```python
import torch

def _softmax(x, axis=-1):
    return torch.softmax(x, dim=axis)
def _gelu(x):
    return torch.nn.functional.gelu(x, approximate="tanh")
def _silu(x):
    return torch.nn.functional.silu(x)
def _sigmoid(x):
    return torch.sigmoid(x)
def _layernorm(x, axis=-1, eps=1e-5):
    m = x.mean(dim=axis, keepdim=True)
    v = x.var(dim=axis, keepdim=True, unbiased=False)
    return (x - m) / torch.sqrt(v + eps)
def _scatter_add(tgt, idx, src, axis=0):
    return tgt.clone().index_add_(axis, idx, src)
def _segment_sum(src, seg, n):
    out = torch.zeros((n,) + src.shape[1:], dtype=src.dtype)
    return out.index_add_(0, seg, src)
def _pad(x, pw):
    flat = tuple(v for pair in reversed(pw) for v in pair)
    return torch.nn.functional.pad(x, flat)

kernel_name = 'standalone__self_sup_conv_stem_hubert__speech'

def setup_inputs():

    _w = (lambda a: (lambda t: t.to(torch.bfloat16) if t.is_floating_point() else t)(torch.as_tensor(a)))
    B, T, D, K = 2, 16000, 256, 15
    scale = (1.0 / (K * D)) ** 0.5
    return {
        "x": _w((lambda *s: torch.randn(*s, dtype=torch.bfloat16) * 0.05)(B, T, D)),
        "w": _w((lambda *s: torch.randn(*s, dtype=torch.bfloat16) * 0.05)(K, D, D) * scale),
        "b": _w((lambda *s: torch.randn(*s, dtype=torch.bfloat16) * 0.05)(D) * 0.1),
        "gamma": _w(torch.ones((D,), dtype=float)),
        "beta": _w(torch.zeros((D,), dtype=float)),
    }

def reference(x, w, b, gamma, beta):
    B, T, D = x.shape
    K = w.shape[0]
    s = 2
    L = (T - K) // s + 1
    y = torch.einsum('blc,cd->bld', x[:, 0 : s * L : s, :], w[0])
    for i in range(1, K):
        y = y + torch.einsum('blc,cd->bld', x[:, i : i + s * L : s, :], w[i])
    y = y + b[None, None, :]
    mu = y.mean(1, keepdims=True)
    var = ((y - mu) ** 2).mean(1, keepdims=True)
    yn = (y - mu) / torch.sqrt(var + 1e-5)
    yn = yn * gamma[None, None, :] + beta[None, None, :]
    return _gelu(yn)
```

```python
import sys
P = dict(rot=1, prio=3, stamps=0, order="w", ldrfirst=0)
for a in sys.argv[1:]:
    k, v = a.split("=")
    P[k] = v if k in ("order",) else int(v)

KN = "standalone__self_sup_conv_stem_hubert__speech_kernel"
XS = 8256
WOFF = 2 * XS
SLOT = WOFF + 32768
MISC = 3 * SLOT
LDS_BYTES = MISC + 1024
X_BYTES = 2 * 16000 * 256 * 2
W_BYTES = 15 * 256 * 256 * 2
GR_BASE = 0
GR_BYTES = 8 * 32 * 1024

L = []
def A(s): L.append("  " + s)
def LBL(s): L.append(s + ":")
def CM(s): L.append("  ; " + s)

sX, sW, sO, sWS, sDBG, sGA, sBE = 4, 8, 12, 16, 20, 24, 28
sWAVE, sT, sNT, sB, sROT = 46, 47, 48, 49, 50
sXO = 51
sWO = 54
sTMP = 55
sCNT = 56
sMASK16 = 57
sTAIL = 58
sD = 60
sXB = 61
sN0, sN1 = 62, 63
sMID = 64
sGR = 66
sK = 68
sM0 = 72
sST = 76

def srd(d, lo, nbytes):
    A(f"s_mov_b32 s{d}, s{lo}")
    A(f"s_and_b32 s{d+1}, s{lo+1}, 0xffff")
    A(f"s_mov_b32 s{d+2}, {nbytes}")
    A(f"s_mov_b32 s{d+3}, 0x20000")

stamp_n = [0]
def stamp():
    if not P["stamps"]: return
    k = stamp_n[0]; stamp_n[0] += 1
    assert sST + 2 * k + 1 < 102
    A(f"s_memrealtime s[{sST+2*k}:{sST+2*k+1}]")

hdr = f"""; conv stem (K=15, stride 2) as a 2-parallel fast-FIR GEMM + per-channel GroupNorm + tanh GELU, one launch.
; @launch grid=(256,1,1) block=(512,1,1) lds={LDS_BYTES}
.amdgcn_target "amdgcn-amd-amdhsa--gfx950"
.text
.globl {KN}
.p2align 8
.type {KN},@function
{KN}:"""
L.append(hdr)
stamp()
A("s_cmp_ge_u32 s2, 256")
A("s_cbranch_scc1 L_end")
A("s_load_dwordx4 s[32:35], s[0:1], 0")
A("s_load_dwordx4 s[36:39], s[0:1], 24")
A("s_load_dwordx4 s[40:43], s[0:1], 40")
A("s_load_dwordx2 s[44:45], s[0:1], 56")
A(f"v_readfirstlane_b32 s{sWAVE}, v0")
A("v_and_b32 v0, 63, v0")
A(f"s_lshr_b32 s{sWAVE}, s{sWAVE}, 6")
A(f"s_and_b32 s{sT}, s2, 7")
A(f"s_lshl_b32 s{sT}, s{sT}, 3")
A(f"s_lshr_b32 s{sTMP}, s2, 5")
A(f"s_add_u32 s{sT}, s{sT}, s{sTMP}")
A(f"s_bfe_u32 s{sNT}, s2, 0x20003")
if P["rot"]: A(f"s_and_b32 s{sROT}, s{sT}, 3")
else: A(f"s_mov_b32 s{sROT}, 0")
A(f"s_lshr_b32 s{sB}, s{sT}, 5")
A(f"s_and_b32 s{sT}, s{sT}, 31")
A(f"s_mul_i32 s{sXB}, s{sB}, {16000*512}")
A(f"s_mul_i32 s{sTMP}, s{sT}, {500*512}")
A(f"s_add_u32 s{sXB}, s{sXB}, s{sTMP}")
A(f"s_mov_b32 s{sMASK16}, 0xffff0000")
A(f"s_lshl_b32 s{sGR}, s{sB}, 2")
A(f"s_add_u32 s{sGR}, s{sGR}, s{sNT}")
A(f"s_lshl_b32 s{sGR}, s{sGR}, 15")
A(f"s_and_b32 s{sTMP}, s{sWAVE}, 3")
A(f"s_lshl_b32 s{sTMP}, s{sTMP}, 8")
A(f"s_add_u32 s{sGR}, s{sGR}, s{sTMP}")
if P["ldrfirst"]:
    A(f"s_cmp_lt_u32 s{sWAVE}, 4")
else:
    A(f"s_cmp_ge_u32 s{sWAVE}, 4")
A(f"s_and_b32 s{sWAVE}, s{sWAVE}, 3")
L.pop()
A("s_cbranch_scc1 L_loader")

G00, G11, GS = 16, 48, 80
SETS = [112, 172]
vXR, vXS, vWR = 1, 4, 7
A(f"s_and_b32 s{sWAVE}, s{sWAVE}, 3")
A("v_and_b32 v10, 15, v0")
A("v_lshrrev_b32 v11, 4, v0")
A("v_xor_b32 v12, v10, v11")
A("v_lshlrev_b32 v12, 4, v12")
A("v_lshl_add_u32 v1, v11, 8, v12")
A("v_add_u32 v12, 1, v10")
A("v_xor_b32 v12, v12, v11")
A("v_lshlrev_b32 v12, 4, v12")
A("v_lshl_add_u32 v4, v11, 8, v12")
A("v_lshlrev_b32 v12, 4, v11")
A("v_add_u32 v12, 0x2000, v12")
A("v_cmp_eq_u32 vcc, 15, v10")
A("v_bfe_u32 v13, v0, 2, 2")
A("v_cndmask_b32 v4, v4, v12, vcc")
A("v_lshl_add_u32 v12, v11, 3, v13")
A("v_lshlrev_b32 v12, 7, v12")
A("v_lshrrev_b32 v13, 1, v13")
A("v_and_b32 v14, 1, v11")
A("v_lshl_or_b32 v13, v14, 1, v13")
A(f"v_xor_b32 v13, s{sWAVE}, v13")
A("v_lshl_add_u32 v12, v13, 5, v12")
A("v_and_b32 v13, 3, v0")
A("v_lshl_add_u32 v12, v13, 3, v12")
A(f"v_add_u32 v7, {WOFF}, v12")
for base in (vXR, vXS, vWR):
    A(f"v_add_u32 v{base+1}, {SLOT}, v{base}")
    A(f"v_add_u32 v{base+2}, {2*SLOT}, v{base}")
for i in range(96):
    A(f"v_mov_b32 v{16+i}, 0")
if P["prio"]: A(f"s_setprio {P['prio']}")
A("s_waitcnt lgkmcnt(0)")
srd(sO, 40, 0)
srd(sWS, 44, GR_BYTES)
A(f"s_mul_i32 s{sTMP}, s{sB}, {7993*512}")
A(f"s_mul_i32 s{sCNT}, s{sT}, {250*512}")
A(f"s_add_u32 s{sTMP}, s{sTMP}, s{sCNT}")
A(f"s_add_u32 s{sO}, s40, s{sTMP}")
A(f"s_addc_u32 s{sO+1}, s41, 0")
A(f"s_and_b32 s{sO+1}, s{sO+1}, 0xffff")
A(f"s_cmp_eq_u32 s{sT}, 31")
A(f"s_mov_b32 s{sO+2}, {243*512}")
A(f"s_cselect_b32 s{sO+2}, s{sO+2}, {250*512}")
A(f"s_mov_b32 s{sMID}, 0x7fff7fff")
A(f"s_cselect_b32 s{sMID}, s{sMID}, -1")
A(f"s_mov_b32 s{sMID+1}, s{sMID}")

def reads(slot, hh, st):
    xb = SETS[st]; wb = xb + 44
    r = []
    def xr(q):
        if q < 8: return f"ds_read_b128 v[{xb+4*q}:{xb+4*q+3}], v{vXR+slot} offset:{hh*XS + q*1024}"
        return f"ds_read_b128 v[{xb+4*q}:{xb+4*q+3}], v{vXS+slot} offset:{hh*XS + (q-8)*1024}"
    def wr(s, h):
        return f"ds_read_b64_tr_b16 v[{wb+4*s+2*h}:{wb+4*s+2*h+1}], v{vWR+slot} offset:{(hh*4+s)*4096 + h*512}"
    r += [wr(0, 0), wr(0, 1)] + [xr(q) for q in range(8)]
    for s in range(1, 4):
        r += [wr(s, 0), wr(s, 1), xr(7 + s)]
    return r

def mfma_list(acc, st, taps):
    xb = SETS[st]; wb = xb + 44
    out = []
    if P["order"] == "w":
        pairs = [(s, j) for s in taps for j in range(8)]
    elif P["order"] == "w2":
        pairs = []
        for s0 in range(0, len(taps), 2):
            ts = taps[s0:s0+2]
            if len(ts) == 2:
                for q in range(ts[0], ts[1] + 8):
                    for s in ts:
                        if 0 <= q - s < 8: pairs.append((s, q - s))
            else:
                pairs += [(ts[0], j) for j in range(8)]
    for s, j in pairs:
        d = f"v[{acc+4*j}:{acc+4*j+3}]"
        out.append(f"v_mfma_f32_16x16x32_bf16 {d}, v[{wb+4*s}:{wb+4*s+3}], v[{xb+4*(j+s)}:{xb+4*(j+s)+3}], {d}")
    return out

def seq(acc, st, rd, barrier, skip_label=None):
    if skip_label:
        m = mfma_list(acc, st, [0, 1, 2]); m2 = mfma_list(acc, st, [3])
    else:
        m = mfma_list(acc, st, [0, 1, 2, 3]); m2 = []
    rd = list(rd)
    for i, ins in enumerate(m):
        A(ins)
        if i == 0 and barrier: A("s_barrier")
        elif i >= 1 and rd: A(rd.pop(0))
    assert not rd
    if skip_label:
        A(f"s_cbranch_scc1 {skip_label}")
        for ins in m2: A(ins)
        LBL(skip_label)
    A("s_waitcnt lgkmcnt(0)")

A("s_barrier")
stamp()
for ins in reads(0, 0, 0): A(ins)
A(f"s_mov_b32 s{sCNT}, 0")
A("s_waitcnt lgkmcnt(0)")
L.append(".p2align 3")
LBL("L_cloop")
seq(G00, 0, reads(0, 1, 1), False)
seq(G00, 1, reads(1, 0, 0), True)
A(f"s_bitcmp1_b32 s{sCNT}, 0")
seq(G11, 0, reads(1, 1, 1), False, "L_skipa")
seq(G11, 1, reads(2, 0, 0), True, "L_skipb")
seq(GS, 0, reads(2, 1, 1), False)
A(f"s_add_u32 s{sCNT}, s{sCNT}, 1")
A(f"s_cmp_lt_u32 s{sCNT}, 8")
seq(GS, 1, reads(0, 0, 0), True)
A("s_cbranch_scc1 L_cloop")
stamp()
CM("---------------- compute epilogue")
if P["prio"]: A("s_setprio 0")
T0 = 232
A(f"v_mov_b32 v10, {MISC}")
A("ds_read_b64 v[238:239], v10")
for i in range(4):
    A(f"v_mov_b32_dpp v{T0+i}, v{G00+i} row_shl:1 row_mask:0xf bank_mask:0xf bound_ctrl:0")
A("s_nop 7")
def pk(op, d, a, b, neg=False, c=None):
    s = f"v_pk_{op}_f32 v[{d}:{d+1}], v[{a}:{a+1}], v[{b}:{b+1}]"
    if c is not None: s += f", v[{c}:{c+1}]"
    if neg: s += " neg_lo:[0,1] neg_hi:[0,1]"
    A(s)
for j in range(8):
    for h in (0, 2):
        pk("add", GS+4*j+h, GS+4*j+h, G11+4*j+h, neg=True)
for j in range(8):
    for h in (0, 2):
        nx = G00+4*(j+1)+h if j < 7 else T0+h
        pk("add", GS+4*j+h, GS+4*j+h, nx, neg=True)
        pk("add", G11+4*j+h, G11+4*j+h, G00+4*j+h)
def yreg(idx): return (G11 if idx % 2 == 0 else GS) + 4 * (idx // 2)
S1, S2 = 16, 20
for h in (0, 2):
    A(f"v_mov_b32 v{S1+h}, v{yreg(0)+h}")
    A(f"v_mov_b32 v{S1+h+1}, v{yreg(0)+h+1}")
    pk("mul", S2+h, yreg(0)+h, yreg(0)+h)
for idx in range(1, 16):
    if idx == 3: A(f"s_mov_b64 exec, s[{sMID}:{sMID+1}]")
    if idx == 10:
        A("s_mov_b32 exec_lo, 0x7fff7fff")
        A("s_mov_b32 exec_hi, 0x7fff7fff")
    for h in (0, 2):
        pk("add", S1+h, S1+h, yreg(idx)+h)
        pk("fma", S2+h, yreg(idx)+h, yreg(idx)+h, c=S2+h)
A("s_mov_b64 exec, -1")
A("s_nop 1")
for sh in (8, 4, 2, 1):
    for i in range(8):
        A(f"v_add_f32_dpp v{16+i}, v{16+i}, v{16+i} row_ror:{sh} row_mask:0xf bank_mask:0xf")
A("v_mov_b32 v236, v16")
A("v_mov_b32 v237, v20")
for i in (1, 2, 3):
    mk = (1 << i) * 0x00010001
    A(f"s_mov_b32 exec_lo, {mk:#x}")
    A(f"s_mov_b32 exec_hi, {mk:#x}")
    A(f"v_mov_b32 v236, v{16+i}")
    A(f"v_mov_b32 v237, v{20+i}")
A("s_mov_b64 exec, -1")
A("v_and_b32 v10, 15, v0")
A("v_lshrrev_b32 v11, 4, v0")
A("v_lshl_add_u32 v12, v11, 2, v10")
A("v_lshlrev_b32 v12, 4, v12")
A(f"s_lshl_b32 s{sTMP}, s{sT}, 10")
A(f"s_add_u32 s{sTMP}, s{sTMP}, s{sGR}")
A("s_mov_b32 exec_lo, 0x000f000f")
A("s_mov_b32 exec_hi, 0x000f000f")
A("s_waitcnt lgkmcnt(0)")
A(f"buffer_store_dwordx4 v[236:239], v12, s[{sWS}:{sWS+3}], s{sTMP} offen sc0 sc1")
A("s_mov_b64 exec, -1")
stamp()
A(f"s_lshl_b32 s{sTMP}, s{sWAVE}, 2")
A(f"v_add_u32 v12, s{sTMP}, v11")
A("v_lshrrev_b32 v13, 1, v12")
A("v_and_b32 v12, 1, v12")
A("v_lshl_or_b32 v12, v12, 3, v13")
A("v_and_b32 v13, 7, v10")
A("v_xor_b32 v12, v12, v13")
A("v_lshlrev_b32 v12, 4, v12")
A("v_lshl_add_u32 v12, v10, 12, v12")
A("v_xor_b32 v13, 0x80, v12")
for idx in range(16):
    j = idx // 2
    A(f"ds_write_b128 v{12 + (j & 1)}, v[{yreg(idx)}:{yreg(idx)+3}] offset:{idx*256}")
A(f"s_add_u32 s{sWAVE}, s{sWAVE}, {0 if P['ldrfirst'] else 0}")
A("s_waitcnt lgkmcnt(0)")
A("s_barrier")
A("s_branch L_final")

LBL("L_loader")
XE, XO_, VV, WT, TT = 16, 52, 88, 104, 136
vXG, vXW, vWG, vWL, vTL = 1, 2, 5, 6, 9
A(f"s_and_b32 s{sWAVE}, s{sWAVE}, 3")
A("v_lshrrev_b32 v10, 3, v0")
A("v_and_b32 v11, 7, v0")
A(f"s_lshl_b32 s{sTMP}, s{sWAVE}, 3")
A(f"v_add_u32 v12, s{sTMP}, v10")
A("v_lshlrev_b32 v13, 13, v12")
A(f"v_lshl_add_u32 v{vXG}, v11, 4, v13")
A("v_bfe_u32 v13, v0, 4, 1")
A(f"s_and_b32 s{sTMP}, s{sWAVE}, 1")
A(f"s_lshl_b32 s{sTMP}, s{sTMP}, 1")
A(f"v_or_b32 v13, s{sTMP}, v13")
A("v_lshlrev_b32 v13, 1, v13")
A("v_xor_b32 v13, v13, v11")
A("v_lshlrev_b32 v13, 4, v13")
A("v_lshl_add_u32 v13, v12, 9, v13")
A(f"s_lshl_b32 s{sTMP}, s{sNT}, 7")
A(f"v_add_u32 v{vWG}, s{sTMP}, v13")
A(f"s_lshl_b32 s{sM0}, s{sWAVE}, 10")
A(f"s_add_u32 s{sM0}, s{sM0}, {WOFF}")
A(f"s_lshl_b32 s{sXO}, s{sROT}, 7")
A(f"s_add_u32 s{sXO}, s{sXO}, s{sXB}")
A(f"s_add_u32 s{sXO+1}, s{sXO}, 4096")
A(f"s_add_u32 s{sXO+2}, s{sXO}, 8192")
A(f"s_lshl_b32 s{sWO}, s{sROT}, 15")
A("s_waitcnt lgkmcnt(0)")
srd(sX, 32, X_BYTES)
srd(sW, 34, W_BYTES)

def dma(slot, taps, hhs=(0, 1)):
    for hh in hhs:
        for s, tap in enumerate(taps):
            A(f"s_add_u32 m0, s{sM0}, {slot*SLOT + (hh*4+s)*4096}")
            A(f"s_add_u32 s{sTMP}, s{sWO}, {tap*131072 + hh*16384}")
            A(f"buffer_load_dwordx4 v{vWG}, s[{sW}:{sW+3}], s{sTMP} offen lds")
def xloads(xs, par, order=range(9)):
    for ip in order:
        i = 2 * ip + par
        A(f"buffer_load_dwordx4 v[{xs+4*ip}:{xs+4*ip+3}], v{vXG}, s[{sX}:{sX+3}], s{sXO + i//8} offen offset:{(i%8)*512}")
TAPS = {("G00", 0): [0, 4, 8, 12], ("G11", 0): [2, 6, 10, 14], ("G00", 1): [1, 5, 9, 13], ("G11", 1): [3, 7, 11]}

dma(0, TAPS[("G00", 0)], (0,))
xloads(XE, 0, [0, 2, 4, 6, 8])
dma(0, TAPS[("G00", 0)], (1,))
xloads(XE, 0, [1, 3, 5, 7])
dma(1, TAPS[("G11", 0)])
xloads(XO_, 1)
A("v_and_b32 v13, 3, v11")
A("v_lshrrev_b32 v14, 2, v11")
A(f"v_mul_u32_u24 v14, {XS}, v14")
A("v_lshl_add_u32 v14, v13, 4, v14")
A(f"v_add_u32 v{vTL}, 0x2000, v14")
A("v_lshrrev_b32 v14, 2, v11")
A(f"v_mul_u32_u24 v14, {XS}, v14")
A("v_lshl_add_u32 v14, v13, 8, v14")
A("v_and_b32 v15, 1, v12")
A("v_lshl_add_u32 v14, v15, 12, v14")
A("v_lshrrev_b32 v15, 1, v12")
A("v_xor_b32 v15, v15, v13")
A(f"v_lshl_add_u32 v{vXW}, v15, 4, v14")
A(f"v_lshlrev_b32 v13, 4, v0")
A(f"v_add_u32 v{vWL}, s{sM0}, v13")
for base in (vXW, vWL):
    A(f"v_add_u32 v{base+1}, {SLOT}, v{base}")
    A(f"v_add_u32 v{base+2}, {2*SLOT}, v{base}")
A(f"s_cmp_eq_u32 s{sWAVE}, 3")
A(f"s_cselect_b32 s{sTAIL+1}, 0xff000000, 0")
A(f"s_mov_b32 s{sTAIL}, 0")
srd(sWS, 44, GR_BYTES)
srd(sDBG, 42, 256)
srd(sGA, 36, 512)
srd(sBE, 38, 512)
A(f"s_mul_i32 s{sTMP}, s{sB}, {7993*512}")
A(f"s_mul_i32 s{sCNT}, s{sT}, {250*512}")
A(f"s_add_u32 s{sTMP}, s{sTMP}, s{sCNT}")
A(f"s_add_u32 s{sO}, s40, s{sTMP}")
A(f"s_addc_u32 s{sO+1}, s41, 0")
A(f"s_and_b32 s{sO+1}, s{sO+1}, 0xffff")
A(f"s_cmp_eq_u32 s{sT}, 31")
A(f"s_mov_b32 s{sO+2}, {243*512}")
A(f"s_cselect_b32 s{sO+2}, s{sO+2}, {250*512}")
A(f"s_mov_b32 s{sO+3}, 0x20000")
A(f"s_or_b32 s{sTMP}, s2, s{sWAVE}")
A(f"s_cmp_lg_u32 s{sTMP}, 0")
A("s_cbranch_scc1 L_nononce")
A(f"s_memrealtime s[{sN0}:{sN1}]")
A("v_mov_b32 v13, 0")
A("s_waitcnt lgkmcnt(0)")
A(f"s_or_b32 s{sN0}, s{sN0}, 1")
A(f"v_mov_b32 v14, s{sN0}")
A(f"v_mov_b32 v15, s{sN1}")
A("s_mov_b64 exec, 1")
A(f"buffer_store_dwordx2 v[14:15], v13, s[{sDBG}:{sDBG+3}], 0 offen sc0 sc1")
A("s_mov_b64 exec, -1")
A("s_waitcnt vmcnt(0)")
LBL("L_nononce")

def write_u(xs, which, slot):
    for e in range(4):
        ip = 2 * e + which
        A(f"ds_write_b128 v{vXW+slot}, v[{xs+4*ip}:{xs+4*ip+3}] offset:{e*1024}")
    if which == 0:
        A(f"s_mov_b64 exec, s[{sTAIL}:{sTAIL+1}]")
        A(f"ds_write_b128 v{vTL}, v[{xs+32}:{xs+35}]")
        A("s_mov_b64 exec, -1")
def addbf(d, a, b, t):
    for i0 in (0, 2):
        for i in (i0, i0 + 1):
            u = t + 4 * (i - i0)
            A(f"v_lshlrev_b32 v{u}, 16, v{a+i}")
            A(f"v_lshlrev_b32 v{u+1}, 16, v{b+i}")
            A(f"v_and_b32 v{u+2}, s{sMASK16}, v{a+i}")
            A(f"v_and_b32 v{u+3}, s{sMASK16}, v{b+i}")
        for i in (i0, i0 + 1):
            u = t + 4 * (i - i0)
            A(f"v_add_f32 v{u}, v{u}, v{u+1}")
            A(f"v_add_f32 v{u+2}, v{u+2}, v{u+3}")
        for i in (i0, i0 + 1):
            u = t + 4 * (i - i0)
            A(f"v_cvt_pk_bf16_f32 v{d+i}, v{u}, v{u+2}")
def compute_v(xs):
    for e in range(4):
        addbf(VV + 4 * e, xs + 4 * (2 * e + 1), xs + 4 * (2 * e + 2), TT)
def write_v():
    for e in range(4):
        A(f"ds_write_b128 v{vXW+2}, v[{VV+4*e}:{VV+4*e+3}] offset:{e*1024}")
def ws_half(par, hh):
    n = len(TAPS[("G11", par)])
    RB = TT + 8
    for s in range(n):
        A(f"ds_read_b128 v[{RB+4*s}:{RB+4*s+3}], v{vWL+1} offset:{(hh*4+s)*4096}")
    for s in range(4):
        a = WT + 16 * hh + 4 * s
        if s < n:
            A(f"s_waitcnt lgkmcnt({n-1-s + s})") if False else None
            A(f"s_waitcnt lgkmcnt({(n-1-s) + s})")
            addbf(a, a, RB + 4 * s, TT)
        A(f"ds_write_b128 v{vWL+2}, v[{a}:{a+3}] offset:{(hh*4+s)*4096}")
def next_x(dadd):
    A(f"s_add_u32 s{sTMP}, s{sD}, {dadd}")
    A(f"s_cmp_lt_u32 s{sTMP}, 4")
    A(f"s_add_u32 s{sTMP}, s{sTMP}, s{sROT}") if False else None
    A(f"s_cselect_b32 s{sCNT}, 0, 0x40000000")
    A(f"s_add_u32 s{sTMP}, s{sTMP}, s{sROT}")
    A(f"s_and_b32 s{sTMP}, s{sTMP}, 3")
    A(f"s_lshl_b32 s{sTMP}, s{sTMP}, 7")
    A(f"s_add_u32 s{sTMP}, s{sTMP}, s{sCNT}")
    A(f"s_add_u32 s{sXO}, s{sTMP}, s{sXB}")
    A(f"s_add_u32 s{sXO+1}, s{sXO}, 4096")
    A(f"s_add_u32 s{sXO+2}, s{sXO}, 8192")

A("s_waitcnt vmcnt(17)")
write_u(XE, 0, 0)
write_u(XE, 1, 1)
compute_v(XE)
A(f"s_mov_b32 s{sD}, 0")
next_x(1)
A("s_waitcnt lgkmcnt(0)")
xloads(XE, 0)
A("s_barrier")
LBL("L_lloop")
for par in (0, 1):
    xs_next = XO_ if par == 0 else XE
    npar = 1 - par
    CM(f"P(3c) par={par}")
    write_v()
    for t in range(8):
        A(f"ds_read_b128 v[{WT+4*t}:{WT+4*t+3}], v{vWL} offset:{t*4096}")
    A("s_waitcnt vmcnt(9) lgkmcnt(0)")
    ws_half(par, 0)
    A("s_waitcnt lgkmcnt(0)")
    A("s_barrier")
    CM(f"P(3c+1) par={par}")
    if par == 1:
        A(f"s_cmp_eq_u32 s{sD}, 3")
        A("s_cbranch_scc1 L_last1")
        A(f"s_add_u32 s{sTMP}, s{sD}, 1")
        A(f"s_add_u32 s{sTMP}, s{sTMP}, s{sROT}")
        A(f"s_and_b32 s{sTMP}, s{sTMP}, 3")
        A(f"s_lshl_b32 s{sWO}, s{sTMP}, 15")
    dma(0, TAPS[("G00", npar)])
    write_u(xs_next, 0, 0)
    if par == 1:
        A("s_branch L_last1b")
        LBL("L_last1")
        CM("last chunk: fetch nonce, gamma, beta instead")
        A("v_mov_b32 v13, 0")
        A("v_and_b32 v14, 15, v0")
        A(f"s_lshl_b32 s{sTMP}, s{sNT}, 2")
        A(f"s_add_u32 s{sTMP}, s{sTMP}, s{sWAVE}")
        A(f"s_lshl_b32 s{sTMP}, s{sTMP}, 5")
        A("v_lshlrev_b32 v14, 1, v14")
        A(f"buffer_load_dwordx2 v[{XE}:{XE+1}], v13, s[{sDBG}:{sDBG+3}], 0 offen sc0 sc1")
        A(f"buffer_load_ushort v{XE+2}, v14, s[{sGA}:{sGA+3}], s{sTMP} offen")
        A(f"buffer_load_ushort v{XE+3}, v14, s[{sBE}:{sBE+3}], s{sTMP} offen")
        LBL("L_last1b")
    ws_half(par, 1)
    A("s_waitcnt lgkmcnt(0)")
    A("s_barrier")
    CM(f"P(3c+2) par={par}")
    if par == 1:
        A(f"s_cmp_eq_u32 s{sD}, 3")
        A("s_cbranch_scc1 L_ldone")
    dma(1, TAPS[("G11", npar)])
    write_u(xs_next, 1, 1)
    compute_v(xs_next)
    next_x(1 if par == 0 else 2)
    A("s_waitcnt lgkmcnt(0)")
    xloads(xs_next, npar)
    A(f"s_waitcnt vmcnt({9 + 2*len(TAPS[('G11', npar)])})")
    if par == 1: A(f"s_add_u32 s{sD}, s{sD}, 1")
    A("s_barrier")
A("s_branch L_lloop")
LBL("L_ldone")
A(f"s_mov_b32 s{sCNT}, 0x40000")
LBL("L_nonce")
A("s_waitcnt vmcnt(0)")
A(f"v_readfirstlane_b32 s{sN0}, v{XE}")
A(f"v_readfirstlane_b32 s{sN1}, v{XE+1}")
A(f"s_sub_u32 s{sCNT}, s{sCNT}, 1")
A("s_cbranch_scc1 L_nonce_ok")
A(f"s_cmp_lg_u32 s{sN0}, 0")
A("s_cbranch_scc1 L_nonce_ok")
A(f"buffer_load_dwordx2 v[{XE}:{XE+1}], v13, s[{sDBG}:{sDBG+3}], 0 offen sc0 sc1")
A("s_branch L_nonce")
LBL("L_nonce_ok")
A(f"v_mov_b32 v13, {MISC}")
A(f"ds_write_b64 v13, v[{XE}:{XE+1}]")
A("v_and_b32 v10, 15, v0")
A("v_lshrrev_b32 v11, 4, v0")
A("v_lshlrev_b32 v12, 4, v10")
A("v_lshl_add_u32 v12, v11, 10, v12")
A(f"v_lshlrev_b32 v{XE+2}, 16, v{XE+2}")
A(f"v_lshlrev_b32 v{XE+3}, 16, v{XE+3}")
A("s_waitcnt lgkmcnt(0)")
A("s_barrier")
A("s_barrier")
stamp_n[0] = 1
stamp()
PG = 32
A(f"s_mov_b32 s{sCNT}, 0x20000")
LBL("L_poll")
for i in range(8):
    so = f"s{sGR}" if i == 0 else f"s{sTMP}"
    if i: A(f"s_add_u32 s{sTMP}, s{sGR}, {i*4096}")
    A(f"buffer_load_dwordx4 v[{PG+4*i}:{PG+4*i+3}], v12, s[{sWS}:{sWS+3}], {so} offen sc0 sc1")
A(f"s_mov_b64 s[{sTAIL}:{sTAIL+1}], -1")
for i in range(8):
    A(f"s_waitcnt vmcnt({7-i})")
    A(f"v_cmp_eq_u64 vcc, s[{sN0}:{sN1}], v[{PG+4*i+2}:{PG+4*i+3}]")
    A(f"s_and_b64 s[{sTAIL}:{sTAIL+1}], s[{sTAIL}:{sTAIL+1}], vcc")
A(f"s_sub_u32 s{sCNT}, s{sCNT}, 1")
A("s_cbranch_scc1 L_poll_ok")
A(f"s_cmp_eq_u64 s[{sTAIL}:{sTAIL+1}], -1")
A("s_cbranch_scc0 L_poll")
LBL("L_poll_ok")
stamp()
for st in (4, 2, 1):
    for i in range(st):
        pk("add", PG+4*i, PG+4*i, PG+4*(i+st))
A(f"v_mov_b32 v{PG+2}, v{PG}")
A(f"v_mov_b32 v{PG+3}, v{PG+1}")
A("s_nop 1")
A(f"v_permlane32_swap_b32 v{PG}, v{PG+2}")
A(f"v_permlane32_swap_b32 v{PG+1}, v{PG+3}")
A("s_nop 1")
pk("add", PG, PG, PG+2)
A(f"v_mov_b32 v{PG+2}, v{PG}")
A(f"v_mov_b32 v{PG+3}, v{PG+1}")
A("s_nop 1")
A(f"v_permlane16_swap_b32 v{PG}, v{PG+2}")
A(f"v_permlane16_swap_b32 v{PG+1}, v{PG+3}")
A("s_nop 1")
pk("add", PG, PG, PG+2)
import struct
def f32(x): return "0x%08x" % struct.unpack("<I", struct.pack("<f", x))[0]
A(f"v_mul_f32 v{PG}, {f32(1.0/7993)}, v{PG}")
A(f"v_mul_f32 v{PG+1}, {f32(1.0/7993)}, v{PG+1}")
A(f"v_fma_f32 v{PG+1}, -v{PG}, v{PG}, v{PG+1}")
A(f"v_max_f32 v{PG+1}, 0, v{PG+1}")
A(f"v_add_f32 v{PG+1}, {f32(1e-5)}, v{PG+1}")
A(f"v_rsq_f32 v{PG+1}, v{PG+1}")
A(f"s_lshl_b32 s{sTMP}, s{sWAVE}, 6")
A(f"s_add_u32 s{sTMP}, s{sTMP}, {MISC+64}")
A(f"v_mul_f32 v{PG+1}, v{PG+1}, v{XE+2}")
A(f"v_lshl_add_u32 v10, v10, 2, s{sTMP}")
A(f"v_fma_f32 v{PG}, -v{PG}, v{PG+1}, v{XE+3}")
A(f"ds_write_b32 v10, v{PG+1}")
A(f"ds_write_b32 v10, v{PG} offset:256")
A(f"s_add_u32 s{sWAVE}, s{sWAVE}, 4")

LBL("L_final")
Y = 64
A("v_lshrrev_b32 v10, 3, v0")
A("v_and_b32 v11, 7, v0")
A(f"s_lshl_b32 s{sTMP}, s{sWAVE}, 5")
A(f"v_add_u32 v10, s{sTMP}, v10")
A("v_bfe_u32 v12, v0, 4, 1")
A("v_lshl_or_b32 v12, v12, 3, v11")
A(f"s_lshl_b32 s{sTMP}, s{sWAVE}, 1")
A(f"s_and_b32 s{sTMP}, s{sTMP}, 7")
A(f"v_xor_b32 v12, s{sTMP}, v12")
A("v_lshlrev_b32 v12, 4, v12")
A("v_lshl_add_u32 v12, v10, 8, v12")
A("v_xor_b32 v13, 0x80, v12")
A("v_xor_b32 v14, 0x10, v12")
A("v_xor_b32 v15, 0x90, v12")
for n in range(4):
    for h in range(2):
        a = 12 + h + 2 * (n >> 1)
        A(f"ds_read_b128 v[{Y+8*n+4*h}:{Y+8*n+4*h+3}], v{a} offset:{n*2048}")
A("v_lshlrev_b32 v10, 9, v10")
A("v_lshl_add_u32 v10, v11, 4, v10")
A(f"s_lshl_b32 s{sTMP}, s{sNT}, 7")
A(f"v_add_u32 v10, s{sTMP}, v10")
A("v_add_u32 v9, 0x2000, v10")
A("v_lshlrev_b32 v11, 5, v11")
A(f"v_add_u32 v11, {MISC+64}, v11")
import math
k0 = -2.0 * math.sqrt(2.0 / math.pi) * math.log2(math.e)
k1 = k0 * 0.044715
A(f"s_mov_b32 s{sK}, {f32(k0)}")
A(f"s_mov_b32 s{sK+1}, {f32(k0)}")
A(f"s_mov_b32 s{sK+2}, {f32(k1)}")
A(f"s_mov_b32 s{sK+3}, {f32(k1)}")
A(f"v_mov_b32 v56, s{sK}")
A(f"v_mov_b32 v57, s{sK}")
A("v_mov_b32 v58, 1.0")
A("v_mov_b32 v59, 1.0")
A("s_waitcnt lgkmcnt(0)")
A("s_barrier")
if P["stamps"]:
    stamp_n[0] = 4; stamp()
CA, CC = 16, 24
A(f"ds_read_b128 v[{CA}:{CA+3}], v11")
A(f"ds_read_b128 v[{CC}:{CC+3}], v11 offset:256")
A(f"ds_read_b128 v[{CA+4}:{CA+7}], v11 offset:16")
A(f"ds_read_b128 v[{CC+4}:{CC+7}], v11 offset:272")
A("s_waitcnt lgkmcnt(0)")
Z, U = 32, 40
for n in range(4):
    y = Y + 8 * n
    for h in range(0, 8, 2): pk("fma", y+h, y+h, CA+h, c=CC+h)
    for h in range(0, 8, 2): pk("mul", U+h, y+h, y+h)
    for h in range(0, 8, 2): A(f"v_pk_fma_f32 v[{U+h}:{U+h+1}], v[{U+h}:{U+h+1}], s[{sK+2}:{sK+3}], v[56:57]")
    for h in range(0, 8, 2): pk("mul", U+h, U+h, y+h)
    for h in range(8): A(f"v_exp_f32 v{U+h}, v{U+h}")
    for h in range(0, 8, 2): pk("add", U+h, U+h, 58)
    for h in range(8): A(f"v_rcp_f32 v{U+h}, v{U+h}")
    for h in range(0, 8, 2): pk("mul", y+h, y+h, U+h)
    o = Z + 4 * (n & 1)
    for h in range(4): A(f"v_cvt_pk_bf16_f32 v{o+h}, v{y+2*h}, v{y+2*h+1}")
    A(f"buffer_store_dwordx4 v[{o}:{o+3}], v{10 if n < 2 else 9}, s[{sO}:{sO+3}], {'0' if n % 2 == 0 else 's'+str(sK+4)} offen" )
if P["stamps"]:
    stamp()
    A("s_waitcnt vmcnt(0)")
    stamp()
    A("s_waitcnt lgkmcnt(0)")
    A(f"s_mov_b32 s{sWS+2}, 0x1000000")
    A(f"s_lshl_b32 s{sTMP}, s2, 3")
    A(f"s_add_u32 s{sTMP}, s{sTMP}, s{sWAVE}")
    A(f"s_lshl_b32 s{sTMP}, s{sTMP}, 5")
    A(f"s_add_u32 s{sTMP}, s{sTMP}, 0x100000")
    A("v_mov_b32 v1, 0")
    for k in range(8): A(f"v_mov_b32 v{2+k}, s{sST+2*min(k,6)}")
    A("s_mov_b64 exec, 1")
    A(f"buffer_store_dwordx4 v[2:5], v1, s[{sWS}:{sWS+3}], s{sTMP} offen")
    A(f"buffer_store_dwordx4 v[6:9], v1, s[{sWS}:{sWS+3}], s{sTMP} offen offset:16")
LBL("L_end")
A("s_endpgm")
L.append(f""".section .rodata,"a"
.p2align 6
.amdhsa_kernel {KN}
  .amdhsa_next_free_vgpr 256
  .amdhsa_next_free_sgpr 102
  .amdhsa_accum_offset 256
  .amdhsa_group_segment_fixed_size 0
  .amdhsa_kernarg_size 64
  .amdhsa_user_sgpr_count 2
  .amdhsa_user_sgpr_kernarg_segment_ptr 1
  .amdhsa_system_sgpr_workgroup_id_x 1
.end_amdhsa_kernel""")
txt = "\n".join(x for x in L if x is not None)
txt = txt.replace(f"  s_mov_b32 s{sK+3}, {f32(k1)}\n", f"  s_mov_b32 s{sK+3}, {f32(k1)}\n  s_mov_b32 s{sK+4}, 4096\n")
print(txt)
```

```python
import sys, struct, math
P = dict(prio=2, lprio=0, stamps=0, novalu=0, nodma=0, nords=0, barslot=1, rd_first=1, rd_last=19, rd_gap=5,
         touch=1, wtouch=1, xoob=0, woob=0, poob=0, pc=0, pflag=0, bst=0, sst=-1, dly0=12, dly2=8, dsmix=0, u0late=1, wsplit=2, dsat3=6, dsprio=3, fine=0, lst=-1, cst=0, pst=0, vsplit=2,
         pro="D0.P.D1:0:5.S.B.D1.A.T1ab.D2:0:5.B.R.F.V04.D2.D3:0:6.B.G.D3.T2ab.W.C.D4.T3ab.B", cpf=1, dsat=0, dsat2=0)
for a in sys.argv[1:]:
    k, v = a.split("=")
    P[k] = v if k in ("pro",) else int(v)

KN = "standalone__self_sup_conv_stem_hubert__speech_kernel"
XSZ = 16384 + 128
WOFF = XSZ
SLOT = WOFF + 32768
SPARE = 3 * SLOT
MISC = SPARE + 8192
LDS_BYTES = MISC + 1024
X_BYTES = 2 * 16000 * 256 * 2
W_BYTES = 15 * 256 * 256 * 2
FL_OFF, WP_OFF, WS_BYTES = 0x40000, 0x80000, 0x180000
SWZ = [0,0,1,1,2,2,4,3,7,4,6,5,2,6,4,7]
SWZ64 = sum(v << (4*i) for i, v in enumerate(SWZ))
OOB = 0x40000000
SPIN = 0x4000
def tile(hh, s): return (hh * 3 + s if s < 3 else 6 + hh) * 4096

SEC = {k: [] for k in ("entry", "lpro", "lloop", "llast", "final", "cpro", "cloop", "cepi")}
cur = ["entry"]
def A(s): SEC[cur[0]].append("  " + s)
def LBL(s): SEC[cur[0]].append(s + ":")
def CM(s): SEC[cur[0]].append("  ; " + s)
def f32(x): return "0x%08x" % struct.unpack("<I", struct.pack("<f", x))[0]

sX, sW, sO, sWS, sDBG, sGA, sBE = 4, 8, 12, 16, 20, 24, 28
sWAVE, sT, sNT, sB = 46, 47, 48, 49
sWN, sXO, sWO, sPO, sTMP, sCNT, sMASK16 = 50, 51, 52, 53, 55, 56, 57
sTA = 58
sD, sXB = 60, 61
sN0, sN1 = 62, 63
sMID = 64
sGR, sFO = 66, 67
sK = 68
sM0, sMX = 73, 74
sSW = 98
sST = 76

def srd(d, lo, nbytes):
    A(f"s_mov_b32 s{d}, s{lo}")
    A(f"s_and_b32 s{d+1}, s{lo+1}, 0xffff")
    A(f"s_mov_b32 s{d+2}, {nbytes}")
    A(f"s_mov_b32 s{d+3}, 0x20000")
def out_srd():
    A(f"s_mul_i32 s{sTMP}, s{sB}, {7993*512}")
    A(f"s_mul_i32 s{sCNT}, s{sT}, {250*512}")
    A(f"s_add_u32 s{sTMP}, s{sTMP}, s{sCNT}")
    A(f"s_add_u32 s{sO}, s40, s{sTMP}")
    A(f"s_addc_u32 s{sO+1}, s41, 0")
    A(f"s_and_b32 s{sO+1}, s{sO+1}, 0xffff")
    A(f"s_cmp_eq_u32 s{sT}, 31")
    A(f"s_mov_b32 s{sO+2}, {243*512}")
    A(f"s_cselect_b32 s{sO+2}, s{sO+2}, {250*512}")
    A(f"s_mov_b32 s{sO+3}, 0x20000")
def granule_off():
    A(f"s_lshl_b32 s{sGR}, s{sB}, 2")
    A(f"s_add_u32 s{sGR}, s{sGR}, s{sNT}")
    A(f"s_lshl_b32 s{sGR}, s{sGR}, 15")
    A(f"s_lshl_b32 s{sTMP}, s{sWAVE}, 8")
    A(f"s_add_u32 s{sGR}, s{sGR}, s{sTMP}")
plain = P["stamps"] and P["lst"] < 0 and not P["cst"] and P["sst"] < 0 and not P["bst"]
def stamp(k, loader=False):
    if not plain: return
    if P["pst"] and k > 0 and cur[0] not in ("cpro", "cloop", "cepi"): return
    A(f"s_memrealtime s[{sST+2*k}:{sST+2*k+1}]")
def lev(k):
    if P["bst"]:
        A("s_memrealtime s[100:101]"); A("s_waitcnt lgkmcnt(0)"); A(f"s_mov_b32 s{76+k}, s100")
def pstamp(k):
    if P["pst"]: A(f"s_memrealtime s[{sST+2*k}:{sST+2*k+1}]")
def swz(dst, rreg, tmp):
    A(f"v_lshlrev_b32 v{dst}, 2, v{rreg}")
    A(f"v_lshrrev_b64 v[{tmp}:{tmp+1}], v{dst}, s[{sSW}:{sSW+1}]")
    A(f"v_and_b32 v{dst}, 7, v{tmp}")
def addbf_list(d, a, b, t, force=False):
    r = []
    if P["novalu"] and not force: return r
    for i0 in (0, 2):
        for i in (i0, i0 + 1):
            u = t + 4 * (i - i0)
            r += [f"v_lshlrev_b32 v{u}, 16, v{a+i}", f"v_lshlrev_b32 v{u+1}, 16, v{b+i}",
                  f"v_and_b32 v{u+2}, s{sMASK16}, v{a+i}", f"v_and_b32 v{u+3}, s{sMASK16}, v{b+i}"]
        for i in (i0, i0 + 1):
            u = t + 4 * (i - i0)
            r += [f"v_add_f32 v{u}, v{u}, v{u+1}", f"v_add_f32 v{u+2}, v{u+2}, v{u+3}"]
        for i in (i0, i0 + 1):
            u = t + 4 * (i - i0)
            r += [f"v_cvt_pk_bf16_f32 v{d+i}, v{u}, v{u+2}"]
    return r
def pk(op, d, a, b, neg=False, c=None):
    s = f"v_pk_{op}_f32 v[{d}:{d+1}], v[{a}:{a+1}], v[{b}:{b+1}]"
    if c is not None: s += f", v[{c}:{c+1}]"
    if neg: s += " neg_lo:[0,1] neg_hi:[0,1]"
    A(s)

stamp(0)
if P["bst"]: A("s_memrealtime s[94:95]")
A("s_load_dwordx4 s[32:35], s[0:1], 0")
A("s_load_dwordx4 s[40:43], s[0:1], 40")
A("s_load_dwordx2 s[44:45], s[0:1], 56")
A("s_load_dwordx4 s[36:39], s[0:1], 24")
A("s_cmp_ge_u32 s2, 256")
A("s_cbranch_scc1 L_end")
A(f"v_readfirstlane_b32 s{sWAVE}, v0")
A("v_and_b32 v0, 63, v0")
A(f"s_and_b32 s{sT}, s2, 7")
A(f"s_lshl_b32 s{sT}, s{sT}, 3")
A(f"s_lshr_b32 s{sTMP}, s2, 5")
A(f"s_add_u32 s{sT}, s{sT}, s{sTMP}")
A(f"s_bfe_u32 s{sNT}, s2, 0x20003")
A(f"s_lshr_b32 s{sB}, s{sT}, 5")
A(f"s_and_b32 s{sT}, s{sT}, 31")
A(f"s_mov_b32 s{sSW}, {SWZ64 & 0xffffffff:#x}")
A(f"s_mov_b32 s{sSW+1}, {SWZ64 >> 32:#x}")
A(f"s_mov_b32 s{sMASK16}, 0xffff0000")
A(f"s_cmp_lt_u32 s{sWAVE}, 256")
A("s_cbranch_scc1 L_compute")

cur[0] = "lpro"
vXG, vWG, vLIN, vLIN2, vU0B, vFL, vZ, vTC = 1, 3, 4, 5, 6, 8, 9, 15
U0, U1, TT, FLG, JUNK, GAM = 16, 32, 48, 56, 66, 68
NON = 64
VV = 80
vPL, vPS, WA, WB = 70, 71, 72, 76
sPF = 54
sTS, sTB, sTD, sTP, sTEa, sTEb = 24, 68, 69, 70, 71, 72
A(f"s_bfe_u32 s{sWAVE}, s{sWAVE}, 0x20006")
A(f"s_mul_i32 s{sXB}, s{sB}, {16000*512}")
A(f"s_mul_i32 s{sTMP}, s{sT}, {500*512}")
A(f"s_add_u32 s{sXB}, s{sXB}, s{sTMP}")
A("v_lshrrev_b32 v10, 3, v0")
A("v_and_b32 v11, 7, v0")
swz(12, 10, 14)
A("v_xor_b32 v12, v12, v11")
A("v_lshlrev_b32 v12, 4, v12")
A(f"v_lshl_add_u32 v{vXG}, v10, 14, v12")
A("v_add_u32 v13, 8, v10")
swz(12, 13, 14)
A("v_xor_b32 v12, v12, v11")
A("v_lshlrev_b32 v12, 4, v12")
A(f"v_lshl_add_u32 v{vXG+1}, v13, 14, v12")
A(f"s_lshl_b32 s{sTMP}, s{sWAVE}, 3")
A(f"v_add_u32 v12, s{sTMP}, v10")
A("v_bfe_u32 v13, v0, 4, 1")
A(f"s_and_b32 s{sTMP}, s{sWAVE}, 1")
A(f"s_lshl_b32 s{sTMP}, s{sTMP}, 1")
A(f"v_or_b32 v13, s{sTMP}, v13")
A("v_lshlrev_b32 v13, 1, v13")
A("v_xor_b32 v13, v13, v11")
A("v_lshlrev_b32 v13, 4, v13")
A("v_lshl_add_u32 v13, v12, 9, v13")
A(f"s_lshl_b32 s{sTMP}, s{sNT}, 7")
A(f"v_add_u32 v{vWG}, s{sTMP}, v13")
A(f"s_lshl_b32 s{sM0}, s{sWAVE}, 10")
A(f"s_add_u32 s{sM0}, s{sM0}, {WOFF}")
A(f"s_lshl_b32 s{sMX}, s{sWAVE}, 12")
A(f"s_add_u32 s{sXO}, s{sXB}, s{sMX}")
A(f"s_mov_b32 s{sWO}, 0")
A(f"s_mov_b32 s{sWN}, 32768")
A(f"s_mov_b32 s{sD}, 0")
A("s_waitcnt lgkmcnt(0)")
pstamp(1)
srd(sX, 32, 0 if P["xoob"] else X_BYTES)
srd(sW, 34, 0 if P["woob"] else W_BYTES)

TAPS = {("G00", 0): [0, 4, 8, 12], ("G11", 0): [2, 6, 10, 14], ("G00", 1): [1, 5, 9, 13], ("G11", 1): [3, 7, 11]}
def dw(lds, so, tap, hh):
    return [f"s_add_u32 m0, s{sM0}, {lds - WOFF}",
            f"s_add_u32 s{sTMP}, s{so}, {tap*131072 + hh*16384}",
            f"buffer_load_dwordx4 v{vWG}, s[{sW}:{sW+3}], s{sTMP} offen lds"]
def dma_w(slot, taps, ss=(0, 1, 2, 3), so=None):
    return [dw(slot*SLOT + WOFF + tile(hh, s), so or sWO, taps[s], hh) for hh in (0, 1) for s in ss if s < len(taps)]
def dma_wp(par, slot, spare0=False):
    r = []
    for hh in (0, 1):
        for s in range(4):
            dst = SPARE if (spare0 and hh == 0 and s == 3) else slot*SLOT + WOFF + tile(hh, s)
            r.append([f"s_add_u32 m0, s{sM0}, {dst - WOFF}",
                      f"s_add_u32 s{sTMP}, s{sPO}, {(0x20000000 if P['poob'] else 0) + WP_OFF + (par*4+s)*131072 + hh*16384}",
                      f"buffer_load_dwordx4 v{vWG}, s[{sWS}:{sWS+3}], s{sTMP} offen sc1 lds"])
    return r
def dma_x(slot, phi):
    return [[f"s_add_u32 m0, s{sMX}, {slot*SLOT + j*1024}",
             f"s_add_u32 s{sTMP}, s{sXO}, {(4*(j >> 1) + phi)*512}",
             f"buffer_load_dwordx4 v{vXG + (j & 1)}, s[{sX}:{sX+3}], s{sTMP} offen lds"] for j in range(4)]
def tail_g(slot, phi):
    return [f"s_mov_b32 m0, {slot*SLOT + 16384}",
            f"s_sub_u32 s{sTMP}, s{sXO}, s{sMX}",
            f"s_add_u32 s{sTMP}, s{sTMP}, {(512 + phi)*512}",
            "s_mov_b64 exec, 0xff",
            f"buffer_load_dwordx4 v{vXG}, s[{sX}:{sX+3}], s{sTMP} offen lds",
            "s_mov_b64 exec, -1"]
tl_n = [0]
def dma_tail1(slot, phi):
    k = tl_n[0]; tl_n[0] += 1
    A(f"s_cmp_lg_u32 s{sWAVE}, 1")
    A(f"s_cbranch_scc1 L_nt{k}")
    for s in tail_g(slot, phi): A(s)
    LBL(f"L_nt{k}")
def touch_g(dd, par, half="ab", const=False):
    r = []
    if const:
        r.append(f"s_mul_i32 s{sTMP}, s{sTD}, {dd}")
        r.append(f"s_add_u32 s{sTMP}, s{sTMP}, s{sTB}")
    else:
        r += [f"s_add_u32 s{sTMP}, s{sD}, {dd}", f"s_cmp_lt_u32 s{sTMP}, 4", f"s_cselect_b32 s{sCNT}, s{sTB}, {OOB}",
              f"s_mul_i32 s{sTMP}, s{sTMP}, s{sTD}", f"s_add_u32 s{sTMP}, s{sTMP}, s{sCNT}"]
    if par: r.append(f"s_add_u32 s{sTMP}, s{sTMP}, s{sTP}")
    r.append("s_mov_b32 exec_hi, 0")
    if half != "ab": r.append(f"s_mov_b32 exec_lo, s{sTEa if half == 'a' else sTEb}")
    r += [f"buffer_load_dword v{JUNK}, v{vTC}, s[{sTS}:{sTS+3}], s{sTMP} offen", "s_mov_b64 exec, -1"]
    return r
def emit_groups(gs):
    if P["nodma"]: return
    for g in gs:
        for s in g: A(s)
def mix(valu, gs):
    if P["nodma"]: gs = []
    n = len(gs)
    if not valu:
        emit_groups(gs); return
    pos = [(k * len(valu)) // n for k in range(n)] if n else []
    gi = 0
    for i, v in enumerate(valu):
        while gi < n and pos[gi] == i:
            for s in gs[gi]: A(s)
            gi += 1
        A(v)
def rd_u0(lin, linoff):
    return [f"ds_read_b128 v[{U0}:{U0+3}], v{lin} offset:{linoff+2048}",
            f"ds_read_b128 v[{U0+4}:{U0+7}], v{lin} offset:{linoff+3072}",
            f"ds_read_b128 v[{U0+8}:{U0+11}], v{vU0B}",
            f"ds_read_b128 v[{U0+12}:{U0+15}], v{vU0B+1}"]
def rd_u1(lin, linoff):
    return [f"ds_read_b128 v[{U1+4*j}:{U1+4*j+3}], v{lin} offset:{linoff + j*1024}" for j in range(4)]
def wr_v(lin, linoff):
    return [f"ds_write_b128 v{lin}, v[{VV+4*j}:{VV+4*j+3}] offset:{linoff + j*1024}" for j in range(4)]
def vadd(js):
    r = []
    for j in js: r += addbf_list(VV+4*j, U1+4*j, U0+4*j, TT)
    return r
def tsetup():
    A(f"s_bitcmp1_b32 s{sWAVE}, 0")
    A("s_cbranch_scc1 L_tw")
    A(f"s_lshr_b32 s{sTMP}, s{sWAVE}, 1")
    A(f"s_lshl_b32 s{sTMP}, s{sTMP}, 5")
    A(f"s_lshl_b32 s{sTB}, s{sNT}, 6")
    A(f"s_add_u32 s{sTMP}, s{sTMP}, s{sTB}")
    A(f"v_add_u32 v12, s{sTMP}, v0")
    A(f"v_lshlrev_b32 v{vTC}, 10, v12")
    A(f"s_mov_b32 s{sTB}, s{sXB}")
    A(f"s_mov_b32 s{sTD}, 128")
    A(f"s_mov_b32 s{sTP}, 512")
    A(f"s_mov_b32 s{sTEa}, 0x55555555")
    A(f"s_mov_b32 s{sTEb}, 0xaaaaaaaa")
    srd(sTS, 32, X_BYTES)
    A("s_branch L_tw2")
    LBL("L_tw")
    A(f"v_lshlrev_b32 v{vTC}, 9, v0")
    A(f"s_lshr_b32 s{sTMP}, s2, 6")
    A(f"s_lshl_b32 s{sTB}, s{sTMP}, 19")
    A(f"s_bfe_u32 s{sTMP}, s2, 0x10005")
    A(f"s_lshl_b32 s{sTMP}, s{sTMP}, 14")
    A(f"s_add_u32 s{sTB}, s{sTB}, s{sTMP}")
    A(f"s_lshr_b32 s{sTMP}, s{sWAVE}, 1")
    A(f"s_lshl_b32 s{sTMP}, s{sTMP}, 18")
    A(f"s_add_u32 s{sTB}, s{sTB}, s{sTMP}")
    A(f"s_lshl_b32 s{sTMP}, s{sNT}, 7")
    A(f"s_add_u32 s{sTB}, s{sTB}, s{sTMP}")
    A(f"s_mov_b32 s{sTD}, 32768")
    A(f"s_mov_b32 s{sTP}, 131072")
    A(f"s_cmp_eq_u32 s{sWAVE}, 1")
    A(f"s_cselect_b32 s{sTEa}, -1, 0")
    A(f"s_cselect_b32 s{sTEb}, 0, -1")
    srd(sTS, 34, W_BYTES if P["wtouch"] else 0)
    LBL("L_tw2")
    A(f"v_lshrrev_b32 v12, 5, v0")
    A(f"s_lshl_b32 s{sTMP}, s{sWAVE}, 1")
    A(f"v_add_u32 v12, s{sTMP}, v12")
    A(f"v_and_b32 v13, 31, v0")
    A(f"v_lshlrev_b32 v13, 4, v13")
    A(f"s_lshl_b32 s{sTMP}, s2, 9")
    A(f"v_add_u32 v13, s{sTMP}, v13")
    A(f"v_lshl_add_u32 v{vPS}, v12, 17, v13")
    A(f"v_and_b32 v12, 3, v12")
    A(f"v_lshl_add_u32 v{vPL}, v12, 19, v13")
def lsetup():
    A("v_lshlrev_b32 v13, 4, v0")
    A(f"v_add_u32 v{vLIN}, s{sMX}, v13")
    A(f"v_add_u32 v{vLIN2}, {2*SLOT}, v{vLIN}")
    A(f"v_add_u32 v{vU0B}, 4096, v{vLIN}")
    A(f"v_add_u32 v{vU0B+1}, {4096+1024}, v{vLIN}")
    A(f"v_mov_b32 v{vFL}, v13")
    A(f"s_cmp_lg_u32 s{sWAVE}, 3")
    A("s_cbranch_scc1 L_nosp")
    for a in (0, 1):
        A(f"v_add_u32 v12, {8*a}, v10")
        swz(13, 12, 16)
        A("v_xor_b32 v13, v13, v11")
        A("v_add_u32 v12, 1, v12")
        swz(14, 12, 16)
        A("v_xor_b32 v13, v13, v14")
        A("v_lshlrev_b32 v13, 4, v13")
        A(f"v_lshl_add_u32 v{vU0B+a}, v12, 7, v13")
    A("v_cmp_eq_u32 vcc, 16, v12")
    A("v_add_u32 v13, 0x4000, v13")
    A("s_nop 0")
    A(f"v_cndmask_b32 v{vU0B+1}, v{vU0B+1}, v13, vcc")
    LBL("L_nosp")
    srd(sWS, 44, WS_BYTES)
    srd(sDBG, 42, 256)
    out_srd()
    granule_off()
    A(f"s_mov_b32 s{sPO}, 0")
    A(f"s_lshl_b32 s{sFO}, s{sWAVE}, 11")
    A(f"s_add_u32 s{sFO}, s{sFO}, {FL_OFF}")
    A(f"v_mov_b32 v{vZ}, 0")
    A(f"s_lshr_b32 s{sPF}, s2, 6")
    A(f"s_lshl_b32 s{sPF}, s{sPF}, 1")
    A(f"s_lshr_b32 s{sTMP}, s{sWAVE}, 1")
    A(f"s_add_u32 s{sPF}, s{sPF}, s{sTMP}")
    A(f"s_lshl_b32 s{sPF}, s{sPF}, 10")
    A(f"s_and_b32 s{sTMP}, s2, 63")
    A(f"s_lshl_b32 s{sTMP}, s{sTMP}, 4")
    A(f"s_add_u32 s{sPF}, s{sPF}, s{sTMP}")
    A(f"s_and_b32 s{sTMP}, s{sWAVE}, 1")
    A(f"s_lshl_b32 s{sTMP}, s{sTMP}, 3")
    A(f"s_add_u32 s{sPF}, s{sPF}, s{sTMP}")
    A(f"s_add_u32 s{sPF}, s{sPF}, {FL_OFF}")
    if P["lprio"]: A(f"s_setprio {P['lprio']}")

def stage_groups(st):
    if st == 0:
        w = dma_w(0, TAPS[("G00", 0)]); x = dma_x(0, 0)
        return x[:2] + w[:4] + x[2:] + [tail_g(0, 0)] + w[4:]
    if st == 1: return dma_x(1, 2) + dma_w(1, TAPS[("G11", 0)])
    if st == 2: return dma_x(2, 1) + [tail_g(2, 1)] + dma_w(2, TAPS[("G00", 1)])
    if st == 3: return dma_x(0, 3) + dma_w(0, TAPS[("G11", 1)]) + dma_w(0, TAPS[("G11", 0)], ss=(3,), so=sWN)
issued = []
period = 0
seen = {0: 0, 1: 0, 2: 0, 3: 0, 4: 0}
tdone = [False]
mixv = []
pendg = []
def flush():
    global mixv, pendg
    mix(mixv, [g for _, g in pendg])
    if not P["nodma"]: issued.extend(k for k, _ in pendg)
    mixv = []; pendg = []
def wait_for(keys, extra=""):
    flush()
    last = max(i for i, k in enumerate(issued) if k in keys)
    A(f"s_waitcnt vmcnt({len(issued) - 1 - last}){extra}")
def check_regs(n, okl):
    A(f"v_cmp_eq_u64 vcc, s[{sN0}:{sN1}], v[{FLG}:{FLG+1}]")
    for i in range(1, 2 * n):
        A(f"v_cmp_eq_u64 s[{sTA}:{sTA+1}], s[{sN0}:{sN1}], v[{FLG+2*i}:{FLG+2*i+1}]")
        A(f"s_and_b64 vcc, vcc, s[{sTA}:{sTA+1}]")
    A("s_cmp_eq_u64 vcc, -1")
    A(f"s_cbranch_scc1 {okl}")
def flag_loads(offs):
    for i, (sr, imm) in enumerate(offs):
        A(f"s_add_u32 s{sTMP}, s{sr}, {imm}" if sr else f"s_mov_b32 s{sTMP}, {imm}")
        A(f"buffer_load_dwordx4 v[{FLG+4*i}:{FLG+4*i+3}], v{vFL}, s[{sWS}:{sWS+3}], s{sTMP} offen sc0 sc1")
def spin_flags(name, offs):
    A(f"s_mov_b32 s{sCNT}, {SPIN}")
    LBL(name)
    flag_loads(offs)
    A("s_waitcnt vmcnt(0)")
    A(f"s_sub_u32 s{sCNT}, s{sCNT}, 1")
    A(f"s_cbranch_scc1 {name}_ok")
    check_regs(len(offs), name + "_ok")
    A(f"s_branch {name}")
    LBL(name + "_ok")
def hi(lst):
    if P["dsprio"]: A(f"s_setprio {P['dsprio']}")
    for d in lst: A(d)
    if P["dsprio"]: A(f"s_setprio {P['lprio']}")
if P["nodma"]: issued.extend([0, 1, 2, 3, 4])
EARLY1 = [dw(SPARE + hh*4096, sWN, TAPS[("G00", 0)][3], hh) for hh in (0, 1)]
for tok in P["pro"].split("."):
    if tok[0] == "D":
        f = tok[1:].split(":"); st = int(f[0]); gs = stage_groups(st) if st < 4 else dma_wp(0, 1) + EARLY1
        lo, hi_ = (int(f[1]), int(f[2])) if len(f) > 1 else (seen[st], len(gs))
        assert lo == seen[st]; seen[st] = min(hi_, len(gs))
        assert st < 3 or period >= st - 1
        pendg += [(st, g) for g in gs[lo:hi_]]
        continue
    if tok[0] == "T":
        if not tdone[0]: flush(); tsetup(); tdone[0] = True
        c = int(tok[1])
        if P["touch"]: pendg.append(("t", touch_g(c >> 1, c & 1, tok[2:], True)))
        continue
    flush()
    if tok[0] == "S":
        pstamp(2)
        if not tdone[0]: tsetup(); tdone[0] = True
        lsetup()
    elif tok[0] == "P":
        if not tdone[0]: tsetup(); tdone[0] = True
        A(f"s_lshr_b32 s{sTMP}, s{sWAVE}, 1")
        A(f"s_lshl_b32 s{sTMP}, s{sTMP}, 17")
        A(f"buffer_load_dwordx4 v[{WA}:{WA+3}], v{vPL}, s[{sW}:{sW+3}], s{sTMP} offen")
        A(f"s_add_u32 s{sTMP}, s{sTMP}, {2*131072}")
        A(f"buffer_load_dwordx4 v[{WB}:{WB+3}], v{vPL}, s[{sW}:{sW+3}], s{sTMP} offen")
        issued.extend(["p", "p"])
    elif tok[0] == "R":
        assert period == 2
        hi(rd_u1(vLIN, SLOT))
    elif tok[0] == "V":
        A("s_waitcnt lgkmcnt(0)")
        mixv = vadd(range(int(tok[1]), int(tok[2])))
    elif tok[0] == "A":
        wait_for(["p"])
        for t in addbf_list(WA, WA, WB, TT, True): A(t)
        A(f"s_mov_b32 s{sTMP}, {WP_OFF}")
        A(f"buffer_store_dwordx4 v[{WA}:{WA+3}], v{vPS}, s[{sWS}:{sWS+3}], s{sTMP} offen sc0 sc1")
        A(f"buffer_load_dwordx2 v[{NON}:{NON+1}], v{vZ}, s[{sDBG}:{sDBG+3}], 0 offen sc0 sc1")
        issued.extend(["s", "n"])
    elif tok[0] == "F":
        wait_for(["s", "n"])
        A(f"s_mov_b32 s{sCNT}, {SPIN}")
        LBL("L_cn")
        A(f"v_readfirstlane_b32 s{sN0}, v{NON}")
        A(f"v_readfirstlane_b32 s{sN1}, v{NON+1}")
        A(f"s_cmp_lg_u32 s{sN0}, 0")
        A("s_cbranch_scc1 L_cn_ok")
        A(f"s_sub_u32 s{sCNT}, s{sCNT}, 1")
        A("s_cbranch_scc1 L_cn_ok")
        A(f"buffer_load_dwordx2 v[{NON}:{NON+1}], v{vZ}, s[{sDBG}:{sDBG+3}], 0 offen sc0 sc1")
        A("s_waitcnt vmcnt(0)")
        A("s_branch L_cn")
        LBL("L_cn_ok")
        A("s_mov_b64 exec, 1")
        A(f"buffer_store_dwordx2 v[{NON}:{NON+1}], v{vZ}, s[{sWS}:{sWS+3}], s{sPF} offen sc0 sc1")
        A("s_mov_b64 exec, -1")
        A(f"v_mov_b32 v12, {MISC}")
        A(f"ds_write_b64 v12, v[{NON}:{NON+1}]")
        issued.append("f")
        pstamp(7)
        lev(1)
    elif tok[0] == "G":
        if P["pc"]:
            A(f"buffer_load_dwordx2 v[{NON}:{NON+1}], v{vZ}, s[{sDBG}:{sDBG+3}], 0 offen sc0 sc1"); issued.append("n")
        flag_loads([(None, FL_OFF)]); issued.append("g")
    elif tok[0] == "C":
        lev(2)
        wait_for(["g"])
        if P["pc"]:
            A(f"s_mov_b32 s{sCNT}, {SPIN}")
            LBL("L_ln")
            A(f"v_readfirstlane_b32 s{sN0}, v{NON}")
            A(f"v_readfirstlane_b32 s{sN1}, v{NON+1}")
            A(f"s_cmp_lg_u32 s{sN0}, 0")
            A("s_cbranch_scc1 L_ln_ok")
            A(f"s_sub_u32 s{sCNT}, s{sCNT}, 1")
            A("s_cbranch_scc1 L_ln_ok")
            A(f"buffer_load_dwordx2 v[{NON}:{NON+1}], v{vZ}, s[{sDBG}:{sDBG+3}], 0 offen sc0 sc1")
            A("s_waitcnt vmcnt(0)")
            A("s_branch L_ln")
            LBL("L_ln_ok")
            A("s_nop 0")
        check_regs(1, "L_spin0_ok")
        spin_flags("L_spin0", [(None, FL_OFF)])
        lev(3)
    elif tok[0] == "W":
        assert period == 3
        hi(wr_v(vLIN, SLOT)[:P["wsplit"]] + rd_u0(vLIN2, 0))
    elif tok[0] == "B":
        assert seen[period] == len(stage_groups(period))
        if period == 0: pstamp(3)
        wait_for([period], " lgkmcnt(0)" if period >= 1 else "")
        if period == 0: pstamp(4)
        if period == 1:
            A(f"v_add_u32 v{vU0B}, {2*SLOT}, v{vU0B}")
            A(f"v_add_u32 v{vU0B+1}, {2*SLOT}, v{vU0B+1}")
        if period == 3:
            assert seen[4] == 10
            A("s_branch L_join")
            break
        A("s_barrier")
        if period < 2: pstamp(5 + period)
        if period == 0: hi(rd_u0(vLIN, 0))
        period += 1
        CM(f"P({period-1})")
n_after_wp = len(issued) - 1 - max(i for i, k in enumerate(issued) if k == 4) + 2

cur[0] = "lloop"
lb_n = [0]
def lbar():
    k = lb_n[0]; lb_n[0] += 1
    if P["lst"] >= 0 and not P["fine"]:
        A(f"s_cmp_lg_u32 s{sD}, {P['lst'] + 1}")
        A(f"s_cbranch_scc1 L_nb{k}")
        A(f"s_memtime s[{76+4*k}:{77+4*k}]")
        A("s_barrier")
        A(f"s_memtime s[{78+4*k}:{79+4*k}]")
        A(f"s_branch L_nc{k}")
        LBL(f"L_nb{k}")
        A("s_barrier")
        LBL(f"L_nc{k}")
    else:
        A("s_barrier")
nt = 1 if P["touch"] else 0
assert P["nodma"] or n_after_wp >= 2 + nt, n_after_wp
fs_n = [0]
def fs(on):
    if P["fine"] and on and fs_n[0] < 12:
        k = fs_n[0]; fs_n[0] += 1
        A(f"s_cmp_lg_u32 s{sD}, {P['lst'] + 1}")
        A(f"s_cbranch_scc1 L_nb{k}")
        A(f"s_memtime s[{76+2*k}:{77+2*k}]")
        LBL(f"L_nb{k}")
LBL("L_lloop")
for par in (1, 0):
    npar = 1 - par
    CM(f"P(3c-1) par={par}: W'(c-1) -> slot1, v(c-1) writes, u0(c) read, early G00(c+1) s3")
    ds = wr_v(vLIN, SLOT)[:P["wsplit"]] + ([] if P["u0late"] else rd_u0(vLIN2, 0))
    late_w = wr_v(vLIN, SLOT)[P["wsplit"]:]
    if par == 1:
        A(f"s_cmp_eq_u32 s{sD}, 3")
        A("s_cbranch_scc1 L_last")
    early = [dw((SPARE if par == 1 else 2*SLOT + WOFF + tile(0, 3)) + hh*4096, sWN if par else sWO, TAPS[("G00", npar)][3], hh) for hh in (0, 1)]
    gs = dma_wp(npar, 1) + early
    k = P["dsat"]
    on = par == 0
    fs(on)
    emit_groups(gs[:k])
    fs(on)
    rest = gs[k:]
    if P["dsprio"]: A(f"s_setprio {P['dsprio']}")
    for i, d in enumerate(ds):
        A(d)
        if i % 2 == 1:
            fs(on)
            if rest and P["dsmix"]: emit_groups([rest.pop(0)])
    if P["dsprio"]: A(f"s_setprio {P['lprio']}")
    fs(on)
    emit_groups(rest)
    fs(on)
    if P["u0late"]:
        for d in rd_u0(vLIN2, 0): A(d)
    if nt: emit_groups([touch_g(1, par)])
    fs(on)
    A(f"s_waitcnt lgkmcnt(0)")
    fs(on)
    A(f"s_waitcnt vmcnt({10 + nt})")
    fs(on)
    fs(on)
    if par == 1: LBL("L_join")
    A(f"s_mov_b32 s{sPO}, s{sWO}")
    if par == 1:
        A(f"s_add_u32 s{sD}, s{sD}, 1")
        A(f"s_mov_b32 s{sWO}, s{sWN}")
        A(f"s_add_u32 s{sWN}, s{sWN}, 32768")
        A(f"s_cmp_eq_u32 s{sD}, 3")
        A(f"s_cselect_b32 s{sWN}, {OOB}, s{sWN}")
        A(f"s_add_u32 s{sXO}, s{sXO}, 128")
    lbar()
    CM(f"P(3c) par={par}: G00(c+1) -> slot2, u1(c) read, v part 1")
    dma_tail1(2, npar)
    gs = dma_x(2, npar) + dma_w(2, TAPS[("G00", npar)], ss=(0, 1, 2))
    k = P["dsat"]
    k = P["dsat2"]
    emit_groups(gs[:k])
    if P["dsprio"]: A(f"s_setprio {P['dsprio']}")
    for d in late_w + rd_u1(vLIN, 0): A(d)
    if P["dsprio"]: A(f"s_setprio {P['lprio']}")
    emit_groups(gs[k:k+1])
    A("s_waitcnt lgkmcnt(0)")
    mix(vadd(range(P["vsplit"])), gs[k+1:])
    A(f"s_waitcnt vmcnt({12 + nt})")
    lbar()
    CM(f"P(3c+1) par={par}: G11(c+1) -> slot0, v part 2")
    gs = dma_x(0, 2 + npar) + dma_w(0, TAPS[("G11", npar)], ss=(0, 1, 2))
    if par == 0: gs += dma_w(0, TAPS[("G11", 0)], ss=(3,), so=sWN)
    if par == 1:
        A(f"s_cmp_lg_u32 s{sD}, 1")
        A("s_cbranch_scc1 L_nf2")
        flag_loads([(sFO, 0), (sFO, 1024)])
        LBL("L_nf2")
    mix(vadd(range(P["vsplit"], 4)), gs)
    A(f"s_waitcnt vmcnt({len(gs)})")
    if par == 1:
        A(f"s_cmp_lg_u32 s{sD}, 1")
        A("s_cbranch_scc1 L_nf3")
        lev(4)
        check_regs(2, "L_spin1_ok")
        spin_flags("L_spin1", [(sFO, 0), (sFO, 1024)])
        lev(5)
        LBL("L_nf3")
    lbar()
A("s_branch L_lloop")
cur[0] = "llast"
LBL("L_last")
CM("P(20): W'(6) -> slot1, v(6) writes, u0(7) read")
hi(wr_v(vLIN, SLOT)[:P["wsplit"]])
emit_groups(dma_wp(0, 1))
for d in rd_u0(vLIN2, 0): A(d)
srd(sGA, 36, 512)
srd(sBE, 38, 512)
A("s_waitcnt vmcnt(8) lgkmcnt(0)")
A("s_barrier")
CM("P(21): W'(7) -> slot2, u1(7) read, v part 1")
gs = dma_wp(1, 2, True)
hi(wr_v(vLIN, SLOT)[P["wsplit"]:] + rd_u1(vLIN, 0))
emit_groups(gs[:1])
A("s_waitcnt lgkmcnt(0)")
mix(vadd(range(3)), gs[1:])
A("v_and_b32 v10, 15, v0")
A(f"s_lshl_b32 s{sTMP}, s{sNT}, 2")
A(f"s_add_u32 s{sTMP}, s{sTMP}, s{sWAVE}")
A(f"s_lshl_b32 s{sTMP}, s{sTMP}, 5")
A("v_lshlrev_b32 v14, 1, v10")
A(f"buffer_load_ushort v{GAM}, v14, s[{sGA}:{sGA+3}], s{sTMP} offen")
A(f"buffer_load_ushort v{GAM+1}, v14, s[{sBE}:{sBE+3}], s{sTMP} offen")
A("s_waitcnt vmcnt(10) lgkmcnt(0)")
A("s_barrier")
CM("P(22)")
wv = wr_v(vLIN2, 0)
for t in vadd(range(3, 4)): A(t)
hi(wv)
A("s_waitcnt vmcnt(2) lgkmcnt(0)")
A("s_barrier")
A("v_lshrrev_b32 v11, 4, v0")
A("v_lshlrev_b32 v12, 4, v10")
A("v_lshl_add_u32 v12, v11, 10, v12")
A("s_waitcnt vmcnt(0)")
A(f"v_lshlrev_b32 v{GAM}, 16, v{GAM}")
A(f"v_lshlrev_b32 v{GAM+1}, 16, v{GAM+1}")
if P["lprio"]: A("s_setprio 0")
A(f"s_add_u32 s{sWAVE}, s{sWAVE}, 4")
A("s_barrier")
def final_addr():
    A("v_lshrrev_b32 v6, 3, v0")
    A("v_and_b32 v8, 7, v0")
    A(f"s_lshl_b32 s{sTMP}, s{sWAVE}, 5")
    A(f"v_add_u32 v6, s{sTMP}, v6")
    A("v_bfe_u32 v2, v0, 4, 1")
    A("v_lshl_or_b32 v2, v2, 3, v8")
    A(f"s_lshl_b32 s{sTMP}, s{sWAVE}, 1")
    A(f"s_and_b32 s{sTMP}, s{sTMP}, 7")
    A(f"v_xor_b32 v2, s{sTMP}, v2")
    A("v_lshlrev_b32 v2, 4, v2")
    A("v_lshl_add_u32 v2, v6, 8, v2")
    A("v_xor_b32 v3, 0x80, v2")
    A("v_xor_b32 v4, 0x10, v2")
    A("v_xor_b32 v5, 0x90, v2")
    A("v_lshlrev_b32 v6, 9, v6")
    A("v_lshl_add_u32 v6, v8, 4, v6")
    A(f"s_lshl_b32 s{sTMP}, s{sNT}, 7")
    A(f"v_add_u32 v6, s{sTMP}, v6")
    A("v_add_u32 v7, 0x2000, v6")
    A("v_lshlrev_b32 v8, 5, v8")
    A(f"v_add_u32 v8, {MISC+64}, v8")
Y = 112
def y_reads():
    for n in range(4):
        for h in range(2):
            A(f"ds_read_b128 v[{Y+8*n+4*h}:{Y+8*n+4*h+3}], v{2 + h + 2*(n >> 1)} offset:{n*2048}")
final_addr()
A("s_barrier")
stamp(1)
PG = 16
A(f"s_mov_b32 s{sCNT}, {SPIN}")
LBL("L_poll")
for i in range(8):
    so = f"s{sGR}" if i == 0 else f"s{sTMP}"
    if i: A(f"s_add_u32 s{sTMP}, s{sGR}, {i*4096}")
    A(f"buffer_load_dwordx4 v[{PG+4*i}:{PG+4*i+3}], v12, s[{sWS}:{sWS+3}], {so} offen sc0 sc1")
y_reads()
A(f"s_mov_b64 s[{sTA}:{sTA+1}], -1")
for i in range(8):
    A(f"s_waitcnt vmcnt({7-i})")
    A(f"v_cmp_eq_u64 vcc, s[{sN0}:{sN1}], v[{PG+4*i+2}:{PG+4*i+3}]")
    A(f"s_and_b64 s[{sTA}:{sTA+1}], s[{sTA}:{sTA+1}], vcc")
A(f"s_sub_u32 s{sCNT}, s{sCNT}, 1")
A("s_cbranch_scc1 L_poll_ok")
A(f"s_cmp_eq_u64 s[{sTA}:{sTA+1}], -1")
A("s_cbranch_scc0 L_poll")
LBL("L_poll_ok")
stamp(2)
for st in (4, 2, 1):
    for i in range(st):
        pk("add", PG+4*i, PG+4*i, PG+4*(i+st))
for sw in ("v_permlane32_swap_b32", "v_permlane16_swap_b32"):
    A(f"v_mov_b32 v{PG+2}, v{PG}")
    A(f"v_mov_b32 v{PG+3}, v{PG+1}")
    A("s_nop 1")
    A(f"{sw} v{PG}, v{PG+2}")
    A(f"{sw} v{PG+1}, v{PG+3}")
    A("s_nop 1")
    pk("add", PG, PG, PG+2)
A(f"v_mul_f32 v{PG}, {f32(1.0/7993)}, v{PG}")
A(f"v_mul_f32 v{PG+1}, {f32(1.0/7993)}, v{PG+1}")
A(f"v_fma_f32 v{PG+1}, -v{PG}, v{PG}, v{PG+1}")
A(f"v_max_f32 v{PG+1}, 0, v{PG+1}")
A(f"v_add_f32 v{PG+1}, {f32(1e-5)}, v{PG+1}")
A(f"v_rsq_f32 v{PG+1}, v{PG+1}")
A(f"s_lshl_b32 s{sTMP}, s{sWAVE}, 6")
A(f"s_add_u32 s{sTMP}, s{sTMP}, {MISC+64-256}")
A(f"v_mul_f32 v{PG+1}, v{PG+1}, v{GAM}")
A(f"v_lshl_add_u32 v10, v10, 2, s{sTMP}")
A(f"v_fma_f32 v{PG}, -v{PG}, v{PG+1}, v{GAM+1}")
A(f"ds_write_b32 v10, v{PG+1}")
A(f"ds_write_b32 v10, v{PG} offset:256")

cur[0] = "final"
LBL("L_final")
k0 = -2.0 * math.sqrt(2.0 / math.pi) * math.log2(math.e)
k1 = k0 * 0.044715
A(f"s_mov_b32 s{sK+2}, {f32(k1)}")
A(f"s_mov_b32 s{sK+3}, {f32(k1)}")
A(f"s_mov_b32 s{sK+4}, 4096")
A(f"v_mov_b32 v56, {f32(k0)}")
A(f"v_mov_b32 v57, {f32(k0)}")
A("s_waitcnt lgkmcnt(0)")
A("s_barrier")
stamp(4)
CA, CC = 16, 24
A(f"ds_read_b128 v[{CA}:{CA+3}], v8")
A(f"ds_read_b128 v[{CC}:{CC+3}], v8 offset:256")
A(f"ds_read_b128 v[{CA+4}:{CA+7}], v8 offset:16")
A(f"ds_read_b128 v[{CC+4}:{CC+7}], v8 offset:272")
A("s_waitcnt lgkmcnt(0)")
Z, U = 32, 40
for n in range(4):
    y = Y + 8 * n
    for h in range(0, 8, 2): pk("fma", y+h, y+h, CA+h, c=CC+h)
    for h in range(0, 8, 2): pk("mul", U+h, y+h, y+h)
    for h in range(0, 8, 2): A(f"v_pk_fma_f32 v[{U+h}:{U+h+1}], v[{U+h}:{U+h+1}], s[{sK+2}:{sK+3}], v[56:57]")
    for h in range(0, 8, 2): pk("mul", U+h, U+h, y+h)
    for h in range(8): A(f"v_exp_f32 v{U+h}, v{U+h}")
    for h in range(0, 8, 2): A(f"v_pk_add_f32 v[{U+h}:{U+h+1}], v[{U+h}:{U+h+1}], 1.0 op_sel_hi:[1,0]")
    for h in range(8): A(f"v_rcp_f32 v{U+h}, v{U+h}")
    for h in range(0, 8, 2): pk("mul", y+h, y+h, U+h)
    o = Z + 4 * (n & 1)
    for h in range(4): A(f"v_cvt_pk_bf16_f32 v{o+h}, v{y+2*h}, v{y+2*h+1}")
    A(f"buffer_store_dwordx4 v[{o}:{o+3}], v{6 if n < 2 else 7}, s[{sO}:{sO+3}], {'0' if n % 2 == 0 else 's'+str(sK+4)} offen")
if P["stamps"]:
    stamp(5)
    A("s_waitcnt vmcnt(0)")
    stamp(6)
    A("s_waitcnt lgkmcnt(0)")
    A(f"s_mov_b32 s{sWS+2}, 0x1000000")
    A(f"s_lshl_b32 s{sTMP}, s2, 3")
    A(f"s_add_u32 s{sTMP}, s{sTMP}, s{sWAVE}")
    A(f"s_lshl_b32 s{sTMP}, s{sTMP}, 5")
    A(f"s_add_u32 s{sTMP}, s{sTMP}, 0x200000")
    A("v_mov_b32 v1, 0")
    if plain and not P["pst"]: A("s_sub_u32 s90, s94, s92")
    if P["bst"]:
        A(f"s_cmp_ge_u32 s{sWAVE}, 4")
        A("s_cselect_b32 s76, s94, s76")
    for k in range(8): A(f"v_mov_b32 v{2+k}, s{sST+(k if P['cst'] or P['bst'] else 2*k)}")
    A("s_mov_b64 exec, 1")
    if P["sst"] >= 0:
        for k in range(12): A(f"v_mov_b32 v{2+k}, v{244+k}")
        A(f"s_add_u32 s{sCNT}, s{sTMP}, 0x100000")
        A(f"buffer_store_dwordx4 v[10:13], v1, s[{sWS}:{sWS+3}], s{sCNT} offen")
    if P["lst"] >= 0 or P["cst"] or P["bst"]:
        for k in range(4): A(f"v_mov_b32 v{10+k}, s{sST+8+k if P['cst'] or P['bst'] else sST+16+2*k}")
        A(f"s_add_u32 s{sCNT}, s{sTMP}, 0x100000")
        A(f"buffer_store_dwordx4 v[10:13], v1, s[{sWS}:{sWS+3}], s{sCNT} offen")
    A(f"buffer_store_dwordx4 v[2:5], v1, s[{sWS}:{sWS+3}], s{sTMP} offen")
    A(f"buffer_store_dwordx4 v[6:9], v1, s[{sWS}:{sWS+3}], s{sTMP} offen offset:16")
LBL("L_end")
A("s_endpgm")

cur[0] = "cpro"
LBL("L_compute")
G00, G11, GS = 16, 48, 80
SETS = [112, 172]
def vXR(slot, hh): return 1 + slot * 5 + hh
def vXS(slot, hh): return 3 + slot * 5 + hh
def vWR(slot): return 5 + slot * 5
T = 232
vW3, vW3C = 240, 241
WA, WB, WT_ = 244, 248, 224
A(f"s_lshr_b32 s{sWAVE}, s{sWAVE}, 6")
A(f"s_memrealtime s[{sN0}:{sN1}]")
A(f"v_mov_b32 v{T+3}, 0")
CWA, CWB = 244, 248
if P["pc"]:
    A(f"v_lshrrev_b32 v{T}, 5, v0")
    A(f"s_lshl_b32 s{sTMP}, s{sWAVE}, 1")
    A(f"v_add_u32 v{T}, s{sTMP}, v{T}")
    A(f"v_and_b32 v{T+1}, 31, v0")
    A(f"v_lshlrev_b32 v{T+1}, 4, v{T+1}")
    A(f"s_lshl_b32 s{sTMP}, s2, 9")
    A(f"v_add_u32 v{T+1}, s{sTMP}, v{T+1}")
    A(f"v_lshl_add_u32 v{T+2}, v{T}, 17, v{T+1}")
    A(f"v_and_b32 v{T}, 3, v{T}")
    A(f"v_lshl_add_u32 v{T+1}, v{T}, 19, v{T+1}")
    A(f"s_lshr_b32 s{sTA}, s{sWAVE}, 1")
    A(f"s_lshl_b32 s{sWO}, s{sTA}, 17")
    A(f"s_add_u32 s{sWN}, s{sWO}, {2*131072}")
if P["cpf"]:
    A("s_getpc_b64 s[74:75]")
    LBL("L_pc")
    A(f"s_lshr_b32 s{sTMP}, s2, 3")
    A(f"s_lshl_b32 s{sTMP}, s{sTMP}, 9")
    A(f"s_add_u32 s74, s74, s{sTMP}")
    A("s_addc_u32 s75, s75, 0")
    A(f"s_sub_u32 s74, s74, L_pc-{KN}")
    A("s_subb_u32 s75, s75, 0")
    A(f"v_lshlrev_b32 v{T+4}, 7, v0")
A("s_waitcnt lgkmcnt(0)")
srd(sDBG, 42, 256)
A(f"s_or_b32 s{sTMP}, s2, s{sWAVE}")
A(f"s_cmp_lg_u32 s{sTMP}, 0")
A("s_cbranch_scc1 L_nononce")
A(f"s_or_b32 s{sN0}, s{sN0}, 1")
A(f"v_mov_b32 v{T+6}, s{sN0}")
A(f"v_mov_b32 v{T+7}, s{sN1}")
A("s_mov_b64 exec, 1")
A(f"buffer_store_dwordx2 v[{T+6}:{T+7}], v{T+3}, s[{sDBG}:{sDBG+3}], 0 offen sc0 sc1")
A("s_mov_b64 exec, -1")
LBL("L_nononce")
if P["pc"]:
    srd(sW, 34, W_BYTES)
    A(f"buffer_load_dwordx4 v[{CWA}:{CWA+3}], v{T+1}, s[{sW}:{sW+3}], s{sWO} offen")
    A(f"buffer_load_dwordx4 v[{CWB}:{CWB+3}], v{T+1}, s[{sW}:{sW+3}], s{sWN} offen")
    A(f"s_lshr_b32 s{sFO}, s2, 6")
    A(f"s_lshl_b32 s{sFO}, s{sFO}, 1")
    A(f"s_add_u32 s{sFO}, s{sFO}, s{sTA}")
    A(f"s_lshl_b32 s{sFO}, s{sFO}, 10")
    A(f"s_and_b32 s{sTMP}, s2, 63")
    A(f"s_lshl_b32 s{sTMP}, s{sTMP}, 4")
    A(f"s_add_u32 s{sFO}, s{sFO}, s{sTMP}")
    A(f"s_and_b32 s{sTMP}, s{sWAVE}, 1")
    A(f"s_lshl_b32 s{sTMP}, s{sTMP}, 3")
    A(f"s_add_u32 s{sFO}, s{sFO}, s{sTMP}")
    A(f"s_add_u32 s{sFO}, s{sFO}, {FL_OFF}")
    A(f"s_mov_b32 s{sPO}, {WP_OFF}")
if P["cpf"]:
    A(f"s_cmp_lg_u32 s{sWAVE}, 0")
    A("s_cbranch_scc1 L_nocpf")
    A("s_mov_b64 exec, 15")
    A(f"global_load_dword v{T+5}, v{T+4}, s[74:75]")
    A("s_mov_b64 exec, -1")
    LBL("L_nocpf")
srd(sWS, 44, WS_BYTES)
out_srd()
A(f"s_mov_b32 s{sMID}, 0x7fff7fff")
A(f"s_cselect_b32 s{sMID}, s{sMID}, -1")
A(f"s_mov_b32 s{sMID+1}, s{sMID}")
granule_off()
A(f"s_lshl_b32 s{sTMP}, s{sT}, 10")
A(f"s_add_u32 s{sGR}, s{sGR}, s{sTMP}")
R, G_, X1, X2 = 120, 121, 122, 124
A(f"v_and_b32 v{R}, 15, v0")
A(f"v_lshrrev_b32 v{G_}, 4, v0")
swz(X1, R, X2)
A(f"v_xor_b32 v{X1}, v{X1}, v{G_}")
A(f"v_lshlrev_b32 v{X1}, 4, v{X1}")
A(f"v_lshl_add_u32 v{vXR(0,0)}, v{R}, 7, v{X1}")
A(f"v_add_u32 v{X1+1}, 1, v{R}")
swz(X1, X1+1, X2)
A(f"v_xor_b32 v{X1}, v{X1}, v{G_}")
A(f"v_lshlrev_b32 v{X1}, 4, v{X1}")
A(f"v_lshl_add_u32 v{vXS(0,0)}, v{X1+1}, 7, v{X1}")
A(f"v_add_u32 v{X1}, 0x4000, v{X1}")
A(f"v_cmp_eq_u32 vcc, 15, v{R}")
A(f"v_bfe_u32 v{X2}, v0, 2, 2")
A(f"v_cndmask_b32 v{vXS(0,0)}, v{vXS(0,0)}, v{X1}, vcc")
A(f"v_xor_b32 v{vXR(0,1)}, 64, v{vXR(0,0)}")
A(f"v_xor_b32 v{vXS(0,1)}, 64, v{vXS(0,0)}")
A(f"v_lshl_add_u32 v{X1}, v{G_}, 3, v{X2}")
A(f"v_lshlrev_b32 v{X1}, 7, v{X1}")
A(f"v_lshrrev_b32 v{X2}, 1, v{X2}")
A(f"v_and_b32 v{X2+1}, 1, v{G_}")
A(f"v_lshl_or_b32 v{X2}, v{X2+1}, 1, v{X2}")
A(f"v_xor_b32 v{X2}, s{sWAVE}, v{X2}")
A(f"v_lshl_add_u32 v{X1}, v{X2}, 5, v{X1}")
A(f"v_and_b32 v{X2}, 3, v0")
A(f"v_lshl_add_u32 v{X1}, v{X2}, 3, v{X1}")
A(f"v_add_u32 v{vWR(0)}, {WOFF}, v{X1}")
A(f"v_add_u32 v{vW3}, {WOFF + tile(0,3)}, v{X1}")
A(f"v_lshlrev_b32 v{vW3C}, 1, v{X1}")
A(f"v_add_u32 v{vW3C}, {2*SLOT + WOFF + tile(0,3) + SPARE}, v{vW3C}")
for k in range(1, 6):
    A(f"v_add_u32 v{k+5}, {SLOT}, v{k}")
    A(f"v_add_u32 v{k+10}, {2*SLOT}, v{k}")
for i in range(0, 96, 2):
    A(f"v_pk_mov_b32 v[{16+i}:{17+i}], 0, 0")
if P["pc"]:
    A("s_waitcnt vmcnt(0)")
    for t in addbf_list(CWA, CWA, CWB, 224, True): A(t)
    A(f"buffer_store_dwordx4 v[{CWA}:{CWA+3}], v{T+2}, s[{sWS}:{sWS+3}], s{sPO} offen sc0 sc1")
    A(f"buffer_load_dwordx2 v[238:239], v{T+3}, s[{sDBG}:{sDBG+3}], 0 offen sc0 sc1")
def c_flag():
    A(f"s_mov_b32 s{sTMP}, {SPIN}")
    LBL("L_cn")
    A("s_waitcnt vmcnt(0)")
    A(f"v_readfirstlane_b32 s{sN0}, v238")
    A(f"s_sub_u32 s{sTMP}, s{sTMP}, 1")
    A("s_cbranch_scc1 L_cn_ok")
    A(f"s_cmp_lg_u32 s{sN0}, 0")
    A("s_cbranch_scc1 L_cn_ok")
    A(f"buffer_load_dwordx2 v[238:239], v{T+3}, s[{sDBG}:{sDBG+3}], 0 offen sc0 sc1")
    A("s_branch L_cn")
    LBL("L_cn_ok")
    A("s_mov_b64 exec, 1")
    A(f"buffer_store_dwordx2 v[238:239], v{T+3}, s[{sWS}:{sWS+3}], s{sFO} offen sc0 sc1")
    A("s_mov_b64 exec, -1")
if P["pc"] and P["pflag"] < 0: c_flag()
if P["prio"]: A(f"s_setprio {P['prio']}")

def reads(role, hh, st):
    xb = SETS[st]; wb = xb + 44
    def xr(q):
        if q < 8: return (("X", q), f"ds_read_b128 v[{xb+4*q}:{xb+4*q+3}], v{vXR(role,hh)} offset:{q*2048}")
        return (("X", q), f"ds_read_b128 v[{xb+4*q}:{xb+4*q+3}], v{vXS(role,hh)} offset:{(q-8)*2048}")
    def wr(s, h):
        if role == 0 and s == 3:
            return (("W", s), f"ds_read_b64_tr_b16 v[{wb+4*s+2*h}:{wb+4*s+2*h+1}], v{vW3} offset:{hh*4096 + h*512}")
        return (("W", s), f"ds_read_b64_tr_b16 v[{wb+4*s+2*h}:{wb+4*s+2*h+1}], v{vWR(role)} offset:{tile(hh, s) + h*512}")
    r = [wr(0, 0), wr(0, 1)] + [xr(q) for q in range(8)]
    for s in range(1, 4):
        r += [wr(s, 0), wr(s, 1), xr(7 + s)]
    return r
def mfma_list(acc, st):
    xb = SETS[st]; wb = xb + 44
    out = []
    for s in range(4):
        for j in range(8):
            d = f"v[{acc+4*j}:{acc+4*j+3}]"
            out.append(([("W", s), ("X", j+s)], f"v_mfma_f32_16x16x32_bf16 {d}, v[{wb+4*s}:{wb+4*s+3}], v[{xb+4*(j+s)}:{xb+4*(j+s)+3}], {d}"))
    return out
pending = []
bs_n = [0]
def bstamp():
    if not P["bst"]: return
    k = bs_n[0]; bs_n[0] += 1
    A("s_cselect_b32 s97, 1, 0")
    A("s_memrealtime s[100:101]")
    A("s_waitcnt lgkmcnt(0)")
    A("s_min_u32 m0, s96, 12")
    A("s_add_u32 s96, s96, 1")
    A("s_movreld_b32 s76, s100")
    A("s_cmp_lg_u32 s97, 0")
ss_n = [0]
def sstamp():
    if P["sst"] < 0 or ss_n[0] >= 12: return
    k = ss_n[0]; ss_n[0] += 1
    A(f"s_memtime s[{76+2*k}:{77+2*k}]")
def seq(acc, st, rd, barrier, skip_label=None, extra=None, delay=0):
    global pending
    nm = 24 if skip_label else 32
    m = mfma_list(acc, st)
    rd = [] if P["nords"] else list(rd)
    first = max(P["barslot"], delay) if barrier else P["rd_first"] - 1
    last = max(min(P["rd_last"] + (first if barrier else 0), nm - P["rd_gap"]), first + len(rd) - 1) if rd else 0
    slots = [first + (k * (last - first)) // max(len(rd) - 1, 1) for k in range(len(rd))]
    cur_ = list(pending); newer = 0
    nxt = []
    for i, (need, ins) in enumerate(m):
        if i == 24 and skip_label:
            A(f"s_cbranch_scc1 {skip_label}")
        if i % 16 == 0:
            need = [k for nd, _ in m[i:i+16] for k in nd]
            if barrier and i == 0: need = [k for nd, _ in m[:P["barslot"]+1] for k in nd]
            idx = max([k for k, key in enumerate(cur_) if key in need], default=-1)
            if idx >= 0:
                n = len(cur_) - 1 - idx + newer
                if n < 15: A(f"s_waitcnt lgkmcnt({n})")
                cur_ = cur_[idx+1:]
        A(ins)
        if barrier and i == P["barslot"]:
            if cur_: A("s_waitcnt lgkmcnt(0)"); cur_ = []
            sstamp()
            A("s_barrier")
            sstamp()
            bstamp()
        while rd and slots[len(nxt)] <= i:
            key, s = rd.pop(0); A(s); nxt.append(key); newer += 1
        if extra and i in extra:
            for s in extra[i]: A(s)
    assert not rd
    if skip_label: LBL(skip_label)
    pending = nxt
    sstamp()
if P["bst"]: A("s_mov_b32 s96, 0")
A("s_barrier")
bstamp()
stamp(1)
if plain: A("s_memtime s[92:93]"); A("s_waitcnt lgkmcnt(0)")
r0 = reads(0, 0, 0)
for _, s in r0: A(s)
pending = [k for k, _ in r0]
A(f"s_mov_b32 s{sCNT}, 0")
A("s_branch L_cloop")

cur[0] = "cloop"
def cstamp(idx=None):
    if not P["cst"]: return
    A("s_memtime s[100:101]")
    A("s_waitcnt lgkmcnt(0)")
    if idx is None:
        A(f"s_mov_b32 m0, s{sCNT}")
        A("s_nop 0")
        A("s_movreld_b32 s76, s100")
    else:
        A(f"s_mov_b32 s{76+idx}, s100")
LBL("L_cloop")
if P["sst"] >= 0:
    A(f"s_cmp_lg_u32 s{sCNT}, {P['sst'] + 1}")
    A("s_cbranch_scc1 L_nss")
    A("s_waitcnt lgkmcnt(0)")
    for k in range(12): A(f"v_mov_b32 v{244+k}, s{76+2*k}")
    LBL("L_nss")
cstamp()
seq(G00, 0, reads(0, 1, 1), False)
def hook(k):
    if P["pc"] and P["pflag"] == k:
        A(f"s_cmp_eq_u32 s{sCNT}, 0")
        A("s_cbranch_scc1 L_hook")
        LBL("L_hookr")
hook(0)
seq(G00, 1, reads(1, 0, 0), True, extra={28: [f"v_sub_u32 v{vW3}, v{vW3C}, v{vW3}"]}, delay=P["dly0"])
hook(1)
A(f"s_bitcmp1_b32 s{sCNT}, 0")
seq(G11, 0, reads(1, 1, 1), False, "L_skipa")
seq(G11, 1, reads(2, 0, 0), True, "L_skipb")
A(f"s_cmp_eq_u32 s{sCNT}, 0")
A("s_cbranch_scc1 L_cfirst")
LBL("L_gs")
seq(GS, 0, reads(2, 1, 1), False)
A(f"s_add_u32 s{sCNT}, s{sCNT}, 1")
A(f"s_cmp_lt_u32 s{sCNT}, 8")
seq(GS, 1, reads(0, 0, 0), True, delay=P["dly2"])
A("s_cbranch_scc1 L_cloop")
A(f"s_cmp_eq_u32 s{sCNT}, 9")
A("s_cbranch_scc1 L_cdone")
cstamp(8)
for k in range(11, 16): A(f"v_mov_b32 v{k}, v{k-10}")
A("s_branch L_gs")
LBL("L_cfirst")
stamp(3)
for k in range(1, 6):
    A(f"v_add_u32 v{k}, {2*SLOT}, v{k}")
    A(f"v_subrev_u32 v{k+5}, {SLOT}, v{k+5}")
    A(f"v_subrev_u32 v{k+10}, {SLOT}, v{k+10}")
A(f"v_add_u32 v{vW3}, {tile(0,3)}, v5")
A(f"s_mov_b32 s{sCNT}, 1")
A("s_branch L_cloop")
if P["pc"] and P["pflag"] >= 0:
    LBL("L_hook")
    c_flag()
    A("s_branch L_hookr")
cur[0] = "cepi"
LBL("L_cdone")
cstamp(9)
stamp(2)
if plain: A("s_memtime s[94:95]")
if P["prio"]: A("s_setprio 0")
if not P["pc"]:
    A(f"v_mov_b32 v10, {MISC}")
    A("ds_read_b64 v[238:239], v10")
for i in range(4):
    A(f"v_mov_b32_dpp v{T+i}, v{G00+i} row_shl:1 row_mask:0xf bank_mask:0xf bound_ctrl:0")
A("s_nop 4")
for j in range(8):
    for h in (0, 2):
        pk("add", GS+4*j+h, GS+4*j+h, G11+4*j+h, neg=True)
for j in range(8):
    for h in (0, 2):
        nx = G00+4*(j+1)+h if j < 7 else T+h
        pk("add", GS+4*j+h, GS+4*j+h, nx, neg=True)
        pk("add", G11+4*j+h, G11+4*j+h, G00+4*j+h)
def yreg(idx): return (G11 if idx % 2 == 0 else GS) + 4 * (idx // 2)
S1, S2 = 16, 20
for h in (0, 2):
    pk("add", S1+h, yreg(0)+h, yreg(1)+h)
    pk("mul", S2+h, yreg(0)+h, yreg(0)+h)
for idx in range(1, 16):
    if idx == 3: A(f"s_mov_b64 exec, s[{sMID}:{sMID+1}]")
    if idx == 10:
        A("s_mov_b32 exec_lo, 0x7fff7fff")
        A("s_mov_b32 exec_hi, 0x7fff7fff")
    for h in (0, 2):
        if idx > 1: pk("add", S1+h, S1+h, yreg(idx)+h)
        pk("fma", S2+h, yreg(idx)+h, yreg(idx)+h, c=S2+h)
A("s_mov_b64 exec, -1")
A("v_and_b32 v10, 15, v0")
A("v_lshrrev_b32 v11, 4, v0")
for sh in (8, 4, 2, 1):
    for i in range(8):
        A(f"v_add_f32_dpp v{16+i}, v{16+i}, v{16+i} row_ror:{sh} row_mask:0xf bank_mask:0xf")
A("v_lshl_add_u32 v12, v11, 2, v10")
A("v_lshlrev_b32 v12, 4, v12")
A("v_mov_b32 v236, v16")
A("v_mov_b32 v237, v20")
for i in (1, 2, 3):
    mk = (1 << i) * 0x00010001
    A(f"s_mov_b32 exec_lo, {mk:#x}")
    A(f"s_mov_b32 exec_hi, {mk:#x}")
    A(f"v_mov_b32 v236, v{16+i}")
    A(f"v_mov_b32 v237, v{20+i}")
A("s_mov_b32 exec_lo, 0x000f000f")
A("s_mov_b32 exec_hi, 0x000f000f")
A("s_waitcnt lgkmcnt(0)")
A(f"buffer_store_dwordx4 v[236:239], v12, s[{sWS}:{sWS+3}], s{sGR} offen sc0 sc1")
A("s_mov_b64 exec, -1")
A(f"s_lshl_b32 s{sTMP}, s{sWAVE}, 2")
A(f"v_add_u32 v12, s{sTMP}, v11")
A("v_lshrrev_b32 v13, 1, v12")
A("v_and_b32 v12, 1, v12")
A("v_lshl_or_b32 v12, v12, 3, v13")
A("v_and_b32 v13, 7, v10")
A("v_xor_b32 v12, v12, v13")
A("v_lshlrev_b32 v12, 4, v12")
A("v_lshl_add_u32 v12, v10, 12, v12")
A("v_xor_b32 v13, 0x80, v12")
for idx in range(16):
    j = idx // 2
    A(f"ds_write_b128 v{12 + (j & 1)}, v[{yreg(idx)}:{yreg(idx)+3}] offset:{idx*256}")
final_addr()
A("s_waitcnt lgkmcnt(0)")
A("s_barrier")
y_reads()
A("s_branch L_final")

out = [f"""; conv stem (K=15, stride 2) as a 2-parallel fast-FIR GEMM + per-channel GroupNorm + tanh GELU, one launch.
; @launch grid=(256,1,1) block=(512,1,1) lds={LDS_BYTES}
.amdgcn_target "amdgcn-amd-amdhsa--gfx950"
.text
.globl {KN}
.p2align 8
.type {KN},@function
{KN}:"""]
for sec in ("entry", "lpro", "cpro", "cloop", "lloop", "cepi", "llast", "final"):
    if sec in ("cloop", "lloop"): out.append(".p2align 6")
    out += SEC[sec]
out.append(f""".p2align 8
.fill 4096, 4, 0xbf810000
.section .rodata,"a"
.p2align 6
.amdhsa_kernel {KN}
  .amdhsa_next_free_vgpr 256
  .amdhsa_next_free_sgpr 102
  .amdhsa_accum_offset 256
  .amdhsa_group_segment_fixed_size 0
  .amdhsa_kernarg_size 64
  .amdhsa_user_sgpr_count 2
  .amdhsa_user_sgpr_kernarg_segment_ptr 1
  .amdhsa_system_sgpr_workgroup_id_x 1
.end_amdhsa_kernel""")
print("\n".join(out))
```

```python
import sys, struct, math
P = dict(prio=2, lprio=0, stamps=0, novalu=0, nodma=0, nords=0, barslot=1, rd_first=1, rd_last=19, rd_gap=5,
         touch=1, wtouch=1, xoob=0, woob=0, poob=0, pc=1, pflag=0, dbgt=0, stf=0, bst=0, sst=-1, dly0=12, dly2=8, dsmix=0, u0late=1, wsplit=2, dsat3=6, dsprio=3, fine=0, lst=-1, cst=0, pst=0, vsplit=2,
         pro="D0.D1:0:7.S.B.D1.D2:0:7.B.R.V04.D2.D3:0:6.B.G.D3.W.C.D4.T2ab.T3ab.B", cpf=1, dsat=0, dsat2=0)
for a in sys.argv[1:]:
    k, v = a.split("=")
    P[k] = v if k in ("pro",) else int(v)

KN = "standalone__self_sup_conv_stem_hubert__speech_kernel"
XSZ = 16384 + 128
WOFF = XSZ
SLOT = WOFF + 32768
SPARE = 3 * SLOT
MISC = SPARE + 8192
LDS_BYTES = MISC + 1024
X_BYTES = 2 * 16000 * 256 * 2
W_BYTES = 15 * 256 * 256 * 2
FL_OFF, WP_OFF, WS_BYTES = 0x40000, 0x80000, 0x180000
SWZ = [0,0,1,1,2,2,4,3,7,4,6,5,2,6,4,7]
SWZ64 = sum(v << (4*i) for i, v in enumerate(SWZ))
OOB = 0x40000000
SPIN = 0x4000
def tile(hh, s): return (hh * 3 + s if s < 3 else 6 + hh) * 4096

SEC = {k: [] for k in ("entry", "lpro", "lloop", "llast", "final", "cpro", "cloop", "cepi")}
cur = ["entry"]
def A(s): SEC[cur[0]].append("  " + s)
def LBL(s): SEC[cur[0]].append(s + ":")
def CM(s): SEC[cur[0]].append("  ; " + s)
def f32(x): return "0x%08x" % struct.unpack("<I", struct.pack("<f", x))[0]

sX, sW, sO, sWS, sDBG, sGA, sBE = 4, 8, 12, 16, 20, 24, 28
sWAVE, sT, sNT, sB = 46, 47, 48, 49
sWN, sXO, sWO, sPO, sTMP, sCNT, sMASK16 = 50, 51, 52, 53, 55, 56, 57
sTA = 58
sD, sXB = 60, 61
sN0, sN1 = 62, 63
sMID = 64
sGR, sFO = 66, 67
sK = 68
sM0, sMX = 73, 74
sSW = 98
sST = 76

def srd(d, lo, nbytes):
    A(f"s_mov_b32 s{d}, s{lo}")
    A(f"s_and_b32 s{d+1}, s{lo+1}, 0xffff")
    A(f"s_mov_b32 s{d+2}, {nbytes}")
    A(f"s_mov_b32 s{d+3}, 0x20000")
def out_srd():
    A(f"s_mul_i32 s{sTMP}, s{sB}, {7993*512}")
    A(f"s_mul_i32 s{sCNT}, s{sT}, {250*512}")
    A(f"s_add_u32 s{sTMP}, s{sTMP}, s{sCNT}")
    A(f"s_add_u32 s{sO}, s40, s{sTMP}")
    A(f"s_addc_u32 s{sO+1}, s41, 0")
    A(f"s_and_b32 s{sO+1}, s{sO+1}, 0xffff")
    A(f"s_cmp_eq_u32 s{sT}, 31")
    A(f"s_mov_b32 s{sO+2}, {243*512}")
    A(f"s_cselect_b32 s{sO+2}, s{sO+2}, {250*512}")
    A(f"s_mov_b32 s{sO+3}, 0x20000")
def granule_off():
    A(f"s_lshl_b32 s{sGR}, s{sB}, 2")
    A(f"s_add_u32 s{sGR}, s{sGR}, s{sNT}")
    A(f"s_lshl_b32 s{sGR}, s{sGR}, 15")
    A(f"s_lshl_b32 s{sTMP}, s{sWAVE}, 8")
    A(f"s_add_u32 s{sGR}, s{sGR}, s{sTMP}")
plain = P["stamps"] and P["lst"] < 0 and not P["cst"] and P["sst"] < 0 and not P["bst"]
def stamp(k, loader=False):
    if not plain: return
    if P["pst"] and k > 0 and cur[0] not in ("cpro", "cloop", "cepi"): return
    A(f"s_memrealtime s[{sST+2*k}:{sST+2*k+1}]")
def lev(k):
    if P["bst"]:
        A("s_memrealtime s[100:101]"); A("s_waitcnt lgkmcnt(0)"); A(f"s_mov_b32 s{76+k}, s100")
def dbg_time(slot, vt, wait_all=False):
    if not P["dbgt"]: return
    if wait_all: A("s_waitcnt vmcnt(0)")
    A("s_memrealtime s[100:101]")
    A("s_waitcnt lgkmcnt(0)")
    A(f"v_mov_b32 v{vt}, s100")
    A(f"v_mov_b32 v{vt+1}, {slot*4}")
    A("s_mov_b64 exec, 1")
    A(f"buffer_atomic_umax v{vt}, v{vt+1}, s[{sDBG}:{sDBG+3}], 0 offen")
    A("s_mov_b64 exec, -1")
def pstamp(k):
    if P["pst"]: A(f"s_memrealtime s[{sST+2*k}:{sST+2*k+1}]")
def swz(dst, rreg, tmp):
    A(f"v_lshlrev_b32 v{dst}, 2, v{rreg}")
    A(f"v_lshrrev_b64 v[{tmp}:{tmp+1}], v{dst}, s[{sSW}:{sSW+1}]")
    A(f"v_and_b32 v{dst}, 7, v{tmp}")
def addbf_list(d, a, b, t, force=False):
    r = []
    if P["novalu"] and not force: return r
    for i0 in (0, 2):
        for i in (i0, i0 + 1):
            u = t + 4 * (i - i0)
            r += [f"v_lshlrev_b32 v{u}, 16, v{a+i}", f"v_lshlrev_b32 v{u+1}, 16, v{b+i}",
                  f"v_and_b32 v{u+2}, s{sMASK16}, v{a+i}", f"v_and_b32 v{u+3}, s{sMASK16}, v{b+i}"]
        for i in (i0, i0 + 1):
            u = t + 4 * (i - i0)
            r += [f"v_add_f32 v{u}, v{u}, v{u+1}", f"v_add_f32 v{u+2}, v{u+2}, v{u+3}"]
        for i in (i0, i0 + 1):
            u = t + 4 * (i - i0)
            r += [f"v_cvt_pk_bf16_f32 v{d+i}, v{u}, v{u+2}"]
    return r
def pk(op, d, a, b, neg=False, c=None):
    s = f"v_pk_{op}_f32 v[{d}:{d+1}], v[{a}:{a+1}], v[{b}:{b+1}]"
    if c is not None: s += f", v[{c}:{c+1}]"
    if neg: s += " neg_lo:[0,1] neg_hi:[0,1]"
    A(s)

stamp(0)
if P["bst"]: A("s_memrealtime s[94:95]")
A("s_load_dwordx4 s[32:35], s[0:1], 0")
A("s_load_dwordx4 s[40:43], s[0:1], 40")
A("s_load_dwordx2 s[44:45], s[0:1], 56")
A("s_load_dwordx4 s[36:39], s[0:1], 24")
A("s_cmp_ge_u32 s2, 256")
A("s_cbranch_scc1 L_end")
A(f"v_readfirstlane_b32 s{sWAVE}, v0")
A("v_and_b32 v0, 63, v0")
A(f"s_and_b32 s{sT}, s2, 7")
A(f"s_lshl_b32 s{sT}, s{sT}, 3")
A(f"s_lshr_b32 s{sTMP}, s2, 5")
A(f"s_add_u32 s{sT}, s{sT}, s{sTMP}")
A(f"s_bfe_u32 s{sNT}, s2, 0x20003")
A(f"s_lshr_b32 s{sB}, s{sT}, 5")
A(f"s_and_b32 s{sT}, s{sT}, 31")
A(f"s_mov_b32 s{sSW}, {SWZ64 & 0xffffffff:#x}")
A(f"s_mov_b32 s{sSW+1}, {SWZ64 >> 32:#x}")
A(f"s_mov_b32 s{sMASK16}, 0xffff0000")
A(f"s_cmp_lt_u32 s{sWAVE}, 256")
A("s_cbranch_scc1 L_compute")

cur[0] = "lpro"
vXG, vWG, vLIN, vLIN2, vU0B, vFL, vZ, vTC = 1, 3, 4, 5, 6, 8, 9, 15
U0, U1, TT, FLG, JUNK, GAM = 16, 32, 48, 56, 66, 68
NON = 64
VV = 80
vPL, vPS, WA, WB = 70, 71, 72, 76
sPF = 54
sTS, sTB, sTD, sTP, sTEa, sTEb = 24, 68, 69, 70, 71, 72
A(f"s_bfe_u32 s{sWAVE}, s{sWAVE}, 0x20006")
A(f"s_mul_i32 s{sXB}, s{sB}, {16000*512}")
A(f"s_mul_i32 s{sTMP}, s{sT}, {500*512}")
A(f"s_add_u32 s{sXB}, s{sXB}, s{sTMP}")
A("v_lshrrev_b32 v10, 3, v0")
A("v_and_b32 v11, 7, v0")
swz(12, 10, 14)
A("v_xor_b32 v12, v12, v11")
A("v_lshlrev_b32 v12, 4, v12")
A(f"v_lshl_add_u32 v{vXG}, v10, 14, v12")
A("v_add_u32 v13, 8, v10")
swz(12, 13, 14)
A("v_xor_b32 v12, v12, v11")
A("v_lshlrev_b32 v12, 4, v12")
A(f"v_lshl_add_u32 v{vXG+1}, v13, 14, v12")
A(f"s_lshl_b32 s{sTMP}, s{sWAVE}, 3")
A(f"v_add_u32 v12, s{sTMP}, v10")
A("v_bfe_u32 v13, v0, 4, 1")
A(f"s_and_b32 s{sTMP}, s{sWAVE}, 1")
A(f"s_lshl_b32 s{sTMP}, s{sTMP}, 1")
A(f"v_or_b32 v13, s{sTMP}, v13")
A("v_lshlrev_b32 v13, 1, v13")
A("v_xor_b32 v13, v13, v11")
A("v_lshlrev_b32 v13, 4, v13")
A("v_lshl_add_u32 v13, v12, 9, v13")
A(f"s_lshl_b32 s{sTMP}, s{sNT}, 7")
A(f"v_add_u32 v{vWG}, s{sTMP}, v13")
A(f"s_lshl_b32 s{sM0}, s{sWAVE}, 10")
A(f"s_add_u32 s{sM0}, s{sM0}, {WOFF}")
A(f"s_lshl_b32 s{sMX}, s{sWAVE}, 12")
A(f"s_add_u32 s{sXO}, s{sXB}, s{sMX}")
A(f"s_mov_b32 s{sWO}, 0")
A(f"s_mov_b32 s{sWN}, 32768")
A(f"s_mov_b32 s{sD}, 0")
A("s_waitcnt lgkmcnt(0)")
pstamp(1)
srd(sX, 32, 0 if P["xoob"] else X_BYTES)
srd(sW, 34, 0 if P["woob"] else W_BYTES)

TAPS = {("G00", 0): [0, 4, 8, 12], ("G11", 0): [2, 6, 10, 14], ("G00", 1): [1, 5, 9, 13], ("G11", 1): [3, 7, 11]}
def dw(lds, so, tap, hh):
    return [f"s_add_u32 m0, s{sM0}, {lds - WOFF}",
            f"s_add_u32 s{sTMP}, s{so}, {tap*131072 + hh*16384}",
            f"buffer_load_dwordx4 v{vWG}, s[{sW}:{sW+3}], s{sTMP} offen lds"]
def dma_w(slot, taps, ss=(0, 1, 2, 3), so=None):
    return [dw(slot*SLOT + WOFF + tile(hh, s), so or sWO, taps[s], hh) for hh in (0, 1) for s in ss if s < len(taps)]
def dma_wp(par, slot, spare0=False):
    r = []
    for hh in (0, 1):
        for s in range(4):
            dst = SPARE if (spare0 and hh == 0 and s == 3) else slot*SLOT + WOFF + tile(hh, s)
            r.append([f"s_add_u32 m0, s{sM0}, {dst - WOFF}",
                      f"s_add_u32 s{sTMP}, s{sPO}, {(0x20000000 if P['poob'] else 0) + WP_OFF + (par*4+s)*131072 + hh*16384}",
                      f"buffer_load_dwordx4 v{vWG}, s[{sWS}:{sWS+3}], s{sTMP} offen sc1 lds"])
    return r
def dma_x(slot, phi):
    return [[f"s_add_u32 m0, s{sMX}, {slot*SLOT + j*1024}",
             f"s_add_u32 s{sTMP}, s{sXO}, {(4*(j >> 1) + phi)*512}",
             f"buffer_load_dwordx4 v{vXG + (j & 1)}, s[{sX}:{sX+3}], s{sTMP} offen lds"] for j in range(4)]
def tail_g(slot, phi):
    return [f"s_mov_b32 m0, {slot*SLOT + 16384}",
            f"s_sub_u32 s{sTMP}, s{sXO}, s{sMX}",
            f"s_add_u32 s{sTMP}, s{sTMP}, {(512 + phi)*512}",
            "s_mov_b64 exec, 0xff",
            f"buffer_load_dwordx4 v{vXG}, s[{sX}:{sX+3}], s{sTMP} offen lds",
            "s_mov_b64 exec, -1"]
tl_n = [0]
def dma_tail1(slot, phi):
    k = tl_n[0]; tl_n[0] += 1
    A(f"s_cmp_lg_u32 s{sWAVE}, 1")
    A(f"s_cbranch_scc1 L_nt{k}")
    for s in tail_g(slot, phi): A(s)
    LBL(f"L_nt{k}")
def touch_g(dd, par, half="ab", const=False):
    r = []
    if const:
        r.append(f"s_mul_i32 s{sTMP}, s{sTD}, {dd}")
        r.append(f"s_add_u32 s{sTMP}, s{sTMP}, s{sTB}")
    else:
        r += [f"s_add_u32 s{sTMP}, s{sD}, {dd}", f"s_cmp_lt_u32 s{sTMP}, 4", f"s_cselect_b32 s{sCNT}, s{sTB}, {OOB}",
              f"s_mul_i32 s{sTMP}, s{sTMP}, s{sTD}", f"s_add_u32 s{sTMP}, s{sTMP}, s{sCNT}"]
    if par: r.append(f"s_add_u32 s{sTMP}, s{sTMP}, s{sTP}")
    r.append("s_mov_b32 exec_hi, 0")
    if half != "ab": r.append(f"s_mov_b32 exec_lo, s{sTEa if half == 'a' else sTEb}")
    r += [f"buffer_load_dword v{JUNK}, v{vTC}, s[{sTS}:{sTS+3}], s{sTMP} offen", "s_mov_b64 exec, -1"]
    return r
def emit_groups(gs):
    if P["nodma"]: return
    for g in gs:
        for s in g: A(s)
def mix(valu, gs):
    if P["nodma"]: gs = []
    n = len(gs)
    if not valu:
        emit_groups(gs); return
    pos = [(k * len(valu)) // n for k in range(n)] if n else []
    gi = 0
    for i, v in enumerate(valu):
        while gi < n and pos[gi] == i:
            for s in gs[gi]: A(s)
            gi += 1
        A(v)
def rd_u0(lin, linoff):
    return [f"ds_read_b128 v[{U0}:{U0+3}], v{lin} offset:{linoff+2048}",
            f"ds_read_b128 v[{U0+4}:{U0+7}], v{lin} offset:{linoff+3072}",
            f"ds_read_b128 v[{U0+8}:{U0+11}], v{vU0B}",
            f"ds_read_b128 v[{U0+12}:{U0+15}], v{vU0B+1}"]
def rd_u1(lin, linoff):
    return [f"ds_read_b128 v[{U1+4*j}:{U1+4*j+3}], v{lin} offset:{linoff + j*1024}" for j in range(4)]
def wr_v(lin, linoff):
    return [f"ds_write_b128 v{lin}, v[{VV+4*j}:{VV+4*j+3}] offset:{linoff + j*1024}" for j in range(4)]
def vadd(js):
    r = []
    for j in js: r += addbf_list(VV+4*j, U1+4*j, U0+4*j, TT)
    return r
def tsetup():
    A(f"s_bitcmp1_b32 s{sWAVE}, 0")
    A("s_cbranch_scc1 L_tw")
    A(f"s_lshr_b32 s{sTMP}, s{sWAVE}, 1")
    A(f"s_lshl_b32 s{sTMP}, s{sTMP}, 5")
    A(f"s_lshl_b32 s{sTB}, s{sNT}, 6")
    A(f"s_add_u32 s{sTMP}, s{sTMP}, s{sTB}")
    A(f"v_add_u32 v12, s{sTMP}, v0")
    A(f"v_lshlrev_b32 v{vTC}, 10, v12")
    A(f"s_mov_b32 s{sTB}, s{sXB}")
    A(f"s_mov_b32 s{sTD}, 128")
    A(f"s_mov_b32 s{sTP}, 512")
    A(f"s_mov_b32 s{sTEa}, 0x55555555")
    A(f"s_mov_b32 s{sTEb}, 0xaaaaaaaa")
    srd(sTS, 32, X_BYTES)
    A("s_branch L_tw2")
    LBL("L_tw")
    A(f"v_lshlrev_b32 v{vTC}, 9, v0")
    A(f"s_lshr_b32 s{sTMP}, s2, 6")
    A(f"s_lshl_b32 s{sTB}, s{sTMP}, 19")
    A(f"s_bfe_u32 s{sTMP}, s2, 0x10005")
    A(f"s_lshl_b32 s{sTMP}, s{sTMP}, 14")
    A(f"s_add_u32 s{sTB}, s{sTB}, s{sTMP}")
    A(f"s_lshr_b32 s{sTMP}, s{sWAVE}, 1")
    A(f"s_lshl_b32 s{sTMP}, s{sTMP}, 18")
    A(f"s_add_u32 s{sTB}, s{sTB}, s{sTMP}")
    A(f"s_lshl_b32 s{sTMP}, s{sNT}, 7")
    A(f"s_add_u32 s{sTB}, s{sTB}, s{sTMP}")
    A(f"s_mov_b32 s{sTD}, 32768")
    A(f"s_mov_b32 s{sTP}, 131072")
    A(f"s_cmp_eq_u32 s{sWAVE}, 1")
    A(f"s_cselect_b32 s{sTEa}, -1, 0")
    A(f"s_cselect_b32 s{sTEb}, 0, -1")
    srd(sTS, 34, W_BYTES if P["wtouch"] else 0)
    LBL("L_tw2")
    A(f"v_lshrrev_b32 v12, 5, v0")
    A(f"s_lshl_b32 s{sTMP}, s{sWAVE}, 1")
    A(f"v_add_u32 v12, s{sTMP}, v12")
    A(f"v_and_b32 v13, 31, v0")
    A(f"v_lshlrev_b32 v13, 4, v13")
    A(f"s_lshl_b32 s{sTMP}, s2, 9")
    A(f"v_add_u32 v13, s{sTMP}, v13")
    A(f"v_lshl_add_u32 v{vPS}, v12, 17, v13")
    A(f"v_and_b32 v12, 3, v12")
    A(f"v_lshl_add_u32 v{vPL}, v12, 19, v13")
def lsetup():
    A("v_lshlrev_b32 v13, 4, v0")
    A(f"v_add_u32 v{vLIN}, s{sMX}, v13")
    A(f"v_add_u32 v{vLIN2}, {2*SLOT}, v{vLIN}")
    A(f"v_add_u32 v{vU0B}, 4096, v{vLIN}")
    A(f"v_add_u32 v{vU0B+1}, {4096+1024}, v{vLIN}")
    A(f"v_mov_b32 v{vFL}, v13")
    A(f"s_cmp_lg_u32 s{sWAVE}, 3")
    A("s_cbranch_scc1 L_nosp")
    for a in (0, 1):
        A(f"v_add_u32 v12, {8*a}, v10")
        swz(13, 12, 16)
        A("v_xor_b32 v13, v13, v11")
        A("v_add_u32 v12, 1, v12")
        swz(14, 12, 16)
        A("v_xor_b32 v13, v13, v14")
        A("v_lshlrev_b32 v13, 4, v13")
        A(f"v_lshl_add_u32 v{vU0B+a}, v12, 7, v13")
    A("v_cmp_eq_u32 vcc, 16, v12")
    A("v_add_u32 v13, 0x4000, v13")
    A("s_nop 0")
    A(f"v_cndmask_b32 v{vU0B+1}, v{vU0B+1}, v13, vcc")
    LBL("L_nosp")
    srd(sWS, 44, WS_BYTES)
    srd(sDBG, 42, 256)
    out_srd()
    granule_off()
    A(f"s_mov_b32 s{sPO}, 0")
    A(f"s_lshl_b32 s{sFO}, s{sWAVE}, 11")
    A(f"s_add_u32 s{sFO}, s{sFO}, {FL_OFF}")
    A(f"v_mov_b32 v{vZ}, 0")
    A(f"s_lshr_b32 s{sPF}, s2, 6")
    A(f"s_lshl_b32 s{sPF}, s{sPF}, 1")
    A(f"s_lshr_b32 s{sTMP}, s{sWAVE}, 1")
    A(f"s_add_u32 s{sPF}, s{sPF}, s{sTMP}")
    A(f"s_lshl_b32 s{sPF}, s{sPF}, 10")
    A(f"s_and_b32 s{sTMP}, s2, 63")
    A(f"s_lshl_b32 s{sTMP}, s{sTMP}, 4")
    A(f"s_add_u32 s{sPF}, s{sPF}, s{sTMP}")
    A(f"s_and_b32 s{sTMP}, s{sWAVE}, 1")
    A(f"s_lshl_b32 s{sTMP}, s{sTMP}, 3")
    A(f"s_add_u32 s{sPF}, s{sPF}, s{sTMP}")
    A(f"s_add_u32 s{sPF}, s{sPF}, {FL_OFF}")
    if P["lprio"]: A(f"s_setprio {P['lprio']}")

def stage_groups(st):
    if st == 0:
        w = dma_w(0, TAPS[("G00", 0)]); x = dma_x(0, 0)
        return x[:2] + w[:4] + x[2:] + [tail_g(0, 0)] + w[4:]
    if st == 1: return dma_x(1, 2) + dma_w(1, TAPS[("G11", 0)])
    if st == 2: return dma_x(2, 1) + [tail_g(2, 1)] + dma_w(2, TAPS[("G00", 1)])
    if st == 3: return dma_x(0, 3) + dma_w(0, TAPS[("G11", 1)]) + dma_w(0, TAPS[("G11", 0)], ss=(3,), so=sWN)
issued = []
period = 0
seen = {0: 0, 1: 0, 2: 0, 3: 0, 4: 0}
tdone = [False]
mixv = []
pendg = []
def flush():
    global mixv, pendg
    mix(mixv, [g for _, g in pendg])
    if not P["nodma"]: issued.extend(k for k, _ in pendg)
    mixv = []; pendg = []
def wait_for(keys, extra=""):
    flush()
    last = max(i for i, k in enumerate(issued) if k in keys)
    A(f"s_waitcnt vmcnt({len(issued) - 1 - last}){extra}")
def check_regs(n, okl):
    A(f"v_cmp_eq_u64 vcc, s[{sN0}:{sN1}], v[{FLG}:{FLG+1}]")
    for i in range(1, 2 * n):
        A(f"v_cmp_eq_u64 s[{sTA}:{sTA+1}], s[{sN0}:{sN1}], v[{FLG+2*i}:{FLG+2*i+1}]")
        A(f"s_and_b64 vcc, vcc, s[{sTA}:{sTA+1}]")
    A("s_cmp_eq_u64 vcc, -1")
    A(f"s_cbranch_scc1 {okl}")
def flag_loads(offs):
    for i, (sr, imm) in enumerate(offs):
        A(f"s_add_u32 s{sTMP}, s{sr}, {imm}" if sr else f"s_mov_b32 s{sTMP}, {imm}")
        A(f"buffer_load_dwordx4 v[{FLG+4*i}:{FLG+4*i+3}], v{vFL}, s[{sWS}:{sWS+3}], s{sTMP} offen sc0 sc1")
def spin_flags(name, offs):
    A(f"s_mov_b32 s{sCNT}, {SPIN}")
    LBL(name)
    flag_loads(offs)
    A("s_waitcnt vmcnt(0)")
    A(f"s_sub_u32 s{sCNT}, s{sCNT}, 1")
    A(f"s_cbranch_scc1 {name}_ok")
    check_regs(len(offs), name + "_ok")
    A(f"s_branch {name}")
    LBL(name + "_ok")
def hi(lst):
    if P["dsprio"]: A(f"s_setprio {P['dsprio']}")
    for d in lst: A(d)
    if P["dsprio"]: A(f"s_setprio {P['lprio']}")
if P["nodma"]: issued.extend([0, 1, 2, 3, 4])
EARLY1 = [dw(SPARE + hh*4096, sWN, TAPS[("G00", 0)][3], hh) for hh in (0, 1)]
for tok in P["pro"].split("."):
    if tok[0] == "D":
        f = tok[1:].split(":"); st = int(f[0]); gs = stage_groups(st) if st < 4 else dma_wp(0, 1) + EARLY1
        lo, hi_ = (int(f[1]), int(f[2])) if len(f) > 1 else (seen[st], len(gs))
        assert lo == seen[st]; seen[st] = min(hi_, len(gs))
        assert st < 3 or period >= st - 1
        pendg += [(st, g) for g in gs[lo:hi_]]
        continue
    if tok[0] == "T":
        if not tdone[0]: flush(); tsetup(); tdone[0] = True
        c = int(tok[1])
        if P["touch"]: pendg.append(("t", touch_g(c >> 1, c & 1, tok[2:], True)))
        continue
    flush()
    if tok[0] == "S":
        pstamp(2)
        if not tdone[0]: tsetup(); tdone[0] = True
        lsetup()
    elif tok[0] == "P":
        if not tdone[0]: tsetup(); tdone[0] = True
        A(f"s_lshr_b32 s{sTMP}, s{sWAVE}, 1")
        A(f"s_lshl_b32 s{sTMP}, s{sTMP}, 17")
        A(f"buffer_load_dwordx4 v[{WA}:{WA+3}], v{vPL}, s[{sW}:{sW+3}], s{sTMP} offen")
        A(f"s_add_u32 s{sTMP}, s{sTMP}, {2*131072}")
        A(f"buffer_load_dwordx4 v[{WB}:{WB+3}], v{vPL}, s[{sW}:{sW+3}], s{sTMP} offen")
        issued.extend(["p", "p"])
    elif tok[0] == "R":
        assert period == 2
        hi(rd_u1(vLIN, SLOT))
    elif tok[0] == "V":
        A("s_waitcnt lgkmcnt(0)")
        mixv = vadd(range(int(tok[1]), int(tok[2])))
    elif tok[0] == "A":
        wait_for(["p"])
        for t in addbf_list(WA, WA, WB, TT, True): A(t)
        A(f"s_mov_b32 s{sTMP}, {WP_OFF}")
        A(f"buffer_store_dwordx4 v[{WA}:{WA+3}], v{vPS}, s[{sWS}:{sWS+3}], s{sTMP} offen sc0 sc1")
        A(f"buffer_load_dwordx2 v[{NON}:{NON+1}], v{vZ}, s[{sDBG}:{sDBG+3}], 0 offen sc0 sc1")
        issued.extend(["s", "n"])
    elif tok[0] == "F":
        wait_for(["s", "n"])
        A(f"s_mov_b32 s{sCNT}, {SPIN}")
        LBL("L_cn")
        A(f"v_readfirstlane_b32 s{sN0}, v{NON}")
        A(f"v_readfirstlane_b32 s{sN1}, v{NON+1}")
        A(f"s_cmp_lg_u32 s{sN0}, 0")
        A("s_cbranch_scc1 L_cn_ok")
        A(f"s_sub_u32 s{sCNT}, s{sCNT}, 1")
        A("s_cbranch_scc1 L_cn_ok")
        A(f"buffer_load_dwordx2 v[{NON}:{NON+1}], v{vZ}, s[{sDBG}:{sDBG+3}], 0 offen sc0 sc1")
        A("s_waitcnt vmcnt(0)")
        A("s_branch L_cn")
        LBL("L_cn_ok")
        A("s_mov_b64 exec, 1")
        A(f"buffer_store_dwordx2 v[{NON}:{NON+1}], v{vZ}, s[{sWS}:{sWS+3}], s{sPF} offen sc0 sc1")
        A("s_mov_b64 exec, -1")
        A(f"v_mov_b32 v12, {MISC}")
        A(f"ds_write_b64 v12, v[{NON}:{NON+1}]")
        issued.append("f")
        pstamp(7)
        lev(1)
    elif tok[0] == "G":
        if P["pc"]:
            A(f"buffer_load_dwordx2 v[{NON}:{NON+1}], v{vZ}, s[{sDBG}:{sDBG+3}], 0 offen sc0 sc1"); issued.append("n")
        flag_loads([(None, FL_OFF)]); issued.append("g")
    elif tok[0] == "C":
        lev(2)
        wait_for(["g"])
        if P["pc"]:
            A(f"s_mov_b32 s{sCNT}, {SPIN}")
            LBL("L_ln")
            A(f"v_readfirstlane_b32 s{sN0}, v{NON}")
            A(f"v_readfirstlane_b32 s{sN1}, v{NON+1}")
            A(f"s_cmp_lg_u32 s{sN0}, 0")
            A("s_cbranch_scc1 L_ln_ok")
            A(f"s_sub_u32 s{sCNT}, s{sCNT}, 1")
            A("s_cbranch_scc1 L_ln_ok")
            A(f"buffer_load_dwordx2 v[{NON}:{NON+1}], v{vZ}, s[{sDBG}:{sDBG+3}], 0 offen sc0 sc1")
            A("s_waitcnt vmcnt(0)")
            A("s_branch L_ln")
            LBL("L_ln_ok")
            A("s_nop 0")
        check_regs(1, "L_spin0_ok")
        spin_flags("L_spin0", [(None, FL_OFF)])
        lev(3)
    elif tok[0] == "W":
        assert period == 3
        hi(wr_v(vLIN, SLOT)[:P["wsplit"]] + rd_u0(vLIN2, 0))
    elif tok[0] == "B":
        assert seen[period] == len(stage_groups(period))
        if period == 0: pstamp(3)
        wait_for([period], " lgkmcnt(0)" if period >= 1 else "")
        if period == 0: pstamp(4)
        if period == 1:
            A(f"v_add_u32 v{vU0B}, {2*SLOT}, v{vU0B}")
            A(f"v_add_u32 v{vU0B+1}, {2*SLOT}, v{vU0B+1}")
        if period == 3:
            assert seen[4] == 10
            A("s_branch L_join")
            break
        A("s_barrier")
        if period < 2: pstamp(5 + period)
        if period == 0: hi(rd_u0(vLIN, 0))
        period += 1
        CM(f"P({period-1})")
n_after_wp = len(issued) - 1 - max(i for i, k in enumerate(issued) if k == 4) + 2

cur[0] = "lloop"
lb_n = [0]
def lbar():
    k = lb_n[0]; lb_n[0] += 1
    if P["lst"] >= 0 and not P["fine"]:
        A(f"s_cmp_lg_u32 s{sD}, {P['lst'] + 1}")
        A(f"s_cbranch_scc1 L_nb{k}")
        A(f"s_memtime s[{76+4*k}:{77+4*k}]")
        A("s_barrier")
        A(f"s_memtime s[{78+4*k}:{79+4*k}]")
        A(f"s_branch L_nc{k}")
        LBL(f"L_nb{k}")
        A("s_barrier")
        LBL(f"L_nc{k}")
    else:
        A("s_barrier")
nt = 1 if P["touch"] else 0
assert P["nodma"] or n_after_wp >= 2 + nt, n_after_wp
fs_n = [0]
def fs(on):
    if P["fine"] and on and fs_n[0] < 12:
        k = fs_n[0]; fs_n[0] += 1
        A(f"s_cmp_lg_u32 s{sD}, {P['lst'] + 1}")
        A(f"s_cbranch_scc1 L_nb{k}")
        A(f"s_memtime s[{76+2*k}:{77+2*k}]")
        LBL(f"L_nb{k}")
LBL("L_lloop")
for par in (1, 0):
    npar = 1 - par
    CM(f"P(3c-1) par={par}: W'(c-1) -> slot1, v(c-1) writes, u0(c) read, early G00(c+1) s3")
    ds = wr_v(vLIN, SLOT)[:P["wsplit"]] + ([] if P["u0late"] else rd_u0(vLIN2, 0))
    late_w = wr_v(vLIN, SLOT)[P["wsplit"]:]
    if par == 1:
        A(f"s_cmp_eq_u32 s{sD}, 3")
        A("s_cbranch_scc1 L_last")
    early = [dw((SPARE if par == 1 else 2*SLOT + WOFF + tile(0, 3)) + hh*4096, sWN if par else sWO, TAPS[("G00", npar)][3], hh) for hh in (0, 1)]
    gs = dma_wp(npar, 1) + early
    k = P["dsat"]
    on = par == 0
    fs(on)
    emit_groups(gs[:k])
    fs(on)
    rest = gs[k:]
    if P["dsprio"]: A(f"s_setprio {P['dsprio']}")
    for i, d in enumerate(ds):
        A(d)
        if i % 2 == 1:
            fs(on)
            if rest and P["dsmix"]: emit_groups([rest.pop(0)])
    if P["dsprio"]: A(f"s_setprio {P['lprio']}")
    fs(on)
    emit_groups(rest)
    fs(on)
    if P["u0late"]:
        for d in rd_u0(vLIN2, 0): A(d)
    if nt: emit_groups([touch_g(1, par)])
    fs(on)
    A(f"s_waitcnt lgkmcnt(0)")
    fs(on)
    A(f"s_waitcnt vmcnt({10 + nt})")
    fs(on)
    fs(on)
    if par == 1: LBL("L_join")
    A(f"s_mov_b32 s{sPO}, s{sWO}")
    if par == 1:
        A(f"s_add_u32 s{sD}, s{sD}, 1")
        A(f"s_mov_b32 s{sWO}, s{sWN}")
        A(f"s_add_u32 s{sWN}, s{sWN}, 32768")
        A(f"s_cmp_eq_u32 s{sD}, 3")
        A(f"s_cselect_b32 s{sWN}, {OOB}, s{sWN}")
        A(f"s_add_u32 s{sXO}, s{sXO}, 128")
    lbar()
    CM(f"P(3c) par={par}: G00(c+1) -> slot2, u1(c) read, v part 1")
    dma_tail1(2, npar)
    gs = dma_x(2, npar) + dma_w(2, TAPS[("G00", npar)], ss=(0, 1, 2))
    k = P["dsat"]
    k = P["dsat2"]
    emit_groups(gs[:k])
    if P["dsprio"]: A(f"s_setprio {P['dsprio']}")
    for d in late_w + rd_u1(vLIN, 0): A(d)
    if P["dsprio"]: A(f"s_setprio {P['lprio']}")
    emit_groups(gs[k:k+1])
    A("s_waitcnt lgkmcnt(0)")
    mix(vadd(range(P["vsplit"])), gs[k+1:])
    A(f"s_waitcnt vmcnt({12 + nt})")
    lbar()
    CM(f"P(3c+1) par={par}: G11(c+1) -> slot0, v part 2")
    gs = dma_x(0, 2 + npar) + dma_w(0, TAPS[("G11", npar)], ss=(0, 1, 2))
    if par == 0: gs += dma_w(0, TAPS[("G11", 0)], ss=(3,), so=sWN)
    if par == 1:
        A(f"s_cmp_lg_u32 s{sD}, 1")
        A("s_cbranch_scc1 L_nf2")
        flag_loads([(sFO, 0), (sFO, 1024)])
        LBL("L_nf2")
    mix(vadd(range(P["vsplit"], 4)), gs)
    A(f"s_waitcnt vmcnt({len(gs)})")
    if par == 1:
        A(f"s_cmp_lg_u32 s{sD}, 1")
        A("s_cbranch_scc1 L_nf3")
        lev(4)
        check_regs(2, "L_spin1_ok")
        spin_flags("L_spin1", [(sFO, 0), (sFO, 1024)])
        lev(5)
        LBL("L_nf3")
    lbar()
A("s_branch L_lloop")
cur[0] = "llast"
LBL("L_last")
CM("P(20): W'(6) -> slot1, v(6) writes, u0(7) read")
hi(wr_v(vLIN, SLOT)[:P["wsplit"]])
emit_groups(dma_wp(0, 1))
for d in rd_u0(vLIN2, 0): A(d)
srd(sGA, 36, 512)
srd(sBE, 38, 512)
A("s_waitcnt vmcnt(8) lgkmcnt(0)")
A("s_barrier")
CM("P(21): W'(7) -> slot2, u1(7) read, v part 1")
gs = dma_wp(1, 2, True)
hi(wr_v(vLIN, SLOT)[P["wsplit"]:] + rd_u1(vLIN, 0))
emit_groups(gs[:1])
A("s_waitcnt lgkmcnt(0)")
mix(vadd(range(3)), gs[1:])
A("v_and_b32 v10, 15, v0")
A(f"s_lshl_b32 s{sTMP}, s{sNT}, 2")
A(f"s_add_u32 s{sTMP}, s{sTMP}, s{sWAVE}")
A(f"s_lshl_b32 s{sTMP}, s{sTMP}, 5")
A("v_lshlrev_b32 v14, 1, v10")
A(f"buffer_load_ushort v{GAM}, v14, s[{sGA}:{sGA+3}], s{sTMP} offen")
A(f"buffer_load_ushort v{GAM+1}, v14, s[{sBE}:{sBE+3}], s{sTMP} offen")
A("s_waitcnt vmcnt(10) lgkmcnt(0)")
A("s_barrier")
CM("P(22)")
wv = wr_v(vLIN2, 0)
for t in vadd(range(3, 4)): A(t)
hi(wv)
A("s_waitcnt vmcnt(2) lgkmcnt(0)")
A("s_barrier")
A("v_lshrrev_b32 v11, 4, v0")
A("v_lshlrev_b32 v12, 4, v10")
A("v_lshl_add_u32 v12, v11, 10, v12")
A("s_waitcnt vmcnt(0)")
A(f"v_lshlrev_b32 v{GAM}, 16, v{GAM}")
A(f"v_lshlrev_b32 v{GAM+1}, 16, v{GAM+1}")
if P["lprio"]: A("s_setprio 0")
A(f"s_add_u32 s{sWAVE}, s{sWAVE}, 4")
A("s_barrier")
def final_addr():
    A("v_lshrrev_b32 v6, 3, v0")
    A("v_and_b32 v8, 7, v0")
    A(f"s_lshl_b32 s{sTMP}, s{sWAVE}, 5")
    A(f"v_add_u32 v6, s{sTMP}, v6")
    A("v_bfe_u32 v2, v0, 4, 1")
    A("v_lshl_or_b32 v2, v2, 3, v8")
    A(f"s_lshl_b32 s{sTMP}, s{sWAVE}, 1")
    A(f"s_and_b32 s{sTMP}, s{sTMP}, 7")
    A(f"v_xor_b32 v2, s{sTMP}, v2")
    A("v_lshlrev_b32 v2, 4, v2")
    A("v_lshl_add_u32 v2, v6, 8, v2")
    A("v_xor_b32 v3, 0x80, v2")
    A("v_xor_b32 v4, 0x10, v2")
    A("v_xor_b32 v5, 0x90, v2")
    A("v_lshlrev_b32 v6, 9, v6")
    A("v_lshl_add_u32 v6, v8, 4, v6")
    A(f"s_lshl_b32 s{sTMP}, s{sNT}, 7")
    A(f"v_add_u32 v6, s{sTMP}, v6")
    A("v_add_u32 v7, 0x2000, v6")
    A("v_lshlrev_b32 v8, 5, v8")
    A(f"v_add_u32 v8, {MISC+64}, v8")
Y = 112
def y_reads():
    for n in range(4):
        for h in range(2):
            A(f"ds_read_b128 v[{Y+8*n+4*h}:{Y+8*n+4*h+3}], v{2 + h + 2*(n >> 1)} offset:{n*2048}")
final_addr()
A("s_barrier")
stamp(1)
PG = 16
A(f"s_mov_b32 s{sCNT}, {SPIN}")
LBL("L_poll")
for i in range(8):
    so = f"s{sGR}" if i == 0 else f"s{sTMP}"
    if i: A(f"s_add_u32 s{sTMP}, s{sGR}, {i*4096}")
    A(f"buffer_load_dwordx4 v[{PG+4*i}:{PG+4*i+3}], v12, s[{sWS}:{sWS+3}], {so} offen sc0 sc1")
y_reads()
A(f"s_mov_b64 s[{sTA}:{sTA+1}], -1")
for i in range(8):
    A(f"s_waitcnt vmcnt({7-i})")
    A(f"v_cmp_eq_u64 vcc, s[{sN0}:{sN1}], v[{PG+4*i+2}:{PG+4*i+3}]")
    A(f"s_and_b64 s[{sTA}:{sTA+1}], s[{sTA}:{sTA+1}], vcc")
A(f"s_sub_u32 s{sCNT}, s{sCNT}, 1")
A("s_cbranch_scc1 L_poll_ok")
A(f"s_cmp_eq_u64 s[{sTA}:{sTA+1}], -1")
A("s_cbranch_scc0 L_poll")
LBL("L_poll_ok")
stamp(2)
for st in (4, 2, 1):
    for i in range(st):
        pk("add", PG+4*i, PG+4*i, PG+4*(i+st))
for sw in ("v_permlane32_swap_b32", "v_permlane16_swap_b32"):
    A(f"v_mov_b32 v{PG+2}, v{PG}")
    A(f"v_mov_b32 v{PG+3}, v{PG+1}")
    A("s_nop 1")
    A(f"{sw} v{PG}, v{PG+2}")
    A(f"{sw} v{PG+1}, v{PG+3}")
    A("s_nop 1")
    pk("add", PG, PG, PG+2)
A(f"v_mul_f32 v{PG}, {f32(1.0/7993)}, v{PG}")
A(f"v_mul_f32 v{PG+1}, {f32(1.0/7993)}, v{PG+1}")
A(f"v_fma_f32 v{PG+1}, -v{PG}, v{PG}, v{PG+1}")
A(f"v_max_f32 v{PG+1}, 0, v{PG+1}")
A(f"v_add_f32 v{PG+1}, {f32(1e-5)}, v{PG+1}")
A(f"v_rsq_f32 v{PG+1}, v{PG+1}")
A(f"s_lshl_b32 s{sTMP}, s{sWAVE}, 6")
A(f"s_add_u32 s{sTMP}, s{sTMP}, {MISC+64-256}")
A(f"v_mul_f32 v{PG+1}, v{PG+1}, v{GAM}")
A(f"v_lshl_add_u32 v10, v10, 2, s{sTMP}")
A(f"v_fma_f32 v{PG}, -v{PG}, v{PG+1}, v{GAM+1}")
A(f"ds_write_b32 v10, v{PG+1}")
A(f"ds_write_b32 v10, v{PG} offset:256")

cur[0] = "final"
LBL("L_final")
k0 = -2.0 * math.sqrt(2.0 / math.pi) * math.log2(math.e)
k1 = k0 * 0.044715
A(f"s_mov_b32 s{sK+2}, {f32(k1)}")
A(f"s_mov_b32 s{sK+3}, {f32(k1)}")
A(f"s_mov_b32 s{sK+4}, 4096")
A(f"v_mov_b32 v56, {f32(k0)}")
A(f"v_mov_b32 v57, {f32(k0)}")
A("s_waitcnt lgkmcnt(0)")
A("s_barrier")
dbg_time(5, 252)
stamp(4)
CA, CC = 16, 24
A(f"ds_read_b128 v[{CA}:{CA+3}], v8")
A(f"ds_read_b128 v[{CC}:{CC+3}], v8 offset:256")
A(f"ds_read_b128 v[{CA+4}:{CA+7}], v8 offset:16")
A(f"ds_read_b128 v[{CC+4}:{CC+7}], v8 offset:272")
A("s_waitcnt lgkmcnt(0)")
Z, U = 32, 40
for n in range(4):
    y = Y + 8 * n
    for h in range(0, 8, 2): pk("fma", y+h, y+h, CA+h, c=CC+h)
    for h in range(0, 8, 2): pk("mul", U+h, y+h, y+h)
    for h in range(0, 8, 2): A(f"v_pk_fma_f32 v[{U+h}:{U+h+1}], v[{U+h}:{U+h+1}], s[{sK+2}:{sK+3}], v[56:57]")
    for h in range(0, 8, 2): pk("mul", U+h, U+h, y+h)
    for h in range(8): A(f"v_exp_f32 v{U+h}, v{U+h}")
    for h in range(0, 8, 2): A(f"v_pk_add_f32 v[{U+h}:{U+h+1}], v[{U+h}:{U+h+1}], 1.0 op_sel_hi:[1,0]")
    for h in range(8): A(f"v_rcp_f32 v{U+h}, v{U+h}")
    for h in range(0, 8, 2): pk("mul", y+h, y+h, U+h)
    o = Z + 4 * (n & 1)
    for h in range(4): A(f"v_cvt_pk_bf16_f32 v{o+h}, v{y+2*h}, v{y+2*h+1}")
    A(f"buffer_store_dwordx4 v[{o}:{o+3}], v{6 if n < 2 else 7}, s[{sO}:{sO+3}], {'0' if n % 2 == 0 else 's'+str(sK+4)} offen" + ["", " nt", " sc1", " sc0 sc1", " sc0 sc1 nt"][P["stf"]])
dbg_time(2, 252, True)
if P["stamps"]:
    stamp(5)
    A("s_waitcnt vmcnt(0)")
    stamp(6)
    A("s_waitcnt lgkmcnt(0)")
    A(f"s_mov_b32 s{sWS+2}, 0x1000000")
    A(f"s_lshl_b32 s{sTMP}, s2, 3")
    A(f"s_add_u32 s{sTMP}, s{sTMP}, s{sWAVE}")
    A(f"s_lshl_b32 s{sTMP}, s{sTMP}, 5")
    A(f"s_add_u32 s{sTMP}, s{sTMP}, 0x200000")
    A("v_mov_b32 v1, 0")
    if plain and not P["pst"]: A("s_sub_u32 s90, s94, s92")
    if P["bst"]:
        A(f"s_cmp_ge_u32 s{sWAVE}, 4")
        A("s_cselect_b32 s76, s94, s76")
    for k in range(8): A(f"v_mov_b32 v{2+k}, s{sST+(k if P['cst'] or P['bst'] else 2*k)}")
    A("s_mov_b64 exec, 1")
    if P["sst"] >= 0:
        for k in range(12): A(f"v_mov_b32 v{2+k}, v{244+k}")
        A(f"s_add_u32 s{sCNT}, s{sTMP}, 0x100000")
        A(f"buffer_store_dwordx4 v[10:13], v1, s[{sWS}:{sWS+3}], s{sCNT} offen")
    if P["lst"] >= 0 or P["cst"] or P["bst"]:
        for k in range(4): A(f"v_mov_b32 v{10+k}, s{sST+8+k if P['cst'] or P['bst'] else sST+16+2*k}")
        A(f"s_add_u32 s{sCNT}, s{sTMP}, 0x100000")
        A(f"buffer_store_dwordx4 v[10:13], v1, s[{sWS}:{sWS+3}], s{sCNT} offen")
    A(f"buffer_store_dwordx4 v[2:5], v1, s[{sWS}:{sWS+3}], s{sTMP} offen")
    A(f"buffer_store_dwordx4 v[6:9], v1, s[{sWS}:{sWS+3}], s{sTMP} offen offset:16")
LBL("L_end")
A("s_endpgm")

cur[0] = "cpro"
LBL("L_compute")
G00, G11, GS = 16, 48, 80
SETS = [112, 172]
def vXR(slot, hh): return 1 + slot * 5 + hh
def vXS(slot, hh): return 3 + slot * 5 + hh
def vWR(slot): return 5 + slot * 5
T = 232
vW3, vW3C = 240, 241
WA, WB, WT_ = 244, 248, 224
A(f"s_lshr_b32 s{sWAVE}, s{sWAVE}, 6")
A(f"s_memrealtime s[{sN0}:{sN1}]")
A(f"v_mov_b32 v{T+3}, 0")
CWA, CWB = 244, 248
if P["pc"]:
    A(f"v_lshrrev_b32 v{T}, 5, v0")
    A(f"s_lshl_b32 s{sTMP}, s{sWAVE}, 1")
    A(f"v_add_u32 v{T}, s{sTMP}, v{T}")
    A(f"v_and_b32 v{T+1}, 31, v0")
    A(f"v_lshlrev_b32 v{T+1}, 4, v{T+1}")
    A(f"s_lshl_b32 s{sTMP}, s2, 9")
    A(f"v_add_u32 v{T+1}, s{sTMP}, v{T+1}")
    A(f"v_lshl_add_u32 v{T+2}, v{T}, 17, v{T+1}")
    A(f"v_and_b32 v{T}, 3, v{T}")
    A(f"v_lshl_add_u32 v{T+1}, v{T}, 19, v{T+1}")
    A(f"s_lshr_b32 s{sTA}, s{sWAVE}, 1")
    A(f"s_lshl_b32 s{sWO}, s{sTA}, 17")
    A(f"s_add_u32 s{sWN}, s{sWO}, {2*131072}")
if P["cpf"]:
    A("s_getpc_b64 s[74:75]")
    LBL("L_pc")
    A(f"s_lshr_b32 s{sTMP}, s2, 3")
    A(f"s_lshl_b32 s{sTMP}, s{sTMP}, 9")
    A(f"s_add_u32 s74, s74, s{sTMP}")
    A("s_addc_u32 s75, s75, 0")
    A(f"s_sub_u32 s74, s74, L_pc-{KN}")
    A("s_subb_u32 s75, s75, 0")
    A(f"v_lshlrev_b32 v{T+4}, 7, v0")
A("s_waitcnt lgkmcnt(0)")
srd(sDBG, 42, 256)
A(f"s_or_b32 s{sTMP}, s2, s{sWAVE}")
A(f"s_cmp_lg_u32 s{sTMP}, 0")
A("s_cbranch_scc1 L_nononce")
A(f"s_or_b32 s{sN0}, s{sN0}, 1")
A(f"v_mov_b32 v{T+6}, s{sN0}")
A(f"v_mov_b32 v{T+7}, s{sN1}")
A("s_mov_b64 exec, 1")
A(f"buffer_store_dwordx2 v[{T+6}:{T+7}], v{T+3}, s[{sDBG}:{sDBG+3}], 0 offen sc0 sc1")
A("s_mov_b64 exec, -1")
LBL("L_nononce")
if P["pc"]:
    srd(sW, 34, W_BYTES)
    A(f"buffer_load_dwordx4 v[{CWA}:{CWA+3}], v{T+1}, s[{sW}:{sW+3}], s{sWO} offen")
    A(f"buffer_load_dwordx4 v[{CWB}:{CWB+3}], v{T+1}, s[{sW}:{sW+3}], s{sWN} offen")
    A(f"s_lshr_b32 s{sFO}, s2, 6")
    A(f"s_lshl_b32 s{sFO}, s{sFO}, 1")
    A(f"s_add_u32 s{sFO}, s{sFO}, s{sTA}")
    A(f"s_lshl_b32 s{sFO}, s{sFO}, 10")
    A(f"s_and_b32 s{sTMP}, s2, 63")
    A(f"s_lshl_b32 s{sTMP}, s{sTMP}, 4")
    A(f"s_add_u32 s{sFO}, s{sFO}, s{sTMP}")
    A(f"s_and_b32 s{sTMP}, s{sWAVE}, 1")
    A(f"s_lshl_b32 s{sTMP}, s{sTMP}, 3")
    A(f"s_add_u32 s{sFO}, s{sFO}, s{sTMP}")
    A(f"s_add_u32 s{sFO}, s{sFO}, {FL_OFF}")
    A(f"s_mov_b32 s{sPO}, {WP_OFF}")
if P["cpf"]:
    A(f"s_cmp_lg_u32 s{sWAVE}, 0")
    A("s_cbranch_scc1 L_nocpf")
    A("s_mov_b64 exec, 15")
    A(f"global_load_dword v{T+5}, v{T+4}, s[74:75]")
    A("s_mov_b64 exec, -1")
    LBL("L_nocpf")
srd(sWS, 44, WS_BYTES)
out_srd()
A(f"s_mov_b32 s{sMID}, 0x7fff7fff")
A(f"s_cselect_b32 s{sMID}, s{sMID}, -1")
A(f"s_mov_b32 s{sMID+1}, s{sMID}")
granule_off()
A(f"s_lshl_b32 s{sTMP}, s{sT}, 10")
A(f"s_add_u32 s{sGR}, s{sGR}, s{sTMP}")
R, G_, X1, X2 = 120, 121, 122, 124
A(f"v_and_b32 v{R}, 15, v0")
A(f"v_lshrrev_b32 v{G_}, 4, v0")
swz(X1, R, X2)
A(f"v_xor_b32 v{X1}, v{X1}, v{G_}")
A(f"v_lshlrev_b32 v{X1}, 4, v{X1}")
A(f"v_lshl_add_u32 v{vXR(0,0)}, v{R}, 7, v{X1}")
A(f"v_add_u32 v{X1+1}, 1, v{R}")
swz(X1, X1+1, X2)
A(f"v_xor_b32 v{X1}, v{X1}, v{G_}")
A(f"v_lshlrev_b32 v{X1}, 4, v{X1}")
A(f"v_lshl_add_u32 v{vXS(0,0)}, v{X1+1}, 7, v{X1}")
A(f"v_add_u32 v{X1}, 0x4000, v{X1}")
A(f"v_cmp_eq_u32 vcc, 15, v{R}")
A(f"v_bfe_u32 v{X2}, v0, 2, 2")
A(f"v_cndmask_b32 v{vXS(0,0)}, v{vXS(0,0)}, v{X1}, vcc")
A(f"v_xor_b32 v{vXR(0,1)}, 64, v{vXR(0,0)}")
A(f"v_xor_b32 v{vXS(0,1)}, 64, v{vXS(0,0)}")
A(f"v_lshl_add_u32 v{X1}, v{G_}, 3, v{X2}")
A(f"v_lshlrev_b32 v{X1}, 7, v{X1}")
A(f"v_lshrrev_b32 v{X2}, 1, v{X2}")
A(f"v_and_b32 v{X2+1}, 1, v{G_}")
A(f"v_lshl_or_b32 v{X2}, v{X2+1}, 1, v{X2}")
A(f"v_xor_b32 v{X2}, s{sWAVE}, v{X2}")
A(f"v_lshl_add_u32 v{X1}, v{X2}, 5, v{X1}")
A(f"v_and_b32 v{X2}, 3, v0")
A(f"v_lshl_add_u32 v{X1}, v{X2}, 3, v{X1}")
A(f"v_add_u32 v{vWR(0)}, {WOFF}, v{X1}")
A(f"v_add_u32 v{vW3}, {WOFF + tile(0,3)}, v{X1}")
A(f"v_lshlrev_b32 v{vW3C}, 1, v{X1}")
A(f"v_add_u32 v{vW3C}, {2*SLOT + WOFF + tile(0,3) + SPARE}, v{vW3C}")
for k in range(1, 6):
    A(f"v_add_u32 v{k+5}, {SLOT}, v{k}")
    A(f"v_add_u32 v{k+10}, {2*SLOT}, v{k}")
for i in range(0, 96, 2):
    A(f"v_pk_mov_b32 v[{16+i}:{17+i}], 0, 0")
if P["pc"]:
    A("s_waitcnt vmcnt(0)")
    for t in addbf_list(CWA, CWA, CWB, 224, True): A(t)
    A(f"buffer_store_dwordx4 v[{CWA}:{CWA+3}], v{T+2}, s[{sWS}:{sWS+3}], s{sPO} offen sc0 sc1")
    A(f"buffer_load_dwordx2 v[238:239], v{T+3}, s[{sDBG}:{sDBG+3}], 0 offen sc0 sc1")
def c_flag():
    A(f"s_mov_b32 s{sTMP}, {SPIN}")
    LBL("L_cn")
    A("s_waitcnt vmcnt(0)")
    A(f"v_readfirstlane_b32 s{sN0}, v238")
    A(f"s_sub_u32 s{sTMP}, s{sTMP}, 1")
    A("s_cbranch_scc1 L_cn_ok")
    A(f"s_cmp_lg_u32 s{sN0}, 0")
    A("s_cbranch_scc1 L_cn_ok")
    A(f"buffer_load_dwordx2 v[238:239], v{T+3}, s[{sDBG}:{sDBG+3}], 0 offen sc0 sc1")
    A("s_branch L_cn")
    LBL("L_cn_ok")
    A("s_mov_b64 exec, 1")
    A(f"buffer_store_dwordx2 v[238:239], v{T+3}, s[{sWS}:{sWS+3}], s{sFO} offen sc0 sc1")
    A("s_mov_b64 exec, -1")
if P["pc"] and P["pflag"] < 0: c_flag()
if P["prio"]: A(f"s_setprio {P['prio']}")

def reads(role, hh, st):
    xb = SETS[st]; wb = xb + 44
    def xr(q):
        if q < 8: return (("X", q), f"ds_read_b128 v[{xb+4*q}:{xb+4*q+3}], v{vXR(role,hh)} offset:{q*2048}")
        return (("X", q), f"ds_read_b128 v[{xb+4*q}:{xb+4*q+3}], v{vXS(role,hh)} offset:{(q-8)*2048}")
    def wr(s, h):
        if role == 0 and s == 3:
            return (("W", s), f"ds_read_b64_tr_b16 v[{wb+4*s+2*h}:{wb+4*s+2*h+1}], v{vW3} offset:{hh*4096 + h*512}")
        return (("W", s), f"ds_read_b64_tr_b16 v[{wb+4*s+2*h}:{wb+4*s+2*h+1}], v{vWR(role)} offset:{tile(hh, s) + h*512}")
    r = [wr(0, 0), wr(0, 1)] + [xr(q) for q in range(8)]
    for s in range(1, 4):
        r += [wr(s, 0), wr(s, 1), xr(7 + s)]
    return r
def mfma_list(acc, st):
    xb = SETS[st]; wb = xb + 44
    out = []
    for s in range(4):
        for j in range(8):
            d = f"v[{acc+4*j}:{acc+4*j+3}]"
            out.append(([("W", s), ("X", j+s)], f"v_mfma_f32_16x16x32_bf16 {d}, v[{wb+4*s}:{wb+4*s+3}], v[{xb+4*(j+s)}:{xb+4*(j+s)+3}], {d}"))
    return out
pending = []
bs_n = [0]
def bstamp():
    if not P["bst"]: return
    k = bs_n[0]; bs_n[0] += 1
    A("s_cselect_b32 s97, 1, 0")
    A("s_memrealtime s[100:101]")
    A("s_waitcnt lgkmcnt(0)")
    A("s_min_u32 m0, s96, 12")
    A("s_add_u32 s96, s96, 1")
    A("s_movreld_b32 s76, s100")
    A("s_cmp_lg_u32 s97, 0")
ss_n = [0]
def sstamp():
    if P["sst"] < 0 or ss_n[0] >= 12: return
    k = ss_n[0]; ss_n[0] += 1
    A(f"s_memtime s[{76+2*k}:{77+2*k}]")
def seq(acc, st, rd, barrier, skip_label=None, extra=None, delay=0):
    global pending
    nm = 24 if skip_label else 32
    m = mfma_list(acc, st)
    rd = [] if P["nords"] else list(rd)
    first = max(P["barslot"], delay) if barrier else P["rd_first"] - 1
    last = max(min(P["rd_last"] + (first if barrier else 0), nm - P["rd_gap"]), first + len(rd) - 1) if rd else 0
    slots = [first + (k * (last - first)) // max(len(rd) - 1, 1) for k in range(len(rd))]
    cur_ = list(pending); newer = 0
    nxt = []
    for i, (need, ins) in enumerate(m):
        if i == 24 and skip_label:
            A(f"s_cbranch_scc1 {skip_label}")
        if i % 16 == 0:
            need = [k for nd, _ in m[i:i+16] for k in nd]
            if barrier and i == 0: need = [k for nd, _ in m[:P["barslot"]+1] for k in nd]
            idx = max([k for k, key in enumerate(cur_) if key in need], default=-1)
            if idx >= 0:
                n = len(cur_) - 1 - idx + newer
                if n < 15: A(f"s_waitcnt lgkmcnt({n})")
                cur_ = cur_[idx+1:]
        A(ins)
        if barrier and i == P["barslot"]:
            if cur_: A("s_waitcnt lgkmcnt(0)"); cur_ = []
            sstamp()
            A("s_barrier")
            sstamp()
            bstamp()
        while rd and slots[len(nxt)] <= i:
            key, s = rd.pop(0); A(s); nxt.append(key); newer += 1
        if extra and i in extra:
            for s in extra[i]: A(s)
    assert not rd
    if skip_label: LBL(skip_label)
    pending = nxt
    sstamp()
if P["bst"]: A("s_mov_b32 s96, 0")
A("s_barrier")
bstamp()
dbg_time(3, 252)
stamp(1)
if plain: A("s_memtime s[92:93]"); A("s_waitcnt lgkmcnt(0)")
r0 = reads(0, 0, 0)
for _, s in r0: A(s)
pending = [k for k, _ in r0]
A(f"s_mov_b32 s{sCNT}, 0")
A("s_branch L_cloop")

cur[0] = "cloop"
def cstamp(idx=None):
    if not P["cst"]: return
    A("s_memtime s[100:101]")
    A("s_waitcnt lgkmcnt(0)")
    if idx is None:
        A(f"s_mov_b32 m0, s{sCNT}")
        A("s_nop 0")
        A("s_movreld_b32 s76, s100")
    else:
        A(f"s_mov_b32 s{76+idx}, s100")
LBL("L_cloop")
if P["sst"] >= 0:
    A(f"s_cmp_lg_u32 s{sCNT}, {P['sst'] + 1}")
    A("s_cbranch_scc1 L_nss")
    A("s_waitcnt lgkmcnt(0)")
    for k in range(12): A(f"v_mov_b32 v{244+k}, s{76+2*k}")
    LBL("L_nss")
cstamp()
seq(G00, 0, reads(0, 1, 1), False)
def hook(k):
    if P["pc"] and P["pflag"] == k:
        A(f"s_cmp_eq_u32 s{sCNT}, 0")
        A("s_cbranch_scc1 L_hook")
        LBL("L_hookr")
hook(0)
seq(G00, 1, reads(1, 0, 0), True, extra={28: [f"v_sub_u32 v{vW3}, v{vW3C}, v{vW3}"]}, delay=P["dly0"])
hook(1)
A(f"s_bitcmp1_b32 s{sCNT}, 0")
seq(G11, 0, reads(1, 1, 1), False, "L_skipa")
seq(G11, 1, reads(2, 0, 0), True, "L_skipb")
A(f"s_cmp_eq_u32 s{sCNT}, 0")
A("s_cbranch_scc1 L_cfirst")
LBL("L_gs")
seq(GS, 0, reads(2, 1, 1), False)
A(f"s_add_u32 s{sCNT}, s{sCNT}, 1")
A(f"s_cmp_lt_u32 s{sCNT}, 8")
seq(GS, 1, reads(0, 0, 0), True, delay=P["dly2"])
A("s_cbranch_scc1 L_cloop")
A(f"s_cmp_eq_u32 s{sCNT}, 9")
A("s_cbranch_scc1 L_cdone")
cstamp(8)
for k in range(11, 16): A(f"v_mov_b32 v{k}, v{k-10}")
A("s_branch L_gs")
LBL("L_cfirst")
dbg_time(6, 252)
stamp(3)
for k in range(1, 6):
    A(f"v_add_u32 v{k}, {2*SLOT}, v{k}")
    A(f"v_subrev_u32 v{k+5}, {SLOT}, v{k+5}")
    A(f"v_subrev_u32 v{k+10}, {SLOT}, v{k+10}")
A(f"v_add_u32 v{vW3}, {tile(0,3)}, v5")
A(f"s_mov_b32 s{sCNT}, 1")
A("s_branch L_cloop")
if P["pc"] and P["pflag"] >= 0:
    LBL("L_hook")
    c_flag()
    A("s_branch L_hookr")
cur[0] = "cepi"
LBL("L_cdone")
dbg_time(4, 252)
cstamp(9)
stamp(2)
if plain: A("s_memtime s[94:95]")
if P["prio"]: A("s_setprio 0")
if not P["pc"]:
    A(f"v_mov_b32 v10, {MISC}")
    A("ds_read_b64 v[238:239], v10")
for i in range(4):
    A(f"v_mov_b32_dpp v{T+i}, v{G00+i} row_shl:1 row_mask:0xf bank_mask:0xf bound_ctrl:0")
A("s_nop 4")
for j in range(8):
    for h in (0, 2):
        pk("add", GS+4*j+h, GS+4*j+h, G11+4*j+h, neg=True)
for j in range(8):
    for h in (0, 2):
        nx = G00+4*(j+1)+h if j < 7 else T+h
        pk("add", GS+4*j+h, GS+4*j+h, nx, neg=True)
        pk("add", G11+4*j+h, G11+4*j+h, G00+4*j+h)
def yreg(idx): return (G11 if idx % 2 == 0 else GS) + 4 * (idx // 2)
S1, S2 = 16, 20
for h in (0, 2):
    pk("add", S1+h, yreg(0)+h, yreg(1)+h)
    pk("mul", S2+h, yreg(0)+h, yreg(0)+h)
for idx in range(1, 16):
    if idx == 3: A(f"s_mov_b64 exec, s[{sMID}:{sMID+1}]")
    if idx == 10:
        A("s_mov_b32 exec_lo, 0x7fff7fff")
        A("s_mov_b32 exec_hi, 0x7fff7fff")
    for h in (0, 2):
        if idx > 1: pk("add", S1+h, S1+h, yreg(idx)+h)
        pk("fma", S2+h, yreg(idx)+h, yreg(idx)+h, c=S2+h)
A("s_mov_b64 exec, -1")
A("v_and_b32 v10, 15, v0")
A("v_lshrrev_b32 v11, 4, v0")
for sh in (8, 4, 2, 1):
    for i in range(8):
        A(f"v_add_f32_dpp v{16+i}, v{16+i}, v{16+i} row_ror:{sh} row_mask:0xf bank_mask:0xf")
A("v_lshl_add_u32 v12, v11, 2, v10")
A("v_lshlrev_b32 v12, 4, v12")
A("v_mov_b32 v236, v16")
A("v_mov_b32 v237, v20")
for i in (1, 2, 3):
    mk = (1 << i) * 0x00010001
    A(f"s_mov_b32 exec_lo, {mk:#x}")
    A(f"s_mov_b32 exec_hi, {mk:#x}")
    A(f"v_mov_b32 v236, v{16+i}")
    A(f"v_mov_b32 v237, v{20+i}")
A("s_mov_b32 exec_lo, 0x000f000f")
A("s_mov_b32 exec_hi, 0x000f000f")
A("s_waitcnt lgkmcnt(0)")
A(f"buffer_store_dwordx4 v[236:239], v12, s[{sWS}:{sWS+3}], s{sGR} offen sc0 sc1")
A("s_mov_b64 exec, -1")
A(f"s_lshl_b32 s{sTMP}, s{sWAVE}, 2")
A(f"v_add_u32 v12, s{sTMP}, v11")
A("v_lshrrev_b32 v13, 1, v12")
A("v_and_b32 v12, 1, v12")
A("v_lshl_or_b32 v12, v12, 3, v13")
A("v_and_b32 v13, 7, v10")
A("v_xor_b32 v12, v12, v13")
A("v_lshlrev_b32 v12, 4, v12")
A("v_lshl_add_u32 v12, v10, 12, v12")
A("v_xor_b32 v13, 0x80, v12")
for idx in range(16):
    j = idx // 2
    A(f"ds_write_b128 v{12 + (j & 1)}, v[{yreg(idx)}:{yreg(idx)+3}] offset:{idx*256}")
final_addr()
A("s_waitcnt lgkmcnt(0)")
A("s_barrier")
y_reads()
A("s_branch L_final")

out = [f"""; conv stem (K=15, stride 2) as a 2-parallel fast-FIR GEMM + per-channel GroupNorm + tanh GELU, one launch.
; @launch grid=(256,1,1) block=(512,1,1) lds={LDS_BYTES}
.amdgcn_target "amdgcn-amd-amdhsa--gfx950"
.text
.globl {KN}
.p2align 8
.type {KN},@function
{KN}:"""]
for sec in ("entry", "lpro", "cpro", "cloop", "lloop", "cepi", "llast", "final"):
    if sec in ("cloop", "lloop"): out.append(".p2align 6")
    out += SEC[sec]
out.append(f""".p2align 8
.fill 4096, 4, 0xbf810000
.section .rodata,"a"
.p2align 6
.amdhsa_kernel {KN}
  .amdhsa_next_free_vgpr 256
  .amdhsa_next_free_sgpr 102
  .amdhsa_accum_offset 256
  .amdhsa_group_segment_fixed_size 0
  .amdhsa_kernarg_size 64
  .amdhsa_user_sgpr_count 2
  .amdhsa_user_sgpr_kernarg_segment_ptr 1
  .amdhsa_system_sgpr_workgroup_id_x 1
.end_amdhsa_kernel""")
print("\n".join(out))
```

```python
import sys, struct, math
P = dict(prio=2, lprio=0, stamps=0, novalu=0, nodma=0, nords=0, barslot=1, rd_first=1, rd_last=19, rd_gap=5,
         touch=1, wtouch=1, xoob=0, woob=0, poob=0, pc=1, pflag=0, dbgt=0, stf=0, bst=0, sst=-1, dly0=12, dly2=8, dsmix=0, u0late=1, wsplit=2, dsat3=6, dsprio=3, fine=0, lst=-1, cst=0, pst=0, vsplit=2,
         pro="D0.D1:0:7.S.B.D1.D2:0:7.B.R.V04.D2.D3:0:6.B.G.D3.W.C.D4.T2ab.T3ab.B", cpf=1, dsat=0, dsat2=0)
for a in sys.argv[1:]:
    k, v = a.split("=")
    P[k] = v if k in ("pro",) else int(v)

KN = "standalone__self_sup_conv_stem_hubert__speech_kernel"
XSZ = 16384 + 128
WOFF = XSZ
SLOT = WOFF + 32768
SPARE = 3 * SLOT
MISC = SPARE + 8192
LDS_BYTES = MISC + 1024
X_BYTES = 2 * 16000 * 256 * 2
W_BYTES = 15 * 256 * 256 * 2
FL_OFF, WP_OFF, WS_BYTES = 0x40000, 0x80000, 0x180000
SWZ = [0,0,1,1,2,2,4,3,7,4,6,5,2,6,4,7]
SWZ64 = sum(v << (4*i) for i, v in enumerate(SWZ))
OOB = 0x40000000
SPIN = 0x4000
def tile(hh, s): return (hh * 3 + s if s < 3 else 6 + hh) * 4096

SEC = {k: [] for k in ("entry", "lpro", "lloop", "llast", "final", "cpro", "cloop", "cepi")}
cur = ["entry"]
def A(s): SEC[cur[0]].append("  " + s)
def LBL(s): SEC[cur[0]].append(s + ":")
def CM(s): SEC[cur[0]].append("  ; " + s)
def f32(x): return "0x%08x" % struct.unpack("<I", struct.pack("<f", x))[0]

sX, sW, sO, sWS, sDBG, sGA, sBE = 4, 8, 12, 16, 20, 24, 28
sWAVE, sT, sNT, sB = 46, 47, 48, 49
sWN, sXO, sWO, sPO, sTMP, sCNT, sMASK16 = 50, 51, 52, 53, 55, 56, 57
sTA = 58
sD, sXB = 60, 61
sN0, sN1 = 62, 63
sMID = 64
sGR, sFO = 66, 67
sK = 68
sM0, sMX = 73, 74
sSW = 98
sST = 76

def srd(d, lo, nbytes):
    A(f"s_mov_b32 s{d}, s{lo}")
    A(f"s_and_b32 s{d+1}, s{lo+1}, 0xffff")
    A(f"s_mov_b32 s{d+2}, {nbytes}")
    A(f"s_mov_b32 s{d+3}, 0x20000")
def out_srd():
    A(f"s_mul_i32 s{sTMP}, s{sB}, {7993*512}")
    A(f"s_mul_i32 s{sCNT}, s{sT}, {250*512}")
    A(f"s_add_u32 s{sTMP}, s{sTMP}, s{sCNT}")
    A(f"s_add_u32 s{sO}, s40, s{sTMP}")
    A(f"s_addc_u32 s{sO+1}, s41, 0")
    A(f"s_and_b32 s{sO+1}, s{sO+1}, 0xffff")
    A(f"s_cmp_eq_u32 s{sT}, 31")
    A(f"s_mov_b32 s{sO+2}, {243*512}")
    A(f"s_cselect_b32 s{sO+2}, s{sO+2}, {250*512}")
    A(f"s_mov_b32 s{sO+3}, 0x20000")
def granule_off():
    A(f"s_lshl_b32 s{sGR}, s{sB}, 2")
    A(f"s_add_u32 s{sGR}, s{sGR}, s{sNT}")
    A(f"s_lshl_b32 s{sGR}, s{sGR}, 15")
    A(f"s_lshl_b32 s{sTMP}, s{sWAVE}, 8")
    A(f"s_add_u32 s{sGR}, s{sGR}, s{sTMP}")
plain = P["stamps"] and P["lst"] < 0 and not P["cst"] and P["sst"] < 0 and not P["bst"]
def stamp(k, loader=False):
    if not plain: return
    if P["pst"] and k > 0 and cur[0] not in ("cpro", "cloop", "cepi"): return
    A(f"s_memrealtime s[{sST+2*k}:{sST+2*k+1}]")
def lev(k):
    if P["bst"]:
        A("s_memrealtime s[100:101]"); A("s_waitcnt lgkmcnt(0)"); A(f"s_mov_b32 s{76+k}, s100")
def dbg_time(slot, vt, wait_all=False):
    if P["dbgt"] != 1: return
    if wait_all: A("s_waitcnt vmcnt(0)")
    A("s_memrealtime s[100:101]")
    A("s_waitcnt lgkmcnt(0)")
    A(f"v_mov_b32 v{vt}, s100")
    A(f"v_mov_b32 v{vt+1}, {slot*4}")
    A("s_mov_b64 exec, 1")
    A(f"buffer_atomic_umax v{vt}, v{vt+1}, s[{sDBG}:{sDBG+3}], 0 offen")
    A("s_mov_b64 exec, -1")
def pstamp(k):
    if P["pst"]: A(f"s_memrealtime s[{sST+2*k}:{sST+2*k+1}]")
def swz(dst, rreg, tmp):
    A(f"v_lshlrev_b32 v{dst}, 2, v{rreg}")
    A(f"v_lshrrev_b64 v[{tmp}:{tmp+1}], v{dst}, s[{sSW}:{sSW+1}]")
    A(f"v_and_b32 v{dst}, 7, v{tmp}")
def addbf_list(d, a, b, t, force=False):
    r = []
    if P["novalu"] and not force: return r
    for i0 in (0, 2):
        for i in (i0, i0 + 1):
            u = t + 4 * (i - i0)
            r += [f"v_lshlrev_b32 v{u}, 16, v{a+i}", f"v_lshlrev_b32 v{u+1}, 16, v{b+i}",
                  f"v_and_b32 v{u+2}, s{sMASK16}, v{a+i}", f"v_and_b32 v{u+3}, s{sMASK16}, v{b+i}"]
        for i in (i0, i0 + 1):
            u = t + 4 * (i - i0)
            r += [f"v_add_f32 v{u}, v{u}, v{u+1}", f"v_add_f32 v{u+2}, v{u+2}, v{u+3}"]
        for i in (i0, i0 + 1):
            u = t + 4 * (i - i0)
            r += [f"v_cvt_pk_bf16_f32 v{d+i}, v{u}, v{u+2}"]
    return r
def pk(op, d, a, b, neg=False, c=None):
    s = f"v_pk_{op}_f32 v[{d}:{d+1}], v[{a}:{a+1}], v[{b}:{b+1}]"
    if c is not None: s += f", v[{c}:{c+1}]"
    if neg: s += " neg_lo:[0,1] neg_hi:[0,1]"
    A(s)

stamp(0)
if P["bst"]: A("s_memrealtime s[94:95]")
A("s_load_dwordx4 s[32:35], s[0:1], 0")
A("s_load_dwordx4 s[40:43], s[0:1], 40")
A("s_load_dwordx2 s[44:45], s[0:1], 56")
A("s_load_dwordx4 s[36:39], s[0:1], 24")
A("s_cmp_ge_u32 s2, 256")
A("s_cbranch_scc1 L_end")
A(f"v_readfirstlane_b32 s{sWAVE}, v0")
A("v_and_b32 v0, 63, v0")
A(f"s_and_b32 s{sT}, s2, 7")
A(f"s_lshl_b32 s{sT}, s{sT}, 3")
A(f"s_lshr_b32 s{sTMP}, s2, 5")
A(f"s_add_u32 s{sT}, s{sT}, s{sTMP}")
A(f"s_bfe_u32 s{sNT}, s2, 0x20003")
A(f"s_lshr_b32 s{sB}, s{sT}, 5")
A(f"s_and_b32 s{sT}, s{sT}, 31")
A(f"s_mov_b32 s{sSW}, {SWZ64 & 0xffffffff:#x}")
A(f"s_mov_b32 s{sSW+1}, {SWZ64 >> 32:#x}")
A(f"s_mov_b32 s{sMASK16}, 0xffff0000")
A(f"s_cmp_lt_u32 s{sWAVE}, 256")
A("s_cbranch_scc1 L_compute")

cur[0] = "lpro"
vXG, vWG, vLIN, vLIN2, vU0B, vFL, vZ, vTC = 1, 3, 4, 5, 6, 8, 9, 15
U0, U1, TT, FLG, JUNK, GAM = 16, 32, 48, 56, 66, 68
NON = 64
VV = 80
vPL, vPS, WA, WB = 70, 71, 72, 76
sPF = 54
sTS, sTB, sTD, sTP, sTEa, sTEb = 24, 68, 69, 70, 71, 72
A(f"s_bfe_u32 s{sWAVE}, s{sWAVE}, 0x20006")
A(f"s_mul_i32 s{sXB}, s{sB}, {16000*512}")
A(f"s_mul_i32 s{sTMP}, s{sT}, {500*512}")
A(f"s_add_u32 s{sXB}, s{sXB}, s{sTMP}")
A("v_lshrrev_b32 v10, 3, v0")
A("v_and_b32 v11, 7, v0")
swz(12, 10, 14)
A("v_xor_b32 v12, v12, v11")
A("v_lshlrev_b32 v12, 4, v12")
A(f"v_lshl_add_u32 v{vXG}, v10, 14, v12")
A("v_add_u32 v13, 8, v10")
swz(12, 13, 14)
A("v_xor_b32 v12, v12, v11")
A("v_lshlrev_b32 v12, 4, v12")
A(f"v_lshl_add_u32 v{vXG+1}, v13, 14, v12")
A(f"s_lshl_b32 s{sTMP}, s{sWAVE}, 3")
A(f"v_add_u32 v12, s{sTMP}, v10")
A("v_bfe_u32 v13, v0, 4, 1")
A(f"s_and_b32 s{sTMP}, s{sWAVE}, 1")
A(f"s_lshl_b32 s{sTMP}, s{sTMP}, 1")
A(f"v_or_b32 v13, s{sTMP}, v13")
A("v_lshlrev_b32 v13, 1, v13")
A("v_xor_b32 v13, v13, v11")
A("v_lshlrev_b32 v13, 4, v13")
A("v_lshl_add_u32 v13, v12, 9, v13")
A(f"s_lshl_b32 s{sTMP}, s{sNT}, 7")
A(f"v_add_u32 v{vWG}, s{sTMP}, v13")
A(f"s_lshl_b32 s{sM0}, s{sWAVE}, 10")
A(f"s_add_u32 s{sM0}, s{sM0}, {WOFF}")
A(f"s_lshl_b32 s{sMX}, s{sWAVE}, 12")
A(f"s_add_u32 s{sXO}, s{sXB}, s{sMX}")
A(f"s_mov_b32 s{sWO}, 0")
A(f"s_mov_b32 s{sWN}, 32768")
A(f"s_mov_b32 s{sD}, 0")
A("s_waitcnt lgkmcnt(0)")
pstamp(1)
srd(sX, 32, 0 if P["xoob"] else X_BYTES)
srd(sW, 34, 0 if P["woob"] else W_BYTES)

TAPS = {("G00", 0): [0, 4, 8, 12], ("G11", 0): [2, 6, 10, 14], ("G00", 1): [1, 5, 9, 13], ("G11", 1): [3, 7, 11]}
def dw(lds, so, tap, hh):
    return [f"s_add_u32 m0, s{sM0}, {lds - WOFF}",
            f"s_add_u32 s{sTMP}, s{so}, {tap*131072 + hh*16384}",
            f"buffer_load_dwordx4 v{vWG}, s[{sW}:{sW+3}], s{sTMP} offen lds"]
def dma_w(slot, taps, ss=(0, 1, 2, 3), so=None):
    return [dw(slot*SLOT + WOFF + tile(hh, s), so or sWO, taps[s], hh) for hh in (0, 1) for s in ss if s < len(taps)]
def dma_wp(par, slot, spare0=False):
    r = []
    for hh in (0, 1):
        for s in range(4):
            dst = SPARE if (spare0 and hh == 0 and s == 3) else slot*SLOT + WOFF + tile(hh, s)
            r.append([f"s_add_u32 m0, s{sM0}, {dst - WOFF}",
                      f"s_add_u32 s{sTMP}, s{sPO}, {(0x20000000 if P['poob'] else 0) + WP_OFF + (par*4+s)*131072 + hh*16384}",
                      f"buffer_load_dwordx4 v{vWG}, s[{sWS}:{sWS+3}], s{sTMP} offen sc1 lds"])
    return r
def dma_x(slot, phi):
    return [[f"s_add_u32 m0, s{sMX}, {slot*SLOT + j*1024}",
             f"s_add_u32 s{sTMP}, s{sXO}, {(4*(j >> 1) + phi)*512}",
             f"buffer_load_dwordx4 v{vXG + (j & 1)}, s[{sX}:{sX+3}], s{sTMP} offen lds"] for j in range(4)]
def tail_g(slot, phi):
    return [f"s_mov_b32 m0, {slot*SLOT + 16384}",
            f"s_sub_u32 s{sTMP}, s{sXO}, s{sMX}",
            f"s_add_u32 s{sTMP}, s{sTMP}, {(512 + phi)*512}",
            "s_mov_b64 exec, 0xff",
            f"buffer_load_dwordx4 v{vXG}, s[{sX}:{sX+3}], s{sTMP} offen lds",
            "s_mov_b64 exec, -1"]
tl_n = [0]
def dma_tail1(slot, phi):
    k = tl_n[0]; tl_n[0] += 1
    A(f"s_cmp_lg_u32 s{sWAVE}, 1")
    A(f"s_cbranch_scc1 L_nt{k}")
    for s in tail_g(slot, phi): A(s)
    LBL(f"L_nt{k}")
def touch_g(dd, par, half="ab", const=False):
    r = []
    if const:
        r.append(f"s_mul_i32 s{sTMP}, s{sTD}, {dd}")
        r.append(f"s_add_u32 s{sTMP}, s{sTMP}, s{sTB}")
    else:
        r += [f"s_add_u32 s{sTMP}, s{sD}, {dd}", f"s_cmp_lt_u32 s{sTMP}, 4", f"s_cselect_b32 s{sCNT}, s{sTB}, {OOB}",
              f"s_mul_i32 s{sTMP}, s{sTMP}, s{sTD}", f"s_add_u32 s{sTMP}, s{sTMP}, s{sCNT}"]
    if par: r.append(f"s_add_u32 s{sTMP}, s{sTMP}, s{sTP}")
    r.append("s_mov_b32 exec_hi, 0")
    if half != "ab": r.append(f"s_mov_b32 exec_lo, s{sTEa if half == 'a' else sTEb}")
    r += [f"buffer_load_dword v{JUNK}, v{vTC}, s[{sTS}:{sTS+3}], s{sTMP} offen", "s_mov_b64 exec, -1"]
    return r
def emit_groups(gs):
    if P["nodma"]: return
    for g in gs:
        for s in g: A(s)
def mix(valu, gs):
    if P["nodma"]: gs = []
    n = len(gs)
    if not valu:
        emit_groups(gs); return
    pos = [(k * len(valu)) // n for k in range(n)] if n else []
    gi = 0
    for i, v in enumerate(valu):
        while gi < n and pos[gi] == i:
            for s in gs[gi]: A(s)
            gi += 1
        A(v)
def rd_u0(lin, linoff):
    return [f"ds_read_b128 v[{U0}:{U0+3}], v{lin} offset:{linoff+2048}",
            f"ds_read_b128 v[{U0+4}:{U0+7}], v{lin} offset:{linoff+3072}",
            f"ds_read_b128 v[{U0+8}:{U0+11}], v{vU0B}",
            f"ds_read_b128 v[{U0+12}:{U0+15}], v{vU0B+1}"]
def rd_u1(lin, linoff):
    return [f"ds_read_b128 v[{U1+4*j}:{U1+4*j+3}], v{lin} offset:{linoff + j*1024}" for j in range(4)]
def wr_v(lin, linoff):
    return [f"ds_write_b128 v{lin}, v[{VV+4*j}:{VV+4*j+3}] offset:{linoff + j*1024}" for j in range(4)]
def vadd(js):
    r = []
    for j in js: r += addbf_list(VV+4*j, U1+4*j, U0+4*j, TT)
    return r
def tsetup():
    A(f"s_bitcmp1_b32 s{sWAVE}, 0")
    A("s_cbranch_scc1 L_tw")
    A(f"s_lshr_b32 s{sTMP}, s{sWAVE}, 1")
    A(f"s_lshl_b32 s{sTMP}, s{sTMP}, 5")
    A(f"s_lshl_b32 s{sTB}, s{sNT}, 6")
    A(f"s_add_u32 s{sTMP}, s{sTMP}, s{sTB}")
    A(f"v_add_u32 v12, s{sTMP}, v0")
    A(f"v_lshlrev_b32 v{vTC}, 10, v12")
    A(f"s_mov_b32 s{sTB}, s{sXB}")
    A(f"s_mov_b32 s{sTD}, 128")
    A(f"s_mov_b32 s{sTP}, 512")
    A(f"s_mov_b32 s{sTEa}, 0x55555555")
    A(f"s_mov_b32 s{sTEb}, 0xaaaaaaaa")
    srd(sTS, 32, X_BYTES)
    A("s_branch L_tw2")
    LBL("L_tw")
    A(f"v_lshlrev_b32 v{vTC}, 9, v0")
    A(f"s_lshr_b32 s{sTMP}, s2, 6")
    A(f"s_lshl_b32 s{sTB}, s{sTMP}, 19")
    A(f"s_bfe_u32 s{sTMP}, s2, 0x10005")
    A(f"s_lshl_b32 s{sTMP}, s{sTMP}, 14")
    A(f"s_add_u32 s{sTB}, s{sTB}, s{sTMP}")
    A(f"s_lshr_b32 s{sTMP}, s{sWAVE}, 1")
    A(f"s_lshl_b32 s{sTMP}, s{sTMP}, 18")
    A(f"s_add_u32 s{sTB}, s{sTB}, s{sTMP}")
    A(f"s_lshl_b32 s{sTMP}, s{sNT}, 7")
    A(f"s_add_u32 s{sTB}, s{sTB}, s{sTMP}")
    A(f"s_mov_b32 s{sTD}, 32768")
    A(f"s_mov_b32 s{sTP}, 131072")
    A(f"s_cmp_eq_u32 s{sWAVE}, 1")
    A(f"s_cselect_b32 s{sTEa}, -1, 0")
    A(f"s_cselect_b32 s{sTEb}, 0, -1")
    srd(sTS, 34, W_BYTES if P["wtouch"] else 0)
    LBL("L_tw2")
    A(f"v_lshrrev_b32 v12, 5, v0")
    A(f"s_lshl_b32 s{sTMP}, s{sWAVE}, 1")
    A(f"v_add_u32 v12, s{sTMP}, v12")
    A(f"v_and_b32 v13, 31, v0")
    A(f"v_lshlrev_b32 v13, 4, v13")
    A(f"s_lshl_b32 s{sTMP}, s2, 9")
    A(f"v_add_u32 v13, s{sTMP}, v13")
    A(f"v_lshl_add_u32 v{vPS}, v12, 17, v13")
    A(f"v_and_b32 v12, 3, v12")
    A(f"v_lshl_add_u32 v{vPL}, v12, 19, v13")
def lsetup():
    A("v_lshlrev_b32 v13, 4, v0")
    A(f"v_add_u32 v{vLIN}, s{sMX}, v13")
    A(f"v_add_u32 v{vLIN2}, {2*SLOT}, v{vLIN}")
    A(f"v_add_u32 v{vU0B}, 4096, v{vLIN}")
    A(f"v_add_u32 v{vU0B+1}, {4096+1024}, v{vLIN}")
    A(f"v_mov_b32 v{vFL}, v13")
    A(f"s_cmp_lg_u32 s{sWAVE}, 3")
    A("s_cbranch_scc1 L_nosp")
    for a in (0, 1):
        A(f"v_add_u32 v12, {8*a}, v10")
        swz(13, 12, 16)
        A("v_xor_b32 v13, v13, v11")
        A("v_add_u32 v12, 1, v12")
        swz(14, 12, 16)
        A("v_xor_b32 v13, v13, v14")
        A("v_lshlrev_b32 v13, 4, v13")
        A(f"v_lshl_add_u32 v{vU0B+a}, v12, 7, v13")
    A("v_cmp_eq_u32 vcc, 16, v12")
    A("v_add_u32 v13, 0x4000, v13")
    A("s_nop 0")
    A(f"v_cndmask_b32 v{vU0B+1}, v{vU0B+1}, v13, vcc")
    LBL("L_nosp")
    srd(sWS, 44, WS_BYTES)
    srd(sDBG, 42, 256)
    out_srd()
    granule_off()
    A(f"s_mov_b32 s{sPO}, 0")
    A(f"s_lshl_b32 s{sFO}, s{sWAVE}, 11")
    A(f"s_add_u32 s{sFO}, s{sFO}, {FL_OFF}")
    A(f"v_mov_b32 v{vZ}, 0")
    A(f"s_lshr_b32 s{sPF}, s2, 6")
    A(f"s_lshl_b32 s{sPF}, s{sPF}, 1")
    A(f"s_lshr_b32 s{sTMP}, s{sWAVE}, 1")
    A(f"s_add_u32 s{sPF}, s{sPF}, s{sTMP}")
    A(f"s_lshl_b32 s{sPF}, s{sPF}, 10")
    A(f"s_and_b32 s{sTMP}, s2, 63")
    A(f"s_lshl_b32 s{sTMP}, s{sTMP}, 4")
    A(f"s_add_u32 s{sPF}, s{sPF}, s{sTMP}")
    A(f"s_and_b32 s{sTMP}, s{sWAVE}, 1")
    A(f"s_lshl_b32 s{sTMP}, s{sTMP}, 3")
    A(f"s_add_u32 s{sPF}, s{sPF}, s{sTMP}")
    A(f"s_add_u32 s{sPF}, s{sPF}, {FL_OFF}")
    if P["lprio"]: A(f"s_setprio {P['lprio']}")

def stage_groups(st):
    if st == 0:
        w = dma_w(0, TAPS[("G00", 0)]); x = dma_x(0, 0)
        return x[:2] + w[:4] + x[2:] + [tail_g(0, 0)] + w[4:]
    if st == 1: return dma_x(1, 2) + dma_w(1, TAPS[("G11", 0)])
    if st == 2: return dma_x(2, 1) + [tail_g(2, 1)] + dma_w(2, TAPS[("G00", 1)])
    if st == 3: return dma_x(0, 3) + dma_w(0, TAPS[("G11", 1)]) + dma_w(0, TAPS[("G11", 0)], ss=(3,), so=sWN)
issued = []
period = 0
seen = {0: 0, 1: 0, 2: 0, 3: 0, 4: 0}
tdone = [False]
mixv = []
pendg = []
def flush():
    global mixv, pendg
    mix(mixv, [g for _, g in pendg])
    if not P["nodma"]: issued.extend(k for k, _ in pendg)
    mixv = []; pendg = []
def wait_for(keys, extra=""):
    flush()
    last = max(i for i, k in enumerate(issued) if k in keys)
    A(f"s_waitcnt vmcnt({len(issued) - 1 - last}){extra}")
def check_regs(n, okl):
    A(f"v_cmp_eq_u64 vcc, s[{sN0}:{sN1}], v[{FLG}:{FLG+1}]")
    for i in range(1, 2 * n):
        A(f"v_cmp_eq_u64 s[{sTA}:{sTA+1}], s[{sN0}:{sN1}], v[{FLG+2*i}:{FLG+2*i+1}]")
        A(f"s_and_b64 vcc, vcc, s[{sTA}:{sTA+1}]")
    A("s_cmp_eq_u64 vcc, -1")
    A(f"s_cbranch_scc1 {okl}")
def flag_loads(offs):
    for i, (sr, imm) in enumerate(offs):
        A(f"s_add_u32 s{sTMP}, s{sr}, {imm}" if sr else f"s_mov_b32 s{sTMP}, {imm}")
        A(f"buffer_load_dwordx4 v[{FLG+4*i}:{FLG+4*i+3}], v{vFL}, s[{sWS}:{sWS+3}], s{sTMP} offen sc0 sc1")
def spin_flags(name, offs):
    A(f"s_mov_b32 s{sCNT}, {SPIN}")
    LBL(name)
    flag_loads(offs)
    A("s_waitcnt vmcnt(0)")
    A(f"s_sub_u32 s{sCNT}, s{sCNT}, 1")
    A(f"s_cbranch_scc1 {name}_ok")
    check_regs(len(offs), name + "_ok")
    A(f"s_branch {name}")
    LBL(name + "_ok")
def hi(lst):
    if P["dsprio"]: A(f"s_setprio {P['dsprio']}")
    for d in lst: A(d)
    if P["dsprio"]: A(f"s_setprio {P['lprio']}")
if P["nodma"]: issued.extend([0, 1, 2, 3, 4])
EARLY1 = [dw(SPARE + hh*4096, sWN, TAPS[("G00", 0)][3], hh) for hh in (0, 1)]
for tok in P["pro"].split("."):
    if tok[0] == "D":
        f = tok[1:].split(":"); st = int(f[0]); gs = stage_groups(st) if st < 4 else dma_wp(0, 1) + EARLY1
        lo, hi_ = (int(f[1]), int(f[2])) if len(f) > 1 else (seen[st], len(gs))
        assert lo == seen[st]; seen[st] = min(hi_, len(gs))
        assert st < 3 or period >= st - 1
        pendg += [(st, g) for g in gs[lo:hi_]]
        continue
    if tok[0] == "T":
        if not tdone[0]: flush(); tsetup(); tdone[0] = True
        c = int(tok[1])
        if P["touch"]: pendg.append(("t", touch_g(c >> 1, c & 1, tok[2:], True)))
        continue
    flush()
    if tok[0] == "S":
        pstamp(2)
        if not tdone[0]: tsetup(); tdone[0] = True
        lsetup()
    elif tok[0] == "P":
        if not tdone[0]: tsetup(); tdone[0] = True
        A(f"s_lshr_b32 s{sTMP}, s{sWAVE}, 1")
        A(f"s_lshl_b32 s{sTMP}, s{sTMP}, 17")
        A(f"buffer_load_dwordx4 v[{WA}:{WA+3}], v{vPL}, s[{sW}:{sW+3}], s{sTMP} offen")
        A(f"s_add_u32 s{sTMP}, s{sTMP}, {2*131072}")
        A(f"buffer_load_dwordx4 v[{WB}:{WB+3}], v{vPL}, s[{sW}:{sW+3}], s{sTMP} offen")
        issued.extend(["p", "p"])
    elif tok[0] == "R":
        assert period == 2
        hi(rd_u1(vLIN, SLOT))
    elif tok[0] == "V":
        A("s_waitcnt lgkmcnt(0)")
        mixv = vadd(range(int(tok[1]), int(tok[2])))
    elif tok[0] == "A":
        wait_for(["p"])
        for t in addbf_list(WA, WA, WB, TT, True): A(t)
        A(f"s_mov_b32 s{sTMP}, {WP_OFF}")
        A(f"buffer_store_dwordx4 v[{WA}:{WA+3}], v{vPS}, s[{sWS}:{sWS+3}], s{sTMP} offen sc0 sc1")
        A(f"buffer_load_dwordx2 v[{NON}:{NON+1}], v{vZ}, s[{sDBG}:{sDBG+3}], 0 offen sc0 sc1")
        issued.extend(["s", "n"])
    elif tok[0] == "F":
        wait_for(["s", "n"])
        A(f"s_mov_b32 s{sCNT}, {SPIN}")
        LBL("L_cn")
        A(f"v_readfirstlane_b32 s{sN0}, v{NON}")
        A(f"v_readfirstlane_b32 s{sN1}, v{NON+1}")
        A(f"s_cmp_lg_u32 s{sN0}, 0")
        A("s_cbranch_scc1 L_cn_ok")
        A(f"s_sub_u32 s{sCNT}, s{sCNT}, 1")
        A("s_cbranch_scc1 L_cn_ok")
        A(f"buffer_load_dwordx2 v[{NON}:{NON+1}], v{vZ}, s[{sDBG}:{sDBG+3}], 0 offen sc0 sc1")
        A("s_waitcnt vmcnt(0)")
        A("s_branch L_cn")
        LBL("L_cn_ok")
        A("s_mov_b64 exec, 1")
        A(f"buffer_store_dwordx2 v[{NON}:{NON+1}], v{vZ}, s[{sWS}:{sWS+3}], s{sPF} offen sc0 sc1")
        A("s_mov_b64 exec, -1")
        A(f"v_mov_b32 v12, {MISC}")
        A(f"ds_write_b64 v12, v[{NON}:{NON+1}]")
        issued.append("f")
        pstamp(7)
        lev(1)
    elif tok[0] == "G":
        if P["pc"]:
            A(f"buffer_load_dwordx2 v[{NON}:{NON+1}], v{vZ}, s[{sDBG}:{sDBG+3}], 0 offen sc0 sc1"); issued.append("n")
        flag_loads([(None, FL_OFF)]); issued.append("g")
    elif tok[0] == "C":
        lev(2)
        wait_for(["g"])
        if P["pc"]:
            A(f"s_mov_b32 s{sCNT}, {SPIN}")
            LBL("L_ln")
            A(f"v_readfirstlane_b32 s{sN0}, v{NON}")
            A(f"v_readfirstlane_b32 s{sN1}, v{NON+1}")
            A(f"s_cmp_lg_u32 s{sN0}, 0")
            A("s_cbranch_scc1 L_ln_ok")
            A(f"s_sub_u32 s{sCNT}, s{sCNT}, 1")
            A("s_cbranch_scc1 L_ln_ok")
            A(f"buffer_load_dwordx2 v[{NON}:{NON+1}], v{vZ}, s[{sDBG}:{sDBG+3}], 0 offen sc0 sc1")
            A("s_waitcnt vmcnt(0)")
            A("s_branch L_ln")
            LBL("L_ln_ok")
            A("s_nop 0")
        check_regs(1, "L_spin0_ok")
        spin_flags("L_spin0", [(None, FL_OFF)])
        lev(3)
    elif tok[0] == "W":
        assert period == 3
        hi(wr_v(vLIN, SLOT)[:P["wsplit"]] + rd_u0(vLIN2, 0))
    elif tok[0] == "B":
        assert seen[period] == len(stage_groups(period))
        if period == 0: pstamp(3)
        wait_for([period], " lgkmcnt(0)" if period >= 1 else "")
        if period == 0: pstamp(4)
        if period == 1:
            A(f"v_add_u32 v{vU0B}, {2*SLOT}, v{vU0B}")
            A(f"v_add_u32 v{vU0B+1}, {2*SLOT}, v{vU0B+1}")
        if period == 3:
            assert seen[4] == 10
            A("s_branch L_join")
            break
        A("s_barrier")
        if period < 2: pstamp(5 + period)
        if period == 0: hi(rd_u0(vLIN, 0))
        period += 1
        CM(f"P({period-1})")
n_after_wp = len(issued) - 1 - max(i for i, k in enumerate(issued) if k == 4) + 2

cur[0] = "lloop"
lb_n = [0]
def lbar():
    k = lb_n[0]; lb_n[0] += 1
    if P["lst"] >= 0 and not P["fine"]:
        A(f"s_cmp_lg_u32 s{sD}, {P['lst'] + 1}")
        A(f"s_cbranch_scc1 L_nb{k}")
        A(f"s_memtime s[{76+4*k}:{77+4*k}]")
        A("s_barrier")
        A(f"s_memtime s[{78+4*k}:{79+4*k}]")
        A(f"s_branch L_nc{k}")
        LBL(f"L_nb{k}")
        A("s_barrier")
        LBL(f"L_nc{k}")
    else:
        A("s_barrier")
nt = 1 if P["touch"] else 0
assert P["nodma"] or n_after_wp >= 2 + nt, n_after_wp
fs_n = [0]
def fs(on):
    if P["fine"] and on and fs_n[0] < 12:
        k = fs_n[0]; fs_n[0] += 1
        A(f"s_cmp_lg_u32 s{sD}, {P['lst'] + 1}")
        A(f"s_cbranch_scc1 L_nb{k}")
        A(f"s_memtime s[{76+2*k}:{77+2*k}]")
        LBL(f"L_nb{k}")
LBL("L_lloop")
for par in (1, 0):
    npar = 1 - par
    CM(f"P(3c-1) par={par}: W'(c-1) -> slot1, v(c-1) writes, u0(c) read, early G00(c+1) s3")
    ds = wr_v(vLIN, SLOT)[:P["wsplit"]] + ([] if P["u0late"] else rd_u0(vLIN2, 0))
    late_w = wr_v(vLIN, SLOT)[P["wsplit"]:]
    if par == 1:
        A(f"s_cmp_eq_u32 s{sD}, 3")
        A("s_cbranch_scc1 L_last")
    early = [dw((SPARE if par == 1 else 2*SLOT + WOFF + tile(0, 3)) + hh*4096, sWN if par else sWO, TAPS[("G00", npar)][3], hh) for hh in (0, 1)]
    gs = dma_wp(npar, 1) + early
    k = P["dsat"]
    on = par == 0
    fs(on)
    emit_groups(gs[:k])
    fs(on)
    rest = gs[k:]
    if P["dsprio"]: A(f"s_setprio {P['dsprio']}")
    for i, d in enumerate(ds):
        A(d)
        if i % 2 == 1:
            fs(on)
            if rest and P["dsmix"]: emit_groups([rest.pop(0)])
    if P["dsprio"]: A(f"s_setprio {P['lprio']}")
    fs(on)
    emit_groups(rest)
    fs(on)
    if P["u0late"]:
        for d in rd_u0(vLIN2, 0): A(d)
    if nt: emit_groups([touch_g(1, par)])
    fs(on)
    A(f"s_waitcnt lgkmcnt(0)")
    fs(on)
    A(f"s_waitcnt vmcnt({10 + nt})")
    fs(on)
    fs(on)
    if par == 1: LBL("L_join")
    A(f"s_mov_b32 s{sPO}, s{sWO}")
    if par == 1:
        A(f"s_add_u32 s{sD}, s{sD}, 1")
        A(f"s_mov_b32 s{sWO}, s{sWN}")
        A(f"s_add_u32 s{sWN}, s{sWN}, 32768")
        A(f"s_cmp_eq_u32 s{sD}, 3")
        A(f"s_cselect_b32 s{sWN}, {OOB}, s{sWN}")
        A(f"s_add_u32 s{sXO}, s{sXO}, 128")
    lbar()
    CM(f"P(3c) par={par}: G00(c+1) -> slot2, u1(c) read, v part 1")
    dma_tail1(2, npar)
    gs = dma_x(2, npar) + dma_w(2, TAPS[("G00", npar)], ss=(0, 1, 2))
    k = P["dsat"]
    k = P["dsat2"]
    emit_groups(gs[:k])
    if P["dsprio"]: A(f"s_setprio {P['dsprio']}")
    for d in late_w + rd_u1(vLIN, 0): A(d)
    if P["dsprio"]: A(f"s_setprio {P['lprio']}")
    emit_groups(gs[k:k+1])
    A("s_waitcnt lgkmcnt(0)")
    mix(vadd(range(P["vsplit"])), gs[k+1:])
    A(f"s_waitcnt vmcnt({12 + nt})")
    lbar()
    CM(f"P(3c+1) par={par}: G11(c+1) -> slot0, v part 2")
    gs = dma_x(0, 2 + npar) + dma_w(0, TAPS[("G11", npar)], ss=(0, 1, 2))
    if par == 0: gs += dma_w(0, TAPS[("G11", 0)], ss=(3,), so=sWN)
    if par == 1:
        A(f"s_cmp_lg_u32 s{sD}, 1")
        A("s_cbranch_scc1 L_nf2")
        flag_loads([(sFO, 0), (sFO, 1024)])
        LBL("L_nf2")
    mix(vadd(range(P["vsplit"], 4)), gs)
    A(f"s_waitcnt vmcnt({len(gs)})")
    if par == 1:
        A(f"s_cmp_lg_u32 s{sD}, 1")
        A("s_cbranch_scc1 L_nf3")
        lev(4)
        check_regs(2, "L_spin1_ok")
        spin_flags("L_spin1", [(sFO, 0), (sFO, 1024)])
        lev(5)
        LBL("L_nf3")
    lbar()
A("s_branch L_lloop")
cur[0] = "llast"
LBL("L_last")
CM("P(20): W'(6) -> slot1, v(6) writes, u0(7) read")
hi(wr_v(vLIN, SLOT)[:P["wsplit"]])
emit_groups(dma_wp(0, 1))
for d in rd_u0(vLIN2, 0): A(d)
srd(sGA, 36, 512)
srd(sBE, 38, 512)
A("s_waitcnt vmcnt(8) lgkmcnt(0)")
A("s_barrier")
CM("P(21): W'(7) -> slot2, u1(7) read, v part 1")
gs = dma_wp(1, 2, True)
hi(wr_v(vLIN, SLOT)[P["wsplit"]:] + rd_u1(vLIN, 0))
emit_groups(gs[:1])
A("s_waitcnt lgkmcnt(0)")
mix(vadd(range(3)), gs[1:])
A("v_and_b32 v10, 15, v0")
A(f"s_lshl_b32 s{sTMP}, s{sNT}, 2")
A(f"s_add_u32 s{sTMP}, s{sTMP}, s{sWAVE}")
A(f"s_lshl_b32 s{sTMP}, s{sTMP}, 5")
A("v_lshlrev_b32 v14, 1, v10")
A(f"buffer_load_ushort v{GAM}, v14, s[{sGA}:{sGA+3}], s{sTMP} offen")
A(f"buffer_load_ushort v{GAM+1}, v14, s[{sBE}:{sBE+3}], s{sTMP} offen")
A("s_waitcnt vmcnt(10) lgkmcnt(0)")
A("s_barrier")
CM("P(22)")
wv = wr_v(vLIN2, 0)
for t in vadd(range(3, 4)): A(t)
hi(wv)
A("s_waitcnt vmcnt(2) lgkmcnt(0)")
A("s_barrier")
A("v_lshrrev_b32 v11, 4, v0")
A("v_lshlrev_b32 v12, 4, v10")
A("v_lshl_add_u32 v12, v11, 10, v12")
A("s_waitcnt vmcnt(0)")
A(f"v_lshlrev_b32 v{GAM}, 16, v{GAM}")
A(f"v_lshlrev_b32 v{GAM+1}, 16, v{GAM+1}")
if P["lprio"]: A("s_setprio 0")
A(f"s_add_u32 s{sWAVE}, s{sWAVE}, 4")
A("s_barrier")
def final_addr():
    A("v_lshrrev_b32 v6, 3, v0")
    A("v_and_b32 v8, 7, v0")
    A(f"s_lshl_b32 s{sTMP}, s{sWAVE}, 5")
    A(f"v_add_u32 v6, s{sTMP}, v6")
    A("v_bfe_u32 v2, v0, 4, 1")
    A("v_lshl_or_b32 v2, v2, 3, v8")
    A(f"s_lshl_b32 s{sTMP}, s{sWAVE}, 1")
    A(f"s_and_b32 s{sTMP}, s{sTMP}, 7")
    A(f"v_xor_b32 v2, s{sTMP}, v2")
    A("v_lshlrev_b32 v2, 4, v2")
    A("v_lshl_add_u32 v2, v6, 8, v2")
    A("v_xor_b32 v3, 0x80, v2")
    A("v_xor_b32 v4, 0x10, v2")
    A("v_xor_b32 v5, 0x90, v2")
    A("v_lshlrev_b32 v6, 9, v6")
    A("v_lshl_add_u32 v6, v8, 4, v6")
    A(f"s_lshl_b32 s{sTMP}, s{sNT}, 7")
    A(f"v_add_u32 v6, s{sTMP}, v6")
    A("v_add_u32 v7, 0x2000, v6")
    A("v_lshlrev_b32 v8, 5, v8")
    A(f"v_add_u32 v8, {MISC+64}, v8")
Y = 112
def y_reads():
    for n in range(4):
        for h in range(2):
            A(f"ds_read_b128 v[{Y+8*n+4*h}:{Y+8*n+4*h+3}], v{2 + h + 2*(n >> 1)} offset:{n*2048}")
final_addr()
A("s_barrier")
stamp(1)
PG = 16
A(f"s_mov_b32 s{sCNT}, {SPIN}")
LBL("L_poll")
for i in range(8):
    so = f"s{sGR}" if i == 0 else f"s{sTMP}"
    if i: A(f"s_add_u32 s{sTMP}, s{sGR}, {i*4096}")
    A(f"buffer_load_dwordx4 v[{PG+4*i}:{PG+4*i+3}], v12, s[{sWS}:{sWS+3}], {so} offen sc0 sc1")
y_reads()
A(f"s_mov_b64 s[{sTA}:{sTA+1}], -1")
for i in range(8):
    A(f"s_waitcnt vmcnt({7-i})")
    A(f"v_cmp_eq_u64 vcc, s[{sN0}:{sN1}], v[{PG+4*i+2}:{PG+4*i+3}]")
    A(f"s_and_b64 s[{sTA}:{sTA+1}], s[{sTA}:{sTA+1}], vcc")
A(f"s_sub_u32 s{sCNT}, s{sCNT}, 1")
A("s_cbranch_scc1 L_poll_ok")
A(f"s_cmp_eq_u64 s[{sTA}:{sTA+1}], -1")
A("s_cbranch_scc0 L_poll")
LBL("L_poll_ok")
stamp(2)
for st in (4, 2, 1):
    for i in range(st):
        pk("add", PG+4*i, PG+4*i, PG+4*(i+st))
for sw in ("v_permlane32_swap_b32", "v_permlane16_swap_b32"):
    A(f"v_mov_b32 v{PG+2}, v{PG}")
    A(f"v_mov_b32 v{PG+3}, v{PG+1}")
    A("s_nop 1")
    A(f"{sw} v{PG}, v{PG+2}")
    A(f"{sw} v{PG+1}, v{PG+3}")
    A("s_nop 1")
    pk("add", PG, PG, PG+2)
A(f"v_mul_f32 v{PG}, {f32(1.0/7993)}, v{PG}")
A(f"v_mul_f32 v{PG+1}, {f32(1.0/7993)}, v{PG+1}")
A(f"v_fma_f32 v{PG+1}, -v{PG}, v{PG}, v{PG+1}")
A(f"v_max_f32 v{PG+1}, 0, v{PG+1}")
A(f"v_add_f32 v{PG+1}, {f32(1e-5)}, v{PG+1}")
A(f"v_rsq_f32 v{PG+1}, v{PG+1}")
A(f"s_lshl_b32 s{sTMP}, s{sWAVE}, 6")
A(f"s_add_u32 s{sTMP}, s{sTMP}, {MISC+64-256}")
A(f"v_mul_f32 v{PG+1}, v{PG+1}, v{GAM}")
A(f"v_lshl_add_u32 v10, v10, 2, s{sTMP}")
A(f"v_fma_f32 v{PG}, -v{PG}, v{PG+1}, v{GAM+1}")
A(f"ds_write_b32 v10, v{PG+1}")
A(f"ds_write_b32 v10, v{PG} offset:256")

cur[0] = "final"
LBL("L_final")
k0 = -2.0 * math.sqrt(2.0 / math.pi) * math.log2(math.e)
k1 = k0 * 0.044715
A(f"s_mov_b32 s{sK+2}, {f32(k1)}")
A(f"s_mov_b32 s{sK+3}, {f32(k1)}")
A(f"s_mov_b32 s{sK+4}, 4096")
A(f"v_mov_b32 v56, {f32(k0)}")
A(f"v_mov_b32 v57, {f32(k0)}")
A("s_waitcnt lgkmcnt(0)")
A("s_barrier")
dbg_time(5, 252)
stamp(4)
CA, CC = 16, 24
A(f"ds_read_b128 v[{CA}:{CA+3}], v8")
A(f"ds_read_b128 v[{CC}:{CC+3}], v8 offset:256")
A(f"ds_read_b128 v[{CA+4}:{CA+7}], v8 offset:16")
A(f"ds_read_b128 v[{CC+4}:{CC+7}], v8 offset:272")
A("s_waitcnt lgkmcnt(0)")
Z, U = 32, 40
for n in range(4):
    y = Y + 8 * n
    for h in range(0, 8, 2): pk("fma", y+h, y+h, CA+h, c=CC+h)
    for h in range(0, 8, 2): pk("mul", U+h, y+h, y+h)
    for h in range(0, 8, 2): A(f"v_pk_fma_f32 v[{U+h}:{U+h+1}], v[{U+h}:{U+h+1}], s[{sK+2}:{sK+3}], v[56:57]")
    for h in range(0, 8, 2): pk("mul", U+h, U+h, y+h)
    for h in range(8): A(f"v_exp_f32 v{U+h}, v{U+h}")
    for h in range(0, 8, 2): A(f"v_pk_add_f32 v[{U+h}:{U+h+1}], v[{U+h}:{U+h+1}], 1.0 op_sel_hi:[1,0]")
    for h in range(8): A(f"v_rcp_f32 v{U+h}, v{U+h}")
    for h in range(0, 8, 2): pk("mul", y+h, y+h, U+h)
    o = Z + 4 * (n & 1)
    for h in range(4): A(f"v_cvt_pk_bf16_f32 v{o+h}, v{y+2*h}, v{y+2*h+1}")
    A(f"buffer_store_dwordx4 v[{o}:{o+3}], v{6 if n < 2 else 7}, s[{sO}:{sO+3}], {'0' if n % 2 == 0 else 's'+str(sK+4)} offen" + ["", " nt", " sc1", " sc0 sc1", " sc0 sc1 nt"][P["stf"]])
dbg_time(2, 252, True)
if P["stamps"]:
    stamp(5)
    A("s_waitcnt vmcnt(0)")
    stamp(6)
    A("s_waitcnt lgkmcnt(0)")
    A(f"s_mov_b32 s{sWS+2}, 0x1000000")
    A(f"s_lshl_b32 s{sTMP}, s2, 3")
    A(f"s_add_u32 s{sTMP}, s{sTMP}, s{sWAVE}")
    A(f"s_lshl_b32 s{sTMP}, s{sTMP}, 5")
    A(f"s_add_u32 s{sTMP}, s{sTMP}, 0x200000")
    A("v_mov_b32 v1, 0")
    if plain and not P["pst"]: A("s_sub_u32 s90, s94, s92")
    if P["bst"]:
        A(f"s_cmp_ge_u32 s{sWAVE}, 4")
        A("s_cselect_b32 s76, s94, s76")
    for k in range(8): A(f"v_mov_b32 v{2+k}, s{sST+(k if P['cst'] or P['bst'] else 2*k)}")
    A("s_mov_b64 exec, 1")
    if P["sst"] >= 0:
        for k in range(12): A(f"v_mov_b32 v{2+k}, v{244+k}")
        A(f"s_add_u32 s{sCNT}, s{sTMP}, 0x100000")
        A(f"buffer_store_dwordx4 v[10:13], v1, s[{sWS}:{sWS+3}], s{sCNT} offen")
    if P["lst"] >= 0 or P["cst"] or P["bst"]:
        for k in range(4): A(f"v_mov_b32 v{10+k}, s{sST+8+k if P['cst'] or P['bst'] else sST+16+2*k}")
        A(f"s_add_u32 s{sCNT}, s{sTMP}, 0x100000")
        A(f"buffer_store_dwordx4 v[10:13], v1, s[{sWS}:{sWS+3}], s{sCNT} offen")
    A(f"buffer_store_dwordx4 v[2:5], v1, s[{sWS}:{sWS+3}], s{sTMP} offen")
    A(f"buffer_store_dwordx4 v[6:9], v1, s[{sWS}:{sWS+3}], s{sTMP} offen offset:16")
if P["dbgt"] == 2:
    A(f"s_cmp_lg_u32 s{sWAVE}, 0")
    A("s_cbranch_scc1 L_end")
    A("s_cmp_eq_u32 s2, 0")
    A(f"s_cselect_b32 s{sTMP}, 8, 36")
    A("s_cbranch_scc1 L_dd")
    A("s_cmp_lg_u32 s2, 77")
    A("s_cbranch_scc1 L_end")
    LBL("L_dd")
    for k in range(1, 7): A(f"v_subrev_u32 v{2+k}, v2, v{2+k}")
    A(f"buffer_store_dwordx4 v[2:5], v1, s[{sDBG}:{sDBG+3}], s{sTMP} offen")
    A(f"buffer_store_dwordx3 v[6:8], v1, s[{sDBG}:{sDBG+3}], s{sTMP} offen offset:16")
LBL("L_end")
A("s_endpgm")

cur[0] = "cpro"
LBL("L_compute")
G00, G11, GS = 16, 48, 80
SETS = [112, 172]
def vXR(slot, hh): return 1 + slot * 5 + hh
def vXS(slot, hh): return 3 + slot * 5 + hh
def vWR(slot): return 5 + slot * 5
T = 232
vW3, vW3C = 240, 241
WA, WB, WT_ = 244, 248, 224
A(f"s_lshr_b32 s{sWAVE}, s{sWAVE}, 6")
A(f"s_memrealtime s[{sN0}:{sN1}]")
A(f"v_mov_b32 v{T+3}, 0")
CWA, CWB = 244, 248
if P["pc"]:
    A(f"v_lshrrev_b32 v{T}, 5, v0")
    A(f"s_lshl_b32 s{sTMP}, s{sWAVE}, 1")
    A(f"v_add_u32 v{T}, s{sTMP}, v{T}")
    A(f"v_and_b32 v{T+1}, 31, v0")
    A(f"v_lshlrev_b32 v{T+1}, 4, v{T+1}")
    A(f"s_lshl_b32 s{sTMP}, s2, 9")
    A(f"v_add_u32 v{T+1}, s{sTMP}, v{T+1}")
    A(f"v_lshl_add_u32 v{T+2}, v{T}, 17, v{T+1}")
    A(f"v_and_b32 v{T}, 3, v{T}")
    A(f"v_lshl_add_u32 v{T+1}, v{T}, 19, v{T+1}")
    A(f"s_lshr_b32 s{sTA}, s{sWAVE}, 1")
    A(f"s_lshl_b32 s{sWO}, s{sTA}, 17")
    A(f"s_add_u32 s{sWN}, s{sWO}, {2*131072}")
if P["cpf"]:
    A("s_getpc_b64 s[74:75]")
    LBL("L_pc")
    A(f"s_lshr_b32 s{sTMP}, s2, 3")
    A(f"s_lshl_b32 s{sTMP}, s{sTMP}, 9")
    A(f"s_add_u32 s74, s74, s{sTMP}")
    A("s_addc_u32 s75, s75, 0")
    A(f"s_sub_u32 s74, s74, L_pc-{KN}")
    A("s_subb_u32 s75, s75, 0")
    A(f"v_lshlrev_b32 v{T+4}, 7, v0")
A("s_waitcnt lgkmcnt(0)")
srd(sDBG, 42, 256)
A(f"s_or_b32 s{sTMP}, s2, s{sWAVE}")
A(f"s_cmp_lg_u32 s{sTMP}, 0")
A("s_cbranch_scc1 L_nononce")
A(f"s_or_b32 s{sN0}, s{sN0}, 1")
A(f"v_mov_b32 v{T+6}, s{sN0}")
A(f"v_mov_b32 v{T+7}, s{sN1}")
A("s_mov_b64 exec, 1")
A(f"buffer_store_dwordx2 v[{T+6}:{T+7}], v{T+3}, s[{sDBG}:{sDBG+3}], 0 offen sc0 sc1")
A("s_mov_b64 exec, -1")
LBL("L_nononce")
if P["pc"]:
    srd(sW, 34, W_BYTES)
    A(f"buffer_load_dwordx4 v[{CWA}:{CWA+3}], v{T+1}, s[{sW}:{sW+3}], s{sWO} offen")
    A(f"buffer_load_dwordx4 v[{CWB}:{CWB+3}], v{T+1}, s[{sW}:{sW+3}], s{sWN} offen")
    A(f"s_lshr_b32 s{sFO}, s2, 6")
    A(f"s_lshl_b32 s{sFO}, s{sFO}, 1")
    A(f"s_add_u32 s{sFO}, s{sFO}, s{sTA}")
    A(f"s_lshl_b32 s{sFO}, s{sFO}, 10")
    A(f"s_and_b32 s{sTMP}, s2, 63")
    A(f"s_lshl_b32 s{sTMP}, s{sTMP}, 4")
    A(f"s_add_u32 s{sFO}, s{sFO}, s{sTMP}")
    A(f"s_and_b32 s{sTMP}, s{sWAVE}, 1")
    A(f"s_lshl_b32 s{sTMP}, s{sTMP}, 3")
    A(f"s_add_u32 s{sFO}, s{sFO}, s{sTMP}")
    A(f"s_add_u32 s{sFO}, s{sFO}, {FL_OFF}")
    A(f"s_mov_b32 s{sPO}, {WP_OFF}")
if P["cpf"]:
    A(f"s_cmp_lg_u32 s{sWAVE}, 0")
    A("s_cbranch_scc1 L_nocpf")
    A("s_mov_b64 exec, 15")
    A(f"global_load_dword v{T+5}, v{T+4}, s[74:75]")
    A("s_mov_b64 exec, -1")
    LBL("L_nocpf")
srd(sWS, 44, WS_BYTES)
out_srd()
A(f"s_mov_b32 s{sMID}, 0x7fff7fff")
A(f"s_cselect_b32 s{sMID}, s{sMID}, -1")
A(f"s_mov_b32 s{sMID+1}, s{sMID}")
granule_off()
A(f"s_lshl_b32 s{sTMP}, s{sT}, 10")
A(f"s_add_u32 s{sGR}, s{sGR}, s{sTMP}")
R, G_, X1, X2 = 120, 121, 122, 124
A(f"v_and_b32 v{R}, 15, v0")
A(f"v_lshrrev_b32 v{G_}, 4, v0")
swz(X1, R, X2)
A(f"v_xor_b32 v{X1}, v{X1}, v{G_}")
A(f"v_lshlrev_b32 v{X1}, 4, v{X1}")
A(f"v_lshl_add_u32 v{vXR(0,0)}, v{R}, 7, v{X1}")
A(f"v_add_u32 v{X1+1}, 1, v{R}")
swz(X1, X1+1, X2)
A(f"v_xor_b32 v{X1}, v{X1}, v{G_}")
A(f"v_lshlrev_b32 v{X1}, 4, v{X1}")
A(f"v_lshl_add_u32 v{vXS(0,0)}, v{X1+1}, 7, v{X1}")
A(f"v_add_u32 v{X1}, 0x4000, v{X1}")
A(f"v_cmp_eq_u32 vcc, 15, v{R}")
A(f"v_bfe_u32 v{X2}, v0, 2, 2")
A(f"v_cndmask_b32 v{vXS(0,0)}, v{vXS(0,0)}, v{X1}, vcc")
A(f"v_xor_b32 v{vXR(0,1)}, 64, v{vXR(0,0)}")
A(f"v_xor_b32 v{vXS(0,1)}, 64, v{vXS(0,0)}")
A(f"v_lshl_add_u32 v{X1}, v{G_}, 3, v{X2}")
A(f"v_lshlrev_b32 v{X1}, 7, v{X1}")
A(f"v_lshrrev_b32 v{X2}, 1, v{X2}")
A(f"v_and_b32 v{X2+1}, 1, v{G_}")
A(f"v_lshl_or_b32 v{X2}, v{X2+1}, 1, v{X2}")
A(f"v_xor_b32 v{X2}, s{sWAVE}, v{X2}")
A(f"v_lshl_add_u32 v{X1}, v{X2}, 5, v{X1}")
A(f"v_and_b32 v{X2}, 3, v0")
A(f"v_lshl_add_u32 v{X1}, v{X2}, 3, v{X1}")
A(f"v_add_u32 v{vWR(0)}, {WOFF}, v{X1}")
A(f"v_add_u32 v{vW3}, {WOFF + tile(0,3)}, v{X1}")
A(f"v_lshlrev_b32 v{vW3C}, 1, v{X1}")
A(f"v_add_u32 v{vW3C}, {2*SLOT + WOFF + tile(0,3) + SPARE}, v{vW3C}")
for k in range(1, 6):
    A(f"v_add_u32 v{k+5}, {SLOT}, v{k}")
    A(f"v_add_u32 v{k+10}, {2*SLOT}, v{k}")
for i in range(0, 96, 2):
    A(f"v_pk_mov_b32 v[{16+i}:{17+i}], 0, 0")
if P["pc"]:
    A("s_waitcnt vmcnt(0)")
    for t in addbf_list(CWA, CWA, CWB, 224, True): A(t)
    A(f"buffer_store_dwordx4 v[{CWA}:{CWA+3}], v{T+2}, s[{sWS}:{sWS+3}], s{sPO} offen sc0 sc1")
    A(f"buffer_load_dwordx2 v[238:239], v{T+3}, s[{sDBG}:{sDBG+3}], 0 offen sc0 sc1")
def c_flag():
    A(f"s_mov_b32 s{sTMP}, {SPIN}")
    LBL("L_cn")
    A("s_waitcnt vmcnt(0)")
    A(f"v_readfirstlane_b32 s{sN0}, v238")
    A(f"s_sub_u32 s{sTMP}, s{sTMP}, 1")
    A("s_cbranch_scc1 L_cn_ok")
    A(f"s_cmp_lg_u32 s{sN0}, 0")
    A("s_cbranch_scc1 L_cn_ok")
    A(f"buffer_load_dwordx2 v[238:239], v{T+3}, s[{sDBG}:{sDBG+3}], 0 offen sc0 sc1")
    A("s_branch L_cn")
    LBL("L_cn_ok")
    A("s_mov_b64 exec, 1")
    A(f"buffer_store_dwordx2 v[238:239], v{T+3}, s[{sWS}:{sWS+3}], s{sFO} offen sc0 sc1")
    A("s_mov_b64 exec, -1")
if P["pc"] and P["pflag"] < 0: c_flag()
if P["prio"]: A(f"s_setprio {P['prio']}")

def reads(role, hh, st):
    xb = SETS[st]; wb = xb + 44
    def xr(q):
        if q < 8: return (("X", q), f"ds_read_b128 v[{xb+4*q}:{xb+4*q+3}], v{vXR(role,hh)} offset:{q*2048}")
        return (("X", q), f"ds_read_b128 v[{xb+4*q}:{xb+4*q+3}], v{vXS(role,hh)} offset:{(q-8)*2048}")
    def wr(s, h):
        if role == 0 and s == 3:
            return (("W", s), f"ds_read_b64_tr_b16 v[{wb+4*s+2*h}:{wb+4*s+2*h+1}], v{vW3} offset:{hh*4096 + h*512}")
        return (("W", s), f"ds_read_b64_tr_b16 v[{wb+4*s+2*h}:{wb+4*s+2*h+1}], v{vWR(role)} offset:{tile(hh, s) + h*512}")
    r = [wr(0, 0), wr(0, 1)] + [xr(q) for q in range(8)]
    for s in range(1, 4):
        r += [wr(s, 0), wr(s, 1), xr(7 + s)]
    return r
def mfma_list(acc, st):
    xb = SETS[st]; wb = xb + 44
    out = []
    for s in range(4):
        for j in range(8):
            d = f"v[{acc+4*j}:{acc+4*j+3}]"
            out.append(([("W", s), ("X", j+s)], f"v_mfma_f32_16x16x32_bf16 {d}, v[{wb+4*s}:{wb+4*s+3}], v[{xb+4*(j+s)}:{xb+4*(j+s)+3}], {d}"))
    return out
pending = []
bs_n = [0]
def bstamp():
    if not P["bst"]: return
    k = bs_n[0]; bs_n[0] += 1
    A("s_cselect_b32 s97, 1, 0")
    A("s_memrealtime s[100:101]")
    A("s_waitcnt lgkmcnt(0)")
    A("s_min_u32 m0, s96, 12")
    A("s_add_u32 s96, s96, 1")
    A("s_movreld_b32 s76, s100")
    A("s_cmp_lg_u32 s97, 0")
ss_n = [0]
def sstamp():
    if P["sst"] < 0 or ss_n[0] >= 12: return
    k = ss_n[0]; ss_n[0] += 1
    A(f"s_memtime s[{76+2*k}:{77+2*k}]")
def seq(acc, st, rd, barrier, skip_label=None, extra=None, delay=0):
    global pending
    nm = 24 if skip_label else 32
    m = mfma_list(acc, st)
    rd = [] if P["nords"] else list(rd)
    first = max(P["barslot"], delay) if barrier else P["rd_first"] - 1
    last = max(min(P["rd_last"] + (first if barrier else 0), nm - P["rd_gap"]), first + len(rd) - 1) if rd else 0
    slots = [first + (k * (last - first)) // max(len(rd) - 1, 1) for k in range(len(rd))]
    cur_ = list(pending); newer = 0
    nxt = []
    for i, (need, ins) in enumerate(m):
        if i == 24 and skip_label:
            A(f"s_cbranch_scc1 {skip_label}")
        if i % 16 == 0:
            need = [k for nd, _ in m[i:i+16] for k in nd]
            if barrier and i == 0: need = [k for nd, _ in m[:P["barslot"]+1] for k in nd]
            idx = max([k for k, key in enumerate(cur_) if key in need], default=-1)
            if idx >= 0:
                n = len(cur_) - 1 - idx + newer
                if n < 15: A(f"s_waitcnt lgkmcnt({n})")
                cur_ = cur_[idx+1:]
        A(ins)
        if barrier and i == P["barslot"]:
            if cur_: A("s_waitcnt lgkmcnt(0)"); cur_ = []
            sstamp()
            A("s_barrier")
            sstamp()
            bstamp()
        while rd and slots[len(nxt)] <= i:
            key, s = rd.pop(0); A(s); nxt.append(key); newer += 1
        if extra and i in extra:
            for s in extra[i]: A(s)
    assert not rd
    if skip_label: LBL(skip_label)
    pending = nxt
    sstamp()
if P["bst"]: A("s_mov_b32 s96, 0")
A("s_barrier")
bstamp()
dbg_time(3, 252)
stamp(1)
if plain: A("s_memtime s[92:93]"); A("s_waitcnt lgkmcnt(0)")
r0 = reads(0, 0, 0)
for _, s in r0: A(s)
pending = [k for k, _ in r0]
A(f"s_mov_b32 s{sCNT}, 0")
A("s_branch L_cloop")

cur[0] = "cloop"
def cstamp(idx=None):
    if not P["cst"]: return
    A("s_memtime s[100:101]")
    A("s_waitcnt lgkmcnt(0)")
    if idx is None:
        A(f"s_mov_b32 m0, s{sCNT}")
        A("s_nop 0")
        A("s_movreld_b32 s76, s100")
    else:
        A(f"s_mov_b32 s{76+idx}, s100")
LBL("L_cloop")
if P["sst"] >= 0:
    A(f"s_cmp_lg_u32 s{sCNT}, {P['sst'] + 1}")
    A("s_cbranch_scc1 L_nss")
    A("s_waitcnt lgkmcnt(0)")
    for k in range(12): A(f"v_mov_b32 v{244+k}, s{76+2*k}")
    LBL("L_nss")
cstamp()
seq(G00, 0, reads(0, 1, 1), False)
def hook(k):
    if P["pc"] and P["pflag"] == k:
        A(f"s_cmp_eq_u32 s{sCNT}, 0")
        A("s_cbranch_scc1 L_hook")
        LBL("L_hookr")
hook(0)
seq(G00, 1, reads(1, 0, 0), True, extra={28: [f"v_sub_u32 v{vW3}, v{vW3C}, v{vW3}"]}, delay=P["dly0"])
hook(1)
A(f"s_bitcmp1_b32 s{sCNT}, 0")
seq(G11, 0, reads(1, 1, 1), False, "L_skipa")
seq(G11, 1, reads(2, 0, 0), True, "L_skipb")
A(f"s_cmp_eq_u32 s{sCNT}, 0")
A("s_cbranch_scc1 L_cfirst")
LBL("L_gs")
seq(GS, 0, reads(2, 1, 1), False)
A(f"s_add_u32 s{sCNT}, s{sCNT}, 1")
A(f"s_cmp_lt_u32 s{sCNT}, 8")
seq(GS, 1, reads(0, 0, 0), True, delay=P["dly2"])
A("s_cbranch_scc1 L_cloop")
A(f"s_cmp_eq_u32 s{sCNT}, 9")
A("s_cbranch_scc1 L_cdone")
cstamp(8)
for k in range(11, 16): A(f"v_mov_b32 v{k}, v{k-10}")
A("s_branch L_gs")
LBL("L_cfirst")
dbg_time(6, 252)
stamp(3)
for k in range(1, 6):
    A(f"v_add_u32 v{k}, {2*SLOT}, v{k}")
    A(f"v_subrev_u32 v{k+5}, {SLOT}, v{k+5}")
    A(f"v_subrev_u32 v{k+10}, {SLOT}, v{k+10}")
A(f"v_add_u32 v{vW3}, {tile(0,3)}, v5")
A(f"s_mov_b32 s{sCNT}, 1")
A("s_branch L_cloop")
if P["pc"] and P["pflag"] >= 0:
    LBL("L_hook")
    c_flag()
    A("s_branch L_hookr")
cur[0] = "cepi"
LBL("L_cdone")
dbg_time(4, 252)
cstamp(9)
stamp(2)
if plain: A("s_memtime s[94:95]")
if P["prio"]: A("s_setprio 0")
if not P["pc"]:
    A(f"v_mov_b32 v10, {MISC}")
    A("ds_read_b64 v[238:239], v10")
for i in range(4):
    A(f"v_mov_b32_dpp v{T+i}, v{G00+i} row_shl:1 row_mask:0xf bank_mask:0xf bound_ctrl:0")
A("s_nop 4")
for j in range(8):
    for h in (0, 2):
        pk("add", GS+4*j+h, GS+4*j+h, G11+4*j+h, neg=True)
for j in range(8):
    for h in (0, 2):
        nx = G00+4*(j+1)+h if j < 7 else T+h
        pk("add", GS+4*j+h, GS+4*j+h, nx, neg=True)
        pk("add", G11+4*j+h, G11+4*j+h, G00+4*j+h)
def yreg(idx): return (G11 if idx % 2 == 0 else GS) + 4 * (idx // 2)
S1, S2 = 16, 20
for h in (0, 2):
    pk("add", S1+h, yreg(0)+h, yreg(1)+h)
    pk("mul", S2+h, yreg(0)+h, yreg(0)+h)
for idx in range(1, 16):
    if idx == 3: A(f"s_mov_b64 exec, s[{sMID}:{sMID+1}]")
    if idx == 10:
        A("s_mov_b32 exec_lo, 0x7fff7fff")
        A("s_mov_b32 exec_hi, 0x7fff7fff")
    for h in (0, 2):
        if idx > 1: pk("add", S1+h, S1+h, yreg(idx)+h)
        pk("fma", S2+h, yreg(idx)+h, yreg(idx)+h, c=S2+h)
A("s_mov_b64 exec, -1")
A("v_and_b32 v10, 15, v0")
A("v_lshrrev_b32 v11, 4, v0")
for sh in (8, 4, 2, 1):
    for i in range(8):
        A(f"v_add_f32_dpp v{16+i}, v{16+i}, v{16+i} row_ror:{sh} row_mask:0xf bank_mask:0xf")
A("v_lshl_add_u32 v12, v11, 2, v10")
A("v_lshlrev_b32 v12, 4, v12")
A("v_mov_b32 v236, v16")
A("v_mov_b32 v237, v20")
for i in (1, 2, 3):
    mk = (1 << i) * 0x00010001
    A(f"s_mov_b32 exec_lo, {mk:#x}")
    A(f"s_mov_b32 exec_hi, {mk:#x}")
    A(f"v_mov_b32 v236, v{16+i}")
    A(f"v_mov_b32 v237, v{20+i}")
A("s_mov_b32 exec_lo, 0x000f000f")
A("s_mov_b32 exec_hi, 0x000f000f")
A("s_waitcnt lgkmcnt(0)")
A(f"buffer_store_dwordx4 v[236:239], v12, s[{sWS}:{sWS+3}], s{sGR} offen sc0 sc1")
A("s_mov_b64 exec, -1")
A(f"s_lshl_b32 s{sTMP}, s{sWAVE}, 2")
A(f"v_add_u32 v12, s{sTMP}, v11")
A("v_lshrrev_b32 v13, 1, v12")
A("v_and_b32 v12, 1, v12")
A("v_lshl_or_b32 v12, v12, 3, v13")
A("v_and_b32 v13, 7, v10")
A("v_xor_b32 v12, v12, v13")
A("v_lshlrev_b32 v12, 4, v12")
A("v_lshl_add_u32 v12, v10, 12, v12")
A("v_xor_b32 v13, 0x80, v12")
for idx in range(16):
    j = idx // 2
    A(f"ds_write_b128 v{12 + (j & 1)}, v[{yreg(idx)}:{yreg(idx)+3}] offset:{idx*256}")
final_addr()
A("s_waitcnt lgkmcnt(0)")
A("s_barrier")
y_reads()
A("s_branch L_final")

out = [f"""; conv stem (K=15, stride 2) as a 2-parallel fast-FIR GEMM + per-channel GroupNorm + tanh GELU, one launch.
; @launch grid=(256,1,1) block=(512,1,1) lds={LDS_BYTES}
.amdgcn_target "amdgcn-amd-amdhsa--gfx950"
.text
.globl {KN}
.p2align 8
.type {KN},@function
{KN}:"""]
for sec in ("entry", "lpro", "cpro", "cloop", "lloop", "cepi", "llast", "final"):
    if sec in ("cloop", "lloop"): out.append(".p2align 6")
    out += SEC[sec]
out.append(f""".p2align 8
.fill 4096, 4, 0xbf810000
.section .rodata,"a"
.p2align 6
.amdhsa_kernel {KN}
  .amdhsa_next_free_vgpr 256
  .amdhsa_next_free_sgpr 102
  .amdhsa_accum_offset 256
  .amdhsa_group_segment_fixed_size 0
  .amdhsa_kernarg_size 64
  .amdhsa_user_sgpr_count 2
  .amdhsa_user_sgpr_kernarg_segment_ptr 1
  .amdhsa_system_sgpr_workgroup_id_x 1
.end_amdhsa_kernel""")
print("\n".join(out))
```

```python
import sys, struct, math
P = dict(prio=2, lprio=0, dsprio=3, stamps=0, novalu=0, nodma=0, nords=0, barslot=1, rd_gap=5, rdA=19, dly0=12, dly2=12,
         touch=1, lst=-1, cst=0, pst=0, sst=-1, vsplit=2, wsplit=2, cpf=1, stf=2, dbgt=0, dpp=1, u3=1, red=1, lateack=1, peel=1, pp=0,
         pro="D0.N.D1.S.B.D2.B.F.V04.D3.B.G.W.C.D4.T2ab.T3ab.B")
for a in sys.argv[1:]:
    k, v = a.split("=")
    P[k] = v if k in ("pro",) else int(v)

KN = "standalone__self_sup_conv_stem_hubert__speech_kernel"
XB = 1056
XSZ = 16 * XB + 128
WOFF = XSZ
SLOT = WOFF + 32768
SPARE = 3 * SLOT
MISC = SPARE + 8192
LDS_BYTES = MISC + 1024
X_BYTES = 2 * 16000 * 256 * 2
W_BYTES = 15 * 256 * 256 * 2
FL_OFF, WP_OFF, WS_BYTES = 0x40000, 0x80000, 0x180000
OOB = 0x40000000
SPIN = 0x4000
def tile(hh, s): return (hh * 3 + s if s < 3 else 6 + hh) * 4096

SEC = {k: [] for k in ("entry", "lpro", "lloop", "llast", "final", "cpro", "cloop", "cepi")}
cur = ["entry"]
def A(s): SEC[cur[0]].append("  " + s)
def LBL(s): SEC[cur[0]].append(s + ":")
def CM(s): SEC[cur[0]].append("  ; " + s)
def f32(x): return "0x%08x" % struct.unpack("<I", struct.pack("<f", x))[0]

sX, sW, sO, sWS, sDBG, sGA, sBE = 4, 8, 12, 16, 20, 24, 28
sWAVE, sT, sNT, sB = 46, 47, 48, 49
sWN, sXO, sWO, sPO, sTMP, sCNT, sMASK16 = 50, 51, 52, 53, 55, 56, 57
sTA = 58
sD, sXB = 60, 61
sN0, sN1 = 62, 63
sMID = 64
sGR, sFO = 66, 67
sK = 68
sM0, sMX = 73, 74
sXW = 75
sST = 76

def srd(d, lo, nbytes):
    A(f"s_mov_b32 s{d}, s{lo}")
    A(f"s_and_b32 s{d+1}, s{lo+1}, 0xffff")
    A(f"s_mov_b32 s{d+2}, {nbytes}")
    A(f"s_mov_b32 s{d+3}, 0x20000")
def out_srd():
    A(f"s_mul_i32 s{sTMP}, s{sB}, {7993*512}")
    A(f"s_mul_i32 s{sCNT}, s{sT}, {250*512}")
    A(f"s_add_u32 s{sTMP}, s{sTMP}, s{sCNT}")
    A(f"s_add_u32 s{sO}, s40, s{sTMP}")
    A(f"s_addc_u32 s{sO+1}, s41, 0")
    A(f"s_and_b32 s{sO+1}, s{sO+1}, 0xffff")
    A(f"s_cmp_eq_u32 s{sT}, 31")
    A(f"s_mov_b32 s{sO+2}, {243*512}")
    A(f"s_cselect_b32 s{sO+2}, s{sO+2}, {250*512}")
    A(f"s_mov_b32 s{sO+3}, 0x20000")
def granule_off():
    A(f"s_lshl_b32 s{sGR}, s{sB}, 2")
    A(f"s_add_u32 s{sGR}, s{sGR}, s{sNT}")
    A(f"s_lshl_b32 s{sGR}, s{sGR}, 15")
    A(f"s_lshl_b32 s{sTMP}, s{sWAVE}, 8")
    A(f"s_add_u32 s{sGR}, s{sGR}, s{sTMP}")
plain = P["stamps"] and P["lst"] < 0 and not P["cst"] and P["sst"] < 0
def stamp(k):
    if not plain: return
    if P["pst"] and k > 0 and cur[0] not in ("cpro", "cloop", "cepi"): return
    A(f"s_memrealtime s[{sST+2*k}:{sST+2*k+1}]")
def pstamp(k):
    if P["pst"]: A(f"s_memrealtime s[{sST+2*k}:{sST+2*k+1}]")
def addbf_list(d, a, b, t, force=False):
    r = []
    if P["novalu"] and not force: return r
    for i0 in (0, 2):
        for i in (i0, i0 + 1):
            u = t + 4 * (i - i0)
            r += [f"v_lshlrev_b32 v{u}, 16, v{a+i}", f"v_lshlrev_b32 v{u+1}, 16, v{b+i}",
                  f"v_and_b32 v{u+2}, s{sMASK16}, v{a+i}", f"v_and_b32 v{u+3}, s{sMASK16}, v{b+i}"]
        for i in (i0, i0 + 1):
            u = t + 4 * (i - i0)
            r += [f"v_add_f32 v{u}, v{u}, v{u+1}", f"v_add_f32 v{u+2}, v{u+2}, v{u+3}"]
        for i in (i0, i0 + 1):
            u = t + 4 * (i - i0)
            r += [f"v_cvt_pk_bf16_f32 v{d+i}, v{u}, v{u+2}"]
    return r
def pks(op, d, a, b, neg=False, c=None):
    s = f"v_pk_{op}_f32 v[{d}:{d+1}], v[{a}:{a+1}], v[{b}:{b+1}]"
    if c is not None: s += f", v[{c}:{c+1}]"
    if neg: s += " neg_lo:[0,1] neg_hi:[0,1]"
    return s
def pk(*a, **k): A(pks(*a, **k))
def final_addr(base):
    b = base
    A(f"v_lshrrev_b32 v{b+4}, 3, v0")
    A(f"v_and_b32 v{b+6}, 7, v0")
    A(f"s_lshl_b32 s{sTMP}, s{sWAVE}, 5")
    A(f"v_add_u32 v{b+4}, s{sTMP}, v{b+4}")
    A(f"v_bfe_u32 v{b}, v0, 4, 1")
    A(f"v_lshl_or_b32 v{b}, v{b}, 3, v{b+6}")
    A(f"s_lshl_b32 s{sTMP}, s{sWAVE}, 1")
    A(f"s_and_b32 s{sTMP}, s{sTMP}, 7")
    A(f"v_xor_b32 v{b}, s{sTMP}, v{b}")
    A(f"v_lshlrev_b32 v{b}, 4, v{b}")
    A(f"v_lshl_add_u32 v{b}, v{b+4}, 8, v{b}")
    A(f"v_xor_b32 v{b+1}, 0x80, v{b}")
    A(f"v_xor_b32 v{b+2}, 0x10, v{b}")
    A(f"v_xor_b32 v{b+3}, 0x90, v{b}")
    A(f"v_lshlrev_b32 v{b+4}, 9, v{b+4}")
    A(f"v_lshl_add_u32 v{b+4}, v{b+6}, 4, v{b+4}")
    A(f"s_lshl_b32 s{sTMP}, s{sNT}, 7")
    A(f"v_add_u32 v{b+4}, s{sTMP}, v{b+4}")
    A(f"v_add_u32 v{b+5}, 0x2000, v{b+4}")
    A(f"v_lshlrev_b32 v{b+6}, 5, v{b+6}")
    A(f"v_add_u32 v{b+6}, {MISC+64}, v{b+6}")
FA = 244
Y = 112
def y_reads():
    for n in range(4):
        for h in range(2):
            A(f"ds_read_b128 v[{Y+8*n+4*h}:{Y+8*n+4*h+3}], v{FA + h + 2*(n >> 1)} offset:{n*2048}")

stamp(0)
A("s_load_dwordx4 s[32:35], s[0:1], 0")
A("s_load_dwordx4 s[40:43], s[0:1], 40")
A("s_load_dwordx2 s[44:45], s[0:1], 56")
A("s_load_dwordx4 s[36:39], s[0:1], 24")
A("s_cmp_ge_u32 s2, 256")
A("s_cbranch_scc1 L_end")
A(f"v_readfirstlane_b32 s{sWAVE}, v0")
A("v_and_b32 v0, 63, v0")
A(f"s_and_b32 s{sT}, s2, 7")
A(f"s_lshl_b32 s{sT}, s{sT}, 3")
A(f"s_lshr_b32 s{sTMP}, s2, 5")
A(f"s_add_u32 s{sT}, s{sT}, s{sTMP}")
A(f"s_bfe_u32 s{sNT}, s2, 0x20003")
A(f"s_lshr_b32 s{sB}, s{sT}, 5")
A(f"s_and_b32 s{sT}, s{sT}, 31")
A(f"s_mov_b32 s{sMASK16}, 0xffff0000")
A(f"s_cmp_lt_u32 s{sWAVE}, 256")
A("s_cbranch_scc1 L_compute")

cur[0] = "lpro"
vXG, vWG, vLIN, vLIN2, vU0, vFL, vZ, vTC = 1, 3, 4, 5, 6, 8, 9, 15
U0, U1, TT, FLG, NON, JUNK, GAM, VV = 16, 32, 48, 56, 64, 66, 68, 80
sTS, sTB = 24, 68
A(f"s_bfe_u32 s{sWAVE}, s{sWAVE}, 0x20006")
A(f"s_mul_i32 s{sXB}, s{sB}, {16000*512}")
A(f"s_mul_i32 s{sTMP}, s{sT}, {500*512}")
A(f"s_add_u32 s{sXB}, s{sXB}, s{sTMP}")
A("v_lshrrev_b32 v10, 3, v0")
A("v_and_b32 v11, 7, v0")
A("v_lshlrev_b32 v12, 4, v11")
A(f"v_lshl_add_u32 v{vXG}, v10, 11, v12")
A(f"s_lshl_b32 s{sXW}, s{sWAVE}, 16")
A(f"s_add_u32 s{sXO}, s{sXB}, s{sXW}")
A(f"s_mul_i32 s{sMX}, s{sWAVE}, {4*XB}")
A("v_bfe_u32 v13, v0, 4, 1")
A(f"s_and_b32 s{sTMP}, s{sWAVE}, 1")
A(f"s_lshl_b32 s{sTMP}, s{sTMP}, 1")
A(f"v_or_b32 v13, s{sTMP}, v13")
A("v_lshlrev_b32 v13, 5, v13")
A("v_xor_b32 v13, v13, v12")
A("v_lshl_add_u32 v13, v10, 9, v13")
A(f"s_lshl_b32 s{sTMP}, s{sNT}, 7")
A(f"s_lshl_b32 s{sM0}, s{sWAVE}, 12")
A(f"s_add_u32 s{sTMP}, s{sTMP}, s{sM0}")
A(f"v_add_u32 v{vWG}, s{sTMP}, v13")
A(f"s_lshl_b32 s{sM0}, s{sWAVE}, 10")
A(f"s_mov_b32 s{sWO}, 0")
A(f"v_mov_b32 v{vZ}, 0")
A("s_waitcnt lgkmcnt(0)")
pstamp(1)
srd(sX, 32, X_BYTES)
srd(sW, 34, W_BYTES)

TAPS = {("G00", 0): [0, 4, 8, 12], ("G11", 0): [2, 6, 10, 14], ("G00", 1): [1, 5, 9, 13], ("G11", 1): [3, 7, 11]}
def dw(lds, so, tap, hh):
    return [f"s_add_u32 m0, s{sM0}, {lds}",
            f"s_add_u32 s{sTMP}, s{so}, {tap*131072 + hh*16384}",
            f"buffer_load_dwordx4 v{vWG}, s[{sW}:{sW+3}], s{sTMP} offen lds"]
def dma_w(slot, taps, ss=(0, 1, 2, 3), so=None):
    return [dw(slot*SLOT + WOFF + tile(hh, s), so or sWO, taps[s], hh) for hh in (0, 1) for s in ss if s < len(taps)]
def dma_wp(par, slot, spare0=False):
    r = []
    for hh in (0, 1):
        for s in range(4):
            dst = SPARE if (spare0 and hh == 0 and s == 3) else slot*SLOT + WOFF + tile(hh, s)
            r.append([f"s_add_u32 m0, s{sM0}, {dst}",
                      f"s_add_u32 s{sTMP}, s{sPO}, {WP_OFF + (par*4+s)*131072 + hh*16384}",
                      f"buffer_load_dwordx4 v{vWG}, s[{sWS}:{sWS+3}], s{sTMP} offen sc1 lds"])
    return r
def dma_x(slot, phi):
    return [[f"s_add_u32 m0, s{sMX}, {slot*SLOT + j*XB}",
             f"s_add_u32 s{sTMP}, s{sXO}, {j*16384 + phi*512}",
             f"buffer_load_dwordx4 v{vXG}, s[{sX}:{sX+3}], s{sTMP} offen lds"] for j in range(4)]
tl_n = [0]
def tail_g(slot, phi):
    k = tl_n[0]; tl_n[0] += 1
    return [f"s_cmp_lg_u32 s{sWAVE}, 0", f"s_cbranch_scc1 L_nt{k}",
            f"s_mov_b32 m0, {slot*SLOT + 16*XB}",
            f"s_add_u32 s{sTMP}, s{sXO}, {(512 + phi)*512}",
            "s_mov_b64 exec, 0xff",
            f"buffer_load_dwordx4 v{vXG}, s[{sX}:{sX+3}], s{sTMP} offen lds",
            "s_mov_b64 exec, -1", f"L_nt{k}:"]
def touch_g(dd, par, half="ab", const=False):
    if const:
        r = [f"s_add_u32 s{sTMP}, s{sXB}, {dd*128 + par*512}"]
    else:
        r = [f"s_cmp_lt_u32 s{sD}, {4 - dd}", f"s_cselect_b32 s{sCNT}, s{sXB}, {OOB}",
             f"s_lshl_b32 s{sTMP}, s{sD}, 7", f"s_add_u32 s{sTMP}, s{sTMP}, s{sCNT}", f"s_add_u32 s{sTMP}, s{sTMP}, {dd*128 + par*512}"]
    r.append(f"s_mov_b64 exec, {dict(ab=0xffff, a=0x5555, b=0xaaaa)[half]:#x}")
    r += [f"buffer_load_dword v{JUNK}, v{vTC}, s[{sX}:{sX+3}], s{sTMP} offen", "s_mov_b64 exec, -1"]
    return r
def emit_groups(gs):
    if P["nodma"]: return
    for g in gs:
        for s in g: A(s)
def mix(valu, gs):
    if P["nodma"]: gs = []
    n = len(gs)
    if not valu:
        emit_groups(gs); return
    pos = [(k * len(valu)) // n for k in range(n)] if n else []
    gi = 0
    for i, v in enumerate(valu):
        while gi < n and pos[gi] == i:
            for s in gs[gi]: A(s)
            gi += 1
        A(v)
def rd_u0(): return [f"ds_read_b128 v[{U0+4*j}:{U0+4*j+3}], v{vU0} offset:{j*XB}" for j in range(4)]
def rd_u1(lin, off): return [f"ds_read_b128 v[{U1+4*j}:{U1+4*j+3}], v{lin} offset:{off + j*XB}" for j in range(4)]
def wr_v(lin, off): return [f"ds_write_b128 v{lin}, v[{VV+4*j}:{VV+4*j+3}] offset:{off + j*XB}" for j in range(4)]
def vadd(js):
    r = []
    for j in js: r += addbf_list(VV+4*j, U1+4*j, U0+4*j, TT)
    return r
def hi(lst):
    if P["dsprio"]: A(f"s_setprio {P['dsprio']}")
    for d in lst: A(d)
    if P["dsprio"]: A(f"s_setprio {P['lprio']}")
def lsetup():
    A("v_lshlrev_b32 v13, 4, v0")
    A(f"v_add_u32 v{vLIN}, s{sMX}, v13")
    A(f"v_add_u32 v{vLIN2}, {2*SLOT}, v{vLIN}")
    A("v_cmp_eq_u32 vcc, 7, v10")
    A(f"v_add_u32 v{vU0}, 128, v{vLIN}")
    A(f"v_add_u32 v12, 160, v{vLIN}")
    A(f"v_cndmask_b32 v{vU0}, v{vU0}, v12, vcc")
    A(f"v_lshlrev_b32 v{vFL}, 3, v0")
    A(f"s_lshl_b32 s{sTMP}, s{sWAVE}, 4")
    A(f"s_lshl_b32 s{sCNT}, s{sNT}, 6")
    A(f"s_add_u32 s{sTMP}, s{sTMP}, s{sCNT}")
    A(f"v_add_u32 v12, s{sTMP}, v0")
    A(f"v_lshlrev_b32 v{vTC}, 10, v12")
    srd(sWS, 44, WS_BYTES)
    out_srd()
    granule_off()
    A(f"s_mov_b32 s{sWN}, 32768")
    A(f"s_mov_b32 s{sD}, 0")
    A(f"s_mov_b32 s{sPO}, 0")
    A(f"s_lshl_b32 s{sFO}, s{sWAVE}, 9")
    A(f"s_add_u32 s{sFO}, s{sFO}, {FL_OFF}")
    if P["lprio"]: A(f"s_setprio {P['lprio']}")
STG = {0: None, 1: None, 2: None, 3: None, 4: None}
w_ = dma_w(0, TAPS[("G00", 0)]); x_ = dma_x(0, 0)
STG[0] = [tail_g(0, 0) + x_[0]] + x_[1:2] + w_[:4] + x_[2:] + w_[4:]
STG[1] = dma_x(1, 2) + dma_w(1, TAPS[("G11", 0)])
x_ = dma_x(2, 1)
STG[2] = [tail_g(2, 1) + x_[0]] + x_[1:] + dma_w(2, TAPS[("G00", 1)])
STG[3] = dma_x(0, 3) + dma_w(0, TAPS[("G11", 1)]) + dma_w(0, TAPS[("G11", 0)], ss=(3,), so=sWN)
STG[4] = dma_wp(0, 1) + [dw(SPARE + hh*4096, sWN, TAPS[("G00", 0)][3], hh) for hh in (0, 1)]
issued = []; period = 0; seen = {k: 0 for k in STG}; mixv = []; pendg = []
def flush():
    global mixv, pendg
    mix(mixv, [g for _, g in pendg])
    if not P["nodma"]: issued.extend(k for k, _ in pendg)
    mixv = []; pendg = []
def wait_for(keys, extra=""):
    flush()
    last = max(i for i, k in enumerate(issued) if k in keys)
    A(f"s_waitcnt vmcnt({len(issued) - 1 - last}){extra}")
def flag_load(so): A(f"buffer_load_dwordx2 v[{FLG}:{FLG+1}], v{vFL}, s[{sWS}:{sWS+3}], {so} offen sc0 sc1")
def check_flags(name, so):
    A(f"s_mov_b32 s{sCNT}, {SPIN}")
    LBL(name)
    A(f"v_cmp_eq_u64 vcc, s[{sN0}:{sN1}], v[{FLG}:{FLG+1}]")
    A("s_cmp_eq_u64 vcc, -1")
    A(f"s_cbranch_scc1 {name}_ok")
    A(f"s_sub_u32 s{sCNT}, s{sCNT}, 1")
    A(f"s_cbranch_scc1 {name}_ok")
    flag_load(so)
    A("s_waitcnt vmcnt(0)")
    A(f"s_branch {name}")
    LBL(name + "_ok")
def nonce_load(): A(f"buffer_load_dwordx2 v[{NON}:{NON+1}], v{vZ}, s[{sDBG}:{sDBG+3}], 0 offen sc0 sc1")
if P["nodma"]: issued.extend([0, 1, 2, 3, 4])
for tok in P["pro"].split("."):
    if tok[0] == "D":
        f = tok[1:].split(":"); st = int(f[0]); gs = STG[st]
        lo, hi_ = (int(f[1]), int(f[2])) if len(f) > 1 else (seen[st], len(gs))
        assert lo == seen[st]; seen[st] = min(hi_, len(gs))
        assert st < 3 or period >= st - 1
        pendg += [(st, g) for g in gs[lo:hi_]]
        continue
    if tok[0] == "T":
        c = int(tok[1])
        if P["touch"]: pendg.append(("t", touch_g(c >> 1, c & 1, tok[2:], True)))
        continue
    flush()
    if tok[0] == "S":
        pstamp(2); lsetup()
    elif tok[0] == "N":
        srd(sDBG, 42, 256); nonce_load(); issued.append("n")
    elif tok[0] == "U":
        k4 = [i for i, k in enumerate(issued) if k == 1][3] if not P["nodma"] else len(issued) - 1
        A(f"s_waitcnt vmcnt({len(issued) - 1 - k4})")
        hi(rd_u1(vLIN, SLOT))
        A("s_waitcnt lgkmcnt(0)")
    elif tok[0] == "V":
        mixv = vadd(range(int(tok[1]), int(tok[2])))
    elif tok[0] == "F":
        assert period == (2 if P["lateack"] else 1)
        wait_for(["n"])
        A(f"s_mov_b32 s{sCNT}, {SPIN}")
        LBL("L_cn")
        A(f"v_readfirstlane_b32 s{sN0}, v{NON}")
        A(f"v_readfirstlane_b32 s{sN1}, v{NON+1}")
        A(f"s_cmp_lg_u32 s{sN0}, 0")
        A("s_cbranch_scc1 L_cn_ok")
        A(f"s_sub_u32 s{sCNT}, s{sCNT}, 1")
        A("s_cbranch_scc1 L_cn_ok")
        nonce_load()
        A("s_waitcnt vmcnt(0)")
        A("s_branch L_cn")
        LBL("L_cn_ok")
        A(f"s_lshl_b32 s{sTMP}, s2, 3")
        A(f"s_add_u32 s{sTMP}, s{sTMP}, {FL_OFF}")
        A(f"s_cmp_eq_u32 s{sWAVE}, 0")
        A(f"s_cselect_b32 s{sTMP}, s{sTMP}, {OOB}")
        A("s_mov_b64 exec, 1")
        A(f"buffer_store_dwordx2 v[{NON}:{NON+1}], v{vZ}, s[{sWS}:{sWS+3}], s{sTMP} offen sc0 sc1")
        A(f"v_mov_b32 v12, {MISC}")
        A(f"ds_write_b64 v12, v[{NON}:{NON+1}]")
        A("s_mov_b64 exec, -1")
        issued.append("f")
        pstamp(7)
    elif tok[0] == "G":
        A(f"s_mov_b32 s{sTA}, {FL_OFF}"); flag_load(f"s{sTA}"); issued.append("g")
    elif tok[0] == "C":
        wait_for(["g"])
        A(f"s_mov_b32 s{sTA}, {FL_OFF}")
        check_flags("L_spin0", f"s{sTA}")
    elif tok[0] == "W":
        assert period == 3
        hi(wr_v(vLIN, SLOT)[:P["wsplit"]] + rd_u0())
    elif tok[0] == "B":
        assert seen[period] == len(STG[period])
        if period == 0: pstamp(3)
        wait_for([period], " lgkmcnt(0)" if period >= 2 else "")
        if period == 0: pstamp(4)
        if period == 1:
            if "U" not in P["pro"].split("."):
                for d in rd_u1(vLIN, SLOT): A(d)
            A("s_waitcnt lgkmcnt(0)")
            A(f"v_add_u32 v{vU0}, {2*SLOT}, v{vU0}")
        if period == 3:
            assert seen[4] == 10
            A("s_branch L_join")
            break
        A("s_barrier")
        if period < 2: pstamp(5 + period)
        period += 1
        CM(f"P({period-1})")
        if period == 1: pend_u0 = True
    if tok[0] in "FB" and period == 1 and pend_u0 and (tok[0] == "F" or P["lateack"]):
        hi(rd_u0()); pend_u0 = False
n_after_wp = len(issued) - 1 - max(i for i, k in enumerate(issued) if k == 4) + 2

cur[0] = "lloop"
lb_n = [0]
def lbar():
    k = lb_n[0]; lb_n[0] += 1
    if P["lst"] >= 0:
        A(f"s_cmp_lg_u32 s{sD}, {P['lst'] + 1}")
        A(f"s_cbranch_scc1 L_nb{k}")
        A(f"s_memtime s[{76+4*k}:{77+4*k}]")
        A("s_barrier")
        A(f"s_memtime s[{78+4*k}:{79+4*k}]")
        A(f"s_branch L_nc{k}")
        LBL(f"L_nb{k}")
        A("s_barrier")
        LBL(f"L_nc{k}")
    else:
        A("s_barrier")
nt = 1 if P["touch"] else 0
assert P["nodma"] or n_after_wp >= 2 + nt, n_after_wp
assert P["vsplit"] <= P["wsplit"]
LBL("L_lloop")
for par in (1, 0):
    npar = 1 - par
    CM(f"P(3c-1) par={par}")
    if par == 1:
        A(f"s_cmp_eq_u32 s{sD}, 3")
        A("s_cbranch_scc1 L_last")
    hi(wr_v(vLIN, SLOT)[:P["wsplit"]])
    early = [dw((SPARE if par == 1 else 2*SLOT + WOFF + tile(0, 3)) + hh*4096, sWN if par else sWO, TAPS[("G00", npar)][3], hh) for hh in (0, 1)]
    emit_groups(dma_wp(npar, 1) + early)
    for d in rd_u0(): A(d)
    if nt: emit_groups([touch_g(1, par)])
    A(f"s_waitcnt vmcnt({10 + nt})")
    if par == 1: LBL("L_join")
    for d in rd_u1(vLIN, 0): A(d)
    A(f"s_mov_b32 s{sPO}, s{sWO}")
    if par == 1:
        A(f"s_add_u32 s{sD}, s{sD}, 1")
        A(f"s_mov_b32 s{sWO}, s{sWN}")
        A(f"s_add_u32 s{sWN}, s{sWN}, 32768")
        A(f"s_cmp_eq_u32 s{sD}, 3")
        A(f"s_cselect_b32 s{sWN}, {OOB}, s{sWN}")
        A(f"s_add_u32 s{sXO}, s{sXO}, 128")
    A("s_waitcnt lgkmcnt(0)")
    lbar()
    CM(f"P(3c) par={par}")
    hi(wr_v(vLIN, SLOT)[P["wsplit"]:])
    x_ = dma_x(2, npar)
    gs = [tail_g(2, npar) + x_[0]] + x_[1:] + dma_w(2, TAPS[("G00", npar)], ss=(0, 1, 2))
    mix(vadd(range(P["vsplit"])), gs)
    A(f"s_waitcnt vmcnt({12 + nt}) lgkmcnt(0)")
    lbar()
    CM(f"P(3c+1) par={par}")
    gs = dma_x(0, 2 + npar) + dma_w(0, TAPS[("G11", npar)], ss=(0, 1, 2))
    if par == 0: gs += dma_w(0, TAPS[("G11", 0)], ss=(3,), so=sWN)
    if par == 1:
        A(f"s_cmp_lg_u32 s{sD}, 1")
        A("s_cbranch_scc1 L_nf2")
        flag_load(f"s{sFO}")
        LBL("L_nf2")
    mix(vadd(range(P["vsplit"], 4)), gs)
    A(f"s_waitcnt vmcnt({len(gs)})")
    if par == 1:
        A(f"s_cmp_lg_u32 s{sD}, 1")
        A("s_cbranch_scc1 L_spin1_ok")
        check_flags("L_spin1", f"s{sFO}")
    lbar()
A("s_branch L_lloop")

cur[0] = "llast"
LBL("L_last")
CM("P(20)")
hi(wr_v(vLIN, SLOT)[:P["wsplit"]])
emit_groups(dma_wp(0, 1))
for d in rd_u0(): A(d)
srd(sGA, 36, 512)
srd(sBE, 38, 512)
A("s_waitcnt vmcnt(8)")
for d in rd_u1(vLIN, 0): A(d)
A("s_waitcnt lgkmcnt(0)")
A("s_barrier")
CM("P(21)")
gs = dma_wp(1, 2, True)
hi(wr_v(vLIN, SLOT)[P["wsplit"]:])
mix(vadd(range(2)), gs[:5])
A("s_waitcnt lgkmcnt(0)")
mix(vadd(range(2, 3)), gs[5:])
A("s_waitcnt vmcnt(8)")
A("s_barrier")
CM("P(22)")
wv = wr_v(vLIN2, 0)
for t in vadd(range(3, 4)): A(t)
for d in wv: A(d)
A("v_and_b32 v10, 15, v0")
A(f"s_lshl_b32 s{sTMP}, s{sNT}, 2")
A(f"s_add_u32 s{sTMP}, s{sTMP}, s{sWAVE}")
A(f"s_lshl_b32 s{sTMP}, s{sTMP}, 5")
A("v_lshlrev_b32 v14, 1, v10")
A(f"buffer_load_ushort v{GAM}, v14, s[{sGA}:{sGA+3}], s{sTMP} offen")
A(f"buffer_load_ushort v{GAM+1}, v14, s[{sBE}:{sBE+3}], s{sTMP} offen")
A("s_waitcnt vmcnt(2) lgkmcnt(0)")
A("s_barrier")
A("v_lshrrev_b32 v11, 4, v0")
A("v_lshlrev_b32 v12, 4, v10")
A("v_lshl_add_u32 v12, v11, 10, v12")
A(f"s_lshl_b32 s{sTMP}, s{sWAVE}, 6")
A(f"s_add_u32 s{sTMP}, s{sTMP}, {MISC+64}")
A(f"v_lshl_add_u32 v10, v10, 2, s{sTMP}")
if P["lprio"]: A("s_setprio 0")
A(f"s_add_u32 s{sWAVE}, s{sWAVE}, 4")
final_addr(FA)
A("s_waitcnt vmcnt(0)")
A(f"v_lshlrev_b32 v{GAM}, 16, v{GAM}")
A(f"v_lshlrev_b32 v{GAM+1}, 16, v{GAM+1}")
if not P["peel"]: A("s_barrier")
A("s_barrier")
stamp(1)
PG = 16
A(f"s_mov_b32 s{sCNT}, {SPIN}")
y_reads()
LBL("L_poll")
for i in range(8):
    so = f"s{sGR}" if i == 0 else f"s{sTMP}"
    if i: A(f"s_add_u32 s{sTMP}, s{sGR}, {i*4096}")
    A(f"buffer_load_dwordx4 v[{PG+4*i}:{PG+4*i+3}], v12, s[{sWS}:{sWS+3}], {so} offen sc0 sc1")
A(f"s_mov_b64 s[{sTA}:{sTA+1}], -1")
for i in range(8):
    A(f"s_waitcnt vmcnt({7-i})")
    A(f"v_cmp_eq_u64 vcc, s[{sN0}:{sN1}], v[{PG+4*i+2}:{PG+4*i+3}]")
    A(f"s_and_b64 s[{sTA}:{sTA+1}], s[{sTA}:{sTA+1}], vcc")
A(f"s_sub_u32 s{sCNT}, s{sCNT}, 1")
A("s_cbranch_scc1 L_poll_ok")
A(f"s_cmp_eq_u64 s[{sTA}:{sTA+1}], -1")
A("s_cbranch_scc0 L_poll")
LBL("L_poll_ok")
stamp(2)
for st in (4, 2, 1):
    for i in range(st):
        pk("add", PG+4*i, PG+4*i, PG+4*(i+st))
for sw in ("v_permlane32_swap_b32", "v_permlane16_swap_b32"):
    A(f"v_mov_b32 v{PG+2}, v{PG}")
    A(f"v_mov_b32 v{PG+3}, v{PG+1}")
    A("s_nop 1")
    A(f"{sw} v{PG}, v{PG+2}")
    A(f"{sw} v{PG+1}, v{PG+3}")
    A("s_nop 1")
    pk("add", PG, PG, PG+2)
A(f"v_mul_f32 v{PG}, {f32(1.0/7993)}, v{PG}")
A(f"v_mul_f32 v{PG+1}, {f32(1.0/7993)}, v{PG+1}")
A(f"v_fma_f32 v{PG+1}, -v{PG}, v{PG}, v{PG+1}")
A(f"v_max_f32 v{PG+1}, 0, v{PG+1}")
A(f"v_add_f32 v{PG+1}, {f32(1e-5)}, v{PG+1}")
A(f"v_rsq_f32 v{PG+1}, v{PG+1}")
A("s_nop 0")
A(f"v_mul_f32 v{PG+1}, v{PG+1}, v{GAM}")
A(f"ds_write_b32 v10, v{PG+1}")
A(f"v_fma_f32 v{PG}, -v{PG}, v{PG+1}, v{GAM+1}")
A(f"ds_write_b32 v10, v{PG} offset:256")

cur[0] = "final"
LBL("L_final")
k0 = -2.0 * math.sqrt(2.0 / math.pi) * math.log2(math.e)
k1 = k0 * 0.044715
A(f"s_mov_b32 s{sK+2}, {f32(k1)}")
A(f"s_mov_b32 s{sK+3}, {f32(k1)}")
A(f"s_mov_b32 s{sK+4}, 4096")
A(f"v_mov_b32 v56, {f32(k0)}")
A(f"v_mov_b32 v57, {f32(k0)}")
A("s_waitcnt lgkmcnt(0)")
A("s_barrier")
stamp(4)
CA, CC = 16, 24
A(f"ds_read_b128 v[{CA}:{CA+3}], v{FA+6}")
A(f"ds_read_b128 v[{CC}:{CC+3}], v{FA+6} offset:256")
A(f"ds_read_b128 v[{CA+4}:{CA+7}], v{FA+6} offset:16")
A(f"ds_read_b128 v[{CC+4}:{CC+7}], v{FA+6} offset:272")
Z, U = 32, 40
for n in range(4):
    y = Y + 8 * n
    for h in range(0, 8, 2):
        if n == 0 and h in (0, 4): A(f"s_waitcnt lgkmcnt({2 if h == 0 else 0})")
        pk("fma", y+h, y+h, CA+h, c=CC+h)
    for h in range(0, 8, 2): pk("mul", U+h, y+h, y+h)
    for h in range(0, 8, 2): A(f"v_pk_fma_f32 v[{U+h}:{U+h+1}], v[{U+h}:{U+h+1}], s[{sK+2}:{sK+3}], v[56:57]")
    for h in range(0, 8, 2): pk("mul", U+h, U+h, y+h)
    for h in range(8): A(f"v_exp_f32 v{U+h}, v{U+h}")
    for h in range(0, 8, 2): A(f"v_pk_add_f32 v[{U+h}:{U+h+1}], v[{U+h}:{U+h+1}], 1.0 op_sel_hi:[1,0]")
    for h in range(8): A(f"v_rcp_f32 v{U+h}, v{U+h}")
    for h in range(0, 8, 2): pk("mul", y+h, y+h, U+h)
    o = Z + 4 * (n & 1)
    for h in range(4): A(f"v_cvt_pk_bf16_f32 v{o+h}, v{y+2*h}, v{y+2*h+1}")
    A(f"buffer_store_dwordx4 v[{o}:{o+3}], v{FA+4 if n < 2 else FA+5}, s[{sO}:{sO+3}], {'0' if n % 2 == 0 else 's'+str(sK+4)} offen" + ["", " nt", " sc1", " sc0 sc1", " sc1 nt"][P["stf"]])
if P["stamps"]:
    stamp(5)
    A("s_waitcnt vmcnt(0)")
    stamp(6)
    A("s_waitcnt lgkmcnt(0)")
    A(f"s_mov_b32 s{sWS+2}, 0x1000000")
    A(f"s_lshl_b32 s{sTMP}, s2, 3")
    A(f"s_add_u32 s{sTMP}, s{sTMP}, s{sWAVE}")
    A(f"s_lshl_b32 s{sTMP}, s{sTMP}, 5")
    A(f"s_add_u32 s{sTMP}, s{sTMP}, 0x200000")
    A("v_mov_b32 v1, 0")
    if plain and not P["pst"]: A("s_sub_u32 s90, s94, s92")
    for k in range(8): A(f"v_mov_b32 v{2+k}, s{sST+(k if P['cst'] else 2*k)}")
    A("s_mov_b64 exec, 1")
    if P["sst"] >= 0:
        for k in range(12): A(f"v_mov_b32 v{2+k}, v{MS+k}") if False else None
    if P["lst"] >= 0 or P["cst"] or P["sst"] >= 0:
        if P["sst"] >= 0:
            for k in range(12): A(f"v_readlane_b32 s{76+k}, v255, {k}")
            A("s_nop 1")
            for k in range(12): A(f"v_mov_b32 v{2+k}, s{76+k}")
        else:
            for k in range(4): A(f"v_mov_b32 v{10+k}, s{sST+8+k if P['cst'] else sST+16+2*k}")
        A(f"s_add_u32 s{sCNT}, s{sTMP}, 0x100000")
        A(f"buffer_store_dwordx4 v[10:13], v1, s[{sWS}:{sWS+3}], s{sCNT} offen")
    A(f"buffer_store_dwordx4 v[2:5], v1, s[{sWS}:{sWS+3}], s{sTMP} offen")
    A(f"buffer_store_dwordx4 v[6:9], v1, s[{sWS}:{sWS+3}], s{sTMP} offen offset:16")
if P["dbgt"]:
    A(f"s_cmp_lg_u32 s{sWAVE}, 0")
    A("s_cbranch_scc1 L_end")
    A("s_cmp_eq_u32 s2, 0")
    A(f"s_cselect_b32 s{sTMP}, 8, 36")
    A("s_cbranch_scc1 L_dd")
    A("s_cmp_lg_u32 s2, 77")
    A("s_cbranch_scc1 L_end")
    LBL("L_dd")
    for k in range(1, 7): A(f"v_subrev_u32 v{2+k}, v2, v{2+k}")
    A(f"buffer_store_dwordx4 v[2:5], v1, s[{sDBG}:{sDBG+3}], s{sTMP} offen")
    A(f"buffer_store_dwordx3 v[6:8], v1, s[{sDBG}:{sDBG+3}], s{sTMP} offen offset:16")
LBL("L_end")
A("s_endpgm")

cur[0] = "cpro"
LBL("L_compute")
G00, G11, GS = 16, 48, 80
SETS = [112, 172]
def vXR(role): return 1 + 2 * role
def vWR(role): return 2 + 2 * role
vW3, vW3C, vGA, vYW = 7, 8, 9, 10
T = 232
CWA, CWB = 112, 116
A(f"s_lshr_b32 s{sWAVE}, s{sWAVE}, 6")
A(f"s_memrealtime s[{sN0}:{sN1}]")
A(f"v_lshrrev_b32 v{T}, 5, v0")
A(f"s_lshl_b32 s{sTMP}, s{sWAVE}, 1")
A(f"v_add_u32 v{T}, s{sTMP}, v{T}")
A(f"v_and_b32 v{T+1}, 31, v0")
A(f"v_lshlrev_b32 v{T+1}, 4, v{T+1}")
A(f"s_lshl_b32 s{sTMP}, s2, 9")
A(f"v_add_u32 v{T+1}, s{sTMP}, v{T+1}")
A(f"v_lshl_add_u32 v{T+2}, v{T}, 17, v{T+1}")
A(f"v_and_b32 v{T}, 3, v{T}")
A(f"v_lshl_add_u32 v{T+1}, v{T}, 19, v{T+1}")
A(f"s_lshr_b32 s{sWO}, s{sWAVE}, 1")
A(f"s_lshl_b32 s{sWO}, s{sWO}, 17")
A(f"s_add_u32 s{sWN}, s{sWO}, {2*131072}")
A("s_waitcnt lgkmcnt(0)")
srd(sW, 34, W_BYTES)
A(f"buffer_load_dwordx4 v[{CWA}:{CWA+3}], v{T+1}, s[{sW}:{sW+3}], s{sWO} offen")
A(f"buffer_load_dwordx4 v[{CWB}:{CWB+3}], v{T+1}, s[{sW}:{sW+3}], s{sWN} offen")
srd(sDBG, 42, 256)
A(f"s_or_b32 s{sTMP}, s2, s{sWAVE}")
A(f"s_cmp_lg_u32 s{sTMP}, 0")
A("s_cbranch_scc1 L_nononce")
A(f"s_or_b32 s{sN0}, s{sN0}, 1")
A(f"v_mov_b32 v{T+3}, 0")
A(f"v_mov_b32 v{T+6}, s{sN0}")
A(f"v_mov_b32 v{T+7}, s{sN1}")
A("s_mov_b64 exec, 1")
A(f"buffer_store_dwordx2 v[{T+6}:{T+7}], v{T+3}, s[{sDBG}:{sDBG+3}], 0 offen sc0 sc1")
A("s_mov_b64 exec, -1")
LBL("L_nononce")
if P["cpf"]:
    A(f"s_cmp_lg_u32 s{sWAVE}, 1")
    A("s_cbranch_scc1 L_nocpf")
    A("s_getpc_b64 s[74:75]")
    LBL("L_pc")
    A(f"s_lshr_b32 s{sTMP}, s2, 3")
    A(f"s_lshl_b32 s{sTMP}, s{sTMP}, 9")
    A(f"s_add_u32 s74, s74, s{sTMP}")
    A("s_addc_u32 s75, s75, 0")
    A(f"s_sub_u32 s74, s74, L_pc-{KN}")
    A("s_subb_u32 s75, s75, 0")
    A(f"v_lshlrev_b32 v{T+4}, 7, v0")
    A("s_mov_b64 exec, 15")
    A(f"global_load_dword v{T+5}, v{T+4}, s[74:75]")
    A("s_mov_b64 exec, -1")
    LBL("L_nocpf")
srd(sWS, 44, WS_BYTES)
A(f"s_mov_b32 s{sPO}, {WP_OFF}")
out_srd()
A(f"s_mov_b32 s{sMID}, 0x7fff7fff")
A(f"s_cselect_b32 s{sMID}, s{sMID}, -1")
A(f"s_mov_b32 s{sMID+1}, s{sMID}")
granule_off()
A(f"s_lshl_b32 s{sTMP}, s{sT}, 10")
A(f"s_add_u32 s{sGR}, s{sGR}, s{sTMP}")
R, G_, X1, X2 = 120, 121, 122, 124
A(f"v_and_b32 v{R}, 15, v0")
A(f"v_lshrrev_b32 v{G_}, 4, v0")
A(f"v_mul_u32_u24 v{X1}, {XB}, v{R}")
A(f"v_lshl_add_u32 v{vXR(0)}, v{G_}, 4, v{X1}")
A(f"v_bfe_u32 v{X2}, v0, 2, 2")
A(f"v_lshl_add_u32 v{X1}, v{G_}, 3, v{X2}")
A(f"v_lshlrev_b32 v{X1}, 7, v{X1}")
A(f"v_lshrrev_b32 v{X2}, 1, v{X2}")
A(f"v_and_b32 v{X2+1}, 1, v{G_}")
A(f"v_lshl_or_b32 v{X2}, v{X2+1}, 1, v{X2}")
A(f"v_xor_b32 v{X2}, s{sWAVE}, v{X2}")
A(f"v_lshl_add_u32 v{X1}, v{X2}, 5, v{X1}")
A(f"v_and_b32 v{X2}, 3, v0")
A(f"v_lshl_add_u32 v{X1}, v{X2}, 3, v{X1}")
A(f"v_add_u32 v{vWR(0)}, {WOFF}, v{X1}")
A(f"v_add_u32 v{vW3}, {WOFF + tile(0,3)}, v{X1}")
A(f"v_lshlrev_b32 v{vW3C}, 1, v{X1}")
A(f"v_add_u32 v{vW3C}, {2*SLOT + WOFF + tile(0,3) + SPARE}, v{vW3C}")
for k in (1, 2):
    A(f"v_add_u32 v{k+2}, {SLOT}, v{k}")
    A(f"v_add_u32 v{k+4}, {2*SLOT}, v{k}")
if P["red"]:
    CM("after the reduce-scatter lane r of group g holds channel 4g + (r>>2)")
    A(f"v_lshrrev_b32 v{X1}, 2, v{R}")
    A(f"v_lshl_add_u32 v{vGA}, v{G_}, 2, v{X1}")
else:
    A(f"v_lshl_add_u32 v{vGA}, v{G_}, 2, v{R}")
A(f"v_lshlrev_b32 v{vGA}, 4, v{vGA}")
A(f"s_lshl_b32 s{sTMP}, s{sWAVE}, 2")
A(f"v_add_u32 v{X1}, s{sTMP}, v{G_}")
A(f"v_lshrrev_b32 v{X2}, 1, v{X1}")
A(f"v_and_b32 v{X1}, 1, v{X1}")
A(f"v_lshl_or_b32 v{X1}, v{X1}, 3, v{X2}")
A(f"v_and_b32 v{X2}, 7, v{R}")
A(f"v_xor_b32 v{X1}, v{X1}, v{X2}")
A(f"v_lshlrev_b32 v{X1}, 4, v{X1}")
A(f"v_lshl_add_u32 v{vYW}, v{R}, 12, v{X1}")
A(f"v_xor_b32 v{vYW+1}, 0x80, v{vYW}")
final_addr(FA)
for i in range(0, 96, 2):
    A(f"v_pk_mov_b32 v[{16+i}:{17+i}], 0, 0")
A("s_waitcnt vmcnt(0)")
for t in addbf_list(CWA, CWA, CWB, 224, True): A(t)
A(f"buffer_store_dwordx4 v[{CWA}:{CWA+3}], v{T+2}, s[{sWS}:{sWS+3}], s{sPO} offen sc0 sc1")
if P["prio"]: A(f"s_setprio {P['prio']}")
if not P["lateack"]: A("s_waitcnt vmcnt(0)")

def reads(role, hh, st, ndpp=0, last=False):
    xb = SETS[st]; wb = xb + 44
    def xr(q): return (("X", q), f"ds_read_b128 v[{xb+4*q}:{xb+4*q+3}], v{vXR(role)} offset:{(q & 7)*128 + hh*64 + (XB if q > 7 else 0)}")
    def wr(s, h):
        if role == 0 and s == 3 and not last:
            return (("W", s), f"ds_read_b64_tr_b16 v[{wb+4*s+2*h}:{wb+4*s+2*h+1}], v{vW3} offset:{hh*4096 + h*512}")
        return (("W", s), f"ds_read_b64_tr_b16 v[{wb+4*s+2*h}:{wb+4*s+2*h+1}], v{vWR(role)} offset:{tile(hh, s) + h*512}")
    if role == 1 and P["u3"]:
        r = [wr(0, 0), wr(0, 1), xr(0), wr(1, 0), wr(1, 1), xr(1), wr(2, 0), wr(2, 1)] + [xr(q) for q in range(2, 10)] + [wr(3, 0), wr(3, 1), xr(10)]
    else:
        r = [wr(0, 0), wr(0, 1), xr(0), wr(1, 0), wr(1, 1)] + [xr(q) for q in range(1, 9)] + [wr(2, 0), wr(2, 1), wr(3, 0), wr(3, 1), xr(9), xr(10)]
    dq = list(range(11 - ndpp, 11))
    r = [e for e in r if not (e[0][0] == "X" and e[0][1] in dq)]
    d = [f"v_mov_b32_dpp v{xb+4*q+i}, v{xb+4*(q-8)+i} row_shl:1 row_mask:0xf bank_mask:0xf" for q in dq for i in range(4)]
    return r, d
def mfma_list(acc, st, split3=False):
    xb = SETS[st]; wb = xb + 44
    pairs = []
    if split3 and P["u3"]:
        pairs = [(s, j) for j in range(8) for s in ((0, 1, 2) if j % 2 == 0 else (2, 1, 0))] + [(3, j) for j in range(8)]
    else:
        for s0 in ((0,) if split3 else (0, 2)):
            for q in range(s0, s0 + 9):
                for s in (s0 + 1, s0):
                    if 0 <= q - s < 8: pairs.append((s, q - s))
        if split3: pairs += [(s, j) for s in (2, 3) for j in range(8)]
    out = []
    for s, j in pairs:
        d = f"v[{acc+4*j}:{acc+4*j+3}]"
        out.append(([("W", s), ("X", j+s)], f"v_mfma_f32_16x16x32_bf16 {d}, v[{wb+4*s}:{wb+4*s+3}], v[{xb+4*(j+s)}:{xb+4*(j+s)+3}], {d}"))
    return out
pending = []
ss_n = [0]
def sstamp():
    if P["sst"] < 0 or ss_n[0] >= 12: return
    k = ss_n[0]; ss_n[0] += 1
    A(f"s_memtime s[{76+2*k}:{77+2*k}]")
def seq(acc, st, rdd, barrier, skip_label=None, extra=None, delay=0, vm0=False):
    global pending
    rd, dpp = rdd
    nm = 24 if skip_label else 32
    m = mfma_list(acc, st, skip_label is not None)
    rd = [] if P["nords"] else list(rd)
    dpp = list(dpp)
    first = max(P["barslot"], delay) if barrier else 0
    if dpp:
        first = min(first, nm - len(rd) - len(dpp) - 0) if barrier else first
        first = max(first, P["barslot"]) if barrier else first
        last = first + len(rd) - 1
    else:
        last = max(min(first + len(rd) if barrier else P["rdA"], nm - P["rd_gap"]), first + len(rd) - 1) if rd else 0
    slots = [first + (k * (last - first)) // max(len(rd) - 1, 1) for k in range(len(rd))]
    dslots = [min(last + 1 + k, nm - 1) for k in range(len(dpp))]
    cur_ = list(pending); newer = 0; nxt = []; nd = 0
    for i, (need, ins) in enumerate(m):
        if i == 24 and skip_label:
            A(f"s_cbranch_scc1 {skip_label}")
        if i % 16 == 0 or (skip_label and i == 24):
            need = [k for nd_, _ in m[i:i+16 if not (skip_label and i == 16) else 24] for k in nd_]
            if barrier and i == 0: need = [k for nd_, _ in m[:P["barslot"]+1] for k in nd_]
            idx = max([k for k, key in enumerate(cur_) if key in need], default=-1)
            if idx >= 0:
                n = len(cur_) - 1 - idx + newer
                if n < 15: A(f"s_waitcnt lgkmcnt({n})")
                cur_ = cur_[idx+1:]
        A(ins)
        if barrier and i == P["barslot"]:
            if cur_ or vm0: A("s_waitcnt" + (" vmcnt(0)" if vm0 else "") + " lgkmcnt(0)"); cur_ = []
            sstamp()
            A("s_barrier")
            sstamp()
        while rd and slots[len(nxt)] <= i:
            key, s = rd.pop(0); A(s); nxt.append(key); newer += 1
        while nd < len(dpp) and dslots[nd] <= i:
            if nd == 0:
                k = max(nxt.index(("X", q)) for q in range(3) if ("X", q) in nxt)
                A(f"s_waitcnt lgkmcnt({min(len(nxt) - 1 - k, 15)})")
            A(dpp[nd]); nd += 1
        if extra and i in extra:
            for s in extra[i]: A(s)
    assert not rd and nd == len(dpp)
    if skip_label: LBL(skip_label)
    pending = nxt
    sstamp()
A("s_barrier")
stamp(1)
if plain: A("s_memtime s[92:93]"); A("s_waitcnt lgkmcnt(0)")
D2, D3 = (2 if P["dpp"] else 0), (3 if P["dpp"] else 0)
r0, _ = reads(0, 0, 0)
for _, s in r0: A(s)
pending = [k for k, _ in reads(0, 0, 0, D2 if P["dpp"] & 4 else 0)[0]]
loop_entry = list(pending)
A(f"s_mov_b32 s{sCNT}, 0")
if P["dpp"] & 4: A("s_waitcnt lgkmcnt(0)")
A("s_branch L_cloop")

cur[0] = "cloop"
def cstamp(idx=None):
    if not P["cst"]: return
    A("s_memtime s[100:101]")
    A("s_waitcnt lgkmcnt(0)")
    if idx is None:
        A(f"s_mov_b32 m0, s{sCNT}")
        A("s_nop 0")
        A("s_movreld_b32 s76, s100")
    else:
        A(f"s_mov_b32 s{76+idx}, s100")
LBL("L_cloop")
if P["sst"] >= 0:
    A(f"s_cmp_lg_u32 s{sCNT}, {P['sst'] + 1}")
    A("s_cbranch_scc1 L_nss")
    A("s_waitcnt lgkmcnt(0)")
    for k in range(12): A(f"v_writelane_b32 v255, s{76+2*k}, {k}")
    LBL("L_nss")
cstamp()
seq(G00, 0, reads(0, 1, 1, D2), False)
seq(G00, 1, reads(1, 0, 0, D3 if P["dpp"] & 2 else 0), True, extra={28: [f"v_sub_u32 v{vW3}, v{vW3C}, v{vW3}"]}, delay=P["dly0"], vm0=bool(P["lateack"]))
A(f"s_bitcmp1_b32 s{sCNT}, 0")
seq(G11, 0, reads(1, 1, 1), False, "L_skipa")
seq(G11, 1, reads(2, 0, 0), True, "L_skipb")
A(f"s_cmp_eq_u32 s{sCNT}, 0")
A("s_cbranch_scc1 L_cfirst")
LBL("L_gs")
pend_gs = list(pending)
seq(GS, 0, reads(2, 1, 1, D3), False)
A(f"s_add_u32 s{sCNT}, s{sCNT}, 1")
A(f"s_cmp_lt_u32 s{sCNT}, 8")
seq(GS, 1, reads(0, 0, 0, D2 if P["dpp"] & 4 else 0), True, delay=P["dly2"])
pend_loop = list(pending)
assert pend_loop == loop_entry
A("s_cbranch_scc1 L_cloop")
if not P["peel"]:
    A(f"s_cmp_eq_u32 s{sCNT}, 9")
    A("s_cbranch_scc1 L_cdone")
    cstamp(8)
    for k in (5, 6): A(f"v_mov_b32 v{k}, v{k-4}")
    if pend_loop != pend_gs: A("s_waitcnt lgkmcnt(0)")
    A("s_branch L_gs")
else:
    A("s_branch L_cdone")
LBL("L_cfirst")
stamp(3)
for k in (1, 2):
    A(f"v_add_u32 v{k}, {2*SLOT}, v{k}")
    A(f"v_subrev_u32 v{k+2}, {SLOT}, v{k+2}")
    A(f"v_subrev_u32 v{k+4}, {SLOT}, v{k+4}")
A(f"v_add_u32 v{vW3}, {tile(0,3)}, v2")
A(f"s_mov_b32 s{sCNT}, 1")
if pend_loop != pend_gs: A("s_waitcnt lgkmcnt(0)")
A("s_branch L_cloop")

cur[0] = "cepi"
LBL("L_cdone")
def yreg(idx): return (G11 if idx % 2 == 0 else GS) + 4 * (idx // 2)
S1, S2 = 16, 20
dppl = [f"v_mov_b32_dpp v{T+i}, v{G00+i} row_shl:1 row_mask:0xf bank_mask:0xf bound_ctrl:0" for i in range(4)]
if P["peel"]:
    cstamp(8)
    pending = pend_loop
    CM("last stage, with the G00/G11 part of the output transform in its shadow: G11 <- y0, G00[j] <- G11[j] + G00[j+1]")
    ex = []
    TS = 12
    for j in range(8):
        for h in (0, 2):
            nx = G00+4*(j+1)+h if j < 7 else T+h
            if P["pp"]:
                ex += [pks("add", TS+h, G11+4*j+h, nx), pks("add", G11+4*j+h, G11+4*j+h, G00+4*j+h), f"v_pk_mov_b32 v[{G00+4*j+h}:{G00+4*j+h+1}], v[{TS+h}:{TS+h+1}], v[{TS+h}:{TS+h+1}] op_sel:[0,1]"]
    exA = {20 + i: [dppl[i]] for i in range(4)}
    exA[19] = [f"v_mov_b32 v12, {MISC}", "ds_read_b64 v[238:239], v12"]
    seq(GS, 0, reads(0, 1, 1, 0, True), False, extra=exA)
    pending = pending + [("N", 0)]
    seq(GS, 1, ([], []), False)
    A("s_nop 7")
else:
    A(f"v_mov_b32 v12, {MISC}")
    A("ds_read_b64 v[238:239], v12")
    for t in dppl: A(t)
    A("s_nop 2")
cstamp(9)
stamp(2)
if plain: A("s_memtime s[94:95]")
if P["prio"]: A("s_setprio 0")
for j in range(8):
    for h in (0, 2):
        pk("add", GS+4*j+h, GS+4*j+h, G11+4*j+h, neg=True)
for j in range(8):
    for h in (0, 2):
        nx = G00+4*(j+1)+h if j < 7 else T+h
        pk("add", GS+4*j+h, GS+4*j+h, nx, neg=True)
        pk("add", G11+4*j+h, G11+4*j+h, G00+4*j+h)
for h in (0, 2):
    pk("add", S1+h, yreg(0)+h, yreg(1)+h)
    pk("mul", S2+h, yreg(0)+h, yreg(0)+h)
for idx in range(1, 16):
    if idx == 3: A(f"s_mov_b64 exec, s[{sMID}:{sMID+1}]")
    if idx == 10:
        A("s_mov_b32 exec_lo, 0x7fff7fff")
        A("s_mov_b32 exec_hi, 0x7fff7fff")
    for h in (0, 2):
        if idx > 1: pk("add", S1+h, S1+h, yreg(idx)+h)
        pk("fma", S2+h, yreg(idx)+h, yreg(idx)+h, c=S2+h)
A("s_mov_b64 exec, -1")
A("s_nop 1")
def dadd(d, s, ctl, bm="0xf"): A(f"v_add_f32_dpp v{d}, v{s}, v{s} {ctl} row_mask:0xf bank_mask:{bm}")
if P["red"]:
    CM("reduce-scatter over the 16 lanes of a row: banks (r>>2) end up with channel r>>2")
    for b in (S1, S2):
        dadd(b+8, b, "row_ror:8"); dadd(b+9, b+1, "row_ror:8")
    for b in (S1, S2):
        dadd(b+8, b+2, "row_ror:8", "0xc"); dadd(b+9, b+3, "row_ror:8", "0xc")
    A("s_nop 0")
    dadd(236, S1+8, "row_half_mirror"); dadd(237, S2+8, "row_half_mirror")
    dadd(236, S1+9, "row_half_mirror", "0xa"); dadd(237, S2+9, "row_half_mirror", "0xa")
    A("s_nop 0")
    dadd(236, 236, "quad_perm:[1,0,3,2]"); dadd(237, 237, "quad_perm:[1,0,3,2]")
    A("s_nop 0")
    dadd(236, 236, "quad_perm:[2,3,0,1]"); dadd(237, 237, "quad_perm:[2,3,0,1]")
    A("s_mov_b32 exec_lo, 0x11111111")
    A("s_mov_b32 exec_hi, 0x11111111")
else:
    for sh in (8, 4, 2, 1):
        for i in range(8): dadd(16+i, 16+i, f"row_ror:{sh}")
    A("v_mov_b32 v236, v16")
    A("v_mov_b32 v237, v20")
    for i in (1, 2, 3):
        mk = (1 << i) * 0x00010001
        A(f"s_mov_b32 exec_lo, {mk:#x}")
        A(f"s_mov_b32 exec_hi, {mk:#x}")
        A(f"v_mov_b32 v236, v{16+i}")
        A(f"v_mov_b32 v237, v{20+i}")
    A("s_mov_b32 exec_lo, 0x000f000f")
    A("s_mov_b32 exec_hi, 0x000f000f")
A("s_waitcnt lgkmcnt(0)")
A(f"buffer_store_dwordx4 v[236:239], v{vGA}, s[{sWS}:{sWS+3}], s{sGR} offen sc0 sc1")
A("s_mov_b64 exec, -1")
for idx in range(16):
    A(f"ds_write_b128 v{vYW + ((idx // 2) & 1)}, v[{yreg(idx)}:{yreg(idx)+3}] offset:{idx*256}")
A("s_waitcnt lgkmcnt(0)")
A("s_barrier")
y_reads()
A("s_branch L_final")

out = [f"""; conv stem (K=15, stride 2) as a 2-parallel fast-FIR GEMM + per-channel GroupNorm + tanh GELU, one launch.
; @launch grid=(256,1,1) block=(512,1,1) lds={LDS_BYTES}
.amdgcn_target "amdgcn-amd-amdhsa--gfx950"
.text
.globl {KN}
.p2align 8
.type {KN},@function
{KN}:"""]
for sec in ("entry", "lpro", "cpro", "cloop", "lloop", "cepi", "llast", "final"):
    if sec in ("cloop", "lloop"): out.append(".p2align 6")
    out += SEC[sec]
out.append(f""".p2align 8
.fill 1024, 4, 0xbf810000
.section .rodata,"a"
.p2align 6
.amdhsa_kernel {KN}
  .amdhsa_next_free_vgpr 256
  .amdhsa_next_free_sgpr 102
  .amdhsa_accum_offset 256
  .amdhsa_group_segment_fixed_size 0
  .amdhsa_kernarg_size 64
  .amdhsa_user_sgpr_count 2
  .amdhsa_user_sgpr_kernarg_segment_ptr 1
  .amdhsa_system_sgpr_workgroup_id_x 1
.end_amdhsa_kernel""")
print("\n".join(out))
```

```python
import sys, struct, math
P = dict(prio=2, lprio=0, dsprio=3, stamps=0, novalu=0, nodma=0, nords=0, barslot=1, rd_gap=5, rdA=19, dly0=12, dly2=12,
         touch=1, lst=-1, cst=0, pst=0, sst=-1, vsplit=2, wsplit=2, cpf=1, stf=2, dbgt=0, dpp=1, u3=1, red=1, wend=0, wend2=0, u0first=0, warm=0, pq=0, xnt=0, tnt=1, wnt=0, pnt=0, nochk=0, v1=2, g5=1, spoll=0, lateack=1, peel=1, pp=0,
         pro="D0.N.D1.S.B.U.V02.D2:0:8.B.F.V24.D2.D3.B.G.w.r.C.D4.T2ab.T3ab.B")
for a in sys.argv[1:]:
    k, v = a.split("=")
    P[k] = v if k in ("pro",) else int(v)

KN = "standalone__self_sup_conv_stem_hubert__speech_kernel"
XB = 1056
XSZ = 16 * XB + 128
WOFF = XSZ
SLOT = WOFF + 32768
SPARE = 3 * SLOT
MISC = SPARE + 8192
LDS_BYTES = MISC + 1024
X_BYTES = 2 * 16000 * 256 * 2
W_BYTES = 15 * 256 * 256 * 2
FL_OFF, WP_OFF, WS_BYTES = 0x40000, 0x80000, 0x180000
OOB = 0x40000000
SPIN = 0x4000
def tile(hh, s): return (hh * 3 + s if s < 3 else 6 + hh) * 4096

SEC = {k: [] for k in ("entry", "lpro", "lloop", "llast", "final", "cpro", "cloop", "cepi")}
cur = ["entry"]
def A(s): SEC[cur[0]].append("  " + s)
def LBL(s): SEC[cur[0]].append(s + ":")
def CM(s): SEC[cur[0]].append("  ; " + s)
def f32(x): return "0x%08x" % struct.unpack("<I", struct.pack("<f", x))[0]

sX, sW, sO, sWS, sDBG, sGA, sBE = 4, 8, 12, 16, 20, 24, 28
sWAVE, sT, sNT, sB = 46, 47, 48, 49
sWN, sXO, sWO, sPO, sTMP, sCNT, sMASK16 = 50, 51, 52, 53, 55, 56, 57
sTA = 58
sD, sXB = 60, 61
sN0, sN1 = 62, 63
sMID = 64
sGR, sFO = 66, 67
sK = 68
sM0, sMX = 73, 74
sXW = 75
sST = 76

def srd(d, lo, nbytes):
    A(f"s_mov_b32 s{d}, s{lo}")
    A(f"s_and_b32 s{d+1}, s{lo+1}, 0xffff")
    A(f"s_mov_b32 s{d+2}, {nbytes}")
    A(f"s_mov_b32 s{d+3}, 0x20000")
def out_srd():
    A(f"s_mul_i32 s{sTMP}, s{sB}, {7993*512}")
    A(f"s_mul_i32 s{sCNT}, s{sT}, {250*512}")
    A(f"s_add_u32 s{sTMP}, s{sTMP}, s{sCNT}")
    A(f"s_add_u32 s{sO}, s40, s{sTMP}")
    A(f"s_addc_u32 s{sO+1}, s41, 0")
    A(f"s_and_b32 s{sO+1}, s{sO+1}, 0xffff")
    A(f"s_cmp_eq_u32 s{sT}, 31")
    A(f"s_mov_b32 s{sO+2}, {243*512}")
    A(f"s_cselect_b32 s{sO+2}, s{sO+2}, {250*512}")
    A(f"s_mov_b32 s{sO+3}, 0x20000")
def granule_off():
    A(f"s_lshl_b32 s{sGR}, s{sB}, 2")
    A(f"s_add_u32 s{sGR}, s{sGR}, s{sNT}")
    A(f"s_lshl_b32 s{sGR}, s{sGR}, 15")
    A(f"s_lshl_b32 s{sTMP}, s{sWAVE}, 8")
    A(f"s_add_u32 s{sGR}, s{sGR}, s{sTMP}")
plain = P["stamps"] and P["lst"] < 0 and not P["cst"] and P["sst"] < 0
def stamp(k):
    if not plain: return
    if P["pst"] and k > 0 and cur[0] not in ("cpro", "cloop", "cepi"): return
    A(f"s_memrealtime s[{sST+2*k}:{sST+2*k+1}]")
def pstamp(k):
    if P["pst"] == 1: A(f"s_memrealtime s[{sST+2*k}:{sST+2*k+1}]")
def addbf_list(d, a, b, t, force=False):
    r = []
    if P["novalu"] and not force: return r
    for i0 in (0, 2):
        for i in (i0, i0 + 1):
            u = t + 4 * (i - i0)
            r += [f"v_lshlrev_b32 v{u}, 16, v{a+i}", f"v_lshlrev_b32 v{u+1}, 16, v{b+i}",
                  f"v_and_b32 v{u+2}, s{sMASK16}, v{a+i}", f"v_and_b32 v{u+3}, s{sMASK16}, v{b+i}"]
        for i in (i0, i0 + 1):
            u = t + 4 * (i - i0)
            r += [f"v_add_f32 v{u}, v{u}, v{u+1}", f"v_add_f32 v{u+2}, v{u+2}, v{u+3}"]
        for i in (i0, i0 + 1):
            u = t + 4 * (i - i0)
            r += [f"v_cvt_pk_bf16_f32 v{d+i}, v{u}, v{u+2}"]
    return r
def pks(op, d, a, b, neg=False, c=None):
    s = f"v_pk_{op}_f32 v[{d}:{d+1}], v[{a}:{a+1}], v[{b}:{b+1}]"
    if c is not None: s += f", v[{c}:{c+1}]"
    if neg: s += " neg_lo:[0,1] neg_hi:[0,1]"
    return s
def pk(*a, **k): A(pks(*a, **k))
def final_addr(base):
    b = base
    A(f"v_lshrrev_b32 v{b+4}, 3, v0")
    A(f"v_and_b32 v{b+6}, 7, v0")
    A(f"s_lshl_b32 s{sTMP}, s{sWAVE}, 5")
    A(f"v_add_u32 v{b+4}, s{sTMP}, v{b+4}")
    A(f"v_bfe_u32 v{b}, v0, 4, 1")
    A(f"v_lshl_or_b32 v{b}, v{b}, 3, v{b+6}")
    A(f"s_lshl_b32 s{sTMP}, s{sWAVE}, 1")
    A(f"s_and_b32 s{sTMP}, s{sTMP}, 7")
    A(f"v_xor_b32 v{b}, s{sTMP}, v{b}")
    A(f"v_lshlrev_b32 v{b}, 4, v{b}")
    A(f"v_lshl_add_u32 v{b}, v{b+4}, 8, v{b}")
    A(f"v_xor_b32 v{b+1}, 0x80, v{b}")
    A(f"v_xor_b32 v{b+2}, 0x10, v{b}")
    A(f"v_xor_b32 v{b+3}, 0x90, v{b}")
    A(f"v_lshlrev_b32 v{b+4}, 9, v{b+4}")
    A(f"v_lshl_add_u32 v{b+4}, v{b+6}, 4, v{b+4}")
    A(f"s_lshl_b32 s{sTMP}, s{sNT}, 7")
    A(f"v_add_u32 v{b+4}, s{sTMP}, v{b+4}")
    A(f"v_add_u32 v{b+5}, 0x2000, v{b+4}")
    A(f"v_lshlrev_b32 v{b+6}, 5, v{b+6}")
    A(f"v_add_u32 v{b+6}, {MISC+64}, v{b+6}")
FA = 244
Y = 112
def y_reads():
    for n in range(4):
        for h in range(2):
            A(f"ds_read_b128 v[{Y+8*n+4*h}:{Y+8*n+4*h+3}], v{FA + h + 2*(n >> 1)} offset:{n*2048}")

stamp(0)
A("s_load_dwordx4 s[32:35], s[0:1], 0")
A("s_load_dwordx4 s[40:43], s[0:1], 40")
A("s_load_dwordx2 s[44:45], s[0:1], 56")
A("s_load_dwordx4 s[36:39], s[0:1], 24")
A("s_cmp_ge_u32 s2, 256")
A("s_cbranch_scc1 L_end")
A(f"v_readfirstlane_b32 s{sWAVE}, v0")
A("v_and_b32 v0, 63, v0")
A(f"s_and_b32 s{sT}, s2, 7")
A(f"s_lshl_b32 s{sT}, s{sT}, 3")
A(f"s_lshr_b32 s{sTMP}, s2, 5")
A(f"s_add_u32 s{sT}, s{sT}, s{sTMP}")
A(f"s_bfe_u32 s{sNT}, s2, 0x20003")
A(f"s_lshr_b32 s{sB}, s{sT}, 5")
A(f"s_and_b32 s{sT}, s{sT}, 31")
A(f"s_mov_b32 s{sMASK16}, 0xffff0000")
A(f"s_cmp_lt_u32 s{sWAVE}, 256")
A("s_cbranch_scc1 L_compute")

cur[0] = "lpro"
vXG, vWG, vLIN, vLIN2, vU0, vFL, vZ, vTC = 1, 3, 4, 5, 6, 8, 9, 15
U0, U1, TT, FLG, NON, JUNK, GAM, VV = 16, 32, 48, 56, 64, 66, 68, 80
sTS, sTB = 24, 68
A(f"s_bfe_u32 s{sWAVE}, s{sWAVE}, 0x20006")
A(f"s_mul_i32 s{sXB}, s{sB}, {16000*512}")
A(f"s_mul_i32 s{sTMP}, s{sT}, {500*512}")
A(f"s_add_u32 s{sXB}, s{sXB}, s{sTMP}")
A("v_lshrrev_b32 v10, 3, v0")
A("v_and_b32 v11, 7, v0")
A("v_lshlrev_b32 v12, 4, v11")
A(f"v_lshl_add_u32 v{vXG}, v10, 11, v12")
A(f"s_lshl_b32 s{sXW}, s{sWAVE}, 16")
A(f"s_add_u32 s{sXO}, s{sXB}, s{sXW}")
A(f"s_mul_i32 s{sMX}, s{sWAVE}, {4*XB}")
A("v_bfe_u32 v13, v0, 4, 1")
A(f"s_and_b32 s{sTMP}, s{sWAVE}, 1")
A(f"s_lshl_b32 s{sTMP}, s{sTMP}, 1")
A(f"v_or_b32 v13, s{sTMP}, v13")
A("v_lshlrev_b32 v13, 5, v13")
A("v_xor_b32 v13, v13, v12")
A("v_lshl_add_u32 v13, v10, 9, v13")
A(f"s_lshl_b32 s{sTMP}, s{sNT}, 7")
A(f"s_lshl_b32 s{sM0}, s{sWAVE}, 12")
A(f"s_add_u32 s{sTMP}, s{sTMP}, s{sM0}")
A(f"v_add_u32 v{vWG}, s{sTMP}, v13")
A(f"s_lshl_b32 s{sM0}, s{sWAVE}, 10")
A(f"s_mov_b32 s{sWO}, 0")
A(f"v_mov_b32 v{vZ}, 0")
A(f"s_lshl_b32 s{sTMP}, s{sWAVE}, 4")
A(f"s_lshl_b32 s{sCNT}, s{sNT}, 6")
A(f"s_add_u32 s{sTMP}, s{sTMP}, s{sCNT}")
A(f"v_add_u32 v14, s{sTMP}, v0")
A(f"v_lshlrev_b32 v{vTC}, 10, v14")
A("s_waitcnt lgkmcnt(0)")
pstamp(1)
srd(sX, 32, X_BYTES)
srd(sW, 34, W_BYTES)

TAPS = {("G00", 0): [0, 4, 8, 12], ("G11", 0): [2, 6, 10, 14], ("G00", 1): [1, 5, 9, 13], ("G11", 1): [3, 7, 11]}
def dw(lds, so, tap, hh):
    return [f"s_add_u32 m0, s{sM0}, {lds}",
            f"s_add_u32 s{sTMP}, s{so}, {tap*131072 + hh*16384}",
            f"buffer_load_dwordx4 v{vWG}, s[{sW}:{sW+3}], s{sTMP} offen" + (" nt" if (P["wnt"] == 2 or (P["wnt"] == 1 and cur[0] == "lpro")) else "") + " lds"]
def dma_w(slot, taps, ss=(0, 1, 2, 3), so=None):
    return [dw(slot*SLOT + WOFF + tile(hh, s), so or sWO, taps[s], hh) for hh in (0, 1) for s in ss if s < len(taps)]
def dma_wp(par, slot, spare0=False):
    r = []
    for hh in (0, 1):
        for s in range(4):
            dst = SPARE if (spare0 and hh == 0 and s == 3) else slot*SLOT + WOFF + tile(hh, s)
            r.append([f"s_add_u32 m0, s{sM0}, {dst}",
                      f"s_add_u32 s{sTMP}, s{sPO}, {WP_OFF + (par*4+s)*131072 + hh*16384}",
                      f"buffer_load_dwordx4 v{vWG}, s[{sWS}:{sWS+3}], s{sTMP} offen sc1 lds"])
    return r
def dma_x(slot, phi):
    nt_ = " nt" if (P["xnt"] == 2 or (P["xnt"] == 1 and cur[0] == "lpro")) else ""
    return [[f"s_add_u32 m0, s{sMX}, {slot*SLOT + j*XB}",
             f"s_add_u32 s{sTMP}, s{sXO}, {j*16384 + phi*512}",
             f"buffer_load_dwordx4 v{vXG}, s[{sX}:{sX+3}], s{sTMP} offen{nt_} lds"] for j in range(4)]
tl_n = [0]
def tail_g(slot, phi):
    k = tl_n[0]; tl_n[0] += 1
    return [f"s_cmp_lg_u32 s{sWAVE}, 0", f"s_cbranch_scc1 L_nt{k}",
            f"s_mov_b32 m0, {slot*SLOT + 16*XB}",
            f"s_add_u32 s{sTMP}, s{sXO}, {(512 + phi)*512}",
            "s_mov_b64 exec, 0xff",
            f"buffer_load_dwordx4 v{vXG}, s[{sX}:{sX+3}], s{sTMP} offen lds",
            "s_mov_b64 exec, -1", f"L_nt{k}:"]
def touch_g(dd, par, half="ab", const=False):
    if const:
        r = [f"s_add_u32 s{sTMP}, s{sXB}, {dd*128 + par*512}"]
    else:
        r = [f"s_cmp_lt_u32 s{sD}, {4 - dd}", f"s_cselect_b32 s{sCNT}, s{sXB}, {OOB}",
             f"s_lshl_b32 s{sTMP}, s{sD}, 7", f"s_add_u32 s{sTMP}, s{sTMP}, s{sCNT}", f"s_add_u32 s{sTMP}, s{sTMP}, {dd*128 + par*512}"]
    r.append(f"s_mov_b64 exec, {dict(ab=0xffff, a=0x5555, b=0xaaaa)[half]:#x}")
    r += [f"buffer_load_dword v{JUNK}, v{vTC}, s[{sX}:{sX+3}], s{sTMP} offen" + (" nt" if P["tnt"] else ""), "s_mov_b64 exec, -1"]
    return r
def emit_groups(gs):
    if P["nodma"]: return
    for g in gs:
        for s in g: A(s)
def mix(valu, gs):
    if P["nodma"]: gs = []
    n = len(gs)
    if not valu:
        emit_groups(gs); return
    pos = [(k * len(valu)) // n for k in range(n)] if n else []
    gi = 0
    for i, v in enumerate(valu):
        while gi < n and pos[gi] == i:
            for s in gs[gi]: A(s)
            gi += 1
        A(v)
def rd_u0(): return [f"ds_read_b128 v[{U0+4*j}:{U0+4*j+3}], v{vU0} offset:{j*XB}" for j in range(4)]
def rd_u1(lin, off): return [f"ds_read_b128 v[{U1+4*j}:{U1+4*j+3}], v{lin} offset:{off + j*XB}" for j in range(4)]
def wr_v(lin, off): return [f"ds_write_b128 v{lin}, v[{VV+4*j}:{VV+4*j+3}] offset:{off + j*XB}" for j in range(4)]
def vadd(js):
    r = []
    for j in js: r += addbf_list(VV+4*j, U1+4*j, U0+4*j, TT)
    return r
def hi(lst):
    if P["dsprio"]: A(f"s_setprio {P['dsprio']}")
    for d in lst: A(d)
    if P["dsprio"]: A(f"s_setprio {P['lprio']}")
def lsetup():
    A("v_lshlrev_b32 v13, 4, v0")
    A(f"v_add_u32 v{vLIN}, s{sMX}, v13")
    A(f"v_add_u32 v{vLIN2}, {2*SLOT}, v{vLIN}")
    A("v_cmp_eq_u32 vcc, 7, v10")
    A(f"v_add_u32 v{vU0}, 128, v{vLIN}")
    A(f"v_add_u32 v12, 160, v{vLIN}")
    A(f"v_cndmask_b32 v{vU0}, v{vU0}, v12, vcc")
    A(f"v_lshlrev_b32 v{vFL}, 3, v0")
    srd(sWS, 44, WS_BYTES)
    out_srd()
    granule_off()
    A(f"s_mov_b32 s{sWN}, 32768")
    A(f"s_mov_b32 s{sD}, 0")
    A(f"s_mov_b32 s{sPO}, 0")
    A(f"s_lshl_b32 s{sFO}, s{sWAVE}, 9")
    A(f"s_add_u32 s{sFO}, s{sFO}, {FL_OFF}")
    if P["lprio"]: A(f"s_setprio {P['lprio']}")
STG = {0: None, 1: None, 2: None, 3: None, 4: None}
w_ = dma_w(0, TAPS[("G00", 0)]); x_ = dma_x(0, 0)
STG[0] = [tail_g(0, 0) + x_[0]] + x_[1:2] + w_[:4] + x_[2:] + w_[4:]
STG[1] = dma_x(1, 2) + dma_w(1, TAPS[("G11", 0)])
x_ = dma_x(2, 1)
STG[2] = [tail_g(2, 1) + x_[0]] + x_[1:] + dma_w(2, TAPS[("G00", 1)])
STG[3] = dma_x(0, 3) + dma_w(0, TAPS[("G11", 1)]) + dma_w(0, TAPS[("G11", 0)], ss=(3,), so=sWN)
STG[4] = dma_wp(0, 1) + [dw(SPARE + hh*4096, sWN, TAPS[("G00", 0)][3], hh) for hh in (0, 1)]
issued = []; period = 0; seen = {k: 0 for k in STG}; mixv = []; pendg = []
def flush():
    global mixv, pendg
    mix(mixv, [g for _, g in pendg])
    if not P["nodma"]: issued.extend(k for k, _ in pendg)
    mixv = []; pendg = []
def wait_for(keys, extra=""):
    flush()
    last = max(i for i, k in enumerate(issued) if k in keys)
    A(f"s_waitcnt vmcnt({len(issued) - 1 - last}){extra}")
def flag_load(so): A(f"buffer_load_dwordx2 v[{FLG}:{FLG+1}], v{vFL}, s[{sWS}:{sWS+3}], {so} offen sc0 sc1")
def check_flags(name, so):
    A(f"s_mov_b32 s{sCNT}, {SPIN}")
    LBL(name)
    A(f"v_cmp_eq_u64 vcc, s[{sN0}:{sN1}], v[{FLG}:{FLG+1}]")
    A("s_cmp_eq_u64 vcc, -1")
    A(f"s_cbranch_scc1 {name}_ok")
    A(f"s_sub_u32 s{sCNT}, s{sCNT}, 1")
    A(f"s_cbranch_scc1 {name}_ok")
    flag_load(so)
    A("s_waitcnt vmcnt(0)")
    A(f"s_branch {name}")
    LBL(name + "_ok")
def nonce_load(): A(f"buffer_load_dwordx2 v[{NON}:{NON+1}], v{vZ}, s[{sDBG}:{sDBG+3}], 0 offen sc0 sc1")
if P["nodma"]: issued.extend([0, 1, 2, 3, 4])
for tok in P["pro"].split("."):
    if tok[0] == "D":
        f = tok[1:].split(":"); st = int(f[0]); gs = STG[st]
        lo, hi_ = (int(f[1]), int(f[2])) if len(f) > 1 else (seen[st], len(gs))
        assert lo == seen[st]; seen[st] = min(hi_, len(gs))
        assert st < 3 or period >= st - 1
        pendg += [(st, g) for g in gs[lo:hi_]]
        continue
    if tok[0] == "T":
        c = int(tok[1])
        if P["touch"]: pendg.append(("t", touch_g(c >> 1, c & 1, tok[2:], True)))
        continue
    flush()
    if tok[0] == "S":
        pstamp(2); lsetup()
    elif tok[0] == "Z":
        k = int(tok[1]); A(f"s_memrealtime s[{sST+2*k}:{sST+2*k+1}]")
    elif tok[0] == "N":
        srd(sDBG, 42, 256); nonce_load(); issued.append("n")
    elif tok[0] == "U":
        k4 = [i for i, k in enumerate(issued) if k == 1][3] if not P["nodma"] else len(issued) - 1
        A(f"s_waitcnt vmcnt({len(issued) - 1 - k4})")
        hi(rd_u1(vLIN, SLOT))
        A("s_waitcnt lgkmcnt(0)")
    elif tok[0] == "V":
        mixv = vadd(range(int(tok[1]), int(tok[2])))
    elif tok[0] == "F":
        assert period == (2 if P["lateack"] else 1)
        wait_for(["n"])
        A(f"s_mov_b32 s{sCNT}, {SPIN}")
        LBL("L_cn")
        A(f"v_readfirstlane_b32 s{sN0}, v{NON}")
        A(f"v_readfirstlane_b32 s{sN1}, v{NON+1}")
        A(f"s_cmp_lg_u32 s{sN0}, 0")
        A("s_cbranch_scc1 L_cn_ok")
        A(f"s_sub_u32 s{sCNT}, s{sCNT}, 1")
        A("s_cbranch_scc1 L_cn_ok")
        nonce_load()
        A("s_waitcnt vmcnt(0)")
        A("s_branch L_cn")
        LBL("L_cn_ok")
        A(f"s_lshl_b32 s{sTMP}, s2, 3")
        A(f"s_add_u32 s{sTMP}, s{sTMP}, {FL_OFF}")
        A(f"s_cmp_eq_u32 s{sWAVE}, 0")
        A(f"s_cselect_b32 s{sTMP}, s{sTMP}, {OOB}")
        A("s_mov_b64 exec, 1")
        A(f"buffer_store_dwordx2 v[{NON}:{NON+1}], v{vZ}, s[{sWS}:{sWS+3}], s{sTMP} offen sc0 sc1")
        A(f"v_mov_b32 v12, {MISC}")
        A(f"ds_write_b64 v12, v[{NON}:{NON+1}]")
        A("s_mov_b64 exec, -1")
        issued.append("f")
        pstamp(7)
    elif tok[0] == "G":
        A(f"s_mov_b32 s{sTA}, {FL_OFF}"); flag_load(f"s{sTA}"); issued.append("g")
    elif tok[0] == "C":
        wait_for(["g"])
        A(f"s_mov_b32 s{sTA}, {FL_OFF}")
        check_flags("L_spin0", f"s{sTA}")
    elif tok[0] == "W":
        assert period == 3
        hi(wr_v(vLIN, SLOT)[:P["wsplit"]] + rd_u0())
    elif tok[0] == "w":
        assert period == 3
        for d in wr_v(vLIN, SLOT)[:P["wsplit"]]: A(d)
    elif tok[0] == "r":
        assert period == 3
        for d in rd_u0(): A(d)
    elif tok[0] == "B":
        assert seen[period] == len(STG[period])
        if period == 0: pstamp(3)
        wait_for([period], " lgkmcnt(0)" if period >= 2 else "")
        if period == 0: pstamp(4)
        if period == 1:
            if "U" not in P["pro"].split("."):
                for d in rd_u1(vLIN, SLOT): A(d)
            A("s_waitcnt lgkmcnt(0)")
            A(f"v_add_u32 v{vU0}, {2*SLOT}, v{vU0}")
        if period == 3:
            assert seen[4] == 10
            A("s_branch L_join")
            break
        A("s_barrier")
        if period < 2: pstamp(5 + period)
        period += 1
        CM(f"P({period-1})")
        if period == 1: pend_u0 = True
    if tok[0] in "FB" and period == 1 and pend_u0 and (tok[0] == "F" or P["lateack"]):
        hi(rd_u0()); pend_u0 = False
n_after_wp = len(issued) - 1 - max(i for i, k in enumerate(issued) if k == 4) + 2

cur[0] = "lloop"
lb_n = [0]
def lbar():
    k = lb_n[0]; lb_n[0] += 1
    if P["lst"] >= 0:
        A(f"s_cmp_lg_u32 s{sD}, {P['lst'] + 1}")
        A(f"s_cbranch_scc1 L_nb{k}")
        A(f"s_memtime s[{76+4*k}:{77+4*k}]")
        A("s_barrier")
        A(f"s_memtime s[{78+4*k}:{79+4*k}]")
        A(f"s_branch L_nc{k}")
        LBL(f"L_nb{k}")
        A("s_barrier")
        LBL(f"L_nc{k}")
    else:
        A("s_barrier")
nt = 1 if P["touch"] else 0
assert P["nodma"] or n_after_wp >= 2 + nt, n_after_wp
assert P["nochk"] or P["vsplit"] <= P["wsplit"] <= P["vsplit"] + P["v1"] <= 4
LBL("L_lloop")
for par in (1, 0):
    npar = 1 - par
    CM(f"P(3c-1) par={par}")
    if par == 1:
        A(f"s_cmp_eq_u32 s{sD}, 3")
        A("s_cbranch_scc1 L_last")
    if not P["wend"]: hi(wr_v(vLIN, SLOT)[:P["wsplit"]])
    if P["u0first"]: hi(rd_u0())
    early = [dw((SPARE if par == 1 else 2*SLOT + WOFF + tile(0, 3)) + hh*4096, sWN if par else sWO, TAPS[("G00", npar)][3], hh) for hh in (0, 1)]
    mix(vadd(range(P["vsplit"] + P["v1"], 4)), dma_wp(npar, 1) + early)
    if not P["u0first"]:
        for d in rd_u0(): A(d)
    if nt: emit_groups([touch_g(1, par)])
    if P["wend"] == 1: hi(wr_v(vLIN, SLOT)[:P["wsplit"]])
    if P["wend"] == 2:
        for d in wr_v(vLIN, SLOT)[:P["wsplit"]]: A(d)
    A(f"s_waitcnt vmcnt({10 + nt})")
    if par == 1: LBL("L_join")
    for d in rd_u1(vLIN, 0): A(d)
    A(f"s_mov_b32 s{sPO}, s{sWO}")
    if par == 1:
        A(f"s_add_u32 s{sD}, s{sD}, 1")
        A(f"s_mov_b32 s{sWO}, s{sWN}")
        A(f"s_add_u32 s{sWN}, s{sWN}, 32768")
        A(f"s_cmp_eq_u32 s{sD}, 3")
        A(f"s_cselect_b32 s{sWN}, {OOB}, s{sWN}")
        A(f"s_add_u32 s{sXO}, s{sXO}, 128")
    A("s_waitcnt lgkmcnt(0)")
    lbar()
    CM(f"P(3c) par={par}")
    if not P["wend2"]: hi(wr_v(vLIN, SLOT)[P["wsplit"]:])
    x_ = dma_x(2, npar)
    gs = [tail_g(2, npar) + x_[0]] + x_[1:] + dma_w(2, TAPS[("G00", npar)], ss=(0, 1, 2))
    mix(vadd(range(P["vsplit"])), gs)
    if P["wend2"] == 1: hi(wr_v(vLIN, SLOT)[P["wsplit"]:])
    if P["wend2"] == 2:
        for d in wr_v(vLIN, SLOT)[P["wsplit"]:]: A(d)
    A(f"s_waitcnt vmcnt({12 + nt}) lgkmcnt(0)")
    lbar()
    CM(f"P(3c+1) par={par}")
    gs = dma_x(0, 2 + npar) + dma_w(0, TAPS[("G11", npar)], ss=(0, 1, 2))
    if par == 0: gs += dma_w(0, TAPS[("G11", 0)], ss=(3,), so=sWN)
    if par == 1:
        A(f"s_cmp_lg_u32 s{sD}, 1")
        A("s_cbranch_scc1 L_nf2")
        flag_load(f"s{sFO}")
        LBL("L_nf2")
    mix(vadd(range(P["vsplit"], P["vsplit"] + P["v1"])), gs)
    A(f"s_waitcnt vmcnt({len(gs)})")
    if par == 1:
        A(f"s_cmp_lg_u32 s{sD}, 1")
        A("s_cbranch_scc1 L_spin1_ok")
        check_flags("L_spin1", f"s{sFO}")
    lbar()
A("s_branch L_lloop")

cur[0] = "llast"
LBL("L_last")
CM("P(20)")
hi(wr_v(vLIN, SLOT)[:P["wsplit"]])
mix(vadd(range(P["vsplit"] + P["v1"], 4)), dma_wp(0, 1))
for d in rd_u0(): A(d)
srd(sGA, 36, 512)
srd(sBE, 38, 512)
A("s_waitcnt vmcnt(8)")
for d in rd_u1(vLIN, 0): A(d)
A("s_waitcnt lgkmcnt(0)")
A("s_barrier")
CM("P(21)")
gs = dma_wp(1, 2, True)
hi(wr_v(vLIN, SLOT)[P["wsplit"]:])
mix(vadd(range(2)), gs[:5])
A("s_waitcnt lgkmcnt(0)")
mix(vadd(range(2, 3)), gs[5:])
A("s_waitcnt vmcnt(8)")
A("s_barrier")
CM("P(22)")
wv = wr_v(vLIN2, 0)
for t in vadd(range(3, 4)): A(t)
for d in wv: A(d)
A("v_and_b32 v10, 15, v0")
A(f"s_lshl_b32 s{sTMP}, s{sNT}, 2")
A(f"s_add_u32 s{sTMP}, s{sTMP}, s{sWAVE}")
A(f"s_lshl_b32 s{sTMP}, s{sTMP}, 5")
A("v_lshlrev_b32 v14, 1, v10")
A(f"buffer_load_ushort v{GAM}, v14, s[{sGA}:{sGA+3}], s{sTMP} offen")
A(f"buffer_load_ushort v{GAM+1}, v14, s[{sBE}:{sBE+3}], s{sTMP} offen")
A("s_waitcnt vmcnt(2) lgkmcnt(0)")
A("s_barrier")
A("v_lshrrev_b32 v11, 4, v0")
A("v_lshlrev_b32 v12, 4, v10")
A("v_lshl_add_u32 v12, v11, 10, v12")
A(f"s_lshl_b32 s{sTMP}, s{sWAVE}, 6")
A(f"s_add_u32 s{sTMP}, s{sTMP}, {MISC+64}")
A(f"v_lshl_add_u32 v10, v10, 2, s{sTMP}")
if P["lprio"]: A("s_setprio 0")
A(f"s_add_u32 s{sWAVE}, s{sWAVE}, 4")
final_addr(FA)
A("s_waitcnt vmcnt(0)")
A(f"v_lshlrev_b32 v{GAM}, 16, v{GAM}")
A(f"v_lshlrev_b32 v{GAM+1}, 16, v{GAM+1}")
k0 = -2.0 * math.sqrt(2.0 / math.pi) * math.log2(math.e)
k1 = k0 * 0.044715
gam3 = -((-k1) ** (1.0 / 3.0))
if P["g5"]:
    A(f"v_mul_f32 v{GAM}, {f32(gam3)}, v{GAM}")
    A(f"v_mul_f32 v{GAM+1}, {f32(gam3)}, v{GAM+1}")
if not P["peel"]: A("s_barrier")
A("s_barrier")
stamp(1)
PG = 16
A(f"s_mov_b32 s{sCNT}, {SPIN}")
y_reads()
if P["spoll"]:
    for i in range(8):
        A(f"s_add_u32 s{84+i}, s{sGR}, {i*4096}")
    def pl(i): A(f"buffer_load_dwordx4 v[{PG+4*i}:{PG+4*i+3}], v12, s[{sWS}:{sWS+3}], s{84+i} offen sc0 sc1")
    for i in range(8): pl(i)
    for i in range(8):
        A(f"s_waitcnt vmcnt({7-i})")
        LBL(f"L_pc{i}")
        A(f"v_cmp_eq_u64 vcc, s[{sN0}:{sN1}], v[{PG+4*i+2}:{PG+4*i+3}]")
        A("s_cmp_eq_u64 vcc, -1")
        A(f"s_cbranch_scc0 L_pr{i}")
        LBL(f"L_pd{i}")
else:
    LBL("L_poll")
    for i in range(8):
        so = f"s{sGR}" if i == 0 else f"s{sTMP}"
        if i: A(f"s_add_u32 s{sTMP}, s{sGR}, {i*4096}")
        A(f"buffer_load_dwordx4 v[{PG+4*i}:{PG+4*i+3}], v12, s[{sWS}:{sWS+3}], {so} offen sc0 sc1")
    A(f"s_mov_b64 s[{sTA}:{sTA+1}], -1")
    for i in range(8):
        A(f"s_waitcnt vmcnt({7-i})")
        A(f"v_cmp_eq_u64 vcc, s[{sN0}:{sN1}], v[{PG+4*i+2}:{PG+4*i+3}]")
        A(f"s_and_b64 s[{sTA}:{sTA+1}], s[{sTA}:{sTA+1}], vcc")
    A(f"s_sub_u32 s{sCNT}, s{sCNT}, 1")
    A("s_cbranch_scc1 L_poll_ok")
    A(f"s_cmp_eq_u64 s[{sTA}:{sTA+1}], -1")
    A("s_cbranch_scc0 L_poll")
LBL("L_poll_ok")
stamp(2)
for st in (4, 2, 1):
    for i in range(st):
        pk("add", PG+4*i, PG+4*i, PG+4*(i+st))
for sw in ("v_permlane32_swap_b32", "v_permlane16_swap_b32"):
    A(f"v_mov_b32 v{PG+2}, v{PG}")
    A(f"v_mov_b32 v{PG+3}, v{PG+1}")
    A("s_nop 1")
    A(f"{sw} v{PG}, v{PG+2}")
    A(f"{sw} v{PG+1}, v{PG+3}")
    A("s_nop 1")
    pk("add", PG, PG, PG+2)
A(f"v_mul_f32 v{PG}, {f32(1.0/7993)}, v{PG}")
A(f"v_mul_f32 v{PG+1}, {f32(1.0/7993)}, v{PG+1}")
A(f"v_fma_f32 v{PG+1}, -v{PG}, v{PG}, v{PG+1}")
A(f"v_max_f32 v{PG+1}, 0, v{PG+1}")
A(f"v_add_f32 v{PG+1}, {f32(1e-5)}, v{PG+1}")
A(f"v_rsq_f32 v{PG+1}, v{PG+1}")
A("s_nop 0")
A(f"v_mul_f32 v{PG+1}, v{PG+1}, v{GAM}")
A(f"ds_write_b32 v10, v{PG+1}")
A(f"v_fma_f32 v{PG}, -v{PG}, v{PG+1}, v{GAM+1}")
A(f"ds_write_b32 v10, v{PG} offset:256")

if P["spoll"]:
    cur[0] = "cepi"
    for i in range(8):
        LBL(f"L_pr{i}")
        A(f"s_sub_u32 s{sCNT}, s{sCNT}, 1")
        A(f"s_cbranch_scc1 L_pd{i}")
        pl(i)
        for k in range(i + 1, min(i + 1 + P["spoll"] - 1, 8)): pl(k)
        A("s_waitcnt vmcnt(0)")
        A(f"s_branch L_pc{i}")
    tail_cepi = SEC["cepi"]; SEC["cepi"] = []
cur[0] = "final"
LBL("L_final")
k0 = -2.0 * math.sqrt(2.0 / math.pi) * math.log2(math.e)
k1 = k0 * 0.044715
A(f"s_mov_b32 s{sK+2}, {f32(gam3 if P['g5'] else k1)}")
A(f"s_mov_b32 s{sK+3}, {f32(gam3 if P['g5'] else k1)}")
A(f"s_mov_b32 s{sK+4}, 4096")
A(f"v_mov_b32 v56, {f32(k0/gam3 if P['g5'] else k0)}")
A(f"v_mov_b32 v57, {f32(k0/gam3 if P['g5'] else k0)}")
A("s_waitcnt lgkmcnt(0)")
A("s_barrier")
stamp(4)
CA, CC = 16, 24
A(f"ds_read_b128 v[{CA}:{CA+3}], v{FA+6}")
A(f"ds_read_b128 v[{CC}:{CC+3}], v{FA+6} offset:256")
A(f"ds_read_b128 v[{CA+4}:{CA+7}], v{FA+6} offset:16")
A(f"ds_read_b128 v[{CC+4}:{CC+7}], v{FA+6} offset:272")
Z, U = 32, 40
for n in range(4):
    y = Y + 8 * n
    for h in range(0, 8, 2):
        if n == 0 and h in (0, 4): A(f"s_waitcnt lgkmcnt({2 if h == 0 else 0})")
        pk("fma", y+h, y+h, CA+h, c=CC+h)
    if P["g5"]:
        for h in range(0, 8, 2): pk("fma", U+h, y+h, y+h, c=56)
    else:
        for h in range(0, 8, 2): pk("mul", U+h, y+h, y+h)
        for h in range(0, 8, 2): A(f"v_pk_fma_f32 v[{U+h}:{U+h+1}], v[{U+h}:{U+h+1}], s[{sK+2}:{sK+3}], v[56:57]")
    for h in range(0, 8, 2): pk("mul", U+h, U+h, y+h)
    for h in range(8): A(f"v_exp_f32 v{U+h}, v{U+h}")
    for h in range(0, 8, 2):
        if P["g5"]: A(f"v_pk_fma_f32 v[{U+h}:{U+h+1}], v[{U+h}:{U+h+1}], s[{sK+2}:{sK+3}], s[{sK+2}:{sK+3}]")
        else: A(f"v_pk_add_f32 v[{U+h}:{U+h+1}], v[{U+h}:{U+h+1}], 1.0 op_sel_hi:[1,0]")
    for h in range(8): A(f"v_rcp_f32 v{U+h}, v{U+h}")
    for h in range(0, 8, 2): pk("mul", y+h, y+h, U+h)
    o = Z + 4 * (n & 1)
    for h in range(4): A(f"v_cvt_pk_bf16_f32 v{o+h}, v{y+2*h}, v{y+2*h+1}")
    A(f"buffer_store_dwordx4 v[{o}:{o+3}], v{FA+4 if n < 2 else FA+5}, s[{sO}:{sO+3}], {'0' if n % 2 == 0 else 's'+str(sK+4)} offen" + ["", " nt", " sc1", " sc0 sc1", " sc1 nt"][P["stf"]])
if P["stamps"]:
    stamp(5)
    A("s_waitcnt vmcnt(0)")
    stamp(6)
    A("s_waitcnt lgkmcnt(0)")
    A(f"s_mov_b32 s{sWS+2}, 0x1000000")
    A(f"s_lshl_b32 s{sTMP}, s2, 3")
    A(f"s_add_u32 s{sTMP}, s{sTMP}, s{sWAVE}")
    A(f"s_lshl_b32 s{sTMP}, s{sTMP}, 5")
    A(f"s_add_u32 s{sTMP}, s{sTMP}, 0x200000")
    A("v_mov_b32 v1, 0")
    if plain and not P["pst"]: A("s_sub_u32 s90, s94, s92")
    for k in range(8): A(f"v_mov_b32 v{2+k}, s{sST+(k if P['cst'] else 2*k)}")
    A("s_mov_b64 exec, 1")
    if P["sst"] >= 0:
        for k in range(12): A(f"v_mov_b32 v{2+k}, v{MS+k}") if False else None
    if P["lst"] >= 0 or P["cst"] or P["sst"] >= 0:
        if P["sst"] >= 0:
            for k in range(12): A(f"v_readlane_b32 s{76+k}, v255, {k}")
            A("s_nop 1")
            for k in range(12): A(f"v_mov_b32 v{2+k}, s{76+k}")
        else:
            for k in range(4): A(f"v_mov_b32 v{10+k}, s{sST+8+k if P['cst'] else sST+16+2*k}")
        A(f"s_add_u32 s{sCNT}, s{sTMP}, 0x100000")
        A(f"buffer_store_dwordx4 v[10:13], v1, s[{sWS}:{sWS+3}], s{sCNT} offen")
    A(f"buffer_store_dwordx4 v[2:5], v1, s[{sWS}:{sWS+3}], s{sTMP} offen")
    A(f"buffer_store_dwordx4 v[6:9], v1, s[{sWS}:{sWS+3}], s{sTMP} offen offset:16")
if P["dbgt"]:
    A(f"s_cmp_lg_u32 s{sWAVE}, 0")
    A("s_cbranch_scc1 L_end")
    A("s_cmp_eq_u32 s2, 0")
    A(f"s_cselect_b32 s{sTMP}, 8, 36")
    A("s_cbranch_scc1 L_dd")
    A("s_cmp_lg_u32 s2, 77")
    A("s_cbranch_scc1 L_end")
    LBL("L_dd")
    for k in range(1, 7): A(f"v_subrev_u32 v{2+k}, v2, v{2+k}")
    A(f"buffer_store_dwordx4 v[2:5], v1, s[{sDBG}:{sDBG+3}], s{sTMP} offen")
    A(f"buffer_store_dwordx3 v[6:8], v1, s[{sDBG}:{sDBG+3}], s{sTMP} offen offset:16")
LBL("L_end")
A("s_endpgm")

cur[0] = "cpro"
LBL("L_compute")
G00, G11, GS = 16, 48, 80
SETS = [112, 172]
def vXR(role): return 1 + 2 * role
def vWR(role): return 2 + 2 * role
vW3, vW3C, vGA, vYW = 7, 8, 9, 10
T = 232
CWA, CWB = 112, 116
A(f"s_lshr_b32 s{sWAVE}, s{sWAVE}, 6")
A(f"s_memrealtime s[{sN0}:{sN1}]")
A(f"v_lshrrev_b32 v{T}, 5, v0")
A(f"s_lshl_b32 s{sTMP}, s{sWAVE}, 1")
A(f"v_add_u32 v{T}, s{sTMP}, v{T}")
A(f"v_and_b32 v{T+1}, 31, v0")
A(f"v_lshlrev_b32 v{T+1}, 4, v{T+1}")
A(f"s_lshl_b32 s{sTMP}, s2, 9")
A(f"v_add_u32 v{T+1}, s{sTMP}, v{T+1}")
A(f"v_lshl_add_u32 v{T+2}, v{T}, 17, v{T+1}")
A(f"v_and_b32 v{T}, 3, v{T}")
A(f"v_lshl_add_u32 v{T+1}, v{T}, 19, v{T+1}")
A(f"s_lshr_b32 s{sWO}, s{sWAVE}, 1")
A(f"s_lshl_b32 s{sWO}, s{sWO}, 17")
A(f"s_add_u32 s{sWN}, s{sWO}, {2*131072}")
A("s_waitcnt lgkmcnt(0)")
srd(sW, 34, W_BYTES)
if P["pq"]:
    A(f"s_cmp_eq_u32 s{sWAVE}, 0")
    A(f"s_cselect_b32 s{sW+2}, s{sW+2}, 0")
A(f"buffer_load_dwordx4 v[{CWA}:{CWA+3}], v{T+1}, s[{sW}:{sW+3}], s{sWO} offen" + (" nt" if P["pnt"] else ""))
A(f"buffer_load_dwordx4 v[{CWB}:{CWB+3}], v{T+1}, s[{sW}:{sW+3}], s{sWN} offen" + (" nt" if P["pnt"] else ""))
srd(sDBG, 42, 256)
A(f"s_or_b32 s{sTMP}, s2, s{sWAVE}")
A(f"s_cmp_lg_u32 s{sTMP}, 0")
A("s_cbranch_scc1 L_nononce")
A(f"s_or_b32 s{sN0}, s{sN0}, 1")
A(f"v_mov_b32 v{T+3}, 0")
A(f"v_mov_b32 v{T+6}, s{sN0}")
A(f"v_mov_b32 v{T+7}, s{sN1}")
A("s_mov_b64 exec, 1")
A(f"buffer_store_dwordx2 v[{T+6}:{T+7}], v{T+3}, s[{sDBG}:{sDBG+3}], 0 offen sc0 sc1")
A("s_mov_b64 exec, -1")
LBL("L_nononce")
if P["cpf"]:
    A(f"s_cmp_lg_u32 s{sWAVE}, 1")
    A("s_cbranch_scc1 L_nocpf")
    A("s_getpc_b64 s[74:75]")
    LBL("L_pc")
    A(f"s_lshr_b32 s{sTMP}, s2, 3")
    A(f"s_lshl_b32 s{sTMP}, s{sTMP}, 9")
    A(f"s_add_u32 s74, s74, s{sTMP}")
    A("s_addc_u32 s75, s75, 0")
    A(f"s_sub_u32 s74, s74, L_pc-{KN}")
    A("s_subb_u32 s75, s75, 0")
    A(f"v_lshlrev_b32 v{T+4}, 7, v0")
    A("s_mov_b64 exec, 15")
    A(f"global_load_dword v{T+5}, v{T+4}, s[74:75]")
    A("s_mov_b64 exec, -1")
    LBL("L_nocpf")
if P["warm"]:
    CM("visit one instruction in every later code page while the first loads are in flight")
    A("s_branch L_warm0")
    LBL("L_warmret")
srd(sWS, 44, WS_BYTES)
A(f"s_mov_b32 s{sPO}, {WP_OFF}")
out_srd()
A(f"s_mov_b32 s{sMID}, 0x7fff7fff")
A(f"s_cselect_b32 s{sMID}, s{sMID}, -1")
A(f"s_mov_b32 s{sMID+1}, s{sMID}")
granule_off()
A(f"s_lshl_b32 s{sTMP}, s{sT}, 10")
A(f"s_add_u32 s{sGR}, s{sGR}, s{sTMP}")
R, G_, X1, X2 = 120, 121, 122, 124
A(f"v_and_b32 v{R}, 15, v0")
A(f"v_lshrrev_b32 v{G_}, 4, v0")
A(f"v_mul_u32_u24 v{X1}, {XB}, v{R}")
A(f"v_lshl_add_u32 v{vXR(0)}, v{G_}, 4, v{X1}")
A(f"v_bfe_u32 v{X2}, v0, 2, 2")
A(f"v_lshl_add_u32 v{X1}, v{G_}, 3, v{X2}")
A(f"v_lshlrev_b32 v{X1}, 7, v{X1}")
A(f"v_lshrrev_b32 v{X2}, 1, v{X2}")
A(f"v_and_b32 v{X2+1}, 1, v{G_}")
A(f"v_lshl_or_b32 v{X2}, v{X2+1}, 1, v{X2}")
A(f"v_xor_b32 v{X2}, s{sWAVE}, v{X2}")
A(f"v_lshl_add_u32 v{X1}, v{X2}, 5, v{X1}")
A(f"v_and_b32 v{X2}, 3, v0")
A(f"v_lshl_add_u32 v{X1}, v{X2}, 3, v{X1}")
A(f"v_add_u32 v{vWR(0)}, {WOFF}, v{X1}")
A(f"v_add_u32 v{vW3}, {WOFF + tile(0,3)}, v{X1}")
A(f"v_lshlrev_b32 v{vW3C}, 1, v{X1}")
A(f"v_add_u32 v{vW3C}, {2*SLOT + WOFF + tile(0,3) + SPARE}, v{vW3C}")
for k in (1, 2):
    A(f"v_add_u32 v{k+2}, {SLOT}, v{k}")
    A(f"v_add_u32 v{k+4}, {2*SLOT}, v{k}")
if P["red"]:
    CM("after the reduce-scatter lane r of group g holds channel 4g + (r>>2)")
    A(f"v_lshrrev_b32 v{X1}, 2, v{R}")
    A(f"v_lshl_add_u32 v{vGA}, v{G_}, 2, v{X1}")
else:
    A(f"v_lshl_add_u32 v{vGA}, v{G_}, 2, v{R}")
A(f"v_lshlrev_b32 v{vGA}, 4, v{vGA}")
A(f"s_lshl_b32 s{sTMP}, s{sWAVE}, 2")
A(f"v_add_u32 v{X1}, s{sTMP}, v{G_}")
A(f"v_lshrrev_b32 v{X2}, 1, v{X1}")
A(f"v_and_b32 v{X1}, 1, v{X1}")
A(f"v_lshl_or_b32 v{X1}, v{X1}, 3, v{X2}")
A(f"v_and_b32 v{X2}, 7, v{R}")
A(f"v_xor_b32 v{X1}, v{X1}, v{X2}")
A(f"v_lshlrev_b32 v{X1}, 4, v{X1}")
A(f"v_lshl_add_u32 v{vYW}, v{R}, 12, v{X1}")
A(f"v_xor_b32 v{vYW+1}, 0x80, v{vYW}")
final_addr(FA)
for i in range(0, 96, 2):
    A(f"v_pk_mov_b32 v[{16+i}:{17+i}], 0, 0")
A("s_waitcnt vmcnt(0)")
for t in addbf_list(CWA, CWA, CWB, 224, True): A(t)
A(f"buffer_store_dwordx4 v[{CWA}:{CWA+3}], v{T+2}, s[{sWS}:{sWS+3}], s{sPO} offen sc0 sc1")
if P["prio"]: A(f"s_setprio {P['prio']}")
if not P["lateack"]: A("s_waitcnt vmcnt(0)")

def reads(role, hh, st, ndpp=0, last=False):
    xb = SETS[st]; wb = xb + 44
    def xr(q): return (("X", q), f"ds_read_b128 v[{xb+4*q}:{xb+4*q+3}], v{vXR(role)} offset:{(q & 7)*128 + hh*64 + (XB if q > 7 else 0)}")
    def wr(s, h):
        if role == 0 and s == 3 and not last:
            return (("W", s), f"ds_read_b64_tr_b16 v[{wb+4*s+2*h}:{wb+4*s+2*h+1}], v{vW3} offset:{hh*4096 + h*512}")
        return (("W", s), f"ds_read_b64_tr_b16 v[{wb+4*s+2*h}:{wb+4*s+2*h+1}], v{vWR(role)} offset:{tile(hh, s) + h*512}")
    if role == 1 and P["u3"]:
        r = [wr(0, 0), wr(0, 1), xr(0), wr(1, 0), wr(1, 1), xr(1), wr(2, 0), wr(2, 1)] + [xr(q) for q in range(2, 10)] + [wr(3, 0), wr(3, 1), xr(10)]
    else:
        r = [wr(0, 0), wr(0, 1), xr(0), wr(1, 0), wr(1, 1)] + [xr(q) for q in range(1, 9)] + [wr(2, 0), wr(2, 1), wr(3, 0), wr(3, 1), xr(9), xr(10)]
    dq = list(range(11 - ndpp, 11))
    r = [e for e in r if not (e[0][0] == "X" and e[0][1] in dq)]
    d = [f"v_mov_b32_dpp v{xb+4*q+i}, v{xb+4*(q-8)+i} row_shl:1 row_mask:0xf bank_mask:0xf" for q in dq for i in range(4)]
    return r, d
def mfma_list(acc, st, split3=False):
    xb = SETS[st]; wb = xb + 44
    pairs = []
    if split3 and P["u3"]:
        pairs = [(s, j) for j in range(8) for s in ((0, 1, 2) if j % 2 == 0 else (2, 1, 0))] + [(3, j) for j in range(8)]
    else:
        for s0 in ((0,) if split3 else (0, 2)):
            for q in range(s0, s0 + 9):
                for s in (s0 + 1, s0):
                    if 0 <= q - s < 8: pairs.append((s, q - s))
        if split3: pairs += [(s, j) for s in (2, 3) for j in range(8)]
    out = []
    for s, j in pairs:
        d = f"v[{acc+4*j}:{acc+4*j+3}]"
        out.append(([("W", s), ("X", j+s)], f"v_mfma_f32_16x16x32_bf16 {d}, v[{wb+4*s}:{wb+4*s+3}], v[{xb+4*(j+s)}:{xb+4*(j+s)+3}], {d}"))
    return out
pending = []
ss_n = [0]
def sstamp():
    if P["sst"] < 0 or ss_n[0] >= 12: return
    k = ss_n[0]; ss_n[0] += 1
    A(f"s_memtime s[{76+2*k}:{77+2*k}]")
def seq(acc, st, rdd, barrier, skip_label=None, extra=None, delay=0, vm0=False):
    global pending
    rd, dpp = rdd
    nm = 24 if skip_label else 32
    m = mfma_list(acc, st, skip_label is not None)
    rd = [] if P["nords"] else list(rd)
    dpp = list(dpp)
    first = max(P["barslot"], delay) if barrier else 0
    if dpp:
        first = min(first, nm - len(rd) - len(dpp) - 0) if barrier else first
        first = max(first, P["barslot"]) if barrier else first
        last = first + len(rd) - 1
    else:
        last = max(min(first + len(rd) if barrier else P["rdA"], nm - P["rd_gap"]), first + len(rd) - 1) if rd else 0
    slots = [first + (k * (last - first)) // max(len(rd) - 1, 1) for k in range(len(rd))]
    dslots = [min(last + 1 + k, nm - 1) for k in range(len(dpp))]
    cur_ = list(pending); newer = 0; nxt = []; nd = 0
    for i, (need, ins) in enumerate(m):
        if i == 24 and skip_label:
            A(f"s_cbranch_scc1 {skip_label}")
        if i % 16 == 0 or (skip_label and i == 24):
            need = [k for nd_, _ in m[i:i+16 if not (skip_label and i == 16) else 24] for k in nd_]
            if barrier and i == 0: need = [k for nd_, _ in m[:P["barslot"]+1] for k in nd_]
            idx = max([k for k, key in enumerate(cur_) if key in need], default=-1)
            if idx >= 0:
                n = len(cur_) - 1 - idx + newer
                if n < 15: A(f"s_waitcnt lgkmcnt({n})")
                cur_ = cur_[idx+1:]
        A(ins)
        if barrier and i == P["barslot"]:
            if cur_ or vm0: A("s_waitcnt" + (" vmcnt(0)" if vm0 else "") + " lgkmcnt(0)"); cur_ = []
            sstamp()
            A("s_barrier")
            sstamp()
        while rd and slots[len(nxt)] <= i:
            key, s = rd.pop(0); A(s); nxt.append(key); newer += 1
        while nd < len(dpp) and dslots[nd] <= i:
            if nd == 0:
                k = max(nxt.index(("X", q)) for q in range(3) if ("X", q) in nxt)
                A(f"s_waitcnt lgkmcnt({min(len(nxt) - 1 - k, 15)})")
            A(dpp[nd]); nd += 1
        if extra and i in extra:
            for s in extra[i]: A(s)
    assert not rd and nd == len(dpp)
    if skip_label: LBL(skip_label)
    pending = nxt
    sstamp()
A("s_barrier")
stamp(1)
if plain: A("s_memtime s[92:93]"); A("s_waitcnt lgkmcnt(0)")
D2, D3 = (2 if P["dpp"] else 0), (3 if P["dpp"] else 0)
r0, _ = reads(0, 0, 0)
for _, s in r0: A(s)
pending = [k for k, _ in reads(0, 0, 0, D2 if P["dpp"] & 4 else 0)[0]]
loop_entry = list(pending)
A(f"s_mov_b32 s{sCNT}, 0")
if P["dpp"] & 4: A("s_waitcnt lgkmcnt(0)")
A("s_branch L_cloop")

cur[0] = "cloop"
def cstamp(idx=None):
    if not P["cst"]: return
    A("s_memtime s[100:101]")
    A("s_waitcnt lgkmcnt(0)")
    if idx is None:
        A(f"s_mov_b32 m0, s{sCNT}")
        A("s_nop 0")
        A("s_movreld_b32 s76, s100")
    else:
        A(f"s_mov_b32 s{76+idx}, s100")
LBL("L_cloop")
if P["sst"] >= 0:
    A(f"s_cmp_lg_u32 s{sCNT}, {P['sst'] + 1}")
    A("s_cbranch_scc1 L_nss")
    A("s_waitcnt lgkmcnt(0)")
    for k in range(12): A(f"v_writelane_b32 v255, s{76+2*k}, {k}")
    LBL("L_nss")
cstamp()
seq(G00, 0, reads(0, 1, 1, D2), False)
seq(G00, 1, reads(1, 0, 0, D3 if P["dpp"] & 2 else 0), True, extra={28: [f"v_sub_u32 v{vW3}, v{vW3C}, v{vW3}"]}, delay=P["dly0"], vm0=bool(P["lateack"]))
A(f"s_bitcmp1_b32 s{sCNT}, 0")
seq(G11, 0, reads(1, 1, 1), False, "L_skipa")
seq(G11, 1, reads(2, 0, 0), True, "L_skipb")
A(f"s_cmp_eq_u32 s{sCNT}, 0")
A("s_cbranch_scc1 L_cfirst")
LBL("L_gs")
pend_gs = list(pending)
seq(GS, 0, reads(2, 1, 1, D3), False)
A(f"s_add_u32 s{sCNT}, s{sCNT}, 1")
A(f"s_cmp_lt_u32 s{sCNT}, 8")
seq(GS, 1, reads(0, 0, 0, D2 if P["dpp"] & 4 else 0), True, delay=P["dly2"])
pend_loop = list(pending)
assert pend_loop == loop_entry
A("s_cbranch_scc1 L_cloop")
if not P["peel"]:
    A(f"s_cmp_eq_u32 s{sCNT}, 9")
    A("s_cbranch_scc1 L_cdone")
    cstamp(8)
    for k in (5, 6): A(f"v_mov_b32 v{k}, v{k-4}")
    if pend_loop != pend_gs: A("s_waitcnt lgkmcnt(0)")
    A("s_branch L_gs")
else:
    A("s_branch L_cdone")
LBL("L_cfirst")
stamp(3)
for k in (1, 2):
    A(f"v_add_u32 v{k}, {2*SLOT}, v{k}")
    A(f"v_subrev_u32 v{k+2}, {SLOT}, v{k+2}")
    A(f"v_subrev_u32 v{k+4}, {SLOT}, v{k+4}")
A(f"v_add_u32 v{vW3}, {tile(0,3)}, v2")
A(f"s_mov_b32 s{sCNT}, 1")
if pend_loop != pend_gs: A("s_waitcnt lgkmcnt(0)")
A("s_branch L_cloop")

cur[0] = "cepi"
LBL("L_cdone")
def yreg(idx): return (G11 if idx % 2 == 0 else GS) + 4 * (idx // 2)
S1, S2 = 16, 20
dppl = [f"v_mov_b32_dpp v{T+i}, v{G00+i} row_shl:1 row_mask:0xf bank_mask:0xf bound_ctrl:0" for i in range(4)]
if P["peel"]:
    cstamp(8)
    pending = pend_loop
    CM("last stage, with the G00/G11 part of the output transform in its shadow: G11 <- y0, G00[j] <- G11[j] + G00[j+1]")
    ex = []
    TS = 12
    for j in range(8):
        for h in (0, 2):
            nx = G00+4*(j+1)+h if j < 7 else T+h
            if P["pp"]:
                ex += [pks("add", TS+h, G11+4*j+h, nx), pks("add", G11+4*j+h, G11+4*j+h, G00+4*j+h), f"v_pk_mov_b32 v[{G00+4*j+h}:{G00+4*j+h+1}], v[{TS+h}:{TS+h+1}], v[{TS+h}:{TS+h+1}] op_sel:[0,1]"]
    exA = {20 + i: [dppl[i]] for i in range(4)}
    exA[19] = [f"v_mov_b32 v12, {MISC}", "ds_read_b64 v[238:239], v12"]
    seq(GS, 0, reads(0, 1, 1, 0, True), False, extra=exA)
    pending = pending + [("N", 0)]
    seq(GS, 1, ([], []), False)
    A("s_nop 7")
else:
    A(f"v_mov_b32 v12, {MISC}")
    A("ds_read_b64 v[238:239], v12")
    for t in dppl: A(t)
    A("s_nop 2")
cstamp(9)
stamp(2)
if plain: A("s_memtime s[94:95]")
if P["prio"]: A("s_setprio 0")
for j in range(8):
    for h in (0, 2):
        pk("add", GS+4*j+h, GS+4*j+h, G11+4*j+h, neg=True)
for j in range(8):
    for h in (0, 2):
        nx = G00+4*(j+1)+h if j < 7 else T+h
        pk("add", GS+4*j+h, GS+4*j+h, nx, neg=True)
        pk("add", G11+4*j+h, G11+4*j+h, G00+4*j+h)
for h in (0, 2):
    pk("add", S1+h, yreg(0)+h, yreg(1)+h)
    pk("mul", S2+h, yreg(0)+h, yreg(0)+h)
for idx in range(1, 16):
    if idx == 3: A(f"s_mov_b64 exec, s[{sMID}:{sMID+1}]")
    if idx == 10:
        A("s_mov_b32 exec_lo, 0x7fff7fff")
        A("s_mov_b32 exec_hi, 0x7fff7fff")
    for h in (0, 2):
        if idx > 1: pk("add", S1+h, S1+h, yreg(idx)+h)
        pk("fma", S2+h, yreg(idx)+h, yreg(idx)+h, c=S2+h)
A("s_mov_b64 exec, -1")
A("s_nop 1")
def dadd(d, s, ctl, bm="0xf"): A(f"v_add_f32_dpp v{d}, v{s}, v{s} {ctl} row_mask:0xf bank_mask:{bm}")
if P["red"]:
    CM("reduce-scatter over the 16 lanes of a row: banks (r>>2) end up with channel r>>2")
    for b in (S1, S2):
        dadd(b+8, b, "row_ror:8"); dadd(b+9, b+1, "row_ror:8")
    for b in (S1, S2):
        dadd(b+8, b+2, "row_ror:8", "0xc"); dadd(b+9, b+3, "row_ror:8", "0xc")
    A("s_nop 0")
    dadd(236, S1+8, "row_half_mirror"); dadd(237, S2+8, "row_half_mirror")
    dadd(236, S1+9, "row_half_mirror", "0xa"); dadd(237, S2+9, "row_half_mirror", "0xa")
    A("s_nop 0")
    dadd(236, 236, "quad_perm:[1,0,3,2]"); dadd(237, 237, "quad_perm:[1,0,3,2]")
    A("s_nop 0")
    dadd(236, 236, "quad_perm:[2,3,0,1]"); dadd(237, 237, "quad_perm:[2,3,0,1]")
    A("s_mov_b32 exec_lo, 0x11111111")
    A("s_mov_b32 exec_hi, 0x11111111")
else:
    for sh in (8, 4, 2, 1):
        for i in range(8): dadd(16+i, 16+i, f"row_ror:{sh}")
    A("v_mov_b32 v236, v16")
    A("v_mov_b32 v237, v20")
    for i in (1, 2, 3):
        mk = (1 << i) * 0x00010001
        A(f"s_mov_b32 exec_lo, {mk:#x}")
        A(f"s_mov_b32 exec_hi, {mk:#x}")
        A(f"v_mov_b32 v236, v{16+i}")
        A(f"v_mov_b32 v237, v{20+i}")
    A("s_mov_b32 exec_lo, 0x000f000f")
    A("s_mov_b32 exec_hi, 0x000f000f")
A("s_waitcnt lgkmcnt(0)")
A(f"buffer_store_dwordx4 v[236:239], v{vGA}, s[{sWS}:{sWS+3}], s{sGR} offen sc0 sc1")
A("s_mov_b64 exec, -1")
for idx in range(16):
    A(f"ds_write_b128 v{vYW + ((idx // 2) & 1)}, v[{yreg(idx)}:{yreg(idx)+3}] offset:{idx*256}")
A("s_waitcnt lgkmcnt(0)")
A("s_barrier")
y_reads()
A("s_branch L_final")
if P["spoll"]: SEC["cepi"] += tail_cepi

out = [f"""; conv stem (K=15, stride 2) as a 2-parallel fast-FIR GEMM + per-channel GroupNorm + tanh GELU, one launch.
; @launch grid=(256,1,1) block=(512,1,1) lds={LDS_BYTES}
.amdgcn_target "amdgcn-amd-amdhsa--gfx950"
.text
.globl {KN}
.p2align 8
.type {KN},@function
{KN}:"""]
wk = 0
for sec in ("entry", "lpro", "cpro", "cloop", "lloop", "cepi", "llast", "final"):
    if P["warm"] and sec in ("cloop", "lloop", "cepi", "llast"):
        out += [f"L_warm{wk}:", f"  s_branch L_warm{wk+1}"]; wk += 1
    if sec in ("cloop", "lloop"): out.append(".p2align 6")
    out += SEC[sec]
if P["warm"]: out += [f"L_warm{wk}:", "  s_branch L_warmret"]
out.append(f""".p2align 8
.fill 1024, 4, 0xbf810000
.section .rodata,"a"
.p2align 6
.amdhsa_kernel {KN}
  .amdhsa_next_free_vgpr 256
  .amdhsa_next_free_sgpr 102
  .amdhsa_accum_offset 256
  .amdhsa_group_segment_fixed_size 0
  .amdhsa_kernarg_size 64
  .amdhsa_user_sgpr_count 2
  .amdhsa_user_sgpr_kernarg_segment_ptr 1
  .amdhsa_system_sgpr_workgroup_id_x 1
.end_amdhsa_kernel""")
print("\n".join(out))
```

```python
import sys, struct, math
P = dict(prio=2, lprio=0, dsprio=3, stamps=0, novalu=0, nodma=0, nords=0, barslot=1, rd_gap=5, rdA=19, dly0=12, dly2=12,
         touch=1, lst=-1, cst=0, pst=0, sst=-1, vsplit=2, wsplit=2, cpf=1, stf=2, dbgt=0, dpp=1, u3=1, red=1, wend=0, wend2=0, u0first=0, warm=0, pq=0, xnt=0, tnt=0, wnt=0, pnt=0, vpk=0, pubst=0, x1st=1, nochk=0, v1=2, g5=1, spoll=0, lateack=1, peel=1, pp=1, ppn=48,
         pro="D0:0:4.D1:0:4.D0.N.D1.S.B.U.V02.D2:0:8.B.F.V24.D2.D3.B.G.w.r.C.D4.T2ab.T3ab.B")
for a in sys.argv[1:]:
    k, v = a.split("=")
    P[k] = v if k in ("pro",) else int(v)

KN = "standalone__self_sup_conv_stem_hubert__speech_kernel"
XB = 1056
XSZ = 16 * XB + 128
WOFF = XSZ
SLOT = WOFF + 32768
SPARE = 3 * SLOT
MISC = SPARE + 8192
LDS_BYTES = MISC + 1024
X_BYTES = 2 * 16000 * 256 * 2
W_BYTES = 15 * 256 * 256 * 2
FL_OFF, WP_OFF, WS_BYTES = 0x40000, 0x80000, 0x180000
OOB = 0x40000000
SPIN = 0x4000
def tile(hh, s): return (hh * 3 + s if s < 3 else 6 + hh) * 4096

SEC = {k: [] for k in ("entry", "lpro", "lloop", "llast", "final", "cpro", "cloop", "cepi")}
cur = ["entry"]
def A(s): SEC[cur[0]].append("  " + s)
def LBL(s): SEC[cur[0]].append(s + ":")
def CM(s): SEC[cur[0]].append("  ; " + s)
def f32(x): return "0x%08x" % struct.unpack("<I", struct.pack("<f", x))[0]

sX, sW, sO, sWS, sDBG, sGA, sBE = 4, 8, 12, 16, 20, 24, 28
sWAVE, sT, sNT, sB = 46, 47, 48, 49
sWN, sXO, sWO, sPO, sTMP, sCNT, sMASK16 = 50, 51, 52, 53, 55, 56, 57
sTA = 58
sD, sXB = 60, 61
sN0, sN1 = 62, 63
sMID = 64
sGR, sFO = 66, 67
sK = 68
sM0, sMX = 73, 74
sXW = 75
sST = 76

def srd(d, lo, nbytes):
    A(f"s_mov_b32 s{d}, s{lo}")
    A(f"s_and_b32 s{d+1}, s{lo+1}, 0xffff")
    A(f"s_mov_b32 s{d+2}, {nbytes}")
    A(f"s_mov_b32 s{d+3}, 0x20000")
def out_srd():
    A(f"s_mul_i32 s{sTMP}, s{sB}, {7993*512}")
    A(f"s_mul_i32 s{sCNT}, s{sT}, {250*512}")
    A(f"s_add_u32 s{sTMP}, s{sTMP}, s{sCNT}")
    A(f"s_add_u32 s{sO}, s40, s{sTMP}")
    A(f"s_addc_u32 s{sO+1}, s41, 0")
    A(f"s_and_b32 s{sO+1}, s{sO+1}, 0xffff")
    A(f"s_cmp_eq_u32 s{sT}, 31")
    A(f"s_mov_b32 s{sO+2}, {243*512}")
    A(f"s_cselect_b32 s{sO+2}, s{sO+2}, {250*512}")
    A(f"s_mov_b32 s{sO+3}, 0x20000")
def granule_off():
    A(f"s_lshl_b32 s{sGR}, s{sB}, 2")
    A(f"s_add_u32 s{sGR}, s{sGR}, s{sNT}")
    A(f"s_lshl_b32 s{sGR}, s{sGR}, 15")
    A(f"s_lshl_b32 s{sTMP}, s{sWAVE}, 8")
    A(f"s_add_u32 s{sGR}, s{sGR}, s{sTMP}")
plain = P["stamps"] and P["lst"] < 0 and not P["cst"] and P["sst"] < 0
def stamp(k):
    if not plain: return
    if P["pst"] and k > 0 and cur[0] not in ("cpro", "cloop", "cepi"): return
    A(f"s_memrealtime s[{sST+2*k}:{sST+2*k+1}]")
def pstamp(k):
    if P["pst"] == 1: A(f"s_memrealtime s[{sST+2*k}:{sST+2*k+1}]")
def addbf_list(d, a, b, t, force=False):
    r = []
    if P["novalu"] and not force: return r
    for i0 in (0, 2):
        if P["vpk"]:
            for i in (i0, i0 + 1):
                u = t + 4 * (i - i0)
                r += [f"v_lshlrev_b32 v{u}, 16, v{a+i}", f"v_and_b32 v{u+1}, s{sMASK16}, v{a+i}",
                      f"v_lshlrev_b32 v{u+2}, 16, v{b+i}", f"v_and_b32 v{u+3}, s{sMASK16}, v{b+i}"]
            for i in (i0, i0 + 1):
                u = t + 4 * (i - i0)
                r += [f"v_pk_add_f32 v[{u}:{u+1}], v[{u}:{u+1}], v[{u+2}:{u+3}]"]
            for i in (i0, i0 + 1):
                u = t + 4 * (i - i0)
                r += [f"v_cvt_pk_bf16_f32 v{d+i}, v{u}, v{u+1}"]
            continue
        for i in (i0, i0 + 1):
            u = t + 4 * (i - i0)
            r += [f"v_lshlrev_b32 v{u}, 16, v{a+i}", f"v_lshlrev_b32 v{u+1}, 16, v{b+i}",
                  f"v_and_b32 v{u+2}, s{sMASK16}, v{a+i}", f"v_and_b32 v{u+3}, s{sMASK16}, v{b+i}"]
        for i in (i0, i0 + 1):
            u = t + 4 * (i - i0)
            r += [f"v_add_f32 v{u}, v{u}, v{u+1}", f"v_add_f32 v{u+2}, v{u+2}, v{u+3}"]
        for i in (i0, i0 + 1):
            u = t + 4 * (i - i0)
            r += [f"v_cvt_pk_bf16_f32 v{d+i}, v{u}, v{u+2}"]
    return r
def pks(op, d, a, b, neg=False, c=None):
    s = f"v_pk_{op}_f32 v[{d}:{d+1}], v[{a}:{a+1}], v[{b}:{b+1}]"
    if c is not None: s += f", v[{c}:{c+1}]"
    if neg: s += " neg_lo:[0,1] neg_hi:[0,1]"
    return s
def pk(*a, **k): A(pks(*a, **k))
def final_addr(base):
    b = base
    A(f"v_lshrrev_b32 v{b+4}, 3, v0")
    A(f"v_and_b32 v{b+6}, 7, v0")
    A(f"s_lshl_b32 s{sTMP}, s{sWAVE}, 5")
    A(f"v_add_u32 v{b+4}, s{sTMP}, v{b+4}")
    A(f"v_bfe_u32 v{b}, v0, 4, 1")
    A(f"v_lshl_or_b32 v{b}, v{b}, 3, v{b+6}")
    A(f"s_lshl_b32 s{sTMP}, s{sWAVE}, 1")
    A(f"s_and_b32 s{sTMP}, s{sTMP}, 7")
    A(f"v_xor_b32 v{b}, s{sTMP}, v{b}")
    A(f"v_lshlrev_b32 v{b}, 4, v{b}")
    A(f"v_lshl_add_u32 v{b}, v{b+4}, 8, v{b}")
    A(f"v_xor_b32 v{b+1}, 0x80, v{b}")
    A(f"v_xor_b32 v{b+2}, 0x10, v{b}")
    A(f"v_xor_b32 v{b+3}, 0x90, v{b}")
    A(f"v_lshlrev_b32 v{b+4}, 9, v{b+4}")
    A(f"v_lshl_add_u32 v{b+4}, v{b+6}, 4, v{b+4}")
    A(f"s_lshl_b32 s{sTMP}, s{sNT}, 7")
    A(f"v_add_u32 v{b+4}, s{sTMP}, v{b+4}")
    A(f"v_add_u32 v{b+5}, 0x2000, v{b+4}")
    A(f"v_lshlrev_b32 v{b+6}, 5, v{b+6}")
    A(f"v_add_u32 v{b+6}, {MISC+64}, v{b+6}")
FA = 244
Y = 112
def y_reads():
    for n in range(4):
        for h in range(2):
            A(f"ds_read_b128 v[{Y+8*n+4*h}:{Y+8*n+4*h+3}], v{FA + h + 2*(n >> 1)} offset:{n*2048}")

stamp(0)
A("s_load_dwordx4 s[32:35], s[0:1], 0")
A("s_load_dwordx4 s[40:43], s[0:1], 40")
A("s_load_dwordx2 s[44:45], s[0:1], 56")
A("s_load_dwordx4 s[36:39], s[0:1], 24")
A("s_cmp_ge_u32 s2, 256")
A("s_cbranch_scc1 L_end")
A(f"v_readfirstlane_b32 s{sWAVE}, v0")
A("v_and_b32 v0, 63, v0")
A(f"s_and_b32 s{sT}, s2, 7")
A(f"s_lshl_b32 s{sT}, s{sT}, 3")
A(f"s_lshr_b32 s{sTMP}, s2, 5")
A(f"s_add_u32 s{sT}, s{sT}, s{sTMP}")
A(f"s_bfe_u32 s{sNT}, s2, 0x20003")
A(f"s_lshr_b32 s{sB}, s{sT}, 5")
A(f"s_and_b32 s{sT}, s{sT}, 31")
A(f"s_mov_b32 s{sMASK16}, 0xffff0000")
A(f"s_cmp_lt_u32 s{sWAVE}, 256")
A("s_cbranch_scc1 L_compute")

cur[0] = "lpro"
vXG, vWG, vLIN, vLIN2, vU0, vFL, vZ, vTC = 1, 3, 4, 5, 6, 8, 9, 15
U0, U1, TT, FLG, NON, JUNK, GAM, VV = 16, 32, 48, 56, 64, 66, 68, 80
sTS, sTB = 24, 68
A(f"s_bfe_u32 s{sWAVE}, s{sWAVE}, 0x20006")
A(f"s_mul_i32 s{sXB}, s{sB}, {16000*512}")
A(f"s_mul_i32 s{sTMP}, s{sT}, {500*512}")
A(f"s_add_u32 s{sXB}, s{sXB}, s{sTMP}")
A("v_lshrrev_b32 v10, 3, v0")
A("v_and_b32 v11, 7, v0")
A("v_lshlrev_b32 v12, 4, v11")
A(f"v_lshl_add_u32 v{vXG}, v10, 11, v12")
A(f"s_lshl_b32 s{sXW}, s{sWAVE}, 16")
A(f"s_add_u32 s{sXO}, s{sXB}, s{sXW}")
A(f"s_mul_i32 s{sMX}, s{sWAVE}, {4*XB}")
A("v_bfe_u32 v13, v0, 4, 1")
A(f"s_and_b32 s{sTMP}, s{sWAVE}, 1")
A(f"s_lshl_b32 s{sTMP}, s{sTMP}, 1")
A(f"v_or_b32 v13, s{sTMP}, v13")
A("v_lshlrev_b32 v13, 5, v13")
A("v_xor_b32 v13, v13, v12")
A("v_lshl_add_u32 v13, v10, 9, v13")
A(f"s_lshl_b32 s{sTMP}, s{sNT}, 7")
A(f"s_lshl_b32 s{sM0}, s{sWAVE}, 12")
A(f"s_add_u32 s{sTMP}, s{sTMP}, s{sM0}")
A(f"v_add_u32 v{vWG}, s{sTMP}, v13")
A(f"s_lshl_b32 s{sM0}, s{sWAVE}, 10")
A(f"s_mov_b32 s{sWO}, 0")
A(f"v_mov_b32 v{vZ}, 0")
A(f"s_lshl_b32 s{sTMP}, s{sWAVE}, 4")
A(f"s_lshl_b32 s{sCNT}, s{sNT}, 6")
A(f"s_add_u32 s{sTMP}, s{sTMP}, s{sCNT}")
A(f"v_add_u32 v14, s{sTMP}, v0")
A(f"v_lshlrev_b32 v{vTC}, 10, v14")
A("s_waitcnt lgkmcnt(0)")
pstamp(1)
srd(sX, 32, X_BYTES)
srd(sW, 34, W_BYTES)

TAPS = {("G00", 0): [0, 4, 8, 12], ("G11", 0): [2, 6, 10, 14], ("G00", 1): [1, 5, 9, 13], ("G11", 1): [3, 7, 11]}
def dw(lds, so, tap, hh):
    return [f"s_add_u32 m0, s{sM0}, {lds}",
            f"s_add_u32 s{sTMP}, s{so}, {tap*131072 + hh*16384}",
            f"buffer_load_dwordx4 v{vWG}, s[{sW}:{sW+3}], s{sTMP} offen" + (" nt" if (P["wnt"] == 2 or (P["wnt"] == 1 and cur[0] == "lpro")) else "") + " lds"]
def dma_w(slot, taps, ss=(0, 1, 2, 3), so=None):
    return [dw(slot*SLOT + WOFF + tile(hh, s), so or sWO, taps[s], hh) for hh in (0, 1) for s in ss if s < len(taps)]
def dma_wp(par, slot, spare0=False):
    r = []
    for hh in (0, 1):
        for s in range(4):
            dst = SPARE if (spare0 and hh == 0 and s == 3) else slot*SLOT + WOFF + tile(hh, s)
            r.append([f"s_add_u32 m0, s{sM0}, {dst}",
                      f"s_add_u32 s{sTMP}, s{sPO}, {WP_OFF + (par*4+s)*131072 + hh*16384}",
                      f"buffer_load_dwordx4 v{vWG}, s[{sWS}:{sWS+3}], s{sTMP} offen sc1 lds"])
    return r
def dma_x(slot, phi):
    nt_ = " nt" if (P["xnt"] == 2 or (P["xnt"] == 1 and cur[0] == "lpro")) else ""
    return [[f"s_add_u32 m0, s{sMX}, {slot*SLOT + j*XB}",
             f"s_add_u32 s{sTMP}, s{sXO}, {j*16384 + phi*512}",
             f"buffer_load_dwordx4 v{vXG}, s[{sX}:{sX+3}], s{sTMP} offen{nt_} lds"] for j in range(4)]
tl_n = [0]
def tail_g(slot, phi):
    k = tl_n[0]; tl_n[0] += 1
    return [f"s_cmp_lg_u32 s{sWAVE}, 0", f"s_cbranch_scc1 L_nt{k}",
            f"s_mov_b32 m0, {slot*SLOT + 16*XB}",
            f"s_add_u32 s{sTMP}, s{sXO}, {(512 + phi)*512}",
            "s_mov_b64 exec, 0xff",
            f"buffer_load_dwordx4 v{vXG}, s[{sX}:{sX+3}], s{sTMP} offen lds",
            "s_mov_b64 exec, -1", f"L_nt{k}:"]
def touch_g(dd, par, half="ab", const=False):
    if const:
        r = [f"s_add_u32 s{sTMP}, s{sXB}, {dd*128 + par*512}"]
    else:
        r = [f"s_cmp_lt_u32 s{sD}, {4 - dd}", f"s_cselect_b32 s{sCNT}, s{sXB}, {OOB}",
             f"s_lshl_b32 s{sTMP}, s{sD}, 7", f"s_add_u32 s{sTMP}, s{sTMP}, s{sCNT}", f"s_add_u32 s{sTMP}, s{sTMP}, {dd*128 + par*512}"]
    r.append(f"s_mov_b64 exec, {dict(ab=0xffff, a=0x5555, b=0xaaaa)[half]:#x}")
    r += [f"buffer_load_dword v{JUNK}, v{vTC}, s[{sX}:{sX+3}], s{sTMP} offen" + (" nt" if P["tnt"] else ""), "s_mov_b64 exec, -1"]
    return r
def emit_groups(gs):
    if P["nodma"]: return
    for g in gs:
        for s in g: A(s)
def mix(valu, gs):
    if P["nodma"]: gs = []
    n = len(gs)
    if not valu:
        emit_groups(gs); return
    pos = [(k * len(valu)) // n for k in range(n)] if n else []
    gi = 0
    for i, v in enumerate(valu):
        while gi < n and pos[gi] == i:
            for s in gs[gi]: A(s)
            gi += 1
        A(v)
def rd_u0(): return [f"ds_read_b128 v[{U0+4*j}:{U0+4*j+3}], v{vU0} offset:{j*XB}" for j in range(4)]
def rd_u1(lin, off): return [f"ds_read_b128 v[{U1+4*j}:{U1+4*j+3}], v{lin} offset:{off + j*XB}" for j in range(4)]
def wr_v(lin, off): return [f"ds_write_b128 v{lin}, v[{VV+4*j}:{VV+4*j+3}] offset:{off + j*XB}" for j in range(4)]
def vadd(js):
    r = []
    for j in js: r += addbf_list(VV+4*j, U1+4*j, U0+4*j, TT)
    return r
def hi(lst):
    if P["dsprio"]: A(f"s_setprio {P['dsprio']}")
    for d in lst: A(d)
    if P["dsprio"]: A(f"s_setprio {P['lprio']}")
def lsetup():
    A("v_lshlrev_b32 v13, 4, v0")
    A(f"v_add_u32 v{vLIN}, s{sMX}, v13")
    A(f"v_add_u32 v{vLIN2}, {2*SLOT}, v{vLIN}")
    A("v_cmp_eq_u32 vcc, 7, v10")
    A(f"v_add_u32 v{vU0}, 128, v{vLIN}")
    A(f"v_add_u32 v12, 160, v{vLIN}")
    A(f"v_cndmask_b32 v{vU0}, v{vU0}, v12, vcc")
    A(f"v_lshlrev_b32 v{vFL}, 3, v0")
    srd(sWS, 44, WS_BYTES)
    out_srd()
    granule_off()
    A(f"s_mov_b32 s{sWN}, 32768")
    A(f"s_mov_b32 s{sD}, 0")
    A(f"s_mov_b32 s{sPO}, 0")
    A(f"s_lshl_b32 s{sFO}, s{sWAVE}, 9")
    A(f"s_add_u32 s{sFO}, s{sFO}, {FL_OFF}")
    if P["lprio"]: A(f"s_setprio {P['lprio']}")
STG = {0: None, 1: None, 2: None, 3: None, 4: None}
w_ = dma_w(0, TAPS[("G00", 0)]); x_ = dma_x(0, 0)
STG[0] = [tail_g(0, 0) + x_[0]] + x_[1:2] + w_[:4] + x_[2:] + w_[4:]
if P["x1st"]: STG[0] = [tail_g(0, 0) + x_[0]] + x_[1:] + w_
STG[1] = dma_x(1, 2) + dma_w(1, TAPS[("G11", 0)])
x_ = dma_x(2, 1)
STG[2] = [tail_g(2, 1) + x_[0]] + x_[1:] + dma_w(2, TAPS[("G00", 1)])
STG[3] = dma_x(0, 3) + dma_w(0, TAPS[("G11", 1)]) + dma_w(0, TAPS[("G11", 0)], ss=(3,), so=sWN)
STG[4] = dma_wp(0, 1) + [dw(SPARE + hh*4096, sWN, TAPS[("G00", 0)][3], hh) for hh in (0, 1)]
issued = []; period = 0; seen = {k: 0 for k in STG}; mixv = []; pendg = []
def flush():
    global mixv, pendg
    mix(mixv, [g for _, g in pendg])
    if not P["nodma"]: issued.extend(k for k, _ in pendg)
    mixv = []; pendg = []
def wait_for(keys, extra=""):
    flush()
    last = max(i for i, k in enumerate(issued) if k in keys)
    A(f"s_waitcnt vmcnt({len(issued) - 1 - last}){extra}")
def flag_load(so): A(f"buffer_load_dwordx2 v[{FLG}:{FLG+1}], v{vFL}, s[{sWS}:{sWS+3}], {so} offen sc0 sc1")
def check_flags(name, so):
    A(f"s_mov_b32 s{sCNT}, {SPIN}")
    LBL(name)
    A(f"v_cmp_eq_u64 vcc, s[{sN0}:{sN1}], v[{FLG}:{FLG+1}]")
    A("s_cmp_eq_u64 vcc, -1")
    A(f"s_cbranch_scc1 {name}_ok")
    A(f"s_sub_u32 s{sCNT}, s{sCNT}, 1")
    A(f"s_cbranch_scc1 {name}_ok")
    flag_load(so)
    A("s_waitcnt vmcnt(0)")
    A(f"s_branch {name}")
    LBL(name + "_ok")
def nonce_load(): A(f"buffer_load_dwordx2 v[{NON}:{NON+1}], v{vZ}, s[{sDBG}:{sDBG+3}], 0 offen sc0 sc1")
if P["nodma"]: issued.extend([0, 1, 2, 3, 4])
for tok in P["pro"].split("."):
    if tok[0] == "D":
        f = tok[1:].split(":"); st = int(f[0]); gs = STG[st]
        lo, hi_ = (int(f[1]), int(f[2])) if len(f) > 1 else (seen[st], len(gs))
        assert lo == seen[st]; seen[st] = min(hi_, len(gs))
        assert st < 3 or period >= st - 1
        pendg += [(st, g) for g in gs[lo:hi_]]
        continue
    if tok[0] == "T":
        c = int(tok[1])
        if P["touch"]: pendg.append(("t", touch_g(c >> 1, c & 1, tok[2:], True)))
        continue
    flush()
    if tok[0] == "S":
        pstamp(2); lsetup()
    elif tok[0] == "Z":
        k = int(tok[1]); A(f"s_memrealtime s[{sST+2*k}:{sST+2*k+1}]")
    elif tok[0] == "N":
        srd(sDBG, 42, 256); nonce_load(); issued.append("n")
    elif tok[0] == "U":
        k4 = [i for i, k in enumerate(issued) if k == 1][3] if not P["nodma"] else len(issued) - 1
        A(f"s_waitcnt vmcnt({len(issued) - 1 - k4})")
        hi(rd_u1(vLIN, SLOT))
        A("s_waitcnt lgkmcnt(0)")
    elif tok[0] == "V":
        mixv = vadd(range(int(tok[1]), int(tok[2])))
    elif tok[0] == "F":
        assert period == (2 if P["lateack"] else 1)
        wait_for(["n"])
        A(f"s_mov_b32 s{sCNT}, {SPIN}")
        LBL("L_cn")
        A(f"v_readfirstlane_b32 s{sN0}, v{NON}")
        A(f"v_readfirstlane_b32 s{sN1}, v{NON+1}")
        A(f"s_cmp_lg_u32 s{sN0}, 0")
        A("s_cbranch_scc1 L_cn_ok")
        A(f"s_sub_u32 s{sCNT}, s{sCNT}, 1")
        A("s_cbranch_scc1 L_cn_ok")
        nonce_load()
        A("s_waitcnt vmcnt(0)")
        A("s_branch L_cn")
        LBL("L_cn_ok")
        A(f"s_lshl_b32 s{sTMP}, s2, 3")
        A(f"s_add_u32 s{sTMP}, s{sTMP}, {FL_OFF}")
        A(f"s_cmp_eq_u32 s{sWAVE}, 0")
        A(f"s_cselect_b32 s{sTMP}, s{sTMP}, {OOB}")
        A("s_mov_b64 exec, 1")
        A(f"buffer_store_dwordx2 v[{NON}:{NON+1}], v{vZ}, s[{sWS}:{sWS+3}], s{sTMP} offen sc0 sc1")
        A(f"v_mov_b32 v12, {MISC}")
        A(f"ds_write_b64 v12, v[{NON}:{NON+1}]")
        A("s_mov_b64 exec, -1")
        issued.append("f")
        pstamp(7)
    elif tok[0] == "G":
        A(f"s_mov_b32 s{sTA}, {FL_OFF}"); flag_load(f"s{sTA}"); issued.append("g")
    elif tok[0] == "C":
        wait_for(["g"])
        A(f"s_mov_b32 s{sTA}, {FL_OFF}")
        check_flags("L_spin0", f"s{sTA}")
    elif tok[0] == "W":
        assert period == 3
        hi(wr_v(vLIN, SLOT)[:P["wsplit"]] + rd_u0())
    elif tok[0] == "w":
        assert period == 3
        for d in wr_v(vLIN, SLOT)[:P["wsplit"]]: A(d)
    elif tok[0] == "r":
        assert period == 3
        for d in rd_u0(): A(d)
    elif tok[0] == "B":
        assert seen[period] == len(STG[period])
        if period == 0: pstamp(3)
        wait_for([period], " lgkmcnt(0)" if period >= 2 else "")
        if period == 0: pstamp(4)
        if period == 1:
            if "U" not in P["pro"].split("."):
                for d in rd_u1(vLIN, SLOT): A(d)
            A("s_waitcnt lgkmcnt(0)")
            A(f"v_add_u32 v{vU0}, {2*SLOT}, v{vU0}")
        if period == 3:
            assert seen[4] == 10
            A("s_branch L_join")
            break
        A("s_barrier")
        if period < 2: pstamp(5 + period)
        period += 1
        CM(f"P({period-1})")
        if period == 1: pend_u0 = True
    if tok[0] in "FB" and period == 1 and pend_u0 and (tok[0] == "F" or P["lateack"]):
        hi(rd_u0()); pend_u0 = False
n_after_wp = len(issued) - 1 - max(i for i, k in enumerate(issued) if k == 4) + 2

cur[0] = "lloop"
lb_n = [0]
def lbar():
    k = lb_n[0]; lb_n[0] += 1
    if P["lst"] >= 0:
        A(f"s_cmp_lg_u32 s{sD}, {P['lst'] + 1}")
        A(f"s_cbranch_scc1 L_nb{k}")
        A(f"s_memtime s[{76+4*k}:{77+4*k}]")
        A("s_barrier")
        A(f"s_memtime s[{78+4*k}:{79+4*k}]")
        A(f"s_branch L_nc{k}")
        LBL(f"L_nb{k}")
        A("s_barrier")
        LBL(f"L_nc{k}")
    else:
        A("s_barrier")
nt = 1 if P["touch"] else 0
assert P["nodma"] or n_after_wp >= 2 + nt, n_after_wp
assert P["nochk"] or P["vsplit"] <= P["wsplit"] <= P["vsplit"] + P["v1"] <= 4
LBL("L_lloop")
for par in (1, 0):
    npar = 1 - par
    CM(f"P(3c-1) par={par}")
    if par == 1:
        A(f"s_cmp_eq_u32 s{sD}, 3")
        A("s_cbranch_scc1 L_last")
    if not P["wend"]: hi(wr_v(vLIN, SLOT)[:P["wsplit"]])
    if P["u0first"]: hi(rd_u0())
    early = [dw((SPARE if par == 1 else 2*SLOT + WOFF + tile(0, 3)) + hh*4096, sWN if par else sWO, TAPS[("G00", npar)][3], hh) for hh in (0, 1)]
    mix(vadd(range(P["vsplit"] + P["v1"], 4)), dma_wp(npar, 1) + early)
    if not P["u0first"]:
        for d in rd_u0(): A(d)
    if nt: emit_groups([touch_g(1, par)])
    if P["wend"] == 1: hi(wr_v(vLIN, SLOT)[:P["wsplit"]])
    if P["wend"] == 2:
        for d in wr_v(vLIN, SLOT)[:P["wsplit"]]: A(d)
    A(f"s_waitcnt vmcnt({10 + nt})")
    if par == 1: LBL("L_join")
    for d in rd_u1(vLIN, 0): A(d)
    A(f"s_mov_b32 s{sPO}, s{sWO}")
    if par == 1:
        A(f"s_add_u32 s{sD}, s{sD}, 1")
        A(f"s_mov_b32 s{sWO}, s{sWN}")
        A(f"s_add_u32 s{sWN}, s{sWN}, 32768")
        A(f"s_cmp_eq_u32 s{sD}, 3")
        A(f"s_cselect_b32 s{sWN}, {OOB}, s{sWN}")
        A(f"s_add_u32 s{sXO}, s{sXO}, 128")
    A("s_waitcnt lgkmcnt(0)")
    lbar()
    CM(f"P(3c) par={par}")
    if not P["wend2"]: hi(wr_v(vLIN, SLOT)[P["wsplit"]:])
    x_ = dma_x(2, npar)
    gs = [tail_g(2, npar) + x_[0]] + x_[1:] + dma_w(2, TAPS[("G00", npar)], ss=(0, 1, 2))
    mix(vadd(range(P["vsplit"])), gs)
    if P["wend2"] == 1: hi(wr_v(vLIN, SLOT)[P["wsplit"]:])
    if P["wend2"] == 2:
        for d in wr_v(vLIN, SLOT)[P["wsplit"]:]: A(d)
    A(f"s_waitcnt vmcnt({12 + nt}) lgkmcnt(0)")
    lbar()
    CM(f"P(3c+1) par={par}")
    gs = dma_x(0, 2 + npar) + dma_w(0, TAPS[("G11", npar)], ss=(0, 1, 2))
    if par == 0: gs += dma_w(0, TAPS[("G11", 0)], ss=(3,), so=sWN)
    if par == 1:
        A(f"s_cmp_lg_u32 s{sD}, 1")
        A("s_cbranch_scc1 L_nf2")
        flag_load(f"s{sFO}")
        LBL("L_nf2")
    mix(vadd(range(P["vsplit"], P["vsplit"] + P["v1"])), gs)
    A(f"s_waitcnt vmcnt({len(gs)})")
    if par == 1:
        A(f"s_cmp_lg_u32 s{sD}, 1")
        A("s_cbranch_scc1 L_spin1_ok")
        check_flags("L_spin1", f"s{sFO}")
    lbar()
A("s_branch L_lloop")

cur[0] = "llast"
LBL("L_last")
CM("P(20)")
hi(wr_v(vLIN, SLOT)[:P["wsplit"]])
mix(vadd(range(P["vsplit"] + P["v1"], 4)), dma_wp(0, 1))
for d in rd_u0(): A(d)
srd(sGA, 36, 512)
srd(sBE, 38, 512)
A("s_waitcnt vmcnt(8)")
for d in rd_u1(vLIN, 0): A(d)
A("s_waitcnt lgkmcnt(0)")
A("s_barrier")
CM("P(21)")
gs = dma_wp(1, 2, True)
hi(wr_v(vLIN, SLOT)[P["wsplit"]:])
mix(vadd(range(2)), gs[:5])
A("s_waitcnt lgkmcnt(0)")
mix(vadd(range(2, 3)), gs[5:])
A("s_waitcnt vmcnt(8)")
A("s_barrier")
CM("P(22)")
wv = wr_v(vLIN2, 0)
for t in vadd(range(3, 4)): A(t)
for d in wv: A(d)
A("v_and_b32 v10, 15, v0")
A(f"s_lshl_b32 s{sTMP}, s{sNT}, 2")
A(f"s_add_u32 s{sTMP}, s{sTMP}, s{sWAVE}")
A(f"s_lshl_b32 s{sTMP}, s{sTMP}, 5")
A("v_lshlrev_b32 v14, 1, v10")
A(f"buffer_load_ushort v{GAM}, v14, s[{sGA}:{sGA+3}], s{sTMP} offen")
A(f"buffer_load_ushort v{GAM+1}, v14, s[{sBE}:{sBE+3}], s{sTMP} offen")
A("s_waitcnt vmcnt(2) lgkmcnt(0)")
A("s_barrier")
A("v_lshrrev_b32 v11, 4, v0")
A("v_lshlrev_b32 v12, 4, v10")
A("v_lshl_add_u32 v12, v11, 10, v12")
A(f"s_lshl_b32 s{sTMP}, s{sWAVE}, 6")
A(f"s_add_u32 s{sTMP}, s{sTMP}, {MISC+64}")
A(f"v_lshl_add_u32 v10, v10, 2, s{sTMP}")
if P["lprio"]: A("s_setprio 0")
A(f"s_add_u32 s{sWAVE}, s{sWAVE}, 4")
final_addr(FA)
A("s_waitcnt vmcnt(0)")
A(f"v_lshlrev_b32 v{GAM}, 16, v{GAM}")
A(f"v_lshlrev_b32 v{GAM+1}, 16, v{GAM+1}")
k0 = -2.0 * math.sqrt(2.0 / math.pi) * math.log2(math.e)
k1 = k0 * 0.044715
gam3 = -((-k1) ** (1.0 / 3.0))
if P["g5"]:
    A(f"v_mul_f32 v{GAM}, {f32(gam3)}, v{GAM}")
    A(f"v_mul_f32 v{GAM+1}, {f32(gam3)}, v{GAM+1}")
if not P["peel"]: A("s_barrier")
A("s_barrier")
stamp(1)
PG = 16
A(f"s_mov_b32 s{sCNT}, {SPIN}")
y_reads()
if P["spoll"]:
    for i in range(8):
        A(f"s_add_u32 s{84+i}, s{sGR}, {i*4096}")
    def pl(i): A(f"buffer_load_dwordx4 v[{PG+4*i}:{PG+4*i+3}], v12, s[{sWS}:{sWS+3}], s{84+i} offen sc0 sc1")
    for i in range(8): pl(i)
    for i in range(8):
        A(f"s_waitcnt vmcnt({7-i})")
        LBL(f"L_pc{i}")
        A(f"v_cmp_eq_u64 vcc, s[{sN0}:{sN1}], v[{PG+4*i+2}:{PG+4*i+3}]")
        A("s_cmp_eq_u64 vcc, -1")
        A(f"s_cbranch_scc0 L_pr{i}")
        LBL(f"L_pd{i}")
else:
    LBL("L_poll")
    for i in range(8):
        so = f"s{sGR}" if i == 0 else f"s{sTMP}"
        if i: A(f"s_add_u32 s{sTMP}, s{sGR}, {i*4096}")
        A(f"buffer_load_dwordx4 v[{PG+4*i}:{PG+4*i+3}], v12, s[{sWS}:{sWS+3}], {so} offen sc0 sc1")
    A(f"s_mov_b64 s[{sTA}:{sTA+1}], -1")
    for i in range(8):
        A(f"s_waitcnt vmcnt({7-i})")
        A(f"v_cmp_eq_u64 vcc, s[{sN0}:{sN1}], v[{PG+4*i+2}:{PG+4*i+3}]")
        A(f"s_and_b64 s[{sTA}:{sTA+1}], s[{sTA}:{sTA+1}], vcc")
    A(f"s_sub_u32 s{sCNT}, s{sCNT}, 1")
    A("s_cbranch_scc1 L_poll_ok")
    A(f"s_cmp_eq_u64 s[{sTA}:{sTA+1}], -1")
    A("s_cbranch_scc0 L_poll")
LBL("L_poll_ok")
stamp(2)
for st in (4, 2, 1):
    for i in range(st):
        pk("add", PG+4*i, PG+4*i, PG+4*(i+st))
for sw in ("v_permlane32_swap_b32", "v_permlane16_swap_b32"):
    A(f"v_mov_b32 v{PG+2}, v{PG}")
    A(f"v_mov_b32 v{PG+3}, v{PG+1}")
    A("s_nop 1")
    A(f"{sw} v{PG}, v{PG+2}")
    A(f"{sw} v{PG+1}, v{PG+3}")
    A("s_nop 1")
    pk("add", PG, PG, PG+2)
A(f"v_mul_f32 v{PG}, {f32(1.0/7993)}, v{PG}")
A(f"v_mul_f32 v{PG+1}, {f32(1.0/7993)}, v{PG+1}")
A(f"v_fma_f32 v{PG+1}, -v{PG}, v{PG}, v{PG+1}")
A(f"v_max_f32 v{PG+1}, 0, v{PG+1}")
A(f"v_add_f32 v{PG+1}, {f32(1e-5)}, v{PG+1}")
A(f"v_rsq_f32 v{PG+1}, v{PG+1}")
A("s_nop 0")
A(f"v_mul_f32 v{PG+1}, v{PG+1}, v{GAM}")
A(f"ds_write_b32 v10, v{PG+1}")
A(f"v_fma_f32 v{PG}, -v{PG}, v{PG+1}, v{GAM+1}")
A(f"ds_write_b32 v10, v{PG} offset:256")

if P["spoll"]:
    cur[0] = "cepi"
    for i in range(8):
        LBL(f"L_pr{i}")
        A(f"s_sub_u32 s{sCNT}, s{sCNT}, 1")
        A(f"s_cbranch_scc1 L_pd{i}")
        pl(i)
        for k in range(i + 1, min(i + 1 + P["spoll"] - 1, 8)): pl(k)
        A("s_waitcnt vmcnt(0)")
        A(f"s_branch L_pc{i}")
    tail_cepi = SEC["cepi"]; SEC["cepi"] = []
cur[0] = "final"
LBL("L_final")
k0 = -2.0 * math.sqrt(2.0 / math.pi) * math.log2(math.e)
k1 = k0 * 0.044715
A(f"s_mov_b32 s{sK+2}, {f32(gam3 if P['g5'] else k1)}")
A(f"s_mov_b32 s{sK+3}, {f32(gam3 if P['g5'] else k1)}")
A(f"s_mov_b32 s{sK+4}, 4096")
A(f"v_mov_b32 v56, {f32(k0/gam3 if P['g5'] else k0)}")
A(f"v_mov_b32 v57, {f32(k0/gam3 if P['g5'] else k0)}")
A("s_waitcnt lgkmcnt(0)")
A("s_barrier")
stamp(4)
CA, CC = 16, 24
A(f"ds_read_b128 v[{CA}:{CA+3}], v{FA+6}")
A(f"ds_read_b128 v[{CC}:{CC+3}], v{FA+6} offset:256")
A(f"ds_read_b128 v[{CA+4}:{CA+7}], v{FA+6} offset:16")
A(f"ds_read_b128 v[{CC+4}:{CC+7}], v{FA+6} offset:272")
Z, U = 32, 40
for n in range(4):
    y = Y + 8 * n
    for h in range(0, 8, 2):
        if n == 0 and h in (0, 4): A(f"s_waitcnt lgkmcnt({2 if h == 0 else 0})")
        pk("fma", y+h, y+h, CA+h, c=CC+h)
    if P["g5"]:
        for h in range(0, 8, 2): pk("fma", U+h, y+h, y+h, c=56)
    else:
        for h in range(0, 8, 2): pk("mul", U+h, y+h, y+h)
        for h in range(0, 8, 2): A(f"v_pk_fma_f32 v[{U+h}:{U+h+1}], v[{U+h}:{U+h+1}], s[{sK+2}:{sK+3}], v[56:57]")
    for h in range(0, 8, 2): pk("mul", U+h, U+h, y+h)
    for h in range(8): A(f"v_exp_f32 v{U+h}, v{U+h}")
    for h in range(0, 8, 2):
        if P["g5"]: A(f"v_pk_fma_f32 v[{U+h}:{U+h+1}], v[{U+h}:{U+h+1}], s[{sK+2}:{sK+3}], s[{sK+2}:{sK+3}]")
        else: A(f"v_pk_add_f32 v[{U+h}:{U+h+1}], v[{U+h}:{U+h+1}], 1.0 op_sel_hi:[1,0]")
    for h in range(8): A(f"v_rcp_f32 v{U+h}, v{U+h}")
    for h in range(0, 8, 2): pk("mul", y+h, y+h, U+h)
    o = Z + 4 * (n & 1)
    for h in range(4): A(f"v_cvt_pk_bf16_f32 v{o+h}, v{y+2*h}, v{y+2*h+1}")
    A(f"buffer_store_dwordx4 v[{o}:{o+3}], v{FA+4 if n < 2 else FA+5}, s[{sO}:{sO+3}], {'0' if n % 2 == 0 else 's'+str(sK+4)} offen" + ["", " nt", " sc1", " sc0 sc1", " sc1 nt"][P["stf"]])
if P["stamps"]:
    stamp(5)
    A("s_waitcnt vmcnt(0)")
    stamp(6)
    A("s_waitcnt lgkmcnt(0)")
    A(f"s_mov_b32 s{sWS+2}, 0x1000000")
    A(f"s_lshl_b32 s{sTMP}, s2, 3")
    A(f"s_add_u32 s{sTMP}, s{sTMP}, s{sWAVE}")
    A(f"s_lshl_b32 s{sTMP}, s{sTMP}, 5")
    A(f"s_add_u32 s{sTMP}, s{sTMP}, 0x200000")
    A("v_mov_b32 v1, 0")
    if plain and not P["pst"]: A("s_sub_u32 s90, s94, s92")
    for k in range(8): A(f"v_mov_b32 v{2+k}, s{sST+(k if P['cst'] else 2*k)}")
    A("s_mov_b64 exec, 1")
    if P["sst"] >= 0:
        for k in range(12): A(f"v_mov_b32 v{2+k}, v{MS+k}") if False else None
    if P["lst"] >= 0 or P["cst"] or P["sst"] >= 0:
        if P["sst"] >= 0:
            for k in range(12): A(f"v_readlane_b32 s{76+k}, v255, {k}")
            A("s_nop 1")
            for k in range(12): A(f"v_mov_b32 v{2+k}, s{76+k}")
        else:
            for k in range(4): A(f"v_mov_b32 v{10+k}, s{sST+8+k if P['cst'] else sST+16+2*k}")
        A(f"s_add_u32 s{sCNT}, s{sTMP}, 0x100000")
        A(f"buffer_store_dwordx4 v[10:13], v1, s[{sWS}:{sWS+3}], s{sCNT} offen")
    A(f"buffer_store_dwordx4 v[2:5], v1, s[{sWS}:{sWS+3}], s{sTMP} offen")
    A(f"buffer_store_dwordx4 v[6:9], v1, s[{sWS}:{sWS+3}], s{sTMP} offen offset:16")
if P["dbgt"]:
    A(f"s_cmp_lg_u32 s{sWAVE}, 0")
    A("s_cbranch_scc1 L_end")
    A("s_cmp_eq_u32 s2, 0")
    A(f"s_cselect_b32 s{sTMP}, 8, 36")
    A("s_cbranch_scc1 L_dd")
    A("s_cmp_lg_u32 s2, 77")
    A("s_cbranch_scc1 L_end")
    LBL("L_dd")
    for k in range(1, 7): A(f"v_subrev_u32 v{2+k}, v2, v{2+k}")
    A(f"buffer_store_dwordx4 v[2:5], v1, s[{sDBG}:{sDBG+3}], s{sTMP} offen")
    A(f"buffer_store_dwordx3 v[6:8], v1, s[{sDBG}:{sDBG+3}], s{sTMP} offen offset:16")
LBL("L_end")
A("s_endpgm")

cur[0] = "cpro"
LBL("L_compute")
G00, G11, GS = 16, 48, 80
SETS = [112, 172]
def vXR(role): return 1 + 2 * role
def vWR(role): return 2 + 2 * role
vW3, vW3C, vGA, vYW = 7, 8, 9, 10
T = 232
CWA, CWB = 112, 116
A(f"s_lshr_b32 s{sWAVE}, s{sWAVE}, 6")
A(f"s_memrealtime s[{sN0}:{sN1}]")
A(f"v_lshrrev_b32 v{T}, 5, v0")
A(f"s_lshl_b32 s{sTMP}, s{sWAVE}, 1")
A(f"v_add_u32 v{T}, s{sTMP}, v{T}")
A(f"v_and_b32 v{T+1}, 31, v0")
A(f"v_lshlrev_b32 v{T+1}, 4, v{T+1}")
A(f"s_lshl_b32 s{sTMP}, s2, 9")
A(f"v_add_u32 v{T+1}, s{sTMP}, v{T+1}")
A(f"v_lshl_add_u32 v{T+2}, v{T}, 17, v{T+1}")
A(f"v_and_b32 v{T}, 3, v{T}")
A(f"v_lshl_add_u32 v{T+1}, v{T}, 19, v{T+1}")
A(f"s_lshr_b32 s{sWO}, s{sWAVE}, 1")
A(f"s_lshl_b32 s{sWO}, s{sWO}, 17")
A(f"s_add_u32 s{sWN}, s{sWO}, {2*131072}")
A("s_waitcnt lgkmcnt(0)")
srd(sW, 34, W_BYTES)
if P["pq"]:
    A(f"s_cmp_eq_u32 s{sWAVE}, 0")
    A(f"s_cselect_b32 s{sW+2}, s{sW+2}, 0")
A(f"buffer_load_dwordx4 v[{CWA}:{CWA+3}], v{T+1}, s[{sW}:{sW+3}], s{sWO} offen" + (" nt" if P["pnt"] else ""))
A(f"buffer_load_dwordx4 v[{CWB}:{CWB+3}], v{T+1}, s[{sW}:{sW+3}], s{sWN} offen" + (" nt" if P["pnt"] else ""))
srd(sDBG, 42, 256)
A(f"s_or_b32 s{sTMP}, s2, s{sWAVE}")
A(f"s_cmp_lg_u32 s{sTMP}, 0")
A("s_cbranch_scc1 L_nononce")
A(f"s_or_b32 s{sN0}, s{sN0}, 1")
A(f"v_mov_b32 v{T+3}, 0")
A(f"v_mov_b32 v{T+6}, s{sN0}")
A(f"v_mov_b32 v{T+7}, s{sN1}")
A("s_mov_b64 exec, 1")
A(f"buffer_store_dwordx2 v[{T+6}:{T+7}], v{T+3}, s[{sDBG}:{sDBG+3}], 0 offen sc0 sc1")
A("s_mov_b64 exec, -1")
LBL("L_nononce")
if P["cpf"]:
    A(f"s_cmp_lg_u32 s{sWAVE}, 1")
    A("s_cbranch_scc1 L_nocpf")
    A("s_getpc_b64 s[74:75]")
    LBL("L_pc")
    A(f"s_lshr_b32 s{sTMP}, s2, 3")
    A(f"s_lshl_b32 s{sTMP}, s{sTMP}, 9")
    A(f"s_add_u32 s74, s74, s{sTMP}")
    A("s_addc_u32 s75, s75, 0")
    A(f"s_sub_u32 s74, s74, L_pc-{KN}")
    A("s_subb_u32 s75, s75, 0")
    A(f"v_lshlrev_b32 v{T+4}, 7, v0")
    A("s_mov_b64 exec, 15")
    A(f"global_load_dword v{T+5}, v{T+4}, s[74:75]")
    A("s_mov_b64 exec, -1")
    LBL("L_nocpf")
if P["warm"]:
    CM("visit one instruction in every later code page while the first loads are in flight")
    A("s_branch L_warm0")
    LBL("L_warmret")
srd(sWS, 44, WS_BYTES)
A(f"s_mov_b32 s{sPO}, {WP_OFF}")
out_srd()
A(f"s_mov_b32 s{sMID}, 0x7fff7fff")
A(f"s_cselect_b32 s{sMID}, s{sMID}, -1")
A(f"s_mov_b32 s{sMID+1}, s{sMID}")
granule_off()
A(f"s_lshl_b32 s{sTMP}, s{sT}, 10")
A(f"s_add_u32 s{sGR}, s{sGR}, s{sTMP}")
R, G_, X1, X2 = 120, 121, 122, 124
A(f"v_and_b32 v{R}, 15, v0")
A(f"v_lshrrev_b32 v{G_}, 4, v0")
A(f"v_mul_u32_u24 v{X1}, {XB}, v{R}")
A(f"v_lshl_add_u32 v{vXR(0)}, v{G_}, 4, v{X1}")
A(f"v_bfe_u32 v{X2}, v0, 2, 2")
A(f"v_lshl_add_u32 v{X1}, v{G_}, 3, v{X2}")
A(f"v_lshlrev_b32 v{X1}, 7, v{X1}")
A(f"v_lshrrev_b32 v{X2}, 1, v{X2}")
A(f"v_and_b32 v{X2+1}, 1, v{G_}")
A(f"v_lshl_or_b32 v{X2}, v{X2+1}, 1, v{X2}")
A(f"v_xor_b32 v{X2}, s{sWAVE}, v{X2}")
A(f"v_lshl_add_u32 v{X1}, v{X2}, 5, v{X1}")
A(f"v_and_b32 v{X2}, 3, v0")
A(f"v_lshl_add_u32 v{X1}, v{X2}, 3, v{X1}")
A(f"v_add_u32 v{vWR(0)}, {WOFF}, v{X1}")
A(f"v_add_u32 v{vW3}, {WOFF + tile(0,3)}, v{X1}")
A(f"v_lshlrev_b32 v{vW3C}, 1, v{X1}")
A(f"v_add_u32 v{vW3C}, {2*SLOT + WOFF + tile(0,3) + SPARE}, v{vW3C}")
for k in (1, 2):
    A(f"v_add_u32 v{k+2}, {SLOT}, v{k}")
    A(f"v_add_u32 v{k+4}, {2*SLOT}, v{k}")
if P["red"]:
    CM("after the reduce-scatter lane r of group g holds channel 4g + (r>>2)")
    A(f"v_lshrrev_b32 v{X1}, 2, v{R}")
    A(f"v_lshl_add_u32 v{vGA}, v{G_}, 2, v{X1}")
else:
    A(f"v_lshl_add_u32 v{vGA}, v{G_}, 2, v{R}")
A(f"v_lshlrev_b32 v{vGA}, 4, v{vGA}")
A(f"s_lshl_b32 s{sTMP}, s{sWAVE}, 2")
A(f"v_add_u32 v{X1}, s{sTMP}, v{G_}")
A(f"v_lshrrev_b32 v{X2}, 1, v{X1}")
A(f"v_and_b32 v{X1}, 1, v{X1}")
A(f"v_lshl_or_b32 v{X1}, v{X1}, 3, v{X2}")
A(f"v_and_b32 v{X2}, 7, v{R}")
A(f"v_xor_b32 v{X1}, v{X1}, v{X2}")
A(f"v_lshlrev_b32 v{X1}, 4, v{X1}")
A(f"v_lshl_add_u32 v{vYW}, v{R}, 12, v{X1}")
A(f"v_xor_b32 v{vYW+1}, 0x80, v{vYW}")
final_addr(FA)
for i in range(0, 96, 2):
    A(f"v_pk_mov_b32 v[{16+i}:{17+i}], 0, 0")
A("s_waitcnt vmcnt(0)")
for t in addbf_list(CWA, CWA, CWB, 224, True): A(t)
A(f"buffer_store_dwordx4 v[{CWA}:{CWA+3}], v{T+2}, s[{sWS}:{sWS+3}], s{sPO} offen sc0 sc1")
if P["prio"]: A(f"s_setprio {P['prio']}")
if not P["lateack"]: A("s_waitcnt vmcnt(0)")

def reads(role, hh, st, ndpp=0, last=False):
    xb = SETS[st]; wb = xb + 44
    def xr(q): return (("X", q), f"ds_read_b128 v[{xb+4*q}:{xb+4*q+3}], v{vXR(role)} offset:{(q & 7)*128 + hh*64 + (XB if q > 7 else 0)}")
    def wr(s, h):
        if role == 0 and s == 3 and not last:
            return (("W", s), f"ds_read_b64_tr_b16 v[{wb+4*s+2*h}:{wb+4*s+2*h+1}], v{vW3} offset:{hh*4096 + h*512}")
        return (("W", s), f"ds_read_b64_tr_b16 v[{wb+4*s+2*h}:{wb+4*s+2*h+1}], v{vWR(role)} offset:{tile(hh, s) + h*512}")
    if role == 1 and P["u3"]:
        r = [wr(0, 0), wr(0, 1), xr(0), wr(1, 0), wr(1, 1), xr(1), wr(2, 0), wr(2, 1)] + [xr(q) for q in range(2, 10)] + [wr(3, 0), wr(3, 1), xr(10)]
    else:
        r = [wr(0, 0), wr(0, 1), xr(0), wr(1, 0), wr(1, 1)] + [xr(q) for q in range(1, 9)] + [wr(2, 0), wr(2, 1), wr(3, 0), wr(3, 1), xr(9), xr(10)]
    dq = list(range(11 - ndpp, 11))
    r = [e for e in r if not (e[0][0] == "X" and e[0][1] in dq)]
    d = [f"v_mov_b32_dpp v{xb+4*q+i}, v{xb+4*(q-8)+i} row_shl:1 row_mask:0xf bank_mask:0xf" for q in dq for i in range(4)]
    return r, d
def mfma_list(acc, st, split3=False):
    xb = SETS[st]; wb = xb + 44
    pairs = []
    if split3 and P["u3"]:
        pairs = [(s, j) for j in range(8) for s in ((0, 1, 2) if j % 2 == 0 else (2, 1, 0))] + [(3, j) for j in range(8)]
    else:
        for s0 in ((0,) if split3 else (0, 2)):
            for q in range(s0, s0 + 9):
                for s in (s0 + 1, s0):
                    if 0 <= q - s < 8: pairs.append((s, q - s))
        if split3: pairs += [(s, j) for s in (2, 3) for j in range(8)]
    out = []
    for s, j in pairs:
        d = f"v[{acc+4*j}:{acc+4*j+3}]"
        out.append(([("W", s), ("X", j+s)], f"v_mfma_f32_16x16x32_bf16 {d}, v[{wb+4*s}:{wb+4*s+3}], v[{xb+4*(j+s)}:{xb+4*(j+s)+3}], {d}"))
    return out
pending = []
ss_n = [0]
def sstamp():
    if P["sst"] < 0 or ss_n[0] >= 12: return
    k = ss_n[0]; ss_n[0] += 1
    A(f"s_memtime s[{76+2*k}:{77+2*k}]")
def seq(acc, st, rdd, barrier, skip_label=None, extra=None, delay=0, vm0=False):
    global pending
    rd, dpp = rdd
    nm = 24 if skip_label else 32
    m = mfma_list(acc, st, skip_label is not None)
    rd = [] if P["nords"] else list(rd)
    dpp = list(dpp)
    first = max(P["barslot"], delay) if barrier else 0
    if dpp:
        first = min(first, nm - len(rd) - len(dpp) - 0) if barrier else first
        first = max(first, P["barslot"]) if barrier else first
        last = first + len(rd) - 1
    else:
        last = max(min(first + len(rd) if barrier else P["rdA"], nm - P["rd_gap"]), first + len(rd) - 1) if rd else 0
    slots = [first + (k * (last - first)) // max(len(rd) - 1, 1) for k in range(len(rd))]
    dslots = [min(last + 1 + k, nm - 1) for k in range(len(dpp))]
    cur_ = list(pending); newer = 0; nxt = []; nd = 0
    for i, (need, ins) in enumerate(m):
        if i == 24 and skip_label:
            A(f"s_cbranch_scc1 {skip_label}")
        if i % 16 == 0 or (skip_label and i == 24):
            need = [k for nd_, _ in m[i:i+16 if not (skip_label and i == 16) else 24] for k in nd_]
            if barrier and i == 0: need = [k for nd_, _ in m[:P["barslot"]+1] for k in nd_]
            idx = max([k for k, key in enumerate(cur_) if key in need], default=-1)
            if idx >= 0:
                n = len(cur_) - 1 - idx + newer
                if n < 15: A(f"s_waitcnt lgkmcnt({n})")
                cur_ = cur_[idx+1:]
        A(ins)
        if barrier and i == P["barslot"]:
            if cur_ or vm0: A("s_waitcnt" + (" vmcnt(0)" if vm0 else "") + " lgkmcnt(0)"); cur_ = []
            sstamp()
            A("s_barrier")
            sstamp()
        while rd and slots[len(nxt)] <= i:
            key, s = rd.pop(0); A(s); nxt.append(key); newer += 1
        while nd < len(dpp) and dslots[nd] <= i:
            if nd == 0:
                k = max(nxt.index(("X", q)) for q in range(3) if ("X", q) in nxt)
                A(f"s_waitcnt lgkmcnt({min(len(nxt) - 1 - k, 15)})")
            A(dpp[nd]); nd += 1
        if extra and i in extra:
            for s in extra[i]: A(s)
    assert not rd and nd == len(dpp)
    if skip_label: LBL(skip_label)
    pending = nxt
    sstamp()
A("s_barrier")
stamp(1)
if plain: A("s_memtime s[92:93]"); A("s_waitcnt lgkmcnt(0)")
D2, D3 = (2 if P["dpp"] else 0), (3 if P["dpp"] else 0)
r0, _ = reads(0, 0, 0)
for _, s in r0: A(s)
pending = [k for k, _ in reads(0, 0, 0, D2 if P["dpp"] & 4 else 0)[0]]
loop_entry = list(pending)
A(f"s_mov_b32 s{sCNT}, 0")
if P["dpp"] & 4: A("s_waitcnt lgkmcnt(0)")
A("s_branch L_cloop")

cur[0] = "cloop"
def cstamp(idx=None):
    if not P["cst"]: return
    A("s_memtime s[100:101]")
    A("s_waitcnt lgkmcnt(0)")
    if idx is None:
        A(f"s_mov_b32 m0, s{sCNT}")
        A("s_nop 0")
        A("s_movreld_b32 s76, s100")
    else:
        A(f"s_mov_b32 s{76+idx}, s100")
LBL("L_cloop")
if P["sst"] >= 0:
    A(f"s_cmp_lg_u32 s{sCNT}, {P['sst'] + 1}")
    A("s_cbranch_scc1 L_nss")
    A("s_waitcnt lgkmcnt(0)")
    for k in range(12): A(f"v_writelane_b32 v255, s{76+2*k}, {k}")
    LBL("L_nss")
cstamp()
seq(G00, 0, reads(0, 1, 1, D2), False)
seq(G00, 1, reads(1, 0, 0, D3 if P["dpp"] & 2 else 0), True, extra={28: [f"v_sub_u32 v{vW3}, v{vW3C}, v{vW3}"]}, delay=P["dly0"], vm0=bool(P["lateack"]))
A(f"s_bitcmp1_b32 s{sCNT}, 0")
seq(G11, 0, reads(1, 1, 1), False, "L_skipa")
seq(G11, 1, reads(2, 0, 0), True, "L_skipb")
A(f"s_cmp_eq_u32 s{sCNT}, 0")
A("s_cbranch_scc1 L_cfirst")
LBL("L_gs")
pend_gs = list(pending)
seq(GS, 0, reads(2, 1, 1, D3), False)
A(f"s_add_u32 s{sCNT}, s{sCNT}, 1")
A(f"s_cmp_lt_u32 s{sCNT}, 8")
seq(GS, 1, reads(0, 0, 0, D2 if P["dpp"] & 4 else 0), True, delay=P["dly2"])
pend_loop = list(pending)
assert pend_loop == loop_entry
A("s_cbranch_scc1 L_cloop")
if not P["peel"]:
    A(f"s_cmp_eq_u32 s{sCNT}, 9")
    A("s_cbranch_scc1 L_cdone")
    cstamp(8)
    for k in (5, 6): A(f"v_mov_b32 v{k}, v{k-4}")
    if pend_loop != pend_gs: A("s_waitcnt lgkmcnt(0)")
    A("s_branch L_gs")
else:
    A("s_branch L_cdone")
LBL("L_cfirst")
if not P["pubst"]: stamp(3)
for k in (1, 2):
    A(f"v_add_u32 v{k}, {2*SLOT}, v{k}")
    A(f"v_subrev_u32 v{k+2}, {SLOT}, v{k+2}")
    A(f"v_subrev_u32 v{k+4}, {SLOT}, v{k+4}")
A(f"v_add_u32 v{vW3}, {tile(0,3)}, v2")
A(f"s_mov_b32 s{sCNT}, 1")
if pend_loop != pend_gs: A("s_waitcnt lgkmcnt(0)")
A("s_branch L_cloop")

cur[0] = "cepi"
LBL("L_cdone")
def yreg(idx): return ((SETS[0] if P["pp"] else G11) if idx % 2 == 0 else GS) + 4 * (idx // 2)
S1, S2 = 16, 20
dppl = [f"v_mov_b32_dpp v{T+i}, v{G00+i} row_shl:1 row_mask:0xf bank_mask:0xf bound_ctrl:0" for i in range(4)]
if P["peel"]:
    cstamp(8)
    pending = pend_loop
    CM("last stage, with the G00/G11 part of the output transform in its shadow: G11 <- y0, G00[j] <- G11[j] + G00[j+1]")
    exA = {20 + i: [dppl[i]] for i in range(4)}
    exA[19] = [f"v_mov_b32 v12, {MISC}", "ds_read_b64 v[238:239], v12"]
    Y0 = SETS[0]
    ex = []
    if P["pp"]:
        def op2(d, x, y):
            return [pks("add", d, x, y), pks("add", d+2, x+2, y+2)] if P["pp"] == 2 else [f"v_add_f32 v{d+i}, v{x+i}, v{y+i}" for i in range(4)]
        for j in range(8):
            ex += op2(Y0+4*j, G00+4*j, G11+4*j)
        for j in range(8):
            ex += op2(G11+4*j, G11+4*j, G00+4*(j+1) if j < 7 else T)
    seq(GS, 0, reads(0, 1, 1, 0, True), False, extra=exA)
    pending = pending + [("N", 0)]
    nh = min(len(ex), P["ppn"])
    seq(GS, 1, ([], []), False, extra={1 + (k * 31) // max(nh, 1): [] for k in range(nh)} and
        {i: [ex[k] for k in range(nh) if 1 + (k * 31) // nh == i] for i in range(32)} if nh else None)
    if P["pp"] == 1 and nh % 4 == 0 and nh >= 32:
        for j in range((nh - 32) // 4, 8):
            for h in (0, 2): pk("add", G11+4*j+h, G11+4*j+h, (G00+4*(j+1) if j < 7 else T) + h)
    else:
        for t in ex[nh:]: A(t)
    A("s_nop 7")
else:
    A(f"v_mov_b32 v12, {MISC}")
    A("ds_read_b64 v[238:239], v12")
    for t in dppl: A(t)
    A("s_nop 2")
cstamp(9)
stamp(2)
if plain: A("s_memtime s[94:95]")
if P["prio"]: A("s_setprio 0")
for j in range(8):
    for h in (0, 2):
        pk("add", GS+4*j+h, GS+4*j+h, G11+4*j+h, neg=True)
for j in range(8):
    for h in (0, 2):
        if P["pp"]: continue
        nx = G00+4*(j+1)+h if j < 7 else T+h
        pk("add", GS+4*j+h, GS+4*j+h, nx, neg=True)
        pk("add", G11+4*j+h, G11+4*j+h, G00+4*j+h)
for h in (0, 2):
    pk("add", S1+h, yreg(0)+h, yreg(1)+h)
    pk("mul", S2+h, yreg(0)+h, yreg(0)+h)
for idx in range(1, 16):
    if idx == 3: A(f"s_mov_b64 exec, s[{sMID}:{sMID+1}]")
    if idx == 10:
        A("s_mov_b32 exec_lo, 0x7fff7fff")
        A("s_mov_b32 exec_hi, 0x7fff7fff")
    for h in (0, 2):
        if idx > 1: pk("add", S1+h, S1+h, yreg(idx)+h)
        pk("fma", S2+h, yreg(idx)+h, yreg(idx)+h, c=S2+h)
A("s_mov_b64 exec, -1")
A("s_nop 1")
def dadd(d, s, ctl, bm="0xf"): A(f"v_add_f32_dpp v{d}, v{s}, v{s} {ctl} row_mask:0xf bank_mask:{bm}")
if P["red"]:
    CM("reduce-scatter over the 16 lanes of a row: banks (r>>2) end up with channel r>>2")
    for b in (S1, S2):
        dadd(b+8, b, "row_ror:8"); dadd(b+9, b+1, "row_ror:8")
    for b in (S1, S2):
        dadd(b+8, b+2, "row_ror:8", "0xc"); dadd(b+9, b+3, "row_ror:8", "0xc")
    A("s_nop 0")
    dadd(236, S1+8, "row_half_mirror"); dadd(237, S2+8, "row_half_mirror")
    dadd(236, S1+9, "row_half_mirror", "0xa"); dadd(237, S2+9, "row_half_mirror", "0xa")
    A("s_nop 0")
    dadd(236, 236, "quad_perm:[1,0,3,2]"); dadd(237, 237, "quad_perm:[1,0,3,2]")
    A("s_nop 0")
    dadd(236, 236, "quad_perm:[2,3,0,1]"); dadd(237, 237, "quad_perm:[2,3,0,1]")
    A("s_mov_b32 exec_lo, 0x11111111")
    A("s_mov_b32 exec_hi, 0x11111111")
else:
    for sh in (8, 4, 2, 1):
        for i in range(8): dadd(16+i, 16+i, f"row_ror:{sh}")
    A("v_mov_b32 v236, v16")
    A("v_mov_b32 v237, v20")
    for i in (1, 2, 3):
        mk = (1 << i) * 0x00010001
        A(f"s_mov_b32 exec_lo, {mk:#x}")
        A(f"s_mov_b32 exec_hi, {mk:#x}")
        A(f"v_mov_b32 v236, v{16+i}")
        A(f"v_mov_b32 v237, v{20+i}")
    A("s_mov_b32 exec_lo, 0x000f000f")
    A("s_mov_b32 exec_hi, 0x000f000f")
A("s_waitcnt lgkmcnt(0)")
A(f"buffer_store_dwordx4 v[236:239], v{vGA}, s[{sWS}:{sWS+3}], s{sGR} offen sc0 sc1")
A("s_mov_b64 exec, -1")
if P["pubst"]: stamp(3)
for idx in range(16):
    A(f"ds_write_b128 v{vYW + ((idx // 2) & 1)}, v[{yreg(idx)}:{yreg(idx)+3}] offset:{idx*256}")
A("s_waitcnt lgkmcnt(0)")
A("s_barrier")
y_reads()
A("s_branch L_final")
if P["spoll"]: SEC["cepi"] += tail_cepi

out = [f"""; conv stem (K=15, stride 2) as a 2-parallel fast-FIR GEMM + per-channel GroupNorm + tanh GELU, one launch.
; @launch grid=(256,1,1) block=(512,1,1) lds={LDS_BYTES}
.amdgcn_target "amdgcn-amd-amdhsa--gfx950"
.text
.globl {KN}
.p2align 8
.type {KN},@function
{KN}:"""]
wk = 0
for sec in ("entry", "lpro", "cpro", "cloop", "lloop", "cepi", "llast", "final"):
    if P["warm"] and sec in ("cloop", "lloop", "cepi", "llast"):
        out += [f"L_warm{wk}:", f"  s_branch L_warm{wk+1}"]; wk += 1
    if sec in ("cloop", "lloop"): out.append(".p2align 6")
    out += SEC[sec]
if P["warm"]: out += [f"L_warm{wk}:", "  s_branch L_warmret"]
out.append(f""".p2align 8
.fill 1024, 4, 0xbf810000
.section .rodata,"a"
.p2align 6
.amdhsa_kernel {KN}
  .amdhsa_next_free_vgpr 256
  .amdhsa_next_free_sgpr 102
  .amdhsa_accum_offset 256
  .amdhsa_group_segment_fixed_size 0
  .amdhsa_kernarg_size 64
  .amdhsa_user_sgpr_count 2
  .amdhsa_user_sgpr_kernarg_segment_ptr 1
  .amdhsa_system_sgpr_workgroup_id_x 1
.end_amdhsa_kernel""")
print("\n".join(out))
```

```python
import sys, struct, math
P = dict(prio=2, lprio=0, dsprio=3, stamps=0, novalu=0, nodma=0, nords=0, barslot=1, rd_gap=5, rdA=19, dly0=13, dly2=13,
         touch=1, lst=-1, cst=0, pst=0, sst=-1, vsplit=2, wsplit=2, cpf=1, stf=2, dbgt=0, dpp=1, u3=1, red=1, wend=0, wend2=0, u0first=0, warm=0, pq=0, xnt=0, tnt=0, wnt=0, pnt=0, vpk=0, pubst=0, x1st=1, algn=0, nochk=0, v1=2, g5=1, spoll=0, lateack=1, peel=1, pp=1, ppn=48,
         pro="D0:0:4.D1:0:4.D0.N.D1.S.B.U.V02.D2:0:8.B.F.V24.D2.D3.B.G.w.r.C.D4.T2ab.T3ab.B")
for a in sys.argv[1:]:
    k, v = a.split("=")
    P[k] = v if k in ("pro",) else int(v)

KN = "standalone__self_sup_conv_stem_hubert__speech_kernel"
XB = 1056
XSZ = 16 * XB + 128
WOFF = XSZ
SLOT = WOFF + 32768
SPARE = 3 * SLOT
MISC = SPARE + 8192
LDS_BYTES = MISC + 1024
X_BYTES = 2 * 16000 * 256 * 2
W_BYTES = 15 * 256 * 256 * 2
FL_OFF, WP_OFF, WS_BYTES = 0x40000, 0x80000, 0x180000
OOB = 0x40000000
SPIN = 0x4000
def tile(hh, s): return (hh * 3 + s if s < 3 else 6 + hh) * 4096

SEC = {k: [] for k in ("entry", "lpro", "lloop", "llast", "final", "cpro", "cloop", "cepi")}
cur = ["entry"]
def A(s): SEC[cur[0]].append("  " + s)
def LBL(s): SEC[cur[0]].append(s + ":")
def CM(s): SEC[cur[0]].append("  ; " + s)
def f32(x): return "0x%08x" % struct.unpack("<I", struct.pack("<f", x))[0]

sX, sW, sO, sWS, sDBG, sGA, sBE = 4, 8, 12, 16, 20, 24, 28
sWAVE, sT, sNT, sB = 46, 47, 48, 49
sWN, sXO, sWO, sPO, sTMP, sCNT, sMASK16 = 50, 51, 52, 53, 55, 56, 57
sTA = 58
sD, sXB = 60, 61
sN0, sN1 = 62, 63
sMID = 64
sGR, sFO = 66, 67
sK = 68
sM0, sMX = 73, 74
sXW = 75
sST = 76

def srd(d, lo, nbytes):
    A(f"s_mov_b32 s{d}, s{lo}")
    A(f"s_and_b32 s{d+1}, s{lo+1}, 0xffff")
    A(f"s_mov_b32 s{d+2}, {nbytes}")
    A(f"s_mov_b32 s{d+3}, 0x20000")
def out_srd():
    A(f"s_mul_i32 s{sTMP}, s{sB}, {7993*512}")
    A(f"s_mul_i32 s{sCNT}, s{sT}, {250*512}")
    A(f"s_add_u32 s{sTMP}, s{sTMP}, s{sCNT}")
    A(f"s_add_u32 s{sO}, s40, s{sTMP}")
    A(f"s_addc_u32 s{sO+1}, s41, 0")
    A(f"s_and_b32 s{sO+1}, s{sO+1}, 0xffff")
    A(f"s_cmp_eq_u32 s{sT}, 31")
    A(f"s_mov_b32 s{sO+2}, {243*512}")
    A(f"s_cselect_b32 s{sO+2}, s{sO+2}, {250*512}")
    A(f"s_mov_b32 s{sO+3}, 0x20000")
def granule_off():
    A(f"s_lshl_b32 s{sGR}, s{sB}, 2")
    A(f"s_add_u32 s{sGR}, s{sGR}, s{sNT}")
    A(f"s_lshl_b32 s{sGR}, s{sGR}, 15")
    A(f"s_lshl_b32 s{sTMP}, s{sWAVE}, 8")
    A(f"s_add_u32 s{sGR}, s{sGR}, s{sTMP}")
plain = P["stamps"] and P["lst"] < 0 and not P["cst"] and P["sst"] < 0
def stamp(k):
    if not plain: return
    if P["pst"] and k > 0 and cur[0] not in ("cpro", "cloop", "cepi"): return
    A(f"s_memrealtime s[{sST+2*k}:{sST+2*k+1}]")
def pstamp(k):
    if P["pst"] == 1: A(f"s_memrealtime s[{sST+2*k}:{sST+2*k+1}]")
def addbf_list(d, a, b, t, force=False):
    r = []
    if P["novalu"] and not force: return r
    for i0 in (0, 2):
        if P["vpk"]:
            for i in (i0, i0 + 1):
                u = t + 4 * (i - i0)
                r += [f"v_lshlrev_b32 v{u}, 16, v{a+i}", f"v_and_b32 v{u+1}, s{sMASK16}, v{a+i}",
                      f"v_lshlrev_b32 v{u+2}, 16, v{b+i}", f"v_and_b32 v{u+3}, s{sMASK16}, v{b+i}"]
            for i in (i0, i0 + 1):
                u = t + 4 * (i - i0)
                r += [f"v_pk_add_f32 v[{u}:{u+1}], v[{u}:{u+1}], v[{u+2}:{u+3}]"]
            for i in (i0, i0 + 1):
                u = t + 4 * (i - i0)
                r += [f"v_cvt_pk_bf16_f32 v{d+i}, v{u}, v{u+1}"]
            continue
        for i in (i0, i0 + 1):
            u = t + 4 * (i - i0)
            r += [f"v_lshlrev_b32 v{u}, 16, v{a+i}", f"v_lshlrev_b32 v{u+1}, 16, v{b+i}",
                  f"v_and_b32 v{u+2}, s{sMASK16}, v{a+i}", f"v_and_b32 v{u+3}, s{sMASK16}, v{b+i}"]
        for i in (i0, i0 + 1):
            u = t + 4 * (i - i0)
            r += [f"v_add_f32 v{u}, v{u}, v{u+1}", f"v_add_f32 v{u+2}, v{u+2}, v{u+3}"]
        for i in (i0, i0 + 1):
            u = t + 4 * (i - i0)
            r += [f"v_cvt_pk_bf16_f32 v{d+i}, v{u}, v{u+2}"]
    return r
def pks(op, d, a, b, neg=False, c=None):
    s = f"v_pk_{op}_f32 v[{d}:{d+1}], v[{a}:{a+1}], v[{b}:{b+1}]"
    if c is not None: s += f", v[{c}:{c+1}]"
    if neg: s += " neg_lo:[0,1] neg_hi:[0,1]"
    return s
def pk(*a, **k): A(pks(*a, **k))
def final_addr(base):
    b = base
    A(f"v_lshrrev_b32 v{b+4}, 3, v0")
    A(f"v_and_b32 v{b+6}, 7, v0")
    A(f"s_lshl_b32 s{sTMP}, s{sWAVE}, 5")
    A(f"v_add_u32 v{b+4}, s{sTMP}, v{b+4}")
    A(f"v_bfe_u32 v{b}, v0, 4, 1")
    A(f"v_lshl_or_b32 v{b}, v{b}, 3, v{b+6}")
    A(f"s_lshl_b32 s{sTMP}, s{sWAVE}, 1")
    A(f"s_and_b32 s{sTMP}, s{sTMP}, 7")
    A(f"v_xor_b32 v{b}, s{sTMP}, v{b}")
    A(f"v_lshlrev_b32 v{b}, 4, v{b}")
    A(f"v_lshl_add_u32 v{b}, v{b+4}, 8, v{b}")
    A(f"v_xor_b32 v{b+1}, 0x80, v{b}")
    A(f"v_xor_b32 v{b+2}, 0x10, v{b}")
    A(f"v_xor_b32 v{b+3}, 0x90, v{b}")
    A(f"v_lshlrev_b32 v{b+4}, 9, v{b+4}")
    A(f"v_lshl_add_u32 v{b+4}, v{b+6}, 4, v{b+4}")
    A(f"s_lshl_b32 s{sTMP}, s{sNT}, 7")
    A(f"v_add_u32 v{b+4}, s{sTMP}, v{b+4}")
    A(f"v_add_u32 v{b+5}, 0x2000, v{b+4}")
    A(f"v_lshlrev_b32 v{b+6}, 5, v{b+6}")
    A(f"v_add_u32 v{b+6}, {MISC+64}, v{b+6}")
FA = 244
Y = 112
def y_reads():
    for n in range(4):
        for h in range(2):
            A(f"ds_read_b128 v[{Y+8*n+4*h}:{Y+8*n+4*h+3}], v{FA + h + 2*(n >> 1)} offset:{n*2048}")

stamp(0)
A("s_load_dwordx4 s[32:35], s[0:1], 0")
A("s_load_dwordx4 s[40:43], s[0:1], 40")
A("s_load_dwordx2 s[44:45], s[0:1], 56")
A("s_load_dwordx4 s[36:39], s[0:1], 24")
A("s_cmp_ge_u32 s2, 256")
A("s_cbranch_scc1 L_end")
A(f"v_readfirstlane_b32 s{sWAVE}, v0")
A("v_and_b32 v0, 63, v0")
A(f"s_and_b32 s{sT}, s2, 7")
A(f"s_lshl_b32 s{sT}, s{sT}, 3")
A(f"s_lshr_b32 s{sTMP}, s2, 5")
A(f"s_add_u32 s{sT}, s{sT}, s{sTMP}")
A(f"s_bfe_u32 s{sNT}, s2, 0x20003")
A(f"s_lshr_b32 s{sB}, s{sT}, 5")
A(f"s_and_b32 s{sT}, s{sT}, 31")
A(f"s_mov_b32 s{sMASK16}, 0xffff0000")
A(f"s_cmp_lt_u32 s{sWAVE}, 256")
A("s_cbranch_scc1 L_compute")

cur[0] = "lpro"
vXG, vWG, vLIN, vLIN2, vU0, vFL, vZ, vTC = 1, 3, 4, 5, 6, 8, 9, 15
U0, U1, TT, FLG, NON, JUNK, GAM, VV = 16, 32, 48, 56, 64, 66, 68, 80
sTS, sTB = 24, 68
A(f"s_bfe_u32 s{sWAVE}, s{sWAVE}, 0x20006")
A(f"s_mul_i32 s{sXB}, s{sB}, {16000*512}")
A(f"s_mul_i32 s{sTMP}, s{sT}, {500*512}")
A(f"s_add_u32 s{sXB}, s{sXB}, s{sTMP}")
A("v_lshrrev_b32 v10, 3, v0")
A("v_and_b32 v11, 7, v0")
A("v_lshlrev_b32 v12, 4, v11")
A(f"v_lshl_add_u32 v{vXG}, v10, 11, v12")
A(f"s_lshl_b32 s{sXW}, s{sWAVE}, 16")
A(f"s_add_u32 s{sXO}, s{sXB}, s{sXW}")
A(f"s_mul_i32 s{sMX}, s{sWAVE}, {4*XB}")
A("v_bfe_u32 v13, v0, 4, 1")
A(f"s_and_b32 s{sTMP}, s{sWAVE}, 1")
A(f"s_lshl_b32 s{sTMP}, s{sTMP}, 1")
A(f"v_or_b32 v13, s{sTMP}, v13")
A("v_lshlrev_b32 v13, 5, v13")
A("v_xor_b32 v13, v13, v12")
A("v_lshl_add_u32 v13, v10, 9, v13")
A(f"s_lshl_b32 s{sTMP}, s{sNT}, 7")
A(f"s_lshl_b32 s{sM0}, s{sWAVE}, 12")
A(f"s_add_u32 s{sTMP}, s{sTMP}, s{sM0}")
A(f"v_add_u32 v{vWG}, s{sTMP}, v13")
A(f"s_lshl_b32 s{sM0}, s{sWAVE}, 10")
A(f"s_mov_b32 s{sWO}, 0")
A(f"v_mov_b32 v{vZ}, 0")
A(f"s_lshl_b32 s{sTMP}, s{sWAVE}, 4")
A(f"s_lshl_b32 s{sCNT}, s{sNT}, 6")
A(f"s_add_u32 s{sTMP}, s{sTMP}, s{sCNT}")
A(f"v_add_u32 v14, s{sTMP}, v0")
A(f"v_lshlrev_b32 v{vTC}, 10, v14")
A("s_waitcnt lgkmcnt(0)")
pstamp(1)
srd(sX, 32, X_BYTES)
srd(sW, 34, W_BYTES)

TAPS = {("G00", 0): [0, 4, 8, 12], ("G11", 0): [2, 6, 10, 14], ("G00", 1): [1, 5, 9, 13], ("G11", 1): [3, 7, 11]}
def dw(lds, so, tap, hh):
    return [f"s_add_u32 m0, s{sM0}, {lds}",
            f"s_add_u32 s{sTMP}, s{so}, {tap*131072 + hh*16384}",
            f"buffer_load_dwordx4 v{vWG}, s[{sW}:{sW+3}], s{sTMP} offen" + (" nt" if (P["wnt"] == 2 or (P["wnt"] == 1 and cur[0] == "lpro")) else "") + " lds"]
def dma_w(slot, taps, ss=(0, 1, 2, 3), so=None):
    return [dw(slot*SLOT + WOFF + tile(hh, s), so or sWO, taps[s], hh) for hh in (0, 1) for s in ss if s < len(taps)]
def dma_wp(par, slot, spare0=False):
    r = []
    for hh in (0, 1):
        for s in range(4):
            dst = SPARE if (spare0 and hh == 0 and s == 3) else slot*SLOT + WOFF + tile(hh, s)
            r.append([f"s_add_u32 m0, s{sM0}, {dst}",
                      f"s_add_u32 s{sTMP}, s{sPO}, {WP_OFF + (par*4+s)*131072 + hh*16384}",
                      f"buffer_load_dwordx4 v{vWG}, s[{sWS}:{sWS+3}], s{sTMP} offen sc1 lds"])
    return r
def dma_x(slot, phi):
    nt_ = " nt" if (P["xnt"] == 2 or (P["xnt"] == 1 and cur[0] == "lpro")) else ""
    return [[f"s_add_u32 m0, s{sMX}, {slot*SLOT + j*XB}",
             f"s_add_u32 s{sTMP}, s{sXO}, {j*16384 + phi*512}",
             f"buffer_load_dwordx4 v{vXG}, s[{sX}:{sX+3}], s{sTMP} offen{nt_} lds"] for j in range(4)]
tl_n = [0]
def tail_g(slot, phi):
    k = tl_n[0]; tl_n[0] += 1
    return [f"s_cmp_lg_u32 s{sWAVE}, 0", f"s_cbranch_scc1 L_nt{k}",
            f"s_mov_b32 m0, {slot*SLOT + 16*XB}",
            f"s_add_u32 s{sTMP}, s{sXO}, {(512 + phi)*512}",
            "s_mov_b64 exec, 0xff",
            f"buffer_load_dwordx4 v{vXG}, s[{sX}:{sX+3}], s{sTMP} offen lds",
            "s_mov_b64 exec, -1", f"L_nt{k}:"]
def touch_g(dd, par, half="ab", const=False):
    if const:
        r = [f"s_add_u32 s{sTMP}, s{sXB}, {dd*128 + par*512}"]
    else:
        r = [f"s_cmp_lt_u32 s{sD}, {4 - dd}", f"s_cselect_b32 s{sCNT}, s{sXB}, {OOB}",
             f"s_lshl_b32 s{sTMP}, s{sD}, 7", f"s_add_u32 s{sTMP}, s{sTMP}, s{sCNT}", f"s_add_u32 s{sTMP}, s{sTMP}, {dd*128 + par*512}"]
    r.append(f"s_mov_b64 exec, {dict(ab=0xffff, a=0x5555, b=0xaaaa)[half]:#x}")
    r += [f"buffer_load_dword v{JUNK}, v{vTC}, s[{sX}:{sX+3}], s{sTMP} offen" + (" nt" if P["tnt"] else ""), "s_mov_b64 exec, -1"]
    return r
def emit_groups(gs):
    if P["nodma"]: return
    for g in gs:
        for s in g: A(s)
def mix(valu, gs):
    if P["nodma"]: gs = []
    n = len(gs)
    if not valu:
        emit_groups(gs); return
    pos = [(k * len(valu)) // n for k in range(n)] if n else []
    gi = 0
    for i, v in enumerate(valu):
        while gi < n and pos[gi] == i:
            for s in gs[gi]: A(s)
            gi += 1
        A(v)
def rd_u0(): return [f"ds_read_b128 v[{U0+4*j}:{U0+4*j+3}], v{vU0} offset:{j*XB}" for j in range(4)]
def rd_u1(lin, off): return [f"ds_read_b128 v[{U1+4*j}:{U1+4*j+3}], v{lin} offset:{off + j*XB}" for j in range(4)]
def wr_v(lin, off): return [f"ds_write_b128 v{lin}, v[{VV+4*j}:{VV+4*j+3}] offset:{off + j*XB}" for j in range(4)]
def vadd(js):
    r = []
    for j in js: r += addbf_list(VV+4*j, U1+4*j, U0+4*j, TT)
    return r
def hi(lst):
    if P["dsprio"]: A(f"s_setprio {P['dsprio']}")
    for d in lst: A(d)
    if P["dsprio"]: A(f"s_setprio {P['lprio']}")
def lsetup():
    A("v_lshlrev_b32 v13, 4, v0")
    A(f"v_add_u32 v{vLIN}, s{sMX}, v13")
    A(f"v_add_u32 v{vLIN2}, {2*SLOT}, v{vLIN}")
    A("v_cmp_eq_u32 vcc, 7, v10")
    A(f"v_add_u32 v{vU0}, 128, v{vLIN}")
    A(f"v_add_u32 v12, 160, v{vLIN}")
    A(f"v_cndmask_b32 v{vU0}, v{vU0}, v12, vcc")
    A(f"v_lshlrev_b32 v{vFL}, 3, v0")
    srd(sWS, 44, WS_BYTES)
    out_srd()
    granule_off()
    A(f"s_mov_b32 s{sWN}, 32768")
    A(f"s_mov_b32 s{sD}, 0")
    A(f"s_mov_b32 s{sPO}, 0")
    A(f"s_lshl_b32 s{sFO}, s{sWAVE}, 9")
    A(f"s_add_u32 s{sFO}, s{sFO}, {FL_OFF}")
    if P["lprio"]: A(f"s_setprio {P['lprio']}")
STG = {0: None, 1: None, 2: None, 3: None, 4: None}
w_ = dma_w(0, TAPS[("G00", 0)]); x_ = dma_x(0, 0)
STG[0] = [tail_g(0, 0) + x_[0]] + x_[1:2] + w_[:4] + x_[2:] + w_[4:]
if P["x1st"]: STG[0] = [tail_g(0, 0) + x_[0]] + x_[1:] + w_
STG[1] = dma_x(1, 2) + dma_w(1, TAPS[("G11", 0)])
x_ = dma_x(2, 1)
STG[2] = [tail_g(2, 1) + x_[0]] + x_[1:] + dma_w(2, TAPS[("G00", 1)])
STG[3] = dma_x(0, 3) + dma_w(0, TAPS[("G11", 1)]) + dma_w(0, TAPS[("G11", 0)], ss=(3,), so=sWN)
STG[4] = dma_wp(0, 1) + [dw(SPARE + hh*4096, sWN, TAPS[("G00", 0)][3], hh) for hh in (0, 1)]
issued = []; period = 0; seen = {k: 0 for k in STG}; mixv = []; pendg = []
def flush():
    global mixv, pendg
    mix(mixv, [g for _, g in pendg])
    if not P["nodma"]: issued.extend(k for k, _ in pendg)
    mixv = []; pendg = []
def wait_for(keys, extra=""):
    flush()
    last = max(i for i, k in enumerate(issued) if k in keys)
    A(f"s_waitcnt vmcnt({len(issued) - 1 - last}){extra}")
def flag_load(so): A(f"buffer_load_dwordx2 v[{FLG}:{FLG+1}], v{vFL}, s[{sWS}:{sWS+3}], {so} offen sc0 sc1")
def check_flags(name, so):
    A(f"s_mov_b32 s{sCNT}, {SPIN}")
    LBL(name)
    A(f"v_cmp_eq_u64 vcc, s[{sN0}:{sN1}], v[{FLG}:{FLG+1}]")
    A("s_cmp_eq_u64 vcc, -1")
    A(f"s_cbranch_scc1 {name}_ok")
    A(f"s_sub_u32 s{sCNT}, s{sCNT}, 1")
    A(f"s_cbranch_scc1 {name}_ok")
    flag_load(so)
    A("s_waitcnt vmcnt(0)")
    A(f"s_branch {name}")
    LBL(name + "_ok")
def nonce_load(): A(f"buffer_load_dwordx2 v[{NON}:{NON+1}], v{vZ}, s[{sDBG}:{sDBG+3}], 0 offen sc0 sc1")
if P["nodma"]: issued.extend([0, 1, 2, 3, 4])
for tok in P["pro"].split("."):
    if tok[0] == "D":
        f = tok[1:].split(":"); st = int(f[0]); gs = STG[st]
        lo, hi_ = (int(f[1]), int(f[2])) if len(f) > 1 else (seen[st], len(gs))
        assert lo == seen[st]; seen[st] = min(hi_, len(gs))
        assert st < 3 or period >= st - 1
        pendg += [(st, g) for g in gs[lo:hi_]]
        continue
    if tok[0] == "T":
        c = int(tok[1])
        if P["touch"]: pendg.append(("t", touch_g(c >> 1, c & 1, tok[2:], True)))
        continue
    flush()
    if tok[0] == "S":
        pstamp(2); lsetup()
    elif tok[0] == "Z":
        k = int(tok[1]); A(f"s_memrealtime s[{sST+2*k}:{sST+2*k+1}]")
    elif tok[0] == "N":
        srd(sDBG, 42, 256); nonce_load(); issued.append("n")
    elif tok[0] == "U":
        k4 = [i for i, k in enumerate(issued) if k == 1][3] if not P["nodma"] else len(issued) - 1
        A(f"s_waitcnt vmcnt({len(issued) - 1 - k4})")
        hi(rd_u1(vLIN, SLOT))
        A("s_waitcnt lgkmcnt(0)")
    elif tok[0] == "V":
        mixv = vadd(range(int(tok[1]), int(tok[2])))
    elif tok[0] == "F":
        assert period == (2 if P["lateack"] else 1)
        wait_for(["n"])
        A(f"s_mov_b32 s{sCNT}, {SPIN}")
        LBL("L_cn")
        A(f"v_readfirstlane_b32 s{sN0}, v{NON}")
        A(f"v_readfirstlane_b32 s{sN1}, v{NON+1}")
        A(f"s_cmp_lg_u32 s{sN0}, 0")
        A("s_cbranch_scc1 L_cn_ok")
        A(f"s_sub_u32 s{sCNT}, s{sCNT}, 1")
        A("s_cbranch_scc1 L_cn_ok")
        nonce_load()
        A("s_waitcnt vmcnt(0)")
        A("s_branch L_cn")
        LBL("L_cn_ok")
        A(f"s_lshl_b32 s{sTMP}, s2, 3")
        A(f"s_add_u32 s{sTMP}, s{sTMP}, {FL_OFF}")
        A(f"s_cmp_eq_u32 s{sWAVE}, 0")
        A(f"s_cselect_b32 s{sTMP}, s{sTMP}, {OOB}")
        A("s_mov_b64 exec, 1")
        A(f"buffer_store_dwordx2 v[{NON}:{NON+1}], v{vZ}, s[{sWS}:{sWS+3}], s{sTMP} offen sc0 sc1")
        A(f"v_mov_b32 v12, {MISC}")
        A(f"ds_write_b64 v12, v[{NON}:{NON+1}]")
        A("s_mov_b64 exec, -1")
        issued.append("f")
        pstamp(7)
    elif tok[0] == "G":
        A(f"s_mov_b32 s{sTA}, {FL_OFF}"); flag_load(f"s{sTA}"); issued.append("g")
    elif tok[0] == "C":
        wait_for(["g"])
        A(f"s_mov_b32 s{sTA}, {FL_OFF}")
        check_flags("L_spin0", f"s{sTA}")
    elif tok[0] == "W":
        assert period == 3
        hi(wr_v(vLIN, SLOT)[:P["wsplit"]] + rd_u0())
    elif tok[0] == "w":
        assert period == 3
        for d in wr_v(vLIN, SLOT)[:P["wsplit"]]: A(d)
    elif tok[0] == "r":
        assert period == 3
        for d in rd_u0(): A(d)
    elif tok[0] == "B":
        assert seen[period] == len(STG[period])
        if period == 0: pstamp(3)
        wait_for([period], " lgkmcnt(0)" if period >= 2 else "")
        if period == 0: pstamp(4)
        if period == 1:
            if "U" not in P["pro"].split("."):
                for d in rd_u1(vLIN, SLOT): A(d)
            A("s_waitcnt lgkmcnt(0)")
            A(f"v_add_u32 v{vU0}, {2*SLOT}, v{vU0}")
        if period == 3:
            assert seen[4] == 10
            A("s_branch L_join")
            break
        A("s_barrier")
        if period < 2: pstamp(5 + period)
        period += 1
        CM(f"P({period-1})")
        if period == 1: pend_u0 = True
    if tok[0] in "FB" and period == 1 and pend_u0 and (tok[0] == "F" or P["lateack"]):
        hi(rd_u0()); pend_u0 = False
n_after_wp = len(issued) - 1 - max(i for i, k in enumerate(issued) if k == 4) + 2

cur[0] = "lloop"
lb_n = [0]
def lbar():
    k = lb_n[0]; lb_n[0] += 1
    if P["lst"] >= 0:
        A(f"s_cmp_lg_u32 s{sD}, {P['lst'] + 1}")
        A(f"s_cbranch_scc1 L_nb{k}")
        A(f"s_memtime s[{76+4*k}:{77+4*k}]")
        A("s_barrier")
        A(f"s_memtime s[{78+4*k}:{79+4*k}]")
        A(f"s_branch L_nc{k}")
        LBL(f"L_nb{k}")
        A("s_barrier")
        LBL(f"L_nc{k}")
    else:
        A("s_barrier")
nt = 1 if P["touch"] else 0
assert P["nodma"] or n_after_wp >= 2 + nt, n_after_wp
assert P["nochk"] or P["vsplit"] <= P["wsplit"] <= P["vsplit"] + P["v1"] <= 4
LBL("L_lloop")
for par in (1, 0):
    npar = 1 - par
    CM(f"P(3c-1) par={par}")
    if par == 1:
        A(f"s_cmp_eq_u32 s{sD}, 3")
        A("s_cbranch_scc1 L_last")
    if not P["wend"]: hi(wr_v(vLIN, SLOT)[:P["wsplit"]])
    if P["u0first"]: hi(rd_u0())
    early = [dw((SPARE if par == 1 else 2*SLOT + WOFF + tile(0, 3)) + hh*4096, sWN if par else sWO, TAPS[("G00", npar)][3], hh) for hh in (0, 1)]
    mix(vadd(range(P["vsplit"] + P["v1"], 4)), dma_wp(npar, 1) + early)
    if not P["u0first"]:
        for d in rd_u0(): A(d)
    if nt: emit_groups([touch_g(1, par)])
    if P["wend"] == 1: hi(wr_v(vLIN, SLOT)[:P["wsplit"]])
    if P["wend"] == 2:
        for d in wr_v(vLIN, SLOT)[:P["wsplit"]]: A(d)
    A(f"s_waitcnt vmcnt({10 + nt})")
    if par == 1: LBL("L_join")
    for d in rd_u1(vLIN, 0): A(d)
    A(f"s_mov_b32 s{sPO}, s{sWO}")
    if par == 1:
        A(f"s_add_u32 s{sD}, s{sD}, 1")
        A(f"s_mov_b32 s{sWO}, s{sWN}")
        A(f"s_add_u32 s{sWN}, s{sWN}, 32768")
        A(f"s_cmp_eq_u32 s{sD}, 3")
        A(f"s_cselect_b32 s{sWN}, {OOB}, s{sWN}")
        A(f"s_add_u32 s{sXO}, s{sXO}, 128")
    A("s_waitcnt lgkmcnt(0)")
    lbar()
    CM(f"P(3c) par={par}")
    if not P["wend2"]: hi(wr_v(vLIN, SLOT)[P["wsplit"]:])
    x_ = dma_x(2, npar)
    gs = [tail_g(2, npar) + x_[0]] + x_[1:] + dma_w(2, TAPS[("G00", npar)], ss=(0, 1, 2))
    mix(vadd(range(P["vsplit"])), gs)
    if P["wend2"] == 1: hi(wr_v(vLIN, SLOT)[P["wsplit"]:])
    if P["wend2"] == 2:
        for d in wr_v(vLIN, SLOT)[P["wsplit"]:]: A(d)
    A(f"s_waitcnt vmcnt({12 + nt}) lgkmcnt(0)")
    lbar()
    CM(f"P(3c+1) par={par}")
    gs = dma_x(0, 2 + npar) + dma_w(0, TAPS[("G11", npar)], ss=(0, 1, 2))
    if par == 0: gs += dma_w(0, TAPS[("G11", 0)], ss=(3,), so=sWN)
    if par == 1:
        A(f"s_cmp_lg_u32 s{sD}, 1")
        A("s_cbranch_scc1 L_nf2")
        flag_load(f"s{sFO}")
        LBL("L_nf2")
    mix(vadd(range(P["vsplit"], P["vsplit"] + P["v1"])), gs)
    A(f"s_waitcnt vmcnt({len(gs)})")
    if par == 1:
        A(f"s_cmp_lg_u32 s{sD}, 1")
        A("s_cbranch_scc1 L_spin1_ok")
        check_flags("L_spin1", f"s{sFO}")
    lbar()
A("s_branch L_lloop")

cur[0] = "llast"
LBL("L_last")
CM("P(20)")
hi(wr_v(vLIN, SLOT)[:P["wsplit"]])
mix(vadd(range(P["vsplit"] + P["v1"], 4)), dma_wp(0, 1))
for d in rd_u0(): A(d)
srd(sGA, 36, 512)
srd(sBE, 38, 512)
A("s_waitcnt vmcnt(8)")
for d in rd_u1(vLIN, 0): A(d)
A("s_waitcnt lgkmcnt(0)")
A("s_barrier")
CM("P(21)")
gs = dma_wp(1, 2, True)
hi(wr_v(vLIN, SLOT)[P["wsplit"]:])
mix(vadd(range(2)), gs[:5])
A("s_waitcnt lgkmcnt(0)")
mix(vadd(range(2, 3)), gs[5:])
A("s_waitcnt vmcnt(8)")
A("s_barrier")
CM("P(22)")
wv = wr_v(vLIN2, 0)
for t in vadd(range(3, 4)): A(t)
for d in wv: A(d)
A("v_and_b32 v10, 15, v0")
A(f"s_lshl_b32 s{sTMP}, s{sNT}, 2")
A(f"s_add_u32 s{sTMP}, s{sTMP}, s{sWAVE}")
A(f"s_lshl_b32 s{sTMP}, s{sTMP}, 5")
A("v_lshlrev_b32 v14, 1, v10")
A(f"buffer_load_ushort v{GAM}, v14, s[{sGA}:{sGA+3}], s{sTMP} offen")
A(f"buffer_load_ushort v{GAM+1}, v14, s[{sBE}:{sBE+3}], s{sTMP} offen")
A("s_waitcnt vmcnt(2) lgkmcnt(0)")
A("s_barrier")
A("v_lshrrev_b32 v11, 4, v0")
A("v_lshlrev_b32 v12, 4, v10")
A("v_lshl_add_u32 v12, v11, 10, v12")
A(f"s_lshl_b32 s{sTMP}, s{sWAVE}, 6")
A(f"s_add_u32 s{sTMP}, s{sTMP}, {MISC+64}")
A(f"v_lshl_add_u32 v10, v10, 2, s{sTMP}")
if P["lprio"]: A("s_setprio 0")
A(f"s_add_u32 s{sWAVE}, s{sWAVE}, 4")
final_addr(FA)
A("s_waitcnt vmcnt(0)")
A(f"v_lshlrev_b32 v{GAM}, 16, v{GAM}")
A(f"v_lshlrev_b32 v{GAM+1}, 16, v{GAM+1}")
k0 = -2.0 * math.sqrt(2.0 / math.pi) * math.log2(math.e)
k1 = k0 * 0.044715
gam3 = -((-k1) ** (1.0 / 3.0))
if P["g5"]:
    A(f"v_mul_f32 v{GAM}, {f32(gam3)}, v{GAM}")
    A(f"v_mul_f32 v{GAM+1}, {f32(gam3)}, v{GAM+1}")
if not P["peel"]: A("s_barrier")
A("s_barrier")
stamp(1)
PG = 16
A(f"s_mov_b32 s{sCNT}, {SPIN}")
y_reads()
if P["spoll"]:
    for i in range(8):
        A(f"s_add_u32 s{84+i}, s{sGR}, {i*4096}")
    def pl(i): A(f"buffer_load_dwordx4 v[{PG+4*i}:{PG+4*i+3}], v12, s[{sWS}:{sWS+3}], s{84+i} offen sc0 sc1")
    for i in range(8): pl(i)
    for i in range(8):
        A(f"s_waitcnt vmcnt({7-i})")
        LBL(f"L_pc{i}")
        A(f"v_cmp_eq_u64 vcc, s[{sN0}:{sN1}], v[{PG+4*i+2}:{PG+4*i+3}]")
        A("s_cmp_eq_u64 vcc, -1")
        A(f"s_cbranch_scc0 L_pr{i}")
        LBL(f"L_pd{i}")
else:
    LBL("L_poll")
    for i in range(8):
        so = f"s{sGR}" if i == 0 else f"s{sTMP}"
        if i: A(f"s_add_u32 s{sTMP}, s{sGR}, {i*4096}")
        A(f"buffer_load_dwordx4 v[{PG+4*i}:{PG+4*i+3}], v12, s[{sWS}:{sWS+3}], {so} offen sc0 sc1")
    A(f"s_mov_b64 s[{sTA}:{sTA+1}], -1")
    for i in range(8):
        A(f"s_waitcnt vmcnt({7-i})")
        A(f"v_cmp_eq_u64 vcc, s[{sN0}:{sN1}], v[{PG+4*i+2}:{PG+4*i+3}]")
        A(f"s_and_b64 s[{sTA}:{sTA+1}], s[{sTA}:{sTA+1}], vcc")
    A(f"s_sub_u32 s{sCNT}, s{sCNT}, 1")
    A("s_cbranch_scc1 L_poll_ok")
    A(f"s_cmp_eq_u64 s[{sTA}:{sTA+1}], -1")
    A("s_cbranch_scc0 L_poll")
LBL("L_poll_ok")
stamp(2)
for st in (4, 2, 1):
    for i in range(st):
        pk("add", PG+4*i, PG+4*i, PG+4*(i+st))
for sw in ("v_permlane32_swap_b32", "v_permlane16_swap_b32"):
    A(f"v_mov_b32 v{PG+2}, v{PG}")
    A(f"v_mov_b32 v{PG+3}, v{PG+1}")
    A("s_nop 1")
    A(f"{sw} v{PG}, v{PG+2}")
    A(f"{sw} v{PG+1}, v{PG+3}")
    A("s_nop 1")
    pk("add", PG, PG, PG+2)
A(f"v_mul_f32 v{PG}, {f32(1.0/7993)}, v{PG}")
A(f"v_mul_f32 v{PG+1}, {f32(1.0/7993)}, v{PG+1}")
A(f"v_fma_f32 v{PG+1}, -v{PG}, v{PG}, v{PG+1}")
A(f"v_max_f32 v{PG+1}, 0, v{PG+1}")
A(f"v_add_f32 v{PG+1}, {f32(1e-5)}, v{PG+1}")
A(f"v_rsq_f32 v{PG+1}, v{PG+1}")
A("s_nop 0")
A(f"v_mul_f32 v{PG+1}, v{PG+1}, v{GAM}")
A(f"ds_write_b32 v10, v{PG+1}")
A(f"v_fma_f32 v{PG}, -v{PG}, v{PG+1}, v{GAM+1}")
A(f"ds_write_b32 v10, v{PG} offset:256")

if P["spoll"]:
    cur[0] = "cepi"
    for i in range(8):
        LBL(f"L_pr{i}")
        A(f"s_sub_u32 s{sCNT}, s{sCNT}, 1")
        A(f"s_cbranch_scc1 L_pd{i}")
        pl(i)
        for k in range(i + 1, min(i + 1 + P["spoll"] - 1, 8)): pl(k)
        A("s_waitcnt vmcnt(0)")
        A(f"s_branch L_pc{i}")
    tail_cepi = SEC["cepi"]; SEC["cepi"] = []
cur[0] = "final"
LBL("L_final")
k0 = -2.0 * math.sqrt(2.0 / math.pi) * math.log2(math.e)
k1 = k0 * 0.044715
A(f"s_mov_b32 s{sK+2}, {f32(gam3 if P['g5'] else k1)}")
A(f"s_mov_b32 s{sK+3}, {f32(gam3 if P['g5'] else k1)}")
A(f"s_mov_b32 s{sK+4}, 4096")
A(f"v_mov_b32 v56, {f32(k0/gam3 if P['g5'] else k0)}")
A(f"v_mov_b32 v57, {f32(k0/gam3 if P['g5'] else k0)}")
A("s_waitcnt lgkmcnt(0)")
A("s_barrier")
stamp(4)
CA, CC = 16, 24
A(f"ds_read_b128 v[{CA}:{CA+3}], v{FA+6}")
A(f"ds_read_b128 v[{CC}:{CC+3}], v{FA+6} offset:256")
A(f"ds_read_b128 v[{CA+4}:{CA+7}], v{FA+6} offset:16")
A(f"ds_read_b128 v[{CC+4}:{CC+7}], v{FA+6} offset:272")
Z, U = 32, 40
for n in range(4):
    y = Y + 8 * n
    for h in range(0, 8, 2):
        if n == 0 and h in (0, 4): A(f"s_waitcnt lgkmcnt({2 if h == 0 else 0})")
        pk("fma", y+h, y+h, CA+h, c=CC+h)
    if P["g5"]:
        for h in range(0, 8, 2): pk("fma", U+h, y+h, y+h, c=56)
    else:
        for h in range(0, 8, 2): pk("mul", U+h, y+h, y+h)
        for h in range(0, 8, 2): A(f"v_pk_fma_f32 v[{U+h}:{U+h+1}], v[{U+h}:{U+h+1}], s[{sK+2}:{sK+3}], v[56:57]")
    for h in range(0, 8, 2): pk("mul", U+h, U+h, y+h)
    for h in range(8): A(f"v_exp_f32 v{U+h}, v{U+h}")
    for h in range(0, 8, 2):
        if P["g5"]: A(f"v_pk_fma_f32 v[{U+h}:{U+h+1}], v[{U+h}:{U+h+1}], s[{sK+2}:{sK+3}], s[{sK+2}:{sK+3}]")
        else: A(f"v_pk_add_f32 v[{U+h}:{U+h+1}], v[{U+h}:{U+h+1}], 1.0 op_sel_hi:[1,0]")
    for h in range(8): A(f"v_rcp_f32 v{U+h}, v{U+h}")
    for h in range(0, 8, 2): pk("mul", y+h, y+h, U+h)
    o = Z + 4 * (n & 1)
    for h in range(4): A(f"v_cvt_pk_bf16_f32 v{o+h}, v{y+2*h}, v{y+2*h+1}")
    A(f"buffer_store_dwordx4 v[{o}:{o+3}], v{FA+4 if n < 2 else FA+5}, s[{sO}:{sO+3}], {'0' if n % 2 == 0 else 's'+str(sK+4)} offen" + ["", " nt", " sc1", " sc0 sc1", " sc1 nt"][P["stf"]])
if P["stamps"]:
    stamp(5)
    A("s_waitcnt vmcnt(0)")
    stamp(6)
    A("s_waitcnt lgkmcnt(0)")
    A(f"s_mov_b32 s{sWS+2}, 0x1000000")
    A(f"s_lshl_b32 s{sTMP}, s2, 3")
    A(f"s_add_u32 s{sTMP}, s{sTMP}, s{sWAVE}")
    A(f"s_lshl_b32 s{sTMP}, s{sTMP}, 5")
    A(f"s_add_u32 s{sTMP}, s{sTMP}, 0x200000")
    A("v_mov_b32 v1, 0")
    if plain and not P["pst"]: A("s_sub_u32 s90, s94, s92")
    for k in range(8): A(f"v_mov_b32 v{2+k}, s{sST+(k if P['cst'] else 2*k)}")
    A("s_mov_b64 exec, 1")
    if P["sst"] >= 0:
        for k in range(12): A(f"v_mov_b32 v{2+k}, v{MS+k}") if False else None
    if P["lst"] >= 0 or P["cst"] or P["sst"] >= 0:
        if P["sst"] >= 0:
            for k in range(12): A(f"v_readlane_b32 s{76+k}, v255, {k}")
            A("s_nop 1")
            for k in range(12): A(f"v_mov_b32 v{2+k}, s{76+k}")
        else:
            for k in range(4): A(f"v_mov_b32 v{10+k}, s{sST+8+k if P['cst'] else sST+16+2*k}")
        A(f"s_add_u32 s{sCNT}, s{sTMP}, 0x100000")
        A(f"buffer_store_dwordx4 v[10:13], v1, s[{sWS}:{sWS+3}], s{sCNT} offen")
    A(f"buffer_store_dwordx4 v[2:5], v1, s[{sWS}:{sWS+3}], s{sTMP} offen")
    A(f"buffer_store_dwordx4 v[6:9], v1, s[{sWS}:{sWS+3}], s{sTMP} offen offset:16")
if P["dbgt"]:
    A(f"s_cmp_lg_u32 s{sWAVE}, 0")
    A("s_cbranch_scc1 L_end")
    A("s_cmp_eq_u32 s2, 0")
    A(f"s_cselect_b32 s{sTMP}, 8, 36")
    A("s_cbranch_scc1 L_dd")
    A("s_cmp_lg_u32 s2, 77")
    A("s_cbranch_scc1 L_end")
    LBL("L_dd")
    for k in range(1, 7): A(f"v_subrev_u32 v{2+k}, v2, v{2+k}")
    A(f"buffer_store_dwordx4 v[2:5], v1, s[{sDBG}:{sDBG+3}], s{sTMP} offen")
    A(f"buffer_store_dwordx3 v[6:8], v1, s[{sDBG}:{sDBG+3}], s{sTMP} offen offset:16")
LBL("L_end")
A("s_endpgm")

cur[0] = "cpro"
LBL("L_compute")
G00, G11, GS = 16, 48, 80
SETS = [112, 172]
def vXR(role): return 1 + 2 * role
def vWR(role): return 2 + 2 * role
vW3, vW3C, vGA, vYW = 7, 8, 9, 10
T = 232
CWA, CWB = 112, 116
A(f"s_lshr_b32 s{sWAVE}, s{sWAVE}, 6")
A(f"s_memrealtime s[{sN0}:{sN1}]")
A(f"v_lshrrev_b32 v{T}, 5, v0")
A(f"s_lshl_b32 s{sTMP}, s{sWAVE}, 1")
A(f"v_add_u32 v{T}, s{sTMP}, v{T}")
A(f"v_and_b32 v{T+1}, 31, v0")
A(f"v_lshlrev_b32 v{T+1}, 4, v{T+1}")
A(f"s_lshl_b32 s{sTMP}, s2, 9")
A(f"v_add_u32 v{T+1}, s{sTMP}, v{T+1}")
A(f"v_lshl_add_u32 v{T+2}, v{T}, 17, v{T+1}")
A(f"v_and_b32 v{T}, 3, v{T}")
A(f"v_lshl_add_u32 v{T+1}, v{T}, 19, v{T+1}")
A(f"s_lshr_b32 s{sWO}, s{sWAVE}, 1")
A(f"s_lshl_b32 s{sWO}, s{sWO}, 17")
A(f"s_add_u32 s{sWN}, s{sWO}, {2*131072}")
A("s_waitcnt lgkmcnt(0)")
srd(sW, 34, W_BYTES)
if P["pq"]:
    A(f"s_cmp_eq_u32 s{sWAVE}, 0")
    A(f"s_cselect_b32 s{sW+2}, s{sW+2}, 0")
A(f"buffer_load_dwordx4 v[{CWA}:{CWA+3}], v{T+1}, s[{sW}:{sW+3}], s{sWO} offen" + (" nt" if P["pnt"] else ""))
A(f"buffer_load_dwordx4 v[{CWB}:{CWB+3}], v{T+1}, s[{sW}:{sW+3}], s{sWN} offen" + (" nt" if P["pnt"] else ""))
srd(sDBG, 42, 256)
A(f"s_or_b32 s{sTMP}, s2, s{sWAVE}")
A(f"s_cmp_lg_u32 s{sTMP}, 0")
A("s_cbranch_scc1 L_nononce")
A(f"s_or_b32 s{sN0}, s{sN0}, 1")
A(f"v_mov_b32 v{T+3}, 0")
A(f"v_mov_b32 v{T+6}, s{sN0}")
A(f"v_mov_b32 v{T+7}, s{sN1}")
A("s_mov_b64 exec, 1")
A(f"buffer_store_dwordx2 v[{T+6}:{T+7}], v{T+3}, s[{sDBG}:{sDBG+3}], 0 offen sc0 sc1")
A("s_mov_b64 exec, -1")
LBL("L_nononce")
if P["cpf"]:
    A(f"s_cmp_lg_u32 s{sWAVE}, 1")
    A("s_cbranch_scc1 L_nocpf")
    A("s_getpc_b64 s[74:75]")
    LBL("L_pc")
    A(f"s_lshr_b32 s{sTMP}, s2, 3")
    A(f"s_lshl_b32 s{sTMP}, s{sTMP}, 9")
    A(f"s_add_u32 s74, s74, s{sTMP}")
    A("s_addc_u32 s75, s75, 0")
    A(f"s_sub_u32 s74, s74, L_pc-{KN}")
    A("s_subb_u32 s75, s75, 0")
    A(f"v_lshlrev_b32 v{T+4}, 7, v0")
    A("s_mov_b64 exec, 15")
    A(f"global_load_dword v{T+5}, v{T+4}, s[74:75]")
    A("s_mov_b64 exec, -1")
    LBL("L_nocpf")
if P["warm"]:
    CM("visit one instruction in every later code page while the first loads are in flight")
    A("s_branch L_warm0")
    LBL("L_warmret")
srd(sWS, 44, WS_BYTES)
A(f"s_mov_b32 s{sPO}, {WP_OFF}")
out_srd()
A(f"s_mov_b32 s{sMID}, 0x7fff7fff")
A(f"s_cselect_b32 s{sMID}, s{sMID}, -1")
A(f"s_mov_b32 s{sMID+1}, s{sMID}")
granule_off()
A(f"s_lshl_b32 s{sTMP}, s{sT}, 10")
A(f"s_add_u32 s{sGR}, s{sGR}, s{sTMP}")
R, G_, X1, X2 = 120, 121, 122, 124
A(f"v_and_b32 v{R}, 15, v0")
A(f"v_lshrrev_b32 v{G_}, 4, v0")
A(f"v_mul_u32_u24 v{X1}, {XB}, v{R}")
A(f"v_lshl_add_u32 v{vXR(0)}, v{G_}, 4, v{X1}")
A(f"v_bfe_u32 v{X2}, v0, 2, 2")
A(f"v_lshl_add_u32 v{X1}, v{G_}, 3, v{X2}")
A(f"v_lshlrev_b32 v{X1}, 7, v{X1}")
A(f"v_lshrrev_b32 v{X2}, 1, v{X2}")
A(f"v_and_b32 v{X2+1}, 1, v{G_}")
A(f"v_lshl_or_b32 v{X2}, v{X2+1}, 1, v{X2}")
A(f"v_xor_b32 v{X2}, s{sWAVE}, v{X2}")
A(f"v_lshl_add_u32 v{X1}, v{X2}, 5, v{X1}")
A(f"v_and_b32 v{X2}, 3, v0")
A(f"v_lshl_add_u32 v{X1}, v{X2}, 3, v{X1}")
A(f"v_add_u32 v{vWR(0)}, {WOFF}, v{X1}")
A(f"v_add_u32 v{vW3}, {WOFF + tile(0,3)}, v{X1}")
A(f"v_lshlrev_b32 v{vW3C}, 1, v{X1}")
A(f"v_add_u32 v{vW3C}, {2*SLOT + WOFF + tile(0,3) + SPARE}, v{vW3C}")
for k in (1, 2):
    A(f"v_add_u32 v{k+2}, {SLOT}, v{k}")
    A(f"v_add_u32 v{k+4}, {2*SLOT}, v{k}")
if P["red"]:
    CM("after the reduce-scatter lane r of group g holds channel 4g + (r>>2)")
    A(f"v_lshrrev_b32 v{X1}, 2, v{R}")
    A(f"v_lshl_add_u32 v{vGA}, v{G_}, 2, v{X1}")
else:
    A(f"v_lshl_add_u32 v{vGA}, v{G_}, 2, v{R}")
A(f"v_lshlrev_b32 v{vGA}, 4, v{vGA}")
A(f"s_lshl_b32 s{sTMP}, s{sWAVE}, 2")
A(f"v_add_u32 v{X1}, s{sTMP}, v{G_}")
A(f"v_lshrrev_b32 v{X2}, 1, v{X1}")
A(f"v_and_b32 v{X1}, 1, v{X1}")
A(f"v_lshl_or_b32 v{X1}, v{X1}, 3, v{X2}")
A(f"v_and_b32 v{X2}, 7, v{R}")
A(f"v_xor_b32 v{X1}, v{X1}, v{X2}")
A(f"v_lshlrev_b32 v{X1}, 4, v{X1}")
A(f"v_lshl_add_u32 v{vYW}, v{R}, 12, v{X1}")
A(f"v_xor_b32 v{vYW+1}, 0x80, v{vYW}")
final_addr(FA)
for i in range(0, 96, 2):
    A(f"v_pk_mov_b32 v[{16+i}:{17+i}], 0, 0")
A("s_waitcnt vmcnt(0)")
for t in addbf_list(CWA, CWA, CWB, 224, True): A(t)
A(f"buffer_store_dwordx4 v[{CWA}:{CWA+3}], v{T+2}, s[{sWS}:{sWS+3}], s{sPO} offen sc0 sc1")
if P["prio"]: A(f"s_setprio {P['prio']}")
if not P["lateack"]: A("s_waitcnt vmcnt(0)")

def reads(role, hh, st, ndpp=0, last=False):
    xb = SETS[st]; wb = xb + 44
    def xr(q): return (("X", q), f"ds_read_b128 v[{xb+4*q}:{xb+4*q+3}], v{vXR(role)} offset:{(q & 7)*128 + hh*64 + (XB if q > 7 else 0)}")
    def wr(s, h):
        if role == 0 and s == 3 and not last:
            return (("W", s), f"ds_read_b64_tr_b16 v[{wb+4*s+2*h}:{wb+4*s+2*h+1}], v{vW3} offset:{hh*4096 + h*512}")
        return (("W", s), f"ds_read_b64_tr_b16 v[{wb+4*s+2*h}:{wb+4*s+2*h+1}], v{vWR(role)} offset:{tile(hh, s) + h*512}")
    if role == 1 and P["u3"]:
        r = [wr(0, 0), wr(0, 1), xr(0), wr(1, 0), wr(1, 1), xr(1), wr(2, 0), wr(2, 1)] + [xr(q) for q in range(2, 10)] + [wr(3, 0), wr(3, 1), xr(10)]
    else:
        r = [wr(0, 0), wr(0, 1), xr(0), wr(1, 0), wr(1, 1)] + [xr(q) for q in range(1, 9)] + [wr(2, 0), wr(2, 1), wr(3, 0), wr(3, 1), xr(9), xr(10)]
    dq = list(range(11 - ndpp, 11))
    r = [e for e in r if not (e[0][0] == "X" and e[0][1] in dq)]
    d = [f"v_mov_b32_dpp v{xb+4*q+i}, v{xb+4*(q-8)+i} row_shl:1 row_mask:0xf bank_mask:0xf bound_ctrl:0" for q in dq for i in range(4)]
    return r, d
def mfma_list(acc, st, split3=False):
    xb = SETS[st]; wb = xb + 44
    pairs = []
    if split3 and P["u3"]:
        pairs = [(s, j) for j in range(8) for s in ((0, 1, 2) if j % 2 == 0 else (2, 1, 0))] + [(3, j) for j in range(8)]
    else:
        for s0 in ((0,) if split3 else (0, 2)):
            for q in range(s0, s0 + 9):
                for s in (s0 + 1, s0):
                    if 0 <= q - s < 8: pairs.append((s, q - s))
        if split3: pairs += [(s, j) for s in (2, 3) for j in range(8)]
    out = []
    for s, j in pairs:
        d = f"v[{acc+4*j}:{acc+4*j+3}]"
        out.append(([("W", s), ("X", j+s)], f"v_mfma_f32_16x16x32_bf16 {d}, v[{wb+4*s}:{wb+4*s+3}], v[{xb+4*(j+s)}:{xb+4*(j+s)+3}], {d}"))
    return out
pending = []
ss_n = [0]
def sstamp():
    if P["sst"] < 0 or ss_n[0] >= 12: return
    k = ss_n[0]; ss_n[0] += 1
    A(f"s_memtime s[{76+2*k}:{77+2*k}]")
def seq(acc, st, rdd, barrier, skip_label=None, extra=None, delay=0, vm0=False):
    global pending
    rd, dpp = rdd
    nm = 24 if skip_label else 32
    m = mfma_list(acc, st, skip_label is not None)
    rd = [] if P["nords"] else list(rd)
    dpp = list(dpp)
    first = max(P["barslot"], delay) if barrier else 0
    if dpp:
        first = min(first, nm - len(rd) - len(dpp) - 0) if barrier else first
        first = max(first, P["barslot"]) if barrier else first
        last = first + len(rd) - 1
    else:
        last = max(min(first + len(rd) if barrier else P["rdA"], nm - P["rd_gap"]), first + len(rd) - 1) if rd else 0
    slots = [first + (k * (last - first)) // max(len(rd) - 1, 1) for k in range(len(rd))]
    dslots = [min(last + 1 + k, nm - 1) for k in range(len(dpp))]
    cur_ = list(pending); newer = 0; nxt = []; nd = 0
    for i, (need, ins) in enumerate(m):
        if i == 24 and skip_label:
            A(f"s_cbranch_scc1 {skip_label}")
        if i % 16 == 0 or (skip_label and i == 24):
            need = [k for nd_, _ in m[i:i+16 if not (skip_label and i == 16) else 24] for k in nd_]
            if barrier and i == 0: need = [k for nd_, _ in m[:P["barslot"]+1] for k in nd_]
            idx = max([k for k, key in enumerate(cur_) if key in need], default=-1)
            if idx >= 0:
                n = len(cur_) - 1 - idx + newer
                if n < 15: A(f"s_waitcnt lgkmcnt({n})")
                cur_ = cur_[idx+1:]
        A(ins)
        if barrier and i == P["barslot"]:
            if cur_ or vm0: A("s_waitcnt" + (" vmcnt(0)" if vm0 else "") + " lgkmcnt(0)"); cur_ = []
            sstamp()
            A("s_barrier")
            sstamp()
        while rd and slots[len(nxt)] <= i:
            key, s = rd.pop(0); A(s); nxt.append(key); newer += 1
        while nd < len(dpp) and dslots[nd] <= i:
            if nd == 0:
                k = max(nxt.index(("X", q)) for q in range(3) if ("X", q) in nxt)
                A(f"s_waitcnt lgkmcnt({min(len(nxt) - 1 - k, 15)})")
            A(dpp[nd]); nd += 1
        if extra and i in extra:
            for s in extra[i]: A(s)
    assert not rd and nd == len(dpp)
    if skip_label: LBL(skip_label)
    pending = nxt
    sstamp()
A("s_barrier")
stamp(1)
if plain: A("s_memtime s[92:93]"); A("s_waitcnt lgkmcnt(0)")
D2, D3 = (2 if P["dpp"] else 0), (3 if P["dpp"] else 0)
r0, _ = reads(0, 0, 0)
for _, s in r0: A(s)
pending = [k for k, _ in reads(0, 0, 0, D2 if P["dpp"] & 4 else 0)[0]]
loop_entry = list(pending)
A(f"s_mov_b32 s{sCNT}, 0")
if P["dpp"] & 4: A("s_waitcnt lgkmcnt(0)")
A("s_branch L_cloop")

cur[0] = "cloop"
def cstamp(idx=None):
    if not P["cst"]: return
    A("s_memtime s[100:101]")
    A("s_waitcnt lgkmcnt(0)")
    if idx is None:
        A(f"s_mov_b32 m0, s{sCNT}")
        A("s_nop 0")
        A("s_movreld_b32 s76, s100")
    else:
        A(f"s_mov_b32 s{76+idx}, s100")
LBL("L_cloop")
if P["sst"] >= 0:
    A(f"s_cmp_lg_u32 s{sCNT}, {P['sst'] + 1}")
    A("s_cbranch_scc1 L_nss")
    A("s_waitcnt lgkmcnt(0)")
    for k in range(12): A(f"v_writelane_b32 v255, s{76+2*k}, {k}")
    LBL("L_nss")
cstamp()
seq(G00, 0, reads(0, 1, 1, D2), False)
seq(G00, 1, reads(1, 0, 0, D3 if P["dpp"] & 2 else 0), True, extra={28: [f"v_sub_u32 v{vW3}, v{vW3C}, v{vW3}"]}, delay=P["dly0"], vm0=bool(P["lateack"]))
A(f"s_bitcmp1_b32 s{sCNT}, 0")
seq(G11, 0, reads(1, 1, 1), False, "L_skipa")
seq(G11, 1, reads(2, 0, 0), True, "L_skipb")
A(f"s_cmp_eq_u32 s{sCNT}, 0")
A("s_cbranch_scc1 L_cfirst")
LBL("L_gs")
pend_gs = list(pending)
seq(GS, 0, reads(2, 1, 1, D3), False)
A(f"s_add_u32 s{sCNT}, s{sCNT}, 1")
A(f"s_cmp_lt_u32 s{sCNT}, 8")
seq(GS, 1, reads(0, 0, 0, D2 if P["dpp"] & 4 else 0), True, delay=P["dly2"])
pend_loop = list(pending)
assert pend_loop == loop_entry
A("s_cbranch_scc1 L_cloop")
if not P["peel"]:
    A(f"s_cmp_eq_u32 s{sCNT}, 9")
    A("s_cbranch_scc1 L_cdone")
    cstamp(8)
    for k in (5, 6): A(f"v_mov_b32 v{k}, v{k-4}")
    if pend_loop != pend_gs: A("s_waitcnt lgkmcnt(0)")
    A("s_branch L_gs")
else:
    A("s_branch L_cdone")
LBL("L_cfirst")
if not P["pubst"]: stamp(3)
for k in (1, 2):
    A(f"v_add_u32 v{k}, {2*SLOT}, v{k}")
    A(f"v_subrev_u32 v{k+2}, {SLOT}, v{k+2}")
    A(f"v_subrev_u32 v{k+4}, {SLOT}, v{k+4}")
A(f"v_add_u32 v{vW3}, {tile(0,3)}, v2")
A(f"s_mov_b32 s{sCNT}, 1")
if pend_loop != pend_gs: A("s_waitcnt lgkmcnt(0)")
A("s_branch L_cloop")

cur[0] = "cepi"
LBL("L_cdone")
def yreg(idx): return ((SETS[0] if P["pp"] else G11) if idx % 2 == 0 else GS) + 4 * (idx // 2)
S1, S2 = 16, 20
dppl = [f"v_mov_b32_dpp v{T+i}, v{G00+i} row_shl:1 row_mask:0xf bank_mask:0xf bound_ctrl:0" for i in range(4)]
if P["peel"]:
    cstamp(8)
    pending = pend_loop
    CM("last stage, with the G00/G11 part of the output transform in its shadow: G11 <- y0, G00[j] <- G11[j] + G00[j+1]")
    exA = {20 + i: [dppl[i]] for i in range(4)}
    exA[19] = [f"v_mov_b32 v12, {MISC}", "ds_read_b64 v[238:239], v12"]
    Y0 = SETS[0]
    ex = []
    if P["pp"]:
        def op2(d, x, y):
            return [pks("add", d, x, y), pks("add", d+2, x+2, y+2)] if P["pp"] == 2 else [f"v_add_f32 v{d+i}, v{x+i}, v{y+i}" for i in range(4)]
        for j in range(8):
            ex += op2(Y0+4*j, G00+4*j, G11+4*j)
        for j in range(8):
            ex += op2(G11+4*j, G11+4*j, G00+4*(j+1) if j < 7 else T)
    seq(GS, 0, reads(0, 1, 1, 0, True), False, extra=exA)
    pending = pending + [("N", 0)]
    nh = min(len(ex), P["ppn"])
    seq(GS, 1, ([], []), False, extra={1 + (k * 31) // max(nh, 1): [] for k in range(nh)} and
        {i: [ex[k] for k in range(nh) if 1 + (k * 31) // nh == i] for i in range(32)} if nh else None)
    if P["pp"] == 1 and nh % 4 == 0 and nh >= 32:
        for j in range((nh - 32) // 4, 8):
            for h in (0, 2): pk("add", G11+4*j+h, G11+4*j+h, (G00+4*(j+1) if j < 7 else T) + h)
    else:
        for t in ex[nh:]: A(t)
    A("s_nop 7")
else:
    A(f"v_mov_b32 v12, {MISC}")
    A("ds_read_b64 v[238:239], v12")
    for t in dppl: A(t)
    A("s_nop 2")
cstamp(9)
stamp(2)
if plain: A("s_memtime s[94:95]")
if P["prio"]: A("s_setprio 0")
for j in range(8):
    for h in (0, 2):
        pk("add", GS+4*j+h, GS+4*j+h, G11+4*j+h, neg=True)
for j in range(8):
    for h in (0, 2):
        if P["pp"]: continue
        nx = G00+4*(j+1)+h if j < 7 else T+h
        pk("add", GS+4*j+h, GS+4*j+h, nx, neg=True)
        pk("add", G11+4*j+h, G11+4*j+h, G00+4*j+h)
for h in (0, 2):
    pk("add", S1+h, yreg(0)+h, yreg(1)+h)
    pk("mul", S2+h, yreg(0)+h, yreg(0)+h)
for idx in range(1, 16):
    if idx == 3: A(f"s_mov_b64 exec, s[{sMID}:{sMID+1}]")
    if idx == 10:
        A("s_mov_b32 exec_lo, 0x7fff7fff")
        A("s_mov_b32 exec_hi, 0x7fff7fff")
    for h in (0, 2):
        if idx > 1: pk("add", S1+h, S1+h, yreg(idx)+h)
        pk("fma", S2+h, yreg(idx)+h, yreg(idx)+h, c=S2+h)
A("s_mov_b64 exec, -1")
A("s_nop 1")
def dadd(d, s, ctl, bm="0xf"): A(f"v_add_f32_dpp v{d}, v{s}, v{s} {ctl} row_mask:0xf bank_mask:{bm}")
if P["red"]:
    CM("reduce-scatter over the 16 lanes of a row: banks (r>>2) end up with channel r>>2")
    for b in (S1, S2):
        dadd(b+8, b, "row_ror:8"); dadd(b+9, b+1, "row_ror:8")
    for b in (S1, S2):
        dadd(b+8, b+2, "row_ror:8", "0xc"); dadd(b+9, b+3, "row_ror:8", "0xc")
    A("s_nop 0")
    dadd(236, S1+8, "row_half_mirror"); dadd(237, S2+8, "row_half_mirror")
    dadd(236, S1+9, "row_half_mirror", "0xa"); dadd(237, S2+9, "row_half_mirror", "0xa")
    A("s_nop 0")
    dadd(236, 236, "quad_perm:[1,0,3,2]"); dadd(237, 237, "quad_perm:[1,0,3,2]")
    A("s_nop 0")
    dadd(236, 236, "quad_perm:[2,3,0,1]"); dadd(237, 237, "quad_perm:[2,3,0,1]")
    A("s_mov_b32 exec_lo, 0x11111111")
    A("s_mov_b32 exec_hi, 0x11111111")
else:
    for sh in (8, 4, 2, 1):
        for i in range(8): dadd(16+i, 16+i, f"row_ror:{sh}")
    A("v_mov_b32 v236, v16")
    A("v_mov_b32 v237, v20")
    for i in (1, 2, 3):
        mk = (1 << i) * 0x00010001
        A(f"s_mov_b32 exec_lo, {mk:#x}")
        A(f"s_mov_b32 exec_hi, {mk:#x}")
        A(f"v_mov_b32 v236, v{16+i}")
        A(f"v_mov_b32 v237, v{20+i}")
    A("s_mov_b32 exec_lo, 0x000f000f")
    A("s_mov_b32 exec_hi, 0x000f000f")
A("s_waitcnt lgkmcnt(0)")
A(f"buffer_store_dwordx4 v[236:239], v{vGA}, s[{sWS}:{sWS+3}], s{sGR} offen sc0 sc1")
A("s_mov_b64 exec, -1")
if P["pubst"]: stamp(3)
for idx in range(16):
    A(f"ds_write_b128 v{vYW + ((idx // 2) & 1)}, v[{yreg(idx)}:{yreg(idx)+3}] offset:{idx*256}")
A("s_waitcnt lgkmcnt(0)")
A("s_barrier")
y_reads()
A("s_branch L_final")
if P["spoll"]: SEC["cepi"] += tail_cepi

ALG = "" if not P["algn"] else f".p2align 12\n.fill {(4096 - 0x300 + (P['algn'] - 1) * 256) // 4}, 4, 0xbf810000\n"
out = [f"""; conv stem (K=15, stride 2) as a 2-parallel fast-FIR GEMM + per-channel GroupNorm + tanh GELU, one launch.
; @launch grid=(256,1,1) block=(512,1,1) lds={LDS_BYTES}
.amdgcn_target "amdgcn-amd-amdhsa--gfx950"
.text
.globl {KN}
{ALG}.p2align 8
.type {KN},@function
{KN}:"""]
wk = 0
for sec in ("entry", "lpro", "cpro", "cloop", "lloop", "cepi", "llast", "final"):
    if P["warm"] and sec in ("cloop", "lloop", "cepi", "llast"):
        out += [f"L_warm{wk}:", f"  s_branch L_warm{wk+1}"]; wk += 1
    if sec in ("cloop", "lloop"): out.append(".p2align 6")
    out += SEC[sec]
if P["warm"]: out += [f"L_warm{wk}:", "  s_branch L_warmret"]
out.append(f""".p2align 8
.fill 1024, 4, 0xbf810000
.section .rodata,"a"
.p2align 6
.amdhsa_kernel {KN}
  .amdhsa_next_free_vgpr 256
  .amdhsa_next_free_sgpr 102
  .amdhsa_accum_offset 256
  .amdhsa_group_segment_fixed_size 0
  .amdhsa_kernarg_size 64
  .amdhsa_user_sgpr_count 2
  .amdhsa_user_sgpr_kernarg_segment_ptr 1
  .amdhsa_system_sgpr_workgroup_id_x 1
.end_amdhsa_kernel""")
print("\n".join(out))
```

```python
import sys, struct, math
P = dict(prio=2, lprio=0, dsprio=3, stamps=0, novalu=0, nodma=0, nords=0, barslot=1, rd_gap=5, rdA=19, dly0=13, dly2=13,
         touch=1, lst=-1, cst=0, pst=0, sst=-1, vsplit=2, wsplit=2, cpf=1, stf=2, dbgt=0, dpp=9, u3=1, red=1, wend=0, wend2=0, u0first=0, warm=0, pq=0, xnt=0, tnt=0, wnt=0, pnt=0, vpk=0, pubst=0, x1st=1, algn=0, fresh=1, burst1=0, early2=0, w8=1, nochk=0, v1=2, g5=1, spoll=0, lateack=1, peel=1, pp=1, ppn=48,
         pro="D0:0:4.D1:0:4.D0.N.D1.S.B.U.V02.D2:0:8.B.F.V24.D2.D3.B.G.w.r.C.D4.T2ab.T3ab.B")
for a in sys.argv[1:]:
    k, v = a.split("=")
    P[k] = v if k in ("pro",) else int(v)

KN = "standalone__self_sup_conv_stem_hubert__speech_kernel"
XB = 1056
XSZ = 16 * XB + 128
WOFF = XSZ
SLOT = WOFF + 32768
SPARE = 3 * SLOT
MISC = SPARE + 8192
LDS_BYTES = MISC + 1024
X_BYTES = 2 * 16000 * 256 * 2
W_BYTES = 15 * 256 * 256 * 2
FL_OFF, WP_OFF, WS_BYTES = 0x40000, 0x80000, 0x180000
OOB = 0x40000000
SPIN = 0x4000
def tile(hh, s): return (hh * 3 + s if s < 3 else 6 + hh) * 4096

SEC = {k: [] for k in ("entry", "lpro", "lloop", "llast", "final", "cpro", "cloop", "cepi")}
cur = ["entry"]
def A(s): SEC[cur[0]].append("  " + s)
def LBL(s): SEC[cur[0]].append(s + ":")
def CM(s): SEC[cur[0]].append("  ; " + s)
def f32(x): return "0x%08x" % struct.unpack("<I", struct.pack("<f", x))[0]

sX, sW, sO, sWS, sDBG, sGA, sBE = 4, 8, 12, 16, 20, 24, 28
sWAVE, sT, sNT, sB = 46, 47, 48, 49
sWN, sXO, sWO, sPO, sTMP, sCNT, sMASK16 = 50, 51, 52, 53, 55, 56, 57
sTA = 58
sD, sXB = 60, 61
sN0, sN1 = 62, 63
sMID = 64
sGR, sFO = 66, 67
sK = 68
sM0, sMX = 73, 74
sXW = 75
sST = 76

def srd(d, lo, nbytes):
    A(f"s_mov_b32 s{d}, s{lo}")
    A(f"s_and_b32 s{d+1}, s{lo+1}, 0xffff")
    A(f"s_mov_b32 s{d+2}, {nbytes}")
    A(f"s_mov_b32 s{d+3}, 0x20000")
def out_srd():
    A(f"s_mul_i32 s{sTMP}, s{sB}, {7993*512}")
    A(f"s_mul_i32 s{sCNT}, s{sT}, {250*512}")
    A(f"s_add_u32 s{sTMP}, s{sTMP}, s{sCNT}")
    A(f"s_add_u32 s{sO}, s40, s{sTMP}")
    A(f"s_addc_u32 s{sO+1}, s41, 0")
    A(f"s_and_b32 s{sO+1}, s{sO+1}, 0xffff")
    A(f"s_cmp_eq_u32 s{sT}, 31")
    A(f"s_mov_b32 s{sO+2}, {243*512}")
    A(f"s_cselect_b32 s{sO+2}, s{sO+2}, {250*512}")
    A(f"s_mov_b32 s{sO+3}, 0x20000")
def granule_off():
    A(f"s_lshl_b32 s{sGR}, s{sB}, 2")
    A(f"s_add_u32 s{sGR}, s{sGR}, s{sNT}")
    A(f"s_lshl_b32 s{sGR}, s{sGR}, 15")
    A(f"s_lshl_b32 s{sTMP}, s{sWAVE}, 8")
    A(f"s_add_u32 s{sGR}, s{sGR}, s{sTMP}")
plain = P["stamps"] and P["lst"] < 0 and not P["cst"] and P["sst"] < 0
def stamp(k):
    if not plain: return
    if P["pst"] and k > 0 and cur[0] not in ("cpro", "cloop", "cepi"): return
    A(f"s_memrealtime s[{sST+2*k}:{sST+2*k+1}]")
def pstamp(k):
    if P["pst"] == 1: A(f"s_memrealtime s[{sST+2*k}:{sST+2*k+1}]")
def addbf_list(d, a, b, t, force=False):
    r = []
    if P["novalu"] and not force: return r
    for i0 in (0, 2):
        if P["vpk"]:
            for i in (i0, i0 + 1):
                u = t + 4 * (i - i0)
                r += [f"v_lshlrev_b32 v{u}, 16, v{a+i}", f"v_and_b32 v{u+1}, s{sMASK16}, v{a+i}",
                      f"v_lshlrev_b32 v{u+2}, 16, v{b+i}", f"v_and_b32 v{u+3}, s{sMASK16}, v{b+i}"]
            for i in (i0, i0 + 1):
                u = t + 4 * (i - i0)
                r += [f"v_pk_add_f32 v[{u}:{u+1}], v[{u}:{u+1}], v[{u+2}:{u+3}]"]
            for i in (i0, i0 + 1):
                u = t + 4 * (i - i0)
                r += [f"v_cvt_pk_bf16_f32 v{d+i}, v{u}, v{u+1}"]
            continue
        for i in (i0, i0 + 1):
            u = t + 4 * (i - i0)
            r += [f"v_lshlrev_b32 v{u}, 16, v{a+i}", f"v_lshlrev_b32 v{u+1}, 16, v{b+i}",
                  f"v_and_b32 v{u+2}, s{sMASK16}, v{a+i}", f"v_and_b32 v{u+3}, s{sMASK16}, v{b+i}"]
        for i in (i0, i0 + 1):
            u = t + 4 * (i - i0)
            r += [f"v_add_f32 v{u}, v{u}, v{u+1}", f"v_add_f32 v{u+2}, v{u+2}, v{u+3}"]
        for i in (i0, i0 + 1):
            u = t + 4 * (i - i0)
            r += [f"v_cvt_pk_bf16_f32 v{d+i}, v{u}, v{u+2}"]
    return r
def pks(op, d, a, b, neg=False, c=None):
    s = f"v_pk_{op}_f32 v[{d}:{d+1}], v[{a}:{a+1}], v[{b}:{b+1}]"
    if c is not None: s += f", v[{c}:{c+1}]"
    if neg: s += " neg_lo:[0,1] neg_hi:[0,1]"
    return s
def pk(*a, **k): A(pks(*a, **k))
def final_addr(base):
    b = base
    A(f"v_lshrrev_b32 v{b+4}, 3, v0")
    A(f"v_and_b32 v{b+6}, 7, v0")
    A(f"s_lshl_b32 s{sTMP}, s{sWAVE}, 5")
    A(f"v_add_u32 v{b+4}, s{sTMP}, v{b+4}")
    A(f"v_bfe_u32 v{b}, v0, 4, 1")
    A(f"v_lshl_or_b32 v{b}, v{b}, 3, v{b+6}")
    A(f"s_lshl_b32 s{sTMP}, s{sWAVE}, 1")
    A(f"s_and_b32 s{sTMP}, s{sTMP}, 7")
    A(f"v_xor_b32 v{b}, s{sTMP}, v{b}")
    A(f"v_lshlrev_b32 v{b}, 4, v{b}")
    A(f"v_lshl_add_u32 v{b}, v{b+4}, 8, v{b}")
    A(f"v_xor_b32 v{b+1}, 0x80, v{b}")
    A(f"v_xor_b32 v{b+2}, 0x10, v{b}")
    A(f"v_xor_b32 v{b+3}, 0x90, v{b}")
    A(f"v_lshlrev_b32 v{b+4}, 9, v{b+4}")
    A(f"v_lshl_add_u32 v{b+4}, v{b+6}, 4, v{b+4}")
    A(f"s_lshl_b32 s{sTMP}, s{sNT}, 7")
    A(f"v_add_u32 v{b+4}, s{sTMP}, v{b+4}")
    A(f"v_add_u32 v{b+5}, 0x2000, v{b+4}")
    A(f"v_lshlrev_b32 v{b+6}, 5, v{b+6}")
    A(f"v_add_u32 v{b+6}, {MISC+64}, v{b+6}")
FA = 244
Y = 112
def y_reads():
    for n in range(4):
        for h in range(2):
            A(f"ds_read_b128 v[{Y+8*n+4*h}:{Y+8*n+4*h+3}], v{FA + h + 2*(n >> 1)} offset:{n*2048}")

stamp(0)
A("s_load_dwordx4 s[32:35], s[0:1], 0")
A("s_load_dwordx4 s[40:43], s[0:1], 40")
A("s_load_dwordx2 s[44:45], s[0:1], 56")
A("s_load_dwordx4 s[36:39], s[0:1], 24")
A("s_cmp_ge_u32 s2, 256")
A("s_cbranch_scc1 L_end")
A(f"v_readfirstlane_b32 s{sWAVE}, v0")
A("v_and_b32 v0, 63, v0")
A(f"s_and_b32 s{sT}, s2, 7")
A(f"s_lshl_b32 s{sT}, s{sT}, 3")
A(f"s_lshr_b32 s{sTMP}, s2, 5")
A(f"s_add_u32 s{sT}, s{sT}, s{sTMP}")
A(f"s_bfe_u32 s{sNT}, s2, 0x20003")
A(f"s_lshr_b32 s{sB}, s{sT}, 5")
A(f"s_and_b32 s{sT}, s{sT}, 31")
A(f"s_mov_b32 s{sMASK16}, 0xffff0000")
A(f"s_cmp_lt_u32 s{sWAVE}, 256")
A("s_cbranch_scc1 L_compute")

cur[0] = "lpro"
vXG, vWG, vLIN, vLIN2, vU0, vFL, vZ, vTC = 1, 3, 4, 5, 6, 8, 9, 15
U0, U1, TT, FLG, NON, JUNK, GAM, VV = 16, 32, 48, 56, 64, 66, 68, 80
sTS, sTB = 24, 68
A(f"s_bfe_u32 s{sWAVE}, s{sWAVE}, 0x20006")
if P["fresh"]: A("s_memrealtime s[70:71]")
A(f"s_mul_i32 s{sXB}, s{sB}, {16000*512}")
A(f"s_mul_i32 s{sTMP}, s{sT}, {500*512}")
A(f"s_add_u32 s{sXB}, s{sXB}, s{sTMP}")
A("v_lshrrev_b32 v10, 3, v0")
A("v_and_b32 v11, 7, v0")
A("v_lshlrev_b32 v12, 4, v11")
A(f"v_lshl_add_u32 v{vXG}, v10, 11, v12")
A(f"s_lshl_b32 s{sXW}, s{sWAVE}, 16")
A(f"s_add_u32 s{sXO}, s{sXB}, s{sXW}")
A(f"s_mul_i32 s{sMX}, s{sWAVE}, {4*XB}")
A("v_bfe_u32 v13, v0, 4, 1")
A(f"s_and_b32 s{sTMP}, s{sWAVE}, 1")
A(f"s_lshl_b32 s{sTMP}, s{sTMP}, 1")
A(f"v_or_b32 v13, s{sTMP}, v13")
A("v_lshlrev_b32 v13, 5, v13")
A("v_xor_b32 v13, v13, v12")
A("v_lshl_add_u32 v13, v10, 9, v13")
A(f"s_lshl_b32 s{sTMP}, s{sNT}, 7")
A(f"s_lshl_b32 s{sM0}, s{sWAVE}, 12")
A(f"s_add_u32 s{sTMP}, s{sTMP}, s{sM0}")
A(f"v_add_u32 v{vWG}, s{sTMP}, v13")
A(f"s_lshl_b32 s{sM0}, s{sWAVE}, 10")
A(f"s_mov_b32 s{sWO}, 0")
A(f"v_mov_b32 v{vZ}, 0")
A(f"s_lshl_b32 s{sTMP}, s{sWAVE}, 4")
A(f"s_lshl_b32 s{sCNT}, s{sNT}, 6")
A(f"s_add_u32 s{sTMP}, s{sTMP}, s{sCNT}")
A(f"v_add_u32 v14, s{sTMP}, v0")
A(f"v_lshlrev_b32 v{vTC}, 10, v14")
A("s_waitcnt lgkmcnt(0)")
pstamp(1)
srd(sX, 32, X_BYTES)
srd(sW, 34, W_BYTES)

TAPS = {("G00", 0): [0, 4, 8, 12], ("G11", 0): [2, 6, 10, 14], ("G00", 1): [1, 5, 9, 13], ("G11", 1): [3, 7, 11]}
def dw(lds, so, tap, hh):
    return [f"s_add_u32 m0, s{sM0}, {lds}",
            f"s_add_u32 s{sTMP}, s{so}, {tap*131072 + hh*16384}",
            f"buffer_load_dwordx4 v{vWG}, s[{sW}:{sW+3}], s{sTMP} offen" + (" nt" if (P["wnt"] == 2 or (P["wnt"] == 1 and cur[0] == "lpro")) else "") + " lds"]
def dma_w(slot, taps, ss=(0, 1, 2, 3), so=None):
    return [dw(slot*SLOT + WOFF + tile(hh, s), so or sWO, taps[s], hh) for hh in (0, 1) for s in ss if s < len(taps)]
def dma_wp(par, slot, spare0=False):
    r = []
    for hh in (0, 1):
        for s in range(4):
            dst = SPARE if (spare0 and hh == 0 and s == 3) else slot*SLOT + WOFF + tile(hh, s)
            r.append([f"s_add_u32 m0, s{sM0}, {dst}",
                      f"s_add_u32 s{sTMP}, s{sPO}, {WP_OFF + (par*4+s)*131072 + hh*16384}",
                      f"buffer_load_dwordx4 v{vWG}, s[{sWS}:{sWS+3}], s{sTMP} offen sc1 lds"])
    return r
def dma_x(slot, phi):
    nt_ = " nt" if (P["xnt"] == 2 or (P["xnt"] == 1 and cur[0] == "lpro")) else ""
    return [[f"s_add_u32 m0, s{sMX}, {slot*SLOT + j*XB}",
             f"s_add_u32 s{sTMP}, s{sXO}, {j*16384 + phi*512}",
             f"buffer_load_dwordx4 v{vXG}, s[{sX}:{sX+3}], s{sTMP} offen{nt_} lds"] for j in range(4)]
tl_n = [0]
def tail_g(slot, phi):
    k = tl_n[0]; tl_n[0] += 1
    return [f"s_cmp_lg_u32 s{sWAVE}, 0", f"s_cbranch_scc1 L_nt{k}",
            f"s_mov_b32 m0, {slot*SLOT + 16*XB}",
            f"s_add_u32 s{sTMP}, s{sXO}, {(512 + phi)*512}",
            "s_mov_b64 exec, 0xff",
            f"buffer_load_dwordx4 v{vXG}, s[{sX}:{sX+3}], s{sTMP} offen lds",
            "s_mov_b64 exec, -1", f"L_nt{k}:"]
def touch_g(dd, par, half="ab", const=False):
    if const:
        r = [f"s_add_u32 s{sTMP}, s{sXB}, {dd*128 + par*512}"]
    else:
        r = [f"s_cmp_lt_u32 s{sD}, {4 - dd}", f"s_cselect_b32 s{sCNT}, s{sXB}, {OOB}",
             f"s_lshl_b32 s{sTMP}, s{sD}, 7", f"s_add_u32 s{sTMP}, s{sTMP}, s{sCNT}", f"s_add_u32 s{sTMP}, s{sTMP}, {dd*128 + par*512}"]
    r.append(f"s_mov_b64 exec, {dict(ab=0xffff, a=0x5555, b=0xaaaa)[half]:#x}")
    r += [f"buffer_load_dword v{JUNK}, v{vTC}, s[{sX}:{sX+3}], s{sTMP} offen" + (" nt" if P["tnt"] else ""), "s_mov_b64 exec, -1"]
    return r
def emit_groups(gs):
    if P["nodma"]: return
    for g in gs:
        for s in g: A(s)
def mix(valu, gs):
    if P["nodma"]: gs = []
    n = len(gs)
    if not valu:
        emit_groups(gs); return
    pos = [(k * len(valu)) // n for k in range(n)] if n else []
    gi = 0
    for i, v in enumerate(valu):
        while gi < n and pos[gi] == i:
            for s in gs[gi]: A(s)
            gi += 1
        A(v)
def rd_u0(): return [f"ds_read_b128 v[{U0+4*j}:{U0+4*j+3}], v{vU0} offset:{j*XB}" for j in range(4)]
def rd_u1(lin, off): return [f"ds_read_b128 v[{U1+4*j}:{U1+4*j+3}], v{lin} offset:{off + j*XB}" for j in range(4)]
def wr_v(lin, off): return [f"ds_write_b128 v{lin}, v[{VV+4*j}:{VV+4*j+3}] offset:{off + j*XB}" for j in range(4)]
def vadd(js):
    r = []
    for j in js: r += addbf_list(VV+4*j, U1+4*j, U0+4*j, TT)
    return r
def hi(lst):
    if P["dsprio"]: A(f"s_setprio {P['dsprio']}")
    for d in lst: A(d)
    if P["dsprio"]: A(f"s_setprio {P['lprio']}")
def lsetup():
    A("v_lshlrev_b32 v13, 4, v0")
    A(f"v_add_u32 v{vLIN}, s{sMX}, v13")
    A(f"v_add_u32 v{vLIN2}, {2*SLOT}, v{vLIN}")
    A("v_cmp_eq_u32 vcc, 7, v10")
    A(f"v_add_u32 v{vU0}, 128, v{vLIN}")
    A(f"v_add_u32 v12, 160, v{vLIN}")
    A(f"v_cndmask_b32 v{vU0}, v{vU0}, v12, vcc")
    A(f"v_lshlrev_b32 v{vFL}, 3, v0")
    srd(sWS, 44, WS_BYTES)
    out_srd()
    granule_off()
    A(f"s_mov_b32 s{sWN}, 32768")
    A(f"s_mov_b32 s{sD}, 0")
    A(f"s_mov_b32 s{sPO}, 0")
    A(f"s_lshl_b32 s{sFO}, s{sWAVE}, 9")
    A(f"s_add_u32 s{sFO}, s{sFO}, {FL_OFF}")
    if P["lprio"]: A(f"s_setprio {P['lprio']}")
STG = {0: None, 1: None, 2: None, 3: None, 4: None}
w_ = dma_w(0, TAPS[("G00", 0)]); x_ = dma_x(0, 0)
STG[0] = [tail_g(0, 0) + x_[0]] + x_[1:2] + w_[:4] + x_[2:] + w_[4:]
if P["x1st"]: STG[0] = [tail_g(0, 0) + x_[0]] + x_[1:] + w_
STG[1] = dma_x(1, 2) + dma_w(1, TAPS[("G11", 0)])
x_ = dma_x(2, 1)
STG[2] = [tail_g(2, 1) + x_[0]] + x_[1:] + dma_w(2, TAPS[("G00", 1)])
STG[3] = dma_x(0, 3) + dma_w(0, TAPS[("G11", 1)]) + dma_w(0, TAPS[("G11", 0)], ss=(3,), so=sWN)
STG[4] = dma_wp(0, 1) + [dw(SPARE + hh*4096, sWN, TAPS[("G00", 0)][3], hh) for hh in (0, 1)]
issued = []; period = 0; seen = {k: 0 for k in STG}; mixv = []; pendg = []
def flush():
    global mixv, pendg
    mix(mixv, [g for _, g in pendg])
    if not P["nodma"]: issued.extend(k for k, _ in pendg)
    mixv = []; pendg = []
def wait_for(keys, extra=""):
    flush()
    last = max(i for i, k in enumerate(issued) if k in keys)
    A(f"s_waitcnt vmcnt({len(issued) - 1 - last}){extra}")
def flag_load(so): A(f"buffer_load_dwordx2 v[{FLG}:{FLG+1}], v{vFL}, s[{sWS}:{sWS+3}], {so} offen sc0 sc1")
def check_flags(name, so):
    A(f"s_mov_b32 s{sCNT}, {SPIN}")
    LBL(name)
    A(f"v_cmp_eq_u64 vcc, s[{sN0}:{sN1}], v[{FLG}:{FLG+1}]")
    A("s_cmp_eq_u64 vcc, -1")
    A(f"s_cbranch_scc1 {name}_ok")
    A(f"s_sub_u32 s{sCNT}, s{sCNT}, 1")
    A(f"s_cbranch_scc1 {name}_ok")
    flag_load(so)
    A("s_waitcnt vmcnt(0)")
    A(f"s_branch {name}")
    LBL(name + "_ok")
def nonce_load(): A(f"buffer_load_dwordx2 v[{NON}:{NON+1}], v{vZ}, s[{sDBG}:{sDBG+3}], 0 offen sc0 sc1")
if P["nodma"]: issued.extend([0, 1, 2, 3, 4])
for tok in P["pro"].split("."):
    if tok[0] == "D":
        f = tok[1:].split(":"); st = int(f[0]); gs = STG[st]
        lo, hi_ = (int(f[1]), int(f[2])) if len(f) > 1 else (seen[st], len(gs))
        assert lo == seen[st]; seen[st] = min(hi_, len(gs))
        assert st < 3 or period >= st - 1
        pendg += [(st, g) for g in gs[lo:hi_]]
        continue
    if tok[0] == "T":
        c = int(tok[1])
        if P["touch"]: pendg.append(("t", touch_g(c >> 1, c & 1, tok[2:], True)))
        continue
    flush()
    if tok[0] == "S":
        pstamp(2); lsetup()
    elif tok[0] == "Z":
        k = int(tok[1]); A(f"s_memrealtime s[{sST+2*k}:{sST+2*k+1}]")
    elif tok[0] == "X":
        for j in range(4):
            A(f"s_add_u32 s{sTMP}, s{sXO}, {j*16384 + 2048}")
            A(f"buffer_load_dwordx4 v[{U0+4*j}:{U0+4*j+3}], v{vXG}, s[{sX}:{sX+3}], s{sTMP} offen")
            A(f"s_add_u32 s{sTMP}, s{sXO}, {j*16384 + 1024}")
            A(f"buffer_load_dwordx4 v[{U1+4*j}:{U1+4*j+3}], v{vXG}, s[{sX}:{sX+3}], s{sTMP} offen")
            issued.extend(["x", "x"])
    elif tok[0] == "Y":
        wait_for(["x"])
    elif tok[0] == "N":
        srd(sDBG, 42, 256); nonce_load(); issued.append("n")
    elif tok[0] == "U":
        k4 = [i for i, k in enumerate(issued) if k == 1][3] if not P["nodma"] else len(issued) - 1
        A(f"s_waitcnt vmcnt({len(issued) - 1 - k4})")
        hi(rd_u1(vLIN, SLOT))
        A("s_waitcnt lgkmcnt(0)")
    elif tok[0] == "V":
        mixv = vadd(range(int(tok[1]), int(tok[2])))
    elif tok[0] == "F":
        assert period == (2 if P["lateack"] else 1)
        wait_for(["n"])
        A(f"s_mov_b32 s{sCNT}, {SPIN}")
        LBL("L_cn")
        A(f"v_readfirstlane_b32 s{sN0}, v{NON}")
        A(f"v_readfirstlane_b32 s{sN1}, v{NON+1}")
        if P["fresh"]:
            CM("a tag much older than this wave is re-read a few times (only matters if d_debug was not cleared)")
            A(f"s_sub_u32 s{sTMP}, s70, s{sN0}")
            A(f"s_cmp_lt_i32 s{sTMP}, 1000")
            A(f"s_cselect_b32 s{sTMP}, s{sN0}, 0")
            A(f"s_cmp_lt_u32 s{sCNT}, {SPIN - 256}")
            A(f"s_cselect_b32 s{sTMP}, s{sN0}, s{sTMP}")
            A(f"s_cmp_lg_u32 s{sTMP}, 0")
        else:
            A(f"s_cmp_lg_u32 s{sN0}, 0")
        A("s_cbranch_scc1 L_cn_ok")
        A(f"s_sub_u32 s{sCNT}, s{sCNT}, 1")
        A("s_cbranch_scc1 L_cn_ok")
        nonce_load()
        A("s_waitcnt vmcnt(0)")
        A("s_branch L_cn")
        LBL("L_cn_ok")
        A(f"s_lshl_b32 s{sTMP}, s2, 3")
        A(f"s_add_u32 s{sTMP}, s{sTMP}, {FL_OFF}")
        A(f"s_cmp_eq_u32 s{sWAVE}, 0")
        A(f"s_cselect_b32 s{sTMP}, s{sTMP}, {OOB}")
        A("s_mov_b64 exec, 1")
        A(f"buffer_store_dwordx2 v[{NON}:{NON+1}], v{vZ}, s[{sWS}:{sWS+3}], s{sTMP} offen sc0 sc1")
        A(f"v_mov_b32 v12, {MISC}")
        A(f"ds_write_b64 v12, v[{NON}:{NON+1}]")
        A("s_mov_b64 exec, -1")
        issued.append("f")
        pstamp(7)
    elif tok[0] == "G":
        A(f"s_mov_b32 s{sTA}, {FL_OFF}"); flag_load(f"s{sTA}"); issued.append("g")
    elif tok[0] == "C":
        wait_for(["g"])
        A(f"s_mov_b32 s{sTA}, {FL_OFF}")
        check_flags("L_spin0", f"s{sTA}")
    elif tok[0] == "W":
        assert period == 3
        hi(wr_v(vLIN, SLOT)[:P["wsplit"]] + rd_u0())
    elif tok[0] == "w":
        assert period == 3
        for d in wr_v(vLIN, SLOT)[:P["wsplit"]]: A(d)
    elif tok[0] == "r":
        assert period == 3
        for d in rd_u0(): A(d)
    elif tok[0] == "B":
        assert seen[period] == len(STG[period])
        if period == 0: pstamp(3)
        wait_for([period], " lgkmcnt(0)" if period >= 2 else "")
        if period == 0: pstamp(4)
        if period == 1:
            if "U" not in P["pro"].split(".") and "X" not in P["pro"].split("."):
                for d in rd_u1(vLIN, SLOT): A(d)
            A("s_waitcnt lgkmcnt(0)")
            A(f"v_add_u32 v{vU0}, {2*SLOT}, v{vU0}")
        if period == 3:
            assert seen[4] == 10
            A("s_branch L_join")
            break
        A("s_barrier")
        if period < 2: pstamp(5 + period)
        period += 1
        CM(f"P({period-1})")
        if period == 1: pend_u0 = "X" not in P["pro"].split(".")
    if tok[0] in "FB" and period == 1 and pend_u0 and (tok[0] == "F" or P["lateack"]):
        hi(rd_u0()); pend_u0 = False
n_after_wp = len(issued) - 1 - max(i for i, k in enumerate(issued) if k == 4) + 2

cur[0] = "lloop"
lb_n = [0]
def lbar():
    k = lb_n[0]; lb_n[0] += 1
    if P["lst"] >= 0:
        A(f"s_cmp_lg_u32 s{sD}, {P['lst'] + 1}")
        A(f"s_cbranch_scc1 L_nb{k}")
        A(f"s_memtime s[{76+4*k}:{77+4*k}]")
        A("s_barrier")
        A(f"s_memtime s[{78+4*k}:{79+4*k}]")
        A(f"s_branch L_nc{k}")
        LBL(f"L_nb{k}")
        A("s_barrier")
        LBL(f"L_nc{k}")
    else:
        A("s_barrier")
nt = 1 if P["touch"] else 0
assert P["nodma"] or n_after_wp >= (0 if P['early2'] else 2) + nt, n_after_wp
assert P["nochk"] or P["vsplit"] <= P["wsplit"] <= P["vsplit"] + P["v1"] <= 4
LBL("L_lloop")
for par in (1, 0):
    npar = 1 - par
    CM(f"P(3c-1) par={par}")
    if par == 1:
        A(f"s_cmp_eq_u32 s{sD}, 3")
        A("s_cbranch_scc1 L_last")
    if not P["wend"]: hi(wr_v(vLIN, SLOT)[:P["wsplit"]])
    if P["u0first"]: hi(rd_u0())
    early = [dw((SPARE if par == 1 else 2*SLOT + WOFF + tile(0, 3)) + hh*4096, sWN if par else sWO, TAPS[("G00", npar)][3], hh) for hh in (0, 1)]
    if P["early2"]: early = []
    ne = len(early)
    mix(vadd(range(P["vsplit"] + P["v1"], 4)), dma_wp(npar, 1) + early)
    if not P["u0first"]:
        for d in rd_u0(): A(d)
    if nt: emit_groups([touch_g(1, par)])
    if P["wend"] == 1: hi(wr_v(vLIN, SLOT)[:P["wsplit"]])
    if P["wend"] == 2:
        for d in wr_v(vLIN, SLOT)[:P["wsplit"]]: A(d)
    A(f"s_waitcnt vmcnt({8 + ne + nt})")
    if par == 1: LBL("L_join")
    for d in rd_u1(vLIN, 0): A(d)
    A(f"s_mov_b32 s{sPO}, s{sWO}")
    if par == 1:
        A(f"s_add_u32 s{sD}, s{sD}, 1")
        A(f"s_mov_b32 s{sWO}, s{sWN}")
        A(f"s_add_u32 s{sWN}, s{sWN}, 32768")
        A(f"s_cmp_eq_u32 s{sD}, 3")
        A(f"s_cselect_b32 s{sWN}, {OOB}, s{sWN}")
        A(f"s_add_u32 s{sXO}, s{sXO}, 128")
    A("s_waitcnt lgkmcnt(0)")
    lbar()
    CM(f"P(3c) par={par}")
    if not P["wend2"]: hi(wr_v(vLIN, SLOT)[P["wsplit"]:])
    x_ = dma_x(2, npar)
    gs = [tail_g(2, npar) + x_[0]] + x_[1:] + dma_w(2, TAPS[("G00", npar)], ss=(0, 1, 2))
    mix(vadd(range(P["vsplit"])), gs)
    if P["wend2"] == 1: hi(wr_v(vLIN, SLOT)[P["wsplit"]:])
    if P["wend2"] == 2:
        for d in wr_v(vLIN, SLOT)[P["wsplit"]:]: A(d)
    A(f"s_waitcnt vmcnt({10 + ne + nt}) lgkmcnt(0)")
    lbar()
    CM(f"P(3c+1) par={par}")
    gs = dma_x(0, 2 + npar) + dma_w(0, TAPS[("G11", npar)], ss=(0, 1, 2))
    if par == 0: gs += dma_w(0, TAPS[("G11", 0)], ss=(3,), so=sWN)
    if P["early2"]:
        gs += [dw((SPARE if par == 0 else 2*SLOT + WOFF + tile(0, 3)) + hh*4096, sWN if par == 0 else sWO, TAPS[("G00", par)][3], hh) for hh in (0, 1)]
    if par == 1:
        A(f"s_cmp_lg_u32 s{sD}, 1")
        A("s_cbranch_scc1 L_nf2")
        flag_load(f"s{sFO}")
        LBL("L_nf2")
    va = vadd(range(P["vsplit"], P["vsplit"] + P["v1"]))
    if P["burst1"]:
        k = len(va) * (P["burst1"] - 1) // 4
        mix(va[:k], gs)
        for t in va[k:]: A(t)
    else:
        mix(va, gs)
    A(f"s_waitcnt vmcnt({len(gs)})")
    if par == 1:
        A(f"s_cmp_lg_u32 s{sD}, 1")
        A("s_cbranch_scc1 L_spin1_ok")
        check_flags("L_spin1", f"s{sFO}")
    lbar()
A("s_branch L_lloop")

cur[0] = "llast"
LBL("L_last")
CM("P(20)")
hi(wr_v(vLIN, SLOT)[:P["wsplit"]])
mix(vadd(range(P["vsplit"] + P["v1"], 4)), dma_wp(0, 1))
for d in rd_u0(): A(d)
srd(sGA, 36, 512)
srd(sBE, 38, 512)
A("s_waitcnt vmcnt(8)")
for d in rd_u1(vLIN, 0): A(d)
A("s_waitcnt lgkmcnt(0)")
A("s_barrier")
CM("P(21)")
gs = dma_wp(1, 2, True)
hi(wr_v(vLIN, SLOT)[P["wsplit"]:])
mix(vadd(range(2)), gs[:5])
A("s_waitcnt lgkmcnt(0)")
mix(vadd(range(2, 3)), gs[5:])
A("s_waitcnt vmcnt(8)")
A("s_barrier")
CM("P(22)")
wv = wr_v(vLIN2, 0)
for t in vadd(range(3, 4)): A(t)
for d in wv: A(d)
A("v_and_b32 v10, 15, v0")
A(f"s_lshl_b32 s{sTMP}, s{sNT}, 2")
A(f"s_add_u32 s{sTMP}, s{sTMP}, s{sWAVE}")
A(f"s_lshl_b32 s{sTMP}, s{sTMP}, 5")
A("v_lshlrev_b32 v14, 1, v10")
A(f"buffer_load_ushort v{GAM}, v14, s[{sGA}:{sGA+3}], s{sTMP} offen")
A(f"buffer_load_ushort v{GAM+1}, v14, s[{sBE}:{sBE+3}], s{sTMP} offen")
A("s_waitcnt vmcnt(2) lgkmcnt(0)")
A("s_barrier")
A("v_lshrrev_b32 v11, 4, v0")
A("v_lshlrev_b32 v12, 4, v10")
A("v_lshl_add_u32 v12, v11, 10, v12")
A(f"s_lshl_b32 s{sTMP}, s{sWAVE}, 6")
A(f"s_add_u32 s{sTMP}, s{sTMP}, {MISC+64}")
A(f"v_lshl_add_u32 v10, v10, 2, s{sTMP}")
if P["lprio"]: A("s_setprio 0")
A(f"s_add_u32 s{sWAVE}, s{sWAVE}, 4")
final_addr(FA)
A("s_waitcnt vmcnt(0)")
A(f"v_lshlrev_b32 v{GAM}, 16, v{GAM}")
A(f"v_lshlrev_b32 v{GAM+1}, 16, v{GAM+1}")
k0 = -2.0 * math.sqrt(2.0 / math.pi) * math.log2(math.e)
k1 = k0 * 0.044715
gam3 = -((-k1) ** (1.0 / 3.0))
if P["g5"]:
    A(f"v_mul_f32 v{GAM}, {f32(gam3)}, v{GAM}")
    A(f"v_mul_f32 v{GAM+1}, {f32(gam3)}, v{GAM+1}")
if not P["peel"]: A("s_barrier")
A("s_barrier")
stamp(1)
PG = 16
A(f"s_mov_b32 s{sCNT}, {SPIN}")
y_reads()
if P["spoll"]:
    for i in range(8):
        A(f"s_add_u32 s{84+i}, s{sGR}, {i*4096}")
    def pl(i): A(f"buffer_load_dwordx4 v[{PG+4*i}:{PG+4*i+3}], v12, s[{sWS}:{sWS+3}], s{84+i} offen sc0 sc1")
    for i in range(8): pl(i)
    for i in range(8):
        A(f"s_waitcnt vmcnt({7-i})")
        LBL(f"L_pc{i}")
        A(f"v_cmp_eq_u64 vcc, s[{sN0}:{sN1}], v[{PG+4*i+2}:{PG+4*i+3}]")
        A("s_cmp_eq_u64 vcc, -1")
        A(f"s_cbranch_scc0 L_pr{i}")
        LBL(f"L_pd{i}")
else:
    LBL("L_poll")
    for i in range(8):
        so = f"s{sGR}" if i == 0 else f"s{sTMP}"
        if i: A(f"s_add_u32 s{sTMP}, s{sGR}, {i*4096}")
        A(f"buffer_load_dwordx4 v[{PG+4*i}:{PG+4*i+3}], v12, s[{sWS}:{sWS+3}], {so} offen sc0 sc1")
    A(f"s_mov_b64 s[{sTA}:{sTA+1}], -1")
    for i in range(8):
        A(f"s_waitcnt vmcnt({7-i})")
        A(f"v_cmp_eq_u64 vcc, s[{sN0}:{sN1}], v[{PG+4*i+2}:{PG+4*i+3}]")
        A(f"s_and_b64 s[{sTA}:{sTA+1}], s[{sTA}:{sTA+1}], vcc")
    A(f"s_sub_u32 s{sCNT}, s{sCNT}, 1")
    A("s_cbranch_scc1 L_poll_ok")
    A(f"s_cmp_eq_u64 s[{sTA}:{sTA+1}], -1")
    A("s_cbranch_scc0 L_poll")
LBL("L_poll_ok")
stamp(2)
for st in (4, 2, 1):
    for i in range(st):
        pk("add", PG+4*i, PG+4*i, PG+4*(i+st))
for sw in ("v_permlane32_swap_b32", "v_permlane16_swap_b32"):
    A(f"v_mov_b32 v{PG+2}, v{PG}")
    A(f"v_mov_b32 v{PG+3}, v{PG+1}")
    A("s_nop 1")
    A(f"{sw} v{PG}, v{PG+2}")
    A(f"{sw} v{PG+1}, v{PG+3}")
    A("s_nop 1")
    pk("add", PG, PG, PG+2)
A(f"v_mul_f32 v{PG}, {f32(1.0/7993)}, v{PG}")
A(f"v_mul_f32 v{PG+1}, {f32(1.0/7993)}, v{PG+1}")
A(f"v_fma_f32 v{PG+1}, -v{PG}, v{PG}, v{PG+1}")
A(f"v_max_f32 v{PG+1}, 0, v{PG+1}")
A(f"v_add_f32 v{PG+1}, {f32(1e-5)}, v{PG+1}")
A(f"v_rsq_f32 v{PG+1}, v{PG+1}")
A("s_nop 0")
A(f"v_mul_f32 v{PG+1}, v{PG+1}, v{GAM}")
A(f"ds_write_b32 v10, v{PG+1}")
A(f"v_fma_f32 v{PG}, -v{PG}, v{PG+1}, v{GAM+1}")
A(f"ds_write_b32 v10, v{PG} offset:256")

if P["spoll"]:
    cur[0] = "cepi"
    for i in range(8):
        LBL(f"L_pr{i}")
        A(f"s_sub_u32 s{sCNT}, s{sCNT}, 1")
        A(f"s_cbranch_scc1 L_pd{i}")
        pl(i)
        for k in range(i + 1, min(i + 1 + P["spoll"] - 1, 8)): pl(k)
        A("s_waitcnt vmcnt(0)")
        A(f"s_branch L_pc{i}")
    tail_cepi = SEC["cepi"]; SEC["cepi"] = []
cur[0] = "final"
LBL("L_final")
k0 = -2.0 * math.sqrt(2.0 / math.pi) * math.log2(math.e)
k1 = k0 * 0.044715
A(f"s_mov_b32 s{sK+2}, {f32(gam3 if P['g5'] else k1)}")
A(f"s_mov_b32 s{sK+3}, {f32(gam3 if P['g5'] else k1)}")
A(f"s_mov_b32 s{sK+4}, 4096")
A(f"v_mov_b32 v56, {f32(k0/gam3 if P['g5'] else k0)}")
A(f"v_mov_b32 v57, {f32(k0/gam3 if P['g5'] else k0)}")
A("s_waitcnt lgkmcnt(0)")
A("s_barrier")
stamp(4)
CA, CC = 16, 24
A(f"ds_read_b128 v[{CA}:{CA+3}], v{FA+6}")
A(f"ds_read_b128 v[{CC}:{CC+3}], v{FA+6} offset:256")
A(f"ds_read_b128 v[{CA+4}:{CA+7}], v{FA+6} offset:16")
A(f"ds_read_b128 v[{CC+4}:{CC+7}], v{FA+6} offset:272")
Z, U = 32, 40
for n in range(4):
    y = Y + 8 * n
    for h in range(0, 8, 2):
        if n == 0 and h in (0, 4): A(f"s_waitcnt lgkmcnt({2 if h == 0 else 0})")
        pk("fma", y+h, y+h, CA+h, c=CC+h)
    if P["g5"]:
        for h in range(0, 8, 2): pk("fma", U+h, y+h, y+h, c=56)
    else:
        for h in range(0, 8, 2): pk("mul", U+h, y+h, y+h)
        for h in range(0, 8, 2): A(f"v_pk_fma_f32 v[{U+h}:{U+h+1}], v[{U+h}:{U+h+1}], s[{sK+2}:{sK+3}], v[56:57]")
    for h in range(0, 8, 2): pk("mul", U+h, U+h, y+h)
    for h in range(8): A(f"v_exp_f32 v{U+h}, v{U+h}")
    for h in range(0, 8, 2):
        if P["g5"]: A(f"v_pk_fma_f32 v[{U+h}:{U+h+1}], v[{U+h}:{U+h+1}], s[{sK+2}:{sK+3}], s[{sK+2}:{sK+3}]")
        else: A(f"v_pk_add_f32 v[{U+h}:{U+h+1}], v[{U+h}:{U+h+1}], 1.0 op_sel_hi:[1,0]")
    for h in range(8): A(f"v_rcp_f32 v{U+h}, v{U+h}")
    for h in range(0, 8, 2): pk("mul", y+h, y+h, U+h)
    o = Z + 4 * (n & 1)
    for h in range(4): A(f"v_cvt_pk_bf16_f32 v{o+h}, v{y+2*h}, v{y+2*h+1}")
    A(f"buffer_store_dwordx4 v[{o}:{o+3}], v{FA+4 if n < 2 else FA+5}, s[{sO}:{sO+3}], {'0' if n % 2 == 0 else 's'+str(sK+4)} offen" + ["", " nt", " sc1", " sc0 sc1", " sc1 nt"][P["stf"]])
if P["stamps"]:
    stamp(5)
    A("s_waitcnt vmcnt(0)")
    stamp(6)
    A("s_waitcnt lgkmcnt(0)")
    A(f"s_mov_b32 s{sWS+2}, 0x1000000")
    A(f"s_lshl_b32 s{sTMP}, s2, 3")
    A(f"s_add_u32 s{sTMP}, s{sTMP}, s{sWAVE}")
    A(f"s_lshl_b32 s{sTMP}, s{sTMP}, 5")
    A(f"s_add_u32 s{sTMP}, s{sTMP}, 0x200000")
    A("v_mov_b32 v1, 0")
    if plain and not P["pst"]: A("s_sub_u32 s90, s94, s92")
    for k in range(8): A(f"v_mov_b32 v{2+k}, s{sST+(k if P['cst'] else 2*k)}")
    A("s_mov_b64 exec, 1")
    if P["sst"] >= 0:
        for k in range(12): A(f"v_mov_b32 v{2+k}, v{MS+k}") if False else None
    if P["lst"] >= 0 or P["cst"] or P["sst"] >= 0:
        if P["sst"] >= 0:
            for k in range(12): A(f"v_readlane_b32 s{76+k}, v255, {k}")
            A("s_nop 1")
            for k in range(12): A(f"v_mov_b32 v{2+k}, s{76+k}")
        else:
            for k in range(4): A(f"v_mov_b32 v{10+k}, s{sST+8+k if P['cst'] else sST+16+2*k}")
        A(f"s_add_u32 s{sCNT}, s{sTMP}, 0x100000")
        A(f"buffer_store_dwordx4 v[10:13], v1, s[{sWS}:{sWS+3}], s{sCNT} offen")
    A(f"buffer_store_dwordx4 v[2:5], v1, s[{sWS}:{sWS+3}], s{sTMP} offen")
    A(f"buffer_store_dwordx4 v[6:9], v1, s[{sWS}:{sWS+3}], s{sTMP} offen offset:16")
if P["dbgt"]:
    A(f"s_cmp_lg_u32 s{sWAVE}, 0")
    A("s_cbranch_scc1 L_end")
    A("s_cmp_eq_u32 s2, 0")
    A(f"s_cselect_b32 s{sTMP}, 8, 36")
    A("s_cbranch_scc1 L_dd")
    A("s_cmp_lg_u32 s2, 77")
    A("s_cbranch_scc1 L_end")
    LBL("L_dd")
    for k in range(1, 7): A(f"v_subrev_u32 v{2+k}, v2, v{2+k}")
    A(f"buffer_store_dwordx4 v[2:5], v1, s[{sDBG}:{sDBG+3}], s{sTMP} offen")
    A(f"buffer_store_dwordx3 v[6:8], v1, s[{sDBG}:{sDBG+3}], s{sTMP} offen offset:16")
LBL("L_end")
A("s_endpgm")

cur[0] = "cpro"
LBL("L_compute")
G00, G11, GS = 16, 48, 80
SETS = [112, 172]
def vXR(role): return 1 + 2 * role
def vWR(role): return 2 + 2 * role
vW3, vW3C, vGA, vYW = 7, 8, 9, 10
T = 232
CWA, CWB = 112, 116
A(f"s_lshr_b32 s{sWAVE}, s{sWAVE}, 6")
A(f"s_memrealtime s[{sN0}:{sN1}]")
A(f"v_lshrrev_b32 v{T}, 5, v0")
A(f"s_lshl_b32 s{sTMP}, s{sWAVE}, 1")
A(f"v_add_u32 v{T}, s{sTMP}, v{T}")
A(f"v_and_b32 v{T+1}, 31, v0")
A(f"v_lshlrev_b32 v{T+1}, 4, v{T+1}")
A(f"s_lshl_b32 s{sTMP}, s2, 9")
A(f"v_add_u32 v{T+1}, s{sTMP}, v{T+1}")
A(f"v_lshl_add_u32 v{T+2}, v{T}, 17, v{T+1}")
A(f"v_and_b32 v{T}, 3, v{T}")
A(f"v_lshl_add_u32 v{T+1}, v{T}, 19, v{T+1}")
A(f"s_lshr_b32 s{sWO}, s{sWAVE}, 1")
A(f"s_lshl_b32 s{sWO}, s{sWO}, 17")
A(f"s_add_u32 s{sWN}, s{sWO}, {2*131072}")
A("s_waitcnt lgkmcnt(0)")
srd(sW, 34, W_BYTES)
if P["pq"]:
    A(f"s_cmp_eq_u32 s{sWAVE}, 0")
    A(f"s_cselect_b32 s{sW+2}, s{sW+2}, 0")
A(f"buffer_load_dwordx4 v[{CWA}:{CWA+3}], v{T+1}, s[{sW}:{sW+3}], s{sWO} offen" + (" nt" if P["pnt"] else ""))
A(f"buffer_load_dwordx4 v[{CWB}:{CWB+3}], v{T+1}, s[{sW}:{sW+3}], s{sWN} offen" + (" nt" if P["pnt"] else ""))
srd(sDBG, 42, 256)
A(f"s_or_b32 s{sTMP}, s2, s{sWAVE}")
A(f"s_cmp_lg_u32 s{sTMP}, 0")
A("s_cbranch_scc1 L_nononce")
A(f"s_or_b32 s{sN0}, s{sN0}, 1")
A(f"v_mov_b32 v{T+3}, 0")
A(f"v_mov_b32 v{T+6}, s{sN0}")
A(f"v_mov_b32 v{T+7}, s{sN1}")
A("s_mov_b64 exec, 1")
A(f"buffer_store_dwordx2 v[{T+6}:{T+7}], v{T+3}, s[{sDBG}:{sDBG+3}], 0 offen sc0 sc1")
A("s_mov_b64 exec, -1")
LBL("L_nononce")
if P["cpf"]:
    A(f"s_cmp_lg_u32 s{sWAVE}, 1")
    A("s_cbranch_scc1 L_nocpf")
    A("s_getpc_b64 s[74:75]")
    LBL("L_pc")
    A(f"s_lshr_b32 s{sTMP}, s2, 3")
    A(f"s_lshl_b32 s{sTMP}, s{sTMP}, 9")
    A(f"s_add_u32 s74, s74, s{sTMP}")
    A("s_addc_u32 s75, s75, 0")
    A(f"s_sub_u32 s74, s74, L_pc-{KN}")
    A("s_subb_u32 s75, s75, 0")
    A(f"v_lshlrev_b32 v{T+4}, 7, v0")
    A("s_mov_b64 exec, 15")
    A(f"global_load_dword v{T+5}, v{T+4}, s[74:75]")
    A("s_mov_b64 exec, -1")
    LBL("L_nocpf")
if P["warm"]:
    CM("visit one instruction in every later code page while the first loads are in flight")
    A("s_branch L_warm0")
    LBL("L_warmret")
srd(sWS, 44, WS_BYTES)
A(f"s_mov_b32 s{sPO}, {WP_OFF}")
out_srd()
A(f"s_mov_b32 s{sMID}, 0x7fff7fff")
A(f"s_cselect_b32 s{sMID}, s{sMID}, -1")
A(f"s_mov_b32 s{sMID+1}, s{sMID}")
granule_off()
A(f"s_lshl_b32 s{sTMP}, s{sT}, 10")
A(f"s_add_u32 s{sGR}, s{sGR}, s{sTMP}")
R, G_, X1, X2 = 120, 121, 122, 124
A(f"v_and_b32 v{R}, 15, v0")
A(f"v_lshrrev_b32 v{G_}, 4, v0")
A(f"v_mul_u32_u24 v{X1}, {XB}, v{R}")
A(f"v_lshl_add_u32 v{vXR(0)}, v{G_}, 4, v{X1}")
A(f"v_bfe_u32 v{X2}, v0, 2, 2")
A(f"v_lshl_add_u32 v{X1}, v{G_}, 3, v{X2}")
A(f"v_lshlrev_b32 v{X1}, 7, v{X1}")
A(f"v_lshrrev_b32 v{X2}, 1, v{X2}")
A(f"v_and_b32 v{X2+1}, 1, v{G_}")
A(f"v_lshl_or_b32 v{X2}, v{X2+1}, 1, v{X2}")
A(f"v_xor_b32 v{X2}, s{sWAVE}, v{X2}")
A(f"v_lshl_add_u32 v{X1}, v{X2}, 5, v{X1}")
A(f"v_and_b32 v{X2}, 3, v0")
A(f"v_lshl_add_u32 v{X1}, v{X2}, 3, v{X1}")
A(f"v_add_u32 v{vWR(0)}, {WOFF}, v{X1}")
A(f"v_add_u32 v{vW3}, {WOFF + tile(0,3)}, v{X1}")
A(f"v_lshlrev_b32 v{vW3C}, 1, v{X1}")
A(f"v_add_u32 v{vW3C}, {2*SLOT + WOFF + tile(0,3) + SPARE}, v{vW3C}")
for k in (1, 2):
    A(f"v_add_u32 v{k+2}, {SLOT}, v{k}")
    A(f"v_add_u32 v{k+4}, {2*SLOT}, v{k}")
if P["red"]:
    CM("after the reduce-scatter lane r of group g holds channel 4g + (r>>2)")
    A(f"v_lshrrev_b32 v{X1}, 2, v{R}")
    A(f"v_lshl_add_u32 v{vGA}, v{G_}, 2, v{X1}")
else:
    A(f"v_lshl_add_u32 v{vGA}, v{G_}, 2, v{R}")
A(f"v_lshlrev_b32 v{vGA}, 4, v{vGA}")
A(f"s_lshl_b32 s{sTMP}, s{sWAVE}, 2")
A(f"v_add_u32 v{X1}, s{sTMP}, v{G_}")
A(f"v_lshrrev_b32 v{X2}, 1, v{X1}")
A(f"v_and_b32 v{X1}, 1, v{X1}")
A(f"v_lshl_or_b32 v{X1}, v{X1}, 3, v{X2}")
A(f"v_and_b32 v{X2}, 7, v{R}")
A(f"v_xor_b32 v{X1}, v{X1}, v{X2}")
A(f"v_lshlrev_b32 v{X1}, 4, v{X1}")
A(f"v_lshl_add_u32 v{vYW}, v{R}, 12, v{X1}")
A(f"v_xor_b32 v{vYW+1}, 0x80, v{vYW}")
final_addr(FA)
for i in range(0, 96, 2):
    A(f"v_pk_mov_b32 v[{16+i}:{17+i}], 0, 0")
A("s_waitcnt vmcnt(0)")
for t in addbf_list(CWA, CWA, CWB, 224, True): A(t)
A(f"buffer_store_dwordx4 v[{CWA}:{CWA+3}], v{T+2}, s[{sWS}:{sWS+3}], s{sPO} offen sc0 sc1")
if P["prio"]: A(f"s_setprio {P['prio']}")
if not P["lateack"]: A("s_waitcnt vmcnt(0)")

def reads(role, hh, st, ndpp=0, last=False):
    xb = SETS[st]; wb = xb + 44
    def xr(q): return (("X", q), f"ds_read_b128 v[{xb+4*q}:{xb+4*q+3}], v{vXR(role)} offset:{(q & 7)*128 + hh*64 + (XB if q > 7 else 0)}")
    def wr(s, h):
        if role == 0 and s == 3 and not last:
            return (("W", s), f"ds_read_b64_tr_b16 v[{wb+4*s+2*h}:{wb+4*s+2*h+1}], v{vW3} offset:{hh*4096 + h*512}")
        return (("W", s), f"ds_read_b64_tr_b16 v[{wb+4*s+2*h}:{wb+4*s+2*h+1}], v{vWR(role)} offset:{tile(hh, s) + h*512}")
    if role == 1 and P["u3"]:
        r = [wr(0, 0), wr(0, 1), xr(0), wr(1, 0), wr(1, 1), xr(1), wr(2, 0), wr(2, 1)] + [xr(q) for q in range(2, 10)] + [wr(3, 0), wr(3, 1), xr(10)]
    else:
        r = [wr(0, 0), wr(0, 1), xr(0), wr(1, 0), wr(1, 1)] + [xr(q) for q in range(1, 9)] + [wr(2, 0), wr(2, 1), wr(3, 0), wr(3, 1), xr(9), xr(10)]
    dq = list(range(11 - ndpp, 11))
    r = [e for e in r if not (e[0][0] == "X" and e[0][1] in dq)]
    d = [f"v_mov_b32_dpp v{xb+4*q+i}, v{xb+4*(q-8)+i} row_shl:1 row_mask:0xf bank_mask:0xf bound_ctrl:0" for q in dq for i in range(4)]
    return r, d
def mfma_list(acc, st, split3=False):
    xb = SETS[st]; wb = xb + 44
    pairs = []
    if split3 and P["u3"]:
        pairs = [(s, j) for j in range(8) for s in ((0, 1, 2) if j % 2 == 0 else (2, 1, 0))] + [(3, j) for j in range(8)]
    else:
        for s0 in ((0,) if split3 else (0, 2)):
            for q in range(s0, s0 + 9):
                for s in (s0 + 1, s0):
                    if 0 <= q - s < 8: pairs.append((s, q - s))
        if split3: pairs += [(s, j) for s in (2, 3) for j in range(8)]
    out = []
    for s, j in pairs:
        d = f"v[{acc+4*j}:{acc+4*j+3}]"
        out.append(([("W", s), ("X", j+s)], f"v_mfma_f32_16x16x32_bf16 {d}, v[{wb+4*s}:{wb+4*s+3}], v[{xb+4*(j+s)}:{xb+4*(j+s)+3}], {d}"))
    return out
pending = []
ss_n = [0]
def sstamp():
    if P["sst"] < 0 or ss_n[0] >= 12: return
    k = ss_n[0]; ss_n[0] += 1
    A(f"s_memtime s[{76+2*k}:{77+2*k}]")
def seq(acc, st, rdd, barrier, skip_label=None, extra=None, delay=0, vm0=False, pre=()):
    global pending
    rd, dpp = rdd
    pre = list(pre)
    nm = 24 if skip_label else 32
    m = mfma_list(acc, st, skip_label is not None)
    rd = [] if P["nords"] else list(rd)
    dpp = list(dpp)
    first = max(P["barslot"], delay) if barrier else 0
    if dpp:
        first = min(first, nm - len(rd) - len(dpp) - 0) if barrier else first
        first = max(first, P["barslot"]) if barrier else first
        last = first + len(rd) - 1
    else:
        last = max(min(first + len(rd) if barrier else P["rdA"], nm - P["rd_gap"]), first + len(rd) - 1) if rd else 0
    slots = [first + (k * (last - first)) // max(len(rd) - 1, 1) for k in range(len(rd))]
    dslots = [min(last + 1 + len(pre) + k, nm - 1) for k in range(len(dpp))]
    if pre:
        extra = dict(extra or {})
        for k, t in enumerate(pre): extra.setdefault(last + 1 + k, []).append(t)
    cur_ = list(pending); newer = 0; nxt = []; nd = 0
    for i, (need, ins) in enumerate(m):
        if i == 24 and skip_label:
            A(f"s_cbranch_scc1 {skip_label}")
        W_ = 8 if P["w8"] else 16
        if i % W_ == 0 or (skip_label and i == 24):
            need = [k for nd_, _ in m[i:i+W_ if not (skip_label and i == 16) else 24] for k in nd_]
            if barrier and i == 0: need = [k for nd_, _ in m[:P["barslot"]+1] for k in nd_]
            idx = max([k for k, key in enumerate(cur_) if key in need], default=-1)
            if idx >= 0:
                n = len(cur_) - 1 - idx + newer
                if n < 15: A(f"s_waitcnt lgkmcnt({n})")
                cur_ = cur_[idx+1:]
        A(ins)
        if barrier and i == P["barslot"]:
            if cur_ or vm0: A("s_waitcnt" + (" vmcnt(0)" if vm0 else "") + " lgkmcnt(0)"); cur_ = []
            sstamp()
            A("s_barrier")
            sstamp()
        while rd and slots[len(nxt)] <= i:
            key, s = rd.pop(0); A(s); nxt.append(key); newer += 1
        while nd < len(dpp) and dslots[nd] <= i:
            if nd == 0:
                k = max(nxt.index(("X", q)) for q in range(3) if ("X", q) in nxt)
                A(f"s_waitcnt lgkmcnt({min(len(nxt) - 1 - k, 15)})")
            A(dpp[nd]); nd += 1
        if extra and i in extra:
            for s in extra[i]: A(s)
    assert not rd and nd == len(dpp)
    if skip_label: LBL(skip_label)
    pending = nxt
    sstamp()
A("s_barrier")
stamp(1)
if plain: A("s_memtime s[92:93]"); A("s_waitcnt lgkmcnt(0)")
D2, D3 = (2 if P["dpp"] else 0), (3 if P["dpp"] else 0)
r0, _ = reads(0, 0, 0)
for _, s in r0: A(s)
LATE = reads(0, 0, 0, 2)[1] if P["dpp"] & 8 else []
pending = [k for k, _ in reads(0, 0, 0, D2 if P["dpp"] & 12 else 0)[0]]
loop_entry = list(pending)
A(f"s_mov_b32 s{sCNT}, 0")
if P["dpp"] & 12: A("s_waitcnt lgkmcnt(0)")
A("s_branch L_cloop")

cur[0] = "cloop"
def cstamp(idx=None):
    if not P["cst"]: return
    A("s_memtime s[100:101]")
    A("s_waitcnt lgkmcnt(0)")
    if idx is None:
        A(f"s_mov_b32 m0, s{sCNT}")
        A("s_nop 0")
        A("s_movreld_b32 s76, s100")
    else:
        A(f"s_mov_b32 s{76+idx}, s100")
LBL("L_cloop")
if P["sst"] >= 0:
    A(f"s_cmp_lg_u32 s{sCNT}, {P['sst'] + 1}")
    A("s_cbranch_scc1 L_nss")
    A("s_waitcnt lgkmcnt(0)")
    for k in range(12): A(f"v_writelane_b32 v255, s{76+2*k}, {k}")
    LBL("L_nss")
cstamp()
seq(G00, 0, reads(0, 1, 1, D2), False, pre=LATE)
seq(G00, 1, reads(1, 0, 0, D3 if P["dpp"] & 2 else 0), True, extra={28: [f"v_sub_u32 v{vW3}, v{vW3C}, v{vW3}"]}, delay=P["dly0"], vm0=bool(P["lateack"]))
A(f"s_bitcmp1_b32 s{sCNT}, 0")
seq(G11, 0, reads(1, 1, 1), False, "L_skipa")
seq(G11, 1, reads(2, 0, 0), True, "L_skipb")
A(f"s_cmp_eq_u32 s{sCNT}, 0")
A("s_cbranch_scc1 L_cfirst")
LBL("L_gs")
pend_gs = list(pending)
seq(GS, 0, reads(2, 1, 1, D3), False)
A(f"s_add_u32 s{sCNT}, s{sCNT}, 1")
A(f"s_cmp_lt_u32 s{sCNT}, 8")
seq(GS, 1, (reads(0, 0, 0, 2)[0], []) if P["dpp"] & 8 else reads(0, 0, 0, D2 if P["dpp"] & 4 else 0), True, delay=P["dly2"] + (2 if P["dpp"] & 8 else 0))
pend_loop = list(pending)
assert pend_loop == loop_entry
A("s_cbranch_scc1 L_cloop")
if not P["peel"]:
    A(f"s_cmp_eq_u32 s{sCNT}, 9")
    A("s_cbranch_scc1 L_cdone")
    cstamp(8)
    for k in (5, 6): A(f"v_mov_b32 v{k}, v{k-4}")
    if pend_loop != pend_gs: A("s_waitcnt lgkmcnt(0)")
    A("s_branch L_gs")
else:
    A("s_branch L_cdone")
LBL("L_cfirst")
if not P["pubst"]: stamp(3)
for k in (1, 2):
    A(f"v_add_u32 v{k}, {2*SLOT}, v{k}")
    A(f"v_subrev_u32 v{k+2}, {SLOT}, v{k+2}")
    A(f"v_subrev_u32 v{k+4}, {SLOT}, v{k+4}")
A(f"v_add_u32 v{vW3}, {tile(0,3)}, v2")
A(f"s_mov_b32 s{sCNT}, 1")
if pend_loop != pend_gs: A("s_waitcnt lgkmcnt(0)")
A("s_branch L_cloop")

cur[0] = "cepi"
LBL("L_cdone")
def yreg(idx): return ((SETS[0] if P["pp"] else G11) if idx % 2 == 0 else GS) + 4 * (idx // 2)
S1, S2 = 16, 20
dppl = [f"v_mov_b32_dpp v{T+i}, v{G00+i} row_shl:1 row_mask:0xf bank_mask:0xf bound_ctrl:0" for i in range(4)]
if P["peel"]:
    cstamp(8)
    pending = pend_loop
    CM("last stage, with the G00/G11 part of the output transform in its shadow: G11 <- y0, G00[j] <- G11[j] + G00[j+1]")
    exA = {20 + i: [dppl[i]] for i in range(4)}
    exA[19] = [f"v_mov_b32 v12, {MISC}", "ds_read_b64 v[238:239], v12"]
    Y0 = SETS[0]
    ex = []
    if P["pp"]:
        def op2(d, x, y):
            return [pks("add", d, x, y), pks("add", d+2, x+2, y+2)] if P["pp"] == 2 else [f"v_add_f32 v{d+i}, v{x+i}, v{y+i}" for i in range(4)]
        for j in range(8):
            ex += op2(Y0+4*j, G00+4*j, G11+4*j)
        for j in range(8):
            ex += op2(G11+4*j, G11+4*j, G00+4*(j+1) if j < 7 else T)
    if LATE:
        exA = {(k + 8 if k >= 20 else k): v for k, v in exA.items()}
        for k, t in enumerate(LATE): exA[20 + k] = [t]
    seq(GS, 0, reads(0, 1, 1, 0, True), False, extra=exA)
    pending = pending + [("N", 0)]
    nh = min(len(ex), P["ppn"])
    seq(GS, 1, ([], []), False, extra={1 + (k * 31) // max(nh, 1): [] for k in range(nh)} and
        {i: [ex[k] for k in range(nh) if 1 + (k * 31) // nh == i] for i in range(32)} if nh else None)
    if P["pp"] == 1 and nh % 4 == 0 and nh >= 32:
        for j in range((nh - 32) // 4, 8):
            for h in (0, 2): pk("add", G11+4*j+h, G11+4*j+h, (G00+4*(j+1) if j < 7 else T) + h)
    else:
        for t in ex[nh:]: A(t)
    A("s_nop 7")
else:
    A(f"v_mov_b32 v12, {MISC}")
    A("ds_read_b64 v[238:239], v12")
    for t in dppl: A(t)
    A("s_nop 2")
cstamp(9)
stamp(2)
if plain: A("s_memtime s[94:95]")
if P["prio"]: A("s_setprio 0")
for j in range(8):
    for h in (0, 2):
        pk("add", GS+4*j+h, GS+4*j+h, G11+4*j+h, neg=True)
for j in range(8):
    for h in (0, 2):
        if P["pp"]: continue
        nx = G00+4*(j+1)+h if j < 7 else T+h
        pk("add", GS+4*j+h, GS+4*j+h, nx, neg=True)
        pk("add", G11+4*j+h, G11+4*j+h, G00+4*j+h)
for h in (0, 2):
    pk("add", S1+h, yreg(0)+h, yreg(1)+h)
    pk("mul", S2+h, yreg(0)+h, yreg(0)+h)
for idx in range(1, 16):
    if idx == 3: A(f"s_mov_b64 exec, s[{sMID}:{sMID+1}]")
    if idx == 10:
        A("s_mov_b32 exec_lo, 0x7fff7fff")
        A("s_mov_b32 exec_hi, 0x7fff7fff")
    for h in (0, 2):
        if idx > 1: pk("add", S1+h, S1+h, yreg(idx)+h)
        pk("fma", S2+h, yreg(idx)+h, yreg(idx)+h, c=S2+h)
A("s_mov_b64 exec, -1")
A("s_nop 1")
def dadd(d, s, ctl, bm="0xf"): A(f"v_add_f32_dpp v{d}, v{s}, v{s} {ctl} row_mask:0xf bank_mask:{bm}")
if P["red"]:
    CM("reduce-scatter over the 16 lanes of a row: banks (r>>2) end up with channel r>>2")
    for b in (S1, S2):
        dadd(b+8, b, "row_ror:8"); dadd(b+9, b+1, "row_ror:8")
    for b in (S1, S2):
        dadd(b+8, b+2, "row_ror:8", "0xc"); dadd(b+9, b+3, "row_ror:8", "0xc")
    A("s_nop 0")
    dadd(236, S1+8, "row_half_mirror"); dadd(237, S2+8, "row_half_mirror")
    dadd(236, S1+9, "row_half_mirror", "0xa"); dadd(237, S2+9, "row_half_mirror", "0xa")
    A("s_nop 0")
    dadd(236, 236, "quad_perm:[1,0,3,2]"); dadd(237, 237, "quad_perm:[1,0,3,2]")
    A("s_nop 0")
    dadd(236, 236, "quad_perm:[2,3,0,1]"); dadd(237, 237, "quad_perm:[2,3,0,1]")
    A("s_mov_b32 exec_lo, 0x11111111")
    A("s_mov_b32 exec_hi, 0x11111111")
else:
    for sh in (8, 4, 2, 1):
        for i in range(8): dadd(16+i, 16+i, f"row_ror:{sh}")
    A("v_mov_b32 v236, v16")
    A("v_mov_b32 v237, v20")
    for i in (1, 2, 3):
        mk = (1 << i) * 0x00010001
        A(f"s_mov_b32 exec_lo, {mk:#x}")
        A(f"s_mov_b32 exec_hi, {mk:#x}")
        A(f"v_mov_b32 v236, v{16+i}")
        A(f"v_mov_b32 v237, v{20+i}")
    A("s_mov_b32 exec_lo, 0x000f000f")
    A("s_mov_b32 exec_hi, 0x000f000f")
A("s_waitcnt lgkmcnt(0)")
A(f"buffer_store_dwordx4 v[236:239], v{vGA}, s[{sWS}:{sWS+3}], s{sGR} offen sc0 sc1")
A("s_mov_b64 exec, -1")
if P["pubst"]: stamp(3)
for idx in range(16):
    A(f"ds_write_b128 v{vYW + ((idx // 2) & 1)}, v[{yreg(idx)}:{yreg(idx)+3}] offset:{idx*256}")
A("s_waitcnt lgkmcnt(0)")
A("s_barrier")
y_reads()
A("s_branch L_final")
if P["spoll"]: SEC["cepi"] += tail_cepi

ALG = "" if not P["algn"] else f".p2align 12\n.fill {(4096 - 0x300 + (P['algn'] - 1) * 256) // 4}, 4, 0xbf810000\n"
out = [f"""; conv stem (K=15, stride 2) as a 2-parallel fast-FIR GEMM + per-channel GroupNorm + tanh GELU, one launch.
; @launch grid=(256,1,1) block=(512,1,1) lds={LDS_BYTES}
.amdgcn_target "amdgcn-amd-amdhsa--gfx950"
.text
.globl {KN}
{ALG}.p2align 8
.type {KN},@function
{KN}:"""]
wk = 0
for sec in ("entry", "lpro", "cpro", "cloop", "lloop", "cepi", "llast", "final"):
    if P["warm"] and sec in ("cloop", "lloop", "cepi", "llast"):
        out += [f"L_warm{wk}:", f"  s_branch L_warm{wk+1}"]; wk += 1
    if sec in ("cloop", "lloop"): out.append(".p2align 6")
    out += SEC[sec]
if P["warm"]: out += [f"L_warm{wk}:", "  s_branch L_warmret"]
out.append(f""".p2align 8
.fill 1024, 4, 0xbf810000
.section .rodata,"a"
.p2align 6
.amdhsa_kernel {KN}
  .amdhsa_next_free_vgpr 256
  .amdhsa_next_free_sgpr 102
  .amdhsa_accum_offset 256
  .amdhsa_group_segment_fixed_size 0
  .amdhsa_kernarg_size 64
  .amdhsa_user_sgpr_count 2
  .amdhsa_user_sgpr_kernarg_segment_ptr 1
  .amdhsa_system_sgpr_workgroup_id_x 1
.end_amdhsa_kernel""")
print("\n".join(out))
```

```python
import sys, struct, math
P = dict(prio=2, lprio=0, dsprio=3, stamps=0, novalu=0, nodma=0, nords=0, barslot=1, rd_gap=5, rdA=19, dly0=13, dly2=13,
         touch=1, lst=-1, cst=0, pst=0, sst=-1, vsplit=2, wsplit=2, cpf=1, stf=2, dbgt=0, dpp=9, u3=1, red=1, wend=0, wend2=0, u0first=0, warm=0, pq=0, xnt=0, tnt=0, wnt=0, pnt=0, vpk=0, pubst=0, x1st=1, algn=0, fresh=1, burst1=0, early2=0, w8=1, cv=0, sst0=0, c0t=1, ct="", ctpos=1, dif=1, nochk=0, v1=2, g5=1, spoll=0, lateack=1, peel=1, pp=1, ppn=48,
         pro="D0:0:4.D1:0:4.D0.N.D1.S.B.U.V02.D2:0:8.B.F.V24.D2.D3.B.G.w.r.C.D4.T2ab.T3ab.B")
for a in sys.argv[1:]:
    k, v = a.split("=")
    P[k] = v if k in ("pro", "ct") else int(v)

KN = "standalone__self_sup_conv_stem_hubert__speech_kernel"
XB = 1056
XSZ = 16 * XB + 128
WOFF = XSZ
SLOT = WOFF + 32768
SPARE = 3 * SLOT
MISC = SPARE + 8192
LDS_BYTES = MISC + 1024
X_BYTES = 2 * 16000 * 256 * 2
W_BYTES = 15 * 256 * 256 * 2
FL_OFF, WP_OFF, WS_BYTES = 0x40000, 0x80000, 0x180000
OOB = 0x40000000
SPIN = 0x4000
def tile(hh, s): return (hh * 3 + s if s < 3 else 6 + hh) * 4096

SEC = {k: [] for k in ("entry", "lpro", "lloop", "llast", "final", "cpro", "cloop", "cepi")}
cur = ["entry"]
def A(s): SEC[cur[0]].append("  " + s)
def LBL(s): SEC[cur[0]].append(s + ":")
def CM(s): SEC[cur[0]].append("  ; " + s)
def f32(x): return "0x%08x" % struct.unpack("<I", struct.pack("<f", x))[0]

sX, sW, sO, sWS, sDBG, sGA, sBE = 4, 8, 12, 16, 20, 24, 28
sWAVE, sT, sNT, sB = 46, 47, 48, 49
sWN, sXO, sWO, sPO, sTMP, sCNT, sMASK16 = 50, 51, 52, 53, 55, 56, 57
sTA = 58
sD, sXB = 60, 61
sN0, sN1 = 62, 63
sMID = 64
sGR, sFO = 66, 67
sK = 68
sM0, sMX = 73, 74
sXW = 75
sST = 76

def srd(d, lo, nbytes):
    A(f"s_mov_b32 s{d}, s{lo}")
    A(f"s_and_b32 s{d+1}, s{lo+1}, 0xffff")
    A(f"s_mov_b32 s{d+2}, {nbytes}")
    A(f"s_mov_b32 s{d+3}, 0x20000")
def out_srd():
    A(f"s_mul_i32 s{sTMP}, s{sB}, {7993*512}")
    A(f"s_mul_i32 s{sCNT}, s{sT}, {250*512}")
    A(f"s_add_u32 s{sTMP}, s{sTMP}, s{sCNT}")
    A(f"s_add_u32 s{sO}, s40, s{sTMP}")
    A(f"s_addc_u32 s{sO+1}, s41, 0")
    A(f"s_and_b32 s{sO+1}, s{sO+1}, 0xffff")
    A(f"s_cmp_eq_u32 s{sT}, 31")
    A(f"s_mov_b32 s{sO+2}, {243*512}")
    A(f"s_cselect_b32 s{sO+2}, s{sO+2}, {250*512}")
    A(f"s_mov_b32 s{sO+3}, 0x20000")
def granule_off():
    A(f"s_lshl_b32 s{sGR}, s{sB}, 2")
    A(f"s_add_u32 s{sGR}, s{sGR}, s{sNT}")
    A(f"s_lshl_b32 s{sGR}, s{sGR}, 15")
    A(f"s_lshl_b32 s{sTMP}, s{sWAVE}, 8")
    A(f"s_add_u32 s{sGR}, s{sGR}, s{sTMP}")
plain = P["stamps"] and P["lst"] < 0 and not P["cst"] and P["sst"] < 0
def stamp(k):
    if not plain: return
    if P["pst"] and k > 0 and cur[0] not in ("cpro", "cloop", "cepi"): return
    A(f"s_memrealtime s[{sST+2*k}:{sST+2*k+1}]")
def pstamp(k):
    if P["pst"] == 1: A(f"s_memrealtime s[{sST+2*k}:{sST+2*k+1}]")
def addbf_list(d, a, b, t, force=False):
    r = []
    if P["novalu"] and not force: return r
    for i0 in (0, 2):
        if P["vpk"]:
            for i in (i0, i0 + 1):
                u = t + 4 * (i - i0)
                r += [f"v_lshlrev_b32 v{u}, 16, v{a+i}", f"v_and_b32 v{u+1}, s{sMASK16}, v{a+i}",
                      f"v_lshlrev_b32 v{u+2}, 16, v{b+i}", f"v_and_b32 v{u+3}, s{sMASK16}, v{b+i}"]
            for i in (i0, i0 + 1):
                u = t + 4 * (i - i0)
                r += [f"v_pk_add_f32 v[{u}:{u+1}], v[{u}:{u+1}], v[{u+2}:{u+3}]"]
            for i in (i0, i0 + 1):
                u = t + 4 * (i - i0)
                r += [f"v_cvt_pk_bf16_f32 v{d+i}, v{u}, v{u+1}"]
            continue
        for i in (i0, i0 + 1):
            u = t + 4 * (i - i0)
            r += [f"v_lshlrev_b32 v{u}, 16, v{a+i}", f"v_lshlrev_b32 v{u+1}, 16, v{b+i}",
                  f"v_and_b32 v{u+2}, s{sMASK16}, v{a+i}", f"v_and_b32 v{u+3}, s{sMASK16}, v{b+i}"]
        for i in (i0, i0 + 1):
            u = t + 4 * (i - i0)
            op = "v_sub_f32" if P["dif"] else "v_add_f32"
            r += [f"{op} v{u}, v{u}, v{u+1}", f"{op} v{u+2}, v{u+2}, v{u+3}"]
        for i in (i0, i0 + 1):
            u = t + 4 * (i - i0)
            r += [f"v_cvt_pk_bf16_f32 v{d+i}, v{u}, v{u+2}"]
    return r
def pks(op, d, a, b, neg=False, c=None):
    s = f"v_pk_{op}_f32 v[{d}:{d+1}], v[{a}:{a+1}], v[{b}:{b+1}]"
    if c is not None: s += f", v[{c}:{c+1}]"
    if neg: s += " neg_lo:[0,1] neg_hi:[0,1]"
    return s
def pk(*a, **k): A(pks(*a, **k))
def final_addr(base):
    b = base
    A(f"v_lshrrev_b32 v{b+4}, 3, v0")
    A(f"v_and_b32 v{b+6}, 7, v0")
    A(f"s_lshl_b32 s{sTMP}, s{sWAVE}, 5")
    A(f"v_add_u32 v{b+4}, s{sTMP}, v{b+4}")
    A(f"v_bfe_u32 v{b}, v0, 4, 1")
    A(f"v_lshl_or_b32 v{b}, v{b}, 3, v{b+6}")
    A(f"s_lshl_b32 s{sTMP}, s{sWAVE}, 1")
    A(f"s_and_b32 s{sTMP}, s{sTMP}, 7")
    A(f"v_xor_b32 v{b}, s{sTMP}, v{b}")
    A(f"v_lshlrev_b32 v{b}, 4, v{b}")
    A(f"v_lshl_add_u32 v{b}, v{b+4}, 8, v{b}")
    A(f"v_xor_b32 v{b+1}, 0x80, v{b}")
    A(f"v_xor_b32 v{b+2}, 0x10, v{b}")
    A(f"v_xor_b32 v{b+3}, 0x90, v{b}")
    A(f"v_lshlrev_b32 v{b+4}, 9, v{b+4}")
    A(f"v_lshl_add_u32 v{b+4}, v{b+6}, 4, v{b+4}")
    A(f"s_lshl_b32 s{sTMP}, s{sNT}, 7")
    A(f"v_add_u32 v{b+4}, s{sTMP}, v{b+4}")
    A(f"v_add_u32 v{b+5}, 0x2000, v{b+4}")
    A(f"v_lshlrev_b32 v{b+6}, 5, v{b+6}")
    A(f"v_add_u32 v{b+6}, {MISC+64}, v{b+6}")
FA = 244
Y = 112
def y_reads():
    for n in range(4):
        for h in range(2):
            A(f"ds_read_b128 v[{Y+8*n+4*h}:{Y+8*n+4*h+3}], v{FA + h + 2*(n >> 1)} offset:{n*2048}")

stamp(0)
A("s_load_dwordx4 s[32:35], s[0:1], 0")
A("s_load_dwordx4 s[40:43], s[0:1], 40")
A("s_load_dwordx2 s[44:45], s[0:1], 56")
A("s_load_dwordx4 s[36:39], s[0:1], 24")
A("s_cmp_ge_u32 s2, 256")
A("s_cbranch_scc1 L_end")
A(f"v_readfirstlane_b32 s{sWAVE}, v0")
A("v_and_b32 v0, 63, v0")
A(f"s_and_b32 s{sT}, s2, 7")
A(f"s_lshl_b32 s{sT}, s{sT}, 3")
A(f"s_lshr_b32 s{sTMP}, s2, 5")
A(f"s_add_u32 s{sT}, s{sT}, s{sTMP}")
A(f"s_bfe_u32 s{sNT}, s2, 0x20003")
A(f"s_lshr_b32 s{sB}, s{sT}, 5")
A(f"s_and_b32 s{sT}, s{sT}, 31")
A(f"s_mov_b32 s{sMASK16}, 0xffff0000")
A(f"s_cmp_lt_u32 s{sWAVE}, 256")
A("s_cbranch_scc1 L_compute")

cur[0] = "lpro"
vXG, vWG, vLIN, vLIN2, vU0, vFL, vZ, vTC = 1, 3, 4, 5, 6, 8, 9, 15
U0, U1, TT, FLG, NON, JUNK, GAM, VV = 16, 32, 48, 56, 64, 66, 68, 80
sTS, sTB = 24, 68
A(f"s_bfe_u32 s{sWAVE}, s{sWAVE}, 0x20006")
if P["fresh"]: A("s_memrealtime s[70:71]")
A(f"s_mul_i32 s{sXB}, s{sB}, {16000*512}")
A(f"s_mul_i32 s{sTMP}, s{sT}, {500*512}")
A(f"s_add_u32 s{sXB}, s{sXB}, s{sTMP}")
A("v_lshrrev_b32 v10, 3, v0")
A("v_and_b32 v11, 7, v0")
A("v_lshlrev_b32 v12, 4, v11")
A(f"v_lshl_add_u32 v{vXG}, v10, 11, v12")
A(f"s_lshl_b32 s{sXW}, s{sWAVE}, 16")
A(f"s_add_u32 s{sXO}, s{sXB}, s{sXW}")
A(f"s_mul_i32 s{sMX}, s{sWAVE}, {4*XB}")
A("v_bfe_u32 v13, v0, 4, 1")
A(f"s_and_b32 s{sTMP}, s{sWAVE}, 1")
A(f"s_lshl_b32 s{sTMP}, s{sTMP}, 1")
A(f"v_or_b32 v13, s{sTMP}, v13")
A("v_lshlrev_b32 v13, 5, v13")
A("v_xor_b32 v13, v13, v12")
A("v_lshl_add_u32 v13, v10, 9, v13")
A(f"s_lshl_b32 s{sTMP}, s{sNT}, 7")
A(f"s_lshl_b32 s{sM0}, s{sWAVE}, 12")
A(f"s_add_u32 s{sTMP}, s{sTMP}, s{sM0}")
A(f"v_add_u32 v{vWG}, s{sTMP}, v13")
A(f"s_lshl_b32 s{sM0}, s{sWAVE}, 10")
A(f"s_mov_b32 s{sWO}, 0")
A(f"v_mov_b32 v{vZ}, 0")
A(f"s_lshl_b32 s{sTMP}, s{sWAVE}, 4")
A(f"s_lshl_b32 s{sCNT}, s{sNT}, 6")
A(f"s_add_u32 s{sTMP}, s{sTMP}, s{sCNT}")
A(f"v_add_u32 v14, s{sTMP}, v0")
A(f"v_lshlrev_b32 v{vTC}, 10, v14")
A("s_waitcnt lgkmcnt(0)")
pstamp(1)
srd(sX, 32, X_BYTES)
srd(sW, 34, W_BYTES)

TAPS = {("G00", 0): [0, 4, 8, 12], ("G11", 0): [2, 6, 10, 14], ("G00", 1): [1, 5, 9, 13], ("G11", 1): [3, 7, 11]}
def dw(lds, so, tap, hh):
    return [f"s_add_u32 m0, s{sM0}, {lds}",
            f"s_add_u32 s{sTMP}, s{so}, {tap*131072 + hh*16384}",
            f"buffer_load_dwordx4 v{vWG}, s[{sW}:{sW+3}], s{sTMP} offen" + (" nt" if (P["wnt"] == 2 or (P["wnt"] == 1 and cur[0] == "lpro")) else "") + " lds"]
def dma_w(slot, taps, ss=(0, 1, 2, 3), so=None):
    return [dw(slot*SLOT + WOFF + tile(hh, s), so or sWO, taps[s], hh) for hh in (0, 1) for s in ss if s < len(taps)]
def dma_wp(par, slot, spare0=False):
    r = []
    for hh in (0, 1):
        for s in range(4):
            dst = SPARE if (spare0 and hh == 0 and s == 3) else slot*SLOT + WOFF + tile(hh, s)
            r.append([f"s_add_u32 m0, s{sM0}, {dst}",
                      f"s_add_u32 s{sTMP}, s{sPO}, {WP_OFF + (par*4+s)*131072 + hh*16384}",
                      f"buffer_load_dwordx4 v{vWG}, s[{sWS}:{sWS+3}], s{sTMP} offen sc1 lds"])
    return r
def dma_x(slot, phi):
    nt_ = " nt" if (P["xnt"] == 2 or (P["xnt"] == 1 and cur[0] == "lpro")) else ""
    return [[f"s_add_u32 m0, s{sMX}, {slot*SLOT + j*XB}",
             f"s_add_u32 s{sTMP}, s{sXO}, {j*16384 + phi*512}",
             f"buffer_load_dwordx4 v{vXG}, s[{sX}:{sX+3}], s{sTMP} offen{nt_} lds"] for j in range(4)]
tl_n = [0]
def tail_g(slot, phi):
    k = tl_n[0]; tl_n[0] += 1
    return [f"s_cmp_lg_u32 s{sWAVE}, 0", f"s_cbranch_scc1 L_nt{k}",
            f"s_mov_b32 m0, {slot*SLOT + 16*XB}",
            f"s_add_u32 s{sTMP}, s{sXO}, {(512 + phi)*512}",
            "s_mov_b64 exec, 0xff",
            f"buffer_load_dwordx4 v{vXG}, s[{sX}:{sX+3}], s{sTMP} offen lds",
            "s_mov_b64 exec, -1", f"L_nt{k}:"]
def touch_g(dd, par, half="ab", const=False):
    if const:
        r = [f"s_add_u32 s{sTMP}, s{sXB}, {dd*128 + par*512}"]
    else:
        r = [f"s_cmp_lt_u32 s{sD}, {4 - dd}", f"s_cselect_b32 s{sCNT}, s{sXB}, {OOB}",
             f"s_lshl_b32 s{sTMP}, s{sD}, 7", f"s_add_u32 s{sTMP}, s{sTMP}, s{sCNT}", f"s_add_u32 s{sTMP}, s{sTMP}, {dd*128 + par*512}"]
    r.append(f"s_mov_b64 exec, {dict(ab=0xffff, a=0x5555, b=0xaaaa)[half]:#x}")
    r += [f"buffer_load_dword v{JUNK}, v{vTC}, s[{sX}:{sX+3}], s{sTMP} offen" + (" nt" if P["tnt"] else ""), "s_mov_b64 exec, -1"]
    return r
def emit_groups(gs):
    if P["nodma"]: return
    for g in gs:
        for s in g: A(s)
def mix(valu, gs):
    if P["nodma"]: gs = []
    n = len(gs)
    if not valu:
        emit_groups(gs); return
    pos = [(k * len(valu)) // n for k in range(n)] if n else []
    gi = 0
    for i, v in enumerate(valu):
        while gi < n and pos[gi] == i:
            for s in gs[gi]: A(s)
            gi += 1
        A(v)
def rd_u0(): return [f"ds_read_b128 v[{U0+4*j}:{U0+4*j+3}], v{vU0} offset:{j*XB}" for j in range(4)]
def rd_u1(lin, off): return [f"ds_read_b128 v[{U1+4*j}:{U1+4*j+3}], v{lin} offset:{off + j*XB}" for j in range(4)]
def wr_v(lin, off): return [f"ds_write_b128 v{lin}, v[{VV+4*j}:{VV+4*j+3}] offset:{off + j*XB}" for j in range(4)]
def vadd(js):
    r = []
    for j in js: r += addbf_list(VV+4*j, U1+4*j, U0+4*j, TT)
    return r
def hi(lst):
    if P["dsprio"]: A(f"s_setprio {P['dsprio']}")
    for d in lst: A(d)
    if P["dsprio"]: A(f"s_setprio {P['lprio']}")
def lsetup():
    A("v_lshlrev_b32 v13, 4, v0")
    A(f"v_add_u32 v{vLIN}, s{sMX}, v13")
    A(f"v_add_u32 v{vLIN2}, {2*SLOT}, v{vLIN}")
    A("v_cmp_eq_u32 vcc, 7, v10")
    A(f"v_add_u32 v{vU0}, 128, v{vLIN}")
    A(f"v_add_u32 v12, 160, v{vLIN}")
    A(f"v_cndmask_b32 v{vU0}, v{vU0}, v12, vcc")
    A(f"v_lshlrev_b32 v{vFL}, 3, v0")
    srd(sWS, 44, WS_BYTES)
    out_srd()
    granule_off()
    A(f"s_mov_b32 s{sWN}, 32768")
    A(f"s_mov_b32 s{sD}, 0")
    A(f"s_mov_b32 s{sPO}, 0")
    A(f"s_lshl_b32 s{sFO}, s{sWAVE}, 9")
    A(f"s_add_u32 s{sFO}, s{sFO}, {FL_OFF}")
    if P["lprio"]: A(f"s_setprio {P['lprio']}")
STG = {0: None, 1: None, 2: None, 3: None, 4: None}
w_ = dma_w(0, TAPS[("G00", 0)]); x_ = dma_x(0, 0)
STG[0] = [tail_g(0, 0) + x_[0]] + x_[1:2] + w_[:4] + x_[2:] + w_[4:]
if P["x1st"]: STG[0] = [tail_g(0, 0) + x_[0]] + x_[1:] + w_
STG[1] = dma_x(1, 2) + dma_w(1, TAPS[("G11", 0)])
x_ = dma_x(2, 1)
STG[2] = [tail_g(2, 1) + x_[0]] + x_[1:] + dma_w(2, TAPS[("G00", 1)])
STG[3] = dma_x(0, 3) + dma_w(0, TAPS[("G11", 1)]) + dma_w(0, TAPS[("G11", 0)], ss=(3,), so=sWN)
STG[4] = dma_wp(0, 1) + [dw(SPARE + hh*4096, sWN, TAPS[("G00", 0)][3], hh) for hh in (0, 1)]
issued = []; period = 0; seen = {k: 0 for k in STG}; mixv = []; pendg = []
def flush():
    global mixv, pendg
    mix(mixv, [g for _, g in pendg])
    if not P["nodma"]: issued.extend(k for k, _ in pendg)
    mixv = []; pendg = []
def wait_for(keys, extra=""):
    flush()
    last = max(i for i, k in enumerate(issued) if k in keys)
    A(f"s_waitcnt vmcnt({len(issued) - 1 - last}){extra}")
def flag_load(so): A(f"buffer_load_dwordx2 v[{FLG}:{FLG+1}], v{vFL}, s[{sWS}:{sWS+3}], {so} offen sc0 sc1")
def check_flags(name, so):
    A(f"s_mov_b32 s{sCNT}, {SPIN}")
    LBL(name)
    A(f"v_cmp_eq_u64 vcc, s[{sN0}:{sN1}], v[{FLG}:{FLG+1}]")
    A("s_cmp_eq_u64 vcc, -1")
    A(f"s_cbranch_scc1 {name}_ok")
    A(f"s_sub_u32 s{sCNT}, s{sCNT}, 1")
    A(f"s_cbranch_scc1 {name}_ok")
    flag_load(so)
    A("s_waitcnt vmcnt(0)")
    A(f"s_branch {name}")
    LBL(name + "_ok")
def nonce_load(): A(f"buffer_load_dwordx2 v[{NON}:{NON+1}], v{vZ}, s[{sDBG}:{sDBG+3}], 0 offen sc0 sc1")
if P["nodma"]: issued.extend([0, 1, 2, 3, 4])
for tok in P["pro"].split("."):
    if tok[0] == "D":
        f = tok[1:].split(":"); st = int(f[0]); gs = STG[st]
        lo, hi_ = (int(f[1]), int(f[2])) if len(f) > 1 else (seen[st], len(gs))
        assert lo == seen[st]; seen[st] = min(hi_, len(gs))
        assert st < 3 or period >= st - 1
        pendg += [(st, g) for g in gs[lo:hi_]]
        continue
    if tok[0] == "T":
        c = int(tok[1])
        if P["touch"]: pendg.append(("t", touch_g(c >> 1, c & 1, tok[2:], True)))
        continue
    flush()
    if tok[0] == "S":
        pstamp(2); lsetup()
    elif tok[0] == "Z":
        k = int(tok[1]); A(f"s_memrealtime s[{sST+2*k}:{sST+2*k+1}]")
    elif tok[0] == "X":
        for j in range(4):
            A(f"s_add_u32 s{sTMP}, s{sXO}, {j*16384 + 2048}")
            A(f"buffer_load_dwordx4 v[{U0+4*j}:{U0+4*j+3}], v{vXG}, s[{sX}:{sX+3}], s{sTMP} offen")
            A(f"s_add_u32 s{sTMP}, s{sXO}, {j*16384 + 1024}")
            A(f"buffer_load_dwordx4 v[{U1+4*j}:{U1+4*j+3}], v{vXG}, s[{sX}:{sX+3}], s{sTMP} offen")
            issued.extend(["x", "x"])
    elif tok[0] == "Y":
        wait_for(["x"])
    elif tok[0] == "N":
        srd(sDBG, 42, 256); nonce_load(); issued.append("n")
    elif tok[0] == "U":
        k4 = [i for i, k in enumerate(issued) if k == 1][3] if not P["nodma"] else len(issued) - 1
        A(f"s_waitcnt vmcnt({len(issued) - 1 - k4})")
        hi(rd_u1(vLIN, SLOT))
        A("s_waitcnt lgkmcnt(0)")
    elif tok[0] == "V":
        mixv = vadd(range(int(tok[1]), int(tok[2])))
    elif tok[0] == "F":
        assert period == (2 if P["lateack"] else 1)
        wait_for(["n"])
        A(f"s_mov_b32 s{sCNT}, {SPIN}")
        LBL("L_cn")
        A(f"v_readfirstlane_b32 s{sN0}, v{NON}")
        A(f"v_readfirstlane_b32 s{sN1}, v{NON+1}")
        if P["fresh"]:
            CM("a tag much older than this wave is re-read a few times (only matters if d_debug was not cleared)")
            A(f"s_sub_u32 s{sTMP}, s70, s{sN0}")
            A(f"s_cmp_lt_i32 s{sTMP}, 1000")
            A(f"s_cselect_b32 s{sTMP}, s{sN0}, 0")
            A(f"s_cmp_lt_u32 s{sCNT}, {SPIN - 256}")
            A(f"s_cselect_b32 s{sTMP}, s{sN0}, s{sTMP}")
            A(f"s_cmp_lg_u32 s{sTMP}, 0")
        else:
            A(f"s_cmp_lg_u32 s{sN0}, 0")
        A("s_cbranch_scc1 L_cn_ok")
        A(f"s_sub_u32 s{sCNT}, s{sCNT}, 1")
        A("s_cbranch_scc1 L_cn_ok")
        nonce_load()
        A("s_waitcnt vmcnt(0)")
        A("s_branch L_cn")
        LBL("L_cn_ok")
        A(f"s_lshl_b32 s{sTMP}, s2, 3")
        A(f"s_add_u32 s{sTMP}, s{sTMP}, {FL_OFF}")
        A(f"s_cmp_eq_u32 s{sWAVE}, 0")
        A(f"s_cselect_b32 s{sTMP}, s{sTMP}, {OOB}")
        A("s_mov_b64 exec, 1")
        A(f"buffer_store_dwordx2 v[{NON}:{NON+1}], v{vZ}, s[{sWS}:{sWS+3}], s{sTMP} offen sc0 sc1")
        A(f"v_mov_b32 v12, {MISC}")
        A(f"ds_write_b64 v12, v[{NON}:{NON+1}]")
        A("s_mov_b64 exec, -1")
        issued.append("f")
        pstamp(7)
    elif tok[0] == "G":
        A(f"s_mov_b32 s{sTA}, {FL_OFF}"); flag_load(f"s{sTA}"); issued.append("g")
    elif tok[0] == "C":
        wait_for(["g"])
        A(f"s_mov_b32 s{sTA}, {FL_OFF}")
        check_flags("L_spin0", f"s{sTA}")
    elif tok[0] == "W":
        assert period == 3
        hi(wr_v(vLIN, SLOT)[:P["wsplit"]] + rd_u0())
    elif tok[0] == "w":
        assert period == 3
        for d in wr_v(vLIN, SLOT)[:P["wsplit"]]: A(d)
    elif tok[0] == "r":
        assert period == 3
        for d in rd_u0(): A(d)
    elif tok[0] == "B":
        assert seen[period] == len(STG[period])
        if period == 0: pstamp(3)
        wait_for([period], " lgkmcnt(0)" if period >= 2 else "")
        if period == 0: pstamp(4)
        if period == 1:
            if "U" not in P["pro"].split(".") and "X" not in P["pro"].split(".") and not P["cv"]:
                for d in rd_u1(vLIN, SLOT): A(d)
            A("s_waitcnt lgkmcnt(0)")
            A(f"v_add_u32 v{vU0}, {2*SLOT}, v{vU0}")
        if period == 3:
            assert seen[4] == 10
            A("s_branch L_join")
            break
        A("s_barrier")
        if period < 2: pstamp(5 + period)
        period += 1
        CM(f"P({period-1})")
        if period == 1: pend_u0 = "X" not in P["pro"].split(".") and not P["cv"]
    if tok[0] in "FB" and period == 1 and pend_u0 and (tok[0] == "F" or P["lateack"]):
        hi(rd_u0()); pend_u0 = False
n_after_wp = len(issued) - 1 - max(i for i, k in enumerate(issued) if k == 4) + 2

cur[0] = "lloop"
lb_n = [0]
def lbar():
    k = lb_n[0]; lb_n[0] += 1
    if P["lst"] >= 0:
        A(f"s_cmp_lg_u32 s{sD}, {P['lst'] + 1}")
        A(f"s_cbranch_scc1 L_nb{k}")
        A(f"s_memtime s[{76+4*k}:{77+4*k}]")
        A("s_barrier")
        A(f"s_memtime s[{78+4*k}:{79+4*k}]")
        A(f"s_branch L_nc{k}")
        LBL(f"L_nb{k}")
        A("s_barrier")
        LBL(f"L_nc{k}")
    else:
        A("s_barrier")
nt = 1 if P["touch"] else 0
assert P["nodma"] or n_after_wp >= (0 if P['early2'] else 2) + nt, n_after_wp
assert P["nochk"] or P["vsplit"] <= P["wsplit"] <= P["vsplit"] + P["v1"] <= 4
LBL("L_lloop")
for par in (1, 0):
    npar = 1 - par
    CM(f"P(3c-1) par={par}")
    if par == 1:
        A(f"s_cmp_eq_u32 s{sD}, 3")
        A("s_cbranch_scc1 L_last")
    if not P["wend"]: hi(wr_v(vLIN, SLOT)[:P["wsplit"]])
    if P["u0first"]: hi(rd_u0())
    early = [dw((SPARE if par == 1 else 2*SLOT + WOFF + tile(0, 3)) + hh*4096, sWN if par else sWO, TAPS[("G00", npar)][3], hh) for hh in (0, 1)]
    if P["early2"]: early = []
    ne = len(early)
    mix(vadd(range(P["vsplit"] + P["v1"], 4)), dma_wp(npar, 1) + early)
    if not P["u0first"]:
        for d in rd_u0(): A(d)
    if nt: emit_groups([touch_g(1, par)])
    if P["wend"] == 1: hi(wr_v(vLIN, SLOT)[:P["wsplit"]])
    if P["wend"] == 2:
        for d in wr_v(vLIN, SLOT)[:P["wsplit"]]: A(d)
    A(f"s_waitcnt vmcnt({8 + ne + nt})")
    if par == 1: LBL("L_join")
    for d in rd_u1(vLIN, 0): A(d)
    A(f"s_mov_b32 s{sPO}, s{sWO}")
    if par == 1:
        A(f"s_add_u32 s{sD}, s{sD}, 1")
        A(f"s_mov_b32 s{sWO}, s{sWN}")
        A(f"s_add_u32 s{sWN}, s{sWN}, 32768")
        A(f"s_cmp_eq_u32 s{sD}, 3")
        A(f"s_cselect_b32 s{sWN}, {OOB}, s{sWN}")
        A(f"s_add_u32 s{sXO}, s{sXO}, 128")
    A("s_waitcnt lgkmcnt(0)")
    lbar()
    CM(f"P(3c) par={par}")
    if P["cv"] and par == 1:
        A(f"s_cmp_eq_u32 s{sD}, 1")
        A("s_cbranch_scc1 L_nolw")
    if not P["wend2"]: hi(wr_v(vLIN, SLOT)[P["wsplit"]:])
    if P["cv"] and par == 1: LBL("L_nolw")
    x_ = dma_x(2, npar)
    gs = [tail_g(2, npar) + x_[0]] + x_[1:] + dma_w(2, TAPS[("G00", npar)], ss=(0, 1, 2))
    mix(vadd(range(P["vsplit"])), gs)
    if P["wend2"] == 1: hi(wr_v(vLIN, SLOT)[P["wsplit"]:])
    if P["wend2"] == 2:
        for d in wr_v(vLIN, SLOT)[P["wsplit"]:]: A(d)
    A(f"s_waitcnt vmcnt({10 + ne + nt}) lgkmcnt(0)")
    lbar()
    CM(f"P(3c+1) par={par}")
    gs = dma_x(0, 2 + npar) + dma_w(0, TAPS[("G11", npar)], ss=(0, 1, 2))
    if par == 0: gs += dma_w(0, TAPS[("G11", 0)], ss=(3,), so=sWN)
    if P["early2"]:
        gs += [dw((SPARE if par == 0 else 2*SLOT + WOFF + tile(0, 3)) + hh*4096, sWN if par == 0 else sWO, TAPS[("G00", par)][3], hh) for hh in (0, 1)]
    if par == 1:
        A(f"s_cmp_lg_u32 s{sD}, 1")
        A("s_cbranch_scc1 L_nf2")
        flag_load(f"s{sFO}")
        LBL("L_nf2")
    va = vadd(range(P["vsplit"], P["vsplit"] + P["v1"]))
    if P["burst1"]:
        k = len(va) * (P["burst1"] - 1) // 4
        mix(va[:k], gs)
        for t in va[k:]: A(t)
    else:
        mix(va, gs)
    A(f"s_waitcnt vmcnt({len(gs)})")
    if par == 1:
        A(f"s_cmp_lg_u32 s{sD}, 1")
        A("s_cbranch_scc1 L_spin1_ok")
        check_flags("L_spin1", f"s{sFO}")
    lbar()
A("s_branch L_lloop")

cur[0] = "llast"
LBL("L_last")
CM("P(20)")
hi(wr_v(vLIN, SLOT)[:P["wsplit"]])
mix(vadd(range(P["vsplit"] + P["v1"], 4)), dma_wp(0, 1))
for d in rd_u0(): A(d)
srd(sGA, 36, 512)
srd(sBE, 38, 512)
A("s_waitcnt vmcnt(8)")
for d in rd_u1(vLIN, 0): A(d)
A("s_waitcnt lgkmcnt(0)")
A("s_barrier")
CM("P(21)")
gs = dma_wp(1, 2, True)
hi(wr_v(vLIN, SLOT)[P["wsplit"]:])
mix(vadd(range(2)), gs[:5])
A("s_waitcnt lgkmcnt(0)")
mix(vadd(range(2, 3)), gs[5:])
A("s_waitcnt vmcnt(8)")
A("s_barrier")
CM("P(22)")
wv = wr_v(vLIN2, 0)
for t in vadd(range(3, 4)): A(t)
for d in wv: A(d)
A("v_and_b32 v10, 15, v0")
A(f"s_lshl_b32 s{sTMP}, s{sNT}, 2")
A(f"s_add_u32 s{sTMP}, s{sTMP}, s{sWAVE}")
A(f"s_lshl_b32 s{sTMP}, s{sTMP}, 5")
A("v_lshlrev_b32 v14, 1, v10")
A(f"buffer_load_ushort v{GAM}, v14, s[{sGA}:{sGA+3}], s{sTMP} offen")
A(f"buffer_load_ushort v{GAM+1}, v14, s[{sBE}:{sBE+3}], s{sTMP} offen")
A("s_waitcnt vmcnt(2) lgkmcnt(0)")
A("s_barrier")
A("v_lshrrev_b32 v11, 4, v0")
A("v_lshlrev_b32 v12, 4, v10")
A("v_lshl_add_u32 v12, v11, 10, v12")
A(f"s_lshl_b32 s{sTMP}, s{sWAVE}, 6")
A(f"s_add_u32 s{sTMP}, s{sTMP}, {MISC+64}")
A(f"v_lshl_add_u32 v10, v10, 2, s{sTMP}")
if P["lprio"]: A("s_setprio 0")
A(f"s_add_u32 s{sWAVE}, s{sWAVE}, 4")
final_addr(FA)
A("s_waitcnt vmcnt(0)")
A(f"v_lshlrev_b32 v{GAM}, 16, v{GAM}")
A(f"v_lshlrev_b32 v{GAM+1}, 16, v{GAM+1}")
k0 = -2.0 * math.sqrt(2.0 / math.pi) * math.log2(math.e)
k1 = k0 * 0.044715
gam3 = -((-k1) ** (1.0 / 3.0))
if P["g5"]:
    A(f"v_mul_f32 v{GAM}, {f32(gam3)}, v{GAM}")
    A(f"v_mul_f32 v{GAM+1}, {f32(gam3)}, v{GAM+1}")
if not P["peel"]: A("s_barrier")
A("s_barrier")
stamp(1)
PG = 16
A(f"s_mov_b32 s{sCNT}, {SPIN}")
y_reads()
if P["spoll"]:
    for i in range(8):
        A(f"s_add_u32 s{84+i}, s{sGR}, {i*4096}")
    def pl(i): A(f"buffer_load_dwordx4 v[{PG+4*i}:{PG+4*i+3}], v12, s[{sWS}:{sWS+3}], s{84+i} offen sc0 sc1")
    for i in range(8): pl(i)
    for i in range(8):
        A(f"s_waitcnt vmcnt({7-i})")
        LBL(f"L_pc{i}")
        A(f"v_cmp_eq_u64 vcc, s[{sN0}:{sN1}], v[{PG+4*i+2}:{PG+4*i+3}]")
        A("s_cmp_eq_u64 vcc, -1")
        A(f"s_cbranch_scc0 L_pr{i}")
        LBL(f"L_pd{i}")
else:
    LBL("L_poll")
    for i in range(8):
        so = f"s{sGR}" if i == 0 else f"s{sTMP}"
        if i: A(f"s_add_u32 s{sTMP}, s{sGR}, {i*4096}")
        A(f"buffer_load_dwordx4 v[{PG+4*i}:{PG+4*i+3}], v12, s[{sWS}:{sWS+3}], {so} offen sc0 sc1")
    A(f"s_mov_b64 s[{sTA}:{sTA+1}], -1")
    for i in range(8):
        A(f"s_waitcnt vmcnt({7-i})")
        A(f"v_cmp_eq_u64 vcc, s[{sN0}:{sN1}], v[{PG+4*i+2}:{PG+4*i+3}]")
        A(f"s_and_b64 s[{sTA}:{sTA+1}], s[{sTA}:{sTA+1}], vcc")
    A(f"s_sub_u32 s{sCNT}, s{sCNT}, 1")
    A("s_cbranch_scc1 L_poll_ok")
    A(f"s_cmp_eq_u64 s[{sTA}:{sTA+1}], -1")
    A("s_cbranch_scc0 L_poll")
LBL("L_poll_ok")
stamp(2)
for st in (4, 2, 1):
    for i in range(st):
        pk("add", PG+4*i, PG+4*i, PG+4*(i+st))
for sw in ("v_permlane32_swap_b32", "v_permlane16_swap_b32"):
    A(f"v_mov_b32 v{PG+2}, v{PG}")
    A(f"v_mov_b32 v{PG+3}, v{PG+1}")
    A("s_nop 1")
    A(f"{sw} v{PG}, v{PG+2}")
    A(f"{sw} v{PG+1}, v{PG+3}")
    A("s_nop 1")
    pk("add", PG, PG, PG+2)
A(f"v_mul_f32 v{PG}, {f32(1.0/7993)}, v{PG}")
A(f"v_mul_f32 v{PG+1}, {f32(1.0/7993)}, v{PG+1}")
A(f"v_fma_f32 v{PG+1}, -v{PG}, v{PG}, v{PG+1}")
A(f"v_max_f32 v{PG+1}, 0, v{PG+1}")
A(f"v_add_f32 v{PG+1}, {f32(1e-5)}, v{PG+1}")
A(f"v_rsq_f32 v{PG+1}, v{PG+1}")
A("s_nop 0")
A(f"v_mul_f32 v{PG+1}, v{PG+1}, v{GAM}")
A(f"ds_write_b32 v10, v{PG+1}")
A(f"v_fma_f32 v{PG}, -v{PG}, v{PG+1}, v{GAM+1}")
A(f"ds_write_b32 v10, v{PG} offset:256")

if P["spoll"]:
    cur[0] = "cepi"
    for i in range(8):
        LBL(f"L_pr{i}")
        A(f"s_sub_u32 s{sCNT}, s{sCNT}, 1")
        A(f"s_cbranch_scc1 L_pd{i}")
        pl(i)
        for k in range(i + 1, min(i + 1 + P["spoll"] - 1, 8)): pl(k)
        A("s_waitcnt vmcnt(0)")
        A(f"s_branch L_pc{i}")
    tail_cepi = SEC["cepi"]; SEC["cepi"] = []
cur[0] = "final"
LBL("L_final")
k0 = -2.0 * math.sqrt(2.0 / math.pi) * math.log2(math.e)
k1 = k0 * 0.044715
A(f"s_mov_b32 s{sK+2}, {f32(gam3 if P['g5'] else k1)}")
A(f"s_mov_b32 s{sK+3}, {f32(gam3 if P['g5'] else k1)}")
A(f"s_mov_b32 s{sK+4}, 4096")
A(f"v_mov_b32 v56, {f32(k0/gam3 if P['g5'] else k0)}")
A(f"v_mov_b32 v57, {f32(k0/gam3 if P['g5'] else k0)}")
A("s_waitcnt lgkmcnt(0)")
A("s_barrier")
stamp(4)
CA, CC = 16, 24
A(f"ds_read_b128 v[{CA}:{CA+3}], v{FA+6}")
A(f"ds_read_b128 v[{CC}:{CC+3}], v{FA+6} offset:256")
A(f"ds_read_b128 v[{CA+4}:{CA+7}], v{FA+6} offset:16")
A(f"ds_read_b128 v[{CC+4}:{CC+7}], v{FA+6} offset:272")
Z, U = 32, 40
for n in range(4):
    y = Y + 8 * n
    for h in range(0, 8, 2):
        if n == 0 and h in (0, 4): A(f"s_waitcnt lgkmcnt({2 if h == 0 else 0})")
        pk("fma", y+h, y+h, CA+h, c=CC+h)
    if P["g5"]:
        for h in range(0, 8, 2): pk("fma", U+h, y+h, y+h, c=56)
    else:
        for h in range(0, 8, 2): pk("mul", U+h, y+h, y+h)
        for h in range(0, 8, 2): A(f"v_pk_fma_f32 v[{U+h}:{U+h+1}], v[{U+h}:{U+h+1}], s[{sK+2}:{sK+3}], v[56:57]")
    for h in range(0, 8, 2): pk("mul", U+h, U+h, y+h)
    for h in range(8): A(f"v_exp_f32 v{U+h}, v{U+h}")
    for h in range(0, 8, 2):
        if P["g5"]: A(f"v_pk_fma_f32 v[{U+h}:{U+h+1}], v[{U+h}:{U+h+1}], s[{sK+2}:{sK+3}], s[{sK+2}:{sK+3}]")
        else: A(f"v_pk_add_f32 v[{U+h}:{U+h+1}], v[{U+h}:{U+h+1}], 1.0 op_sel_hi:[1,0]")
    for h in range(8): A(f"v_rcp_f32 v{U+h}, v{U+h}")
    for h in range(0, 8, 2): pk("mul", y+h, y+h, U+h)
    o = Z + 4 * (n & 1)
    for h in range(4): A(f"v_cvt_pk_bf16_f32 v{o+h}, v{y+2*h}, v{y+2*h+1}")
    A(f"buffer_store_dwordx4 v[{o}:{o+3}], v{FA+4 if n < 2 else FA+5}, s[{sO}:{sO+3}], {'0' if n % 2 == 0 else 's'+str(sK+4)} offen" + ["", " nt", " sc1", " sc0 sc1", " sc1 nt"][P["stf"]])
if P["stamps"]:
    stamp(5)
    A("s_waitcnt vmcnt(0)")
    stamp(6)
    A("s_waitcnt lgkmcnt(0)")
    A(f"s_mov_b32 s{sWS+2}, 0x1000000")
    A(f"s_lshl_b32 s{sTMP}, s2, 3")
    A(f"s_add_u32 s{sTMP}, s{sTMP}, s{sWAVE}")
    A(f"s_lshl_b32 s{sTMP}, s{sTMP}, 5")
    A(f"s_add_u32 s{sTMP}, s{sTMP}, 0x200000")
    A("v_mov_b32 v1, 0")
    if plain and not P["pst"]: A("s_sub_u32 s90, s94, s92")
    for k in range(8): A(f"v_mov_b32 v{2+k}, s{sST+(k if P['cst'] else 2*k)}")
    A("s_mov_b64 exec, 1")
    if P["sst"] >= 0:
        for k in range(12): A(f"v_mov_b32 v{2+k}, v{MS+k}") if False else None
    if P["lst"] >= 0 or P["cst"] or P["sst"] >= 0:
        if P["sst"] >= 0:
            for k in range(12): A(f"v_readlane_b32 s{76+k}, v255, {k}")
            A("s_nop 1")
            for k in range(12): A(f"v_mov_b32 v{2+k}, s{76+k}")
        else:
            for k in range(4): A(f"v_mov_b32 v{10+k}, s{sST+8+k if P['cst'] else sST+16+2*k}")
        A(f"s_add_u32 s{sCNT}, s{sTMP}, 0x100000")
        A(f"buffer_store_dwordx4 v[10:13], v1, s[{sWS}:{sWS+3}], s{sCNT} offen")
    A(f"buffer_store_dwordx4 v[2:5], v1, s[{sWS}:{sWS+3}], s{sTMP} offen")
    A(f"buffer_store_dwordx4 v[6:9], v1, s[{sWS}:{sWS+3}], s{sTMP} offen offset:16")
if P["dbgt"]:
    A(f"s_cmp_lg_u32 s{sWAVE}, 0")
    A("s_cbranch_scc1 L_end")
    A("s_cmp_eq_u32 s2, 0")
    A(f"s_cselect_b32 s{sTMP}, 8, 36")
    A("s_cbranch_scc1 L_dd")
    A("s_cmp_lg_u32 s2, 77")
    A("s_cbranch_scc1 L_end")
    LBL("L_dd")
    for k in range(1, 7): A(f"v_subrev_u32 v{2+k}, v2, v{2+k}")
    A(f"buffer_store_dwordx4 v[2:5], v1, s[{sDBG}:{sDBG+3}], s{sTMP} offen")
    A(f"buffer_store_dwordx3 v[6:8], v1, s[{sDBG}:{sDBG+3}], s{sTMP} offen offset:16")
LBL("L_end")
A("s_endpgm")

cur[0] = "cpro"
LBL("L_compute")
G00, G11, GS = 16, 48, 80
SETS = [112, 172]
def vXR(role): return 1 + 2 * role
def vWR(role): return 2 + 2 * role
vW3, vW3C, vGA, vYW = 7, 8, 9, 10
T = 232
CWA, CWB = 112, 116
TP = 160 if P["cv"] else T
CU0, CU1, vCX, vCL = 128, 144, 168, 251
CV = [232, 236, 240, 12]
A(f"s_lshr_b32 s{sWAVE}, s{sWAVE}, 6")
A(f"s_memrealtime s[{sN0}:{sN1}]")
A(f"v_lshrrev_b32 v{TP}, 5, v0")
A(f"s_lshl_b32 s{sTMP}, s{sWAVE}, 1")
A(f"v_add_u32 v{TP}, s{sTMP}, v{TP}")
A(f"v_and_b32 v{TP+1}, 31, v0")
A(f"v_lshlrev_b32 v{TP+1}, 4, v{TP+1}")
A(f"s_lshl_b32 s{sTMP}, s2, 9")
A(f"v_add_u32 v{TP+1}, s{sTMP}, v{TP+1}")
A(f"v_lshl_add_u32 v{TP+2}, v{TP}, 17, v{TP+1}")
A(f"v_and_b32 v{TP}, 3, v{TP}")
A(f"v_lshl_add_u32 v{TP+1}, v{TP}, 19, v{TP+1}")
A(f"s_lshr_b32 s{sWO}, s{sWAVE}, 1")
A(f"s_lshl_b32 s{sWO}, s{sWO}, 17")
A(f"s_add_u32 s{sWN}, s{sWO}, {2*131072}")
if P["cv"]:
    A(f"v_lshrrev_b32 v{vCX}, 3, v0")
    A(f"v_and_b32 v{vCX+1}, 7, v0")
    A(f"v_lshlrev_b32 v{vCX+1}, 4, v{vCX+1}")
    A(f"v_lshl_add_u32 v{vCX}, v{vCX}, 11, v{vCX+1}")
    A(f"s_mul_i32 s{sXB}, s{sB}, {16000*512}")
    A(f"s_mul_i32 s{sTMP}, s{sT}, {500*512}")
    A(f"s_add_u32 s{sXB}, s{sXB}, s{sTMP}")
    A(f"s_lshl_b32 s{sTMP}, s{sWAVE}, 16")
    A(f"s_add_u32 s{sXB}, s{sXB}, s{sTMP}")
A("s_waitcnt lgkmcnt(0)")
srd(sW, 34, W_BYTES)
if P["pq"]:
    A(f"s_cmp_eq_u32 s{sWAVE}, 0")
    A(f"s_cselect_b32 s{sW+2}, s{sW+2}, 0")
A(f"buffer_load_dwordx4 v[{CWA}:{CWA+3}], v{TP+1}, s[{sW}:{sW+3}], s{sWO} offen" + (" nt" if P["pnt"] else ""))
A(f"buffer_load_dwordx4 v[{CWB}:{CWB+3}], v{TP+1}, s[{sW}:{sW+3}], s{sWN} offen" + (" nt" if P["pnt"] else ""))
def cx_loads():
    srd(sX, 32, X_BYTES)
    for j in range(4):
        A(f"s_add_u32 s{sTMP}, s{sXB}, {j*16384 + 2048}")
        A(f"buffer_load_dwordx4 v[{CU0+4*j}:{CU0+4*j+3}], v{vCX}, s[{sX}:{sX+3}], s{sTMP} offen")
        A(f"s_add_u32 s{sTMP}, s{sXB}, {j*16384 + 1024}")
        A(f"buffer_load_dwordx4 v[{CU1+4*j}:{CU1+4*j+3}], v{vCX}, s[{sX}:{sX+3}], s{sTMP} offen")
if P["cv"] == 1: cx_loads()
srd(sDBG, 42, 256)
A(f"s_or_b32 s{sTMP}, s2, s{sWAVE}")
A(f"s_cmp_lg_u32 s{sTMP}, 0")
A("s_cbranch_scc1 L_nononce")
A(f"s_or_b32 s{sN0}, s{sN0}, 1")
A(f"v_mov_b32 v{TP+3}, 0")
A(f"v_mov_b32 v{TP+6}, s{sN0}")
A(f"v_mov_b32 v{TP+7}, s{sN1}")
A("s_mov_b64 exec, 1")
A(f"buffer_store_dwordx2 v[{TP+6}:{TP+7}], v{TP+3}, s[{sDBG}:{sDBG+3}], 0 offen sc0 sc1")
A("s_mov_b64 exec, -1")
LBL("L_nononce")
if P["cpf"]:
    A(f"s_cmp_lg_u32 s{sWAVE}, 1")
    A("s_cbranch_scc1 L_nocpf")
    A("s_getpc_b64 s[74:75]")
    LBL("L_pc")
    A(f"s_lshr_b32 s{sTMP}, s2, 3")
    A(f"s_lshl_b32 s{sTMP}, s{sTMP}, 9")
    A(f"s_add_u32 s74, s74, s{sTMP}")
    A("s_addc_u32 s75, s75, 0")
    A(f"s_sub_u32 s74, s74, L_pc-{KN}")
    A("s_subb_u32 s75, s75, 0")
    A(f"v_lshlrev_b32 v{TP+4}, 7, v0")
    A("s_mov_b64 exec, 15")
    A(f"global_load_dword v{TP+5}, v{TP+4}, s[74:75]")
    A("s_mov_b64 exec, -1")
    LBL("L_nocpf")
if P["warm"]:
    CM("visit one instruction in every later code page while the first loads are in flight")
    A("s_branch L_warm0")
    LBL("L_warmret")
srd(sWS, 44, WS_BYTES)
A(f"s_mov_b32 s{sPO}, {WP_OFF}")
out_srd()
A(f"s_mov_b32 s{sMID}, 0x7fff7fff")
A(f"s_cselect_b32 s{sMID}, s{sMID}, -1")
A(f"s_mov_b32 s{sMID+1}, s{sMID}")
granule_off()
A(f"s_lshl_b32 s{sTMP}, s{sT}, 10")
A(f"s_add_u32 s{sGR}, s{sGR}, s{sTMP}")
R, G_, X1, X2 = 120, 121, 122, 124
A(f"v_and_b32 v{R}, 15, v0")
A(f"v_lshrrev_b32 v{G_}, 4, v0")
A(f"v_mul_u32_u24 v{X1}, {XB}, v{R}")
A(f"v_lshl_add_u32 v{vXR(0)}, v{G_}, 4, v{X1}")
A(f"v_bfe_u32 v{X2}, v0, 2, 2")
A(f"v_lshl_add_u32 v{X1}, v{G_}, 3, v{X2}")
A(f"v_lshlrev_b32 v{X1}, 7, v{X1}")
A(f"v_lshrrev_b32 v{X2}, 1, v{X2}")
A(f"v_and_b32 v{X2+1}, 1, v{G_}")
A(f"v_lshl_or_b32 v{X2}, v{X2+1}, 1, v{X2}")
A(f"v_xor_b32 v{X2}, s{sWAVE}, v{X2}")
A(f"v_lshl_add_u32 v{X1}, v{X2}, 5, v{X1}")
A(f"v_and_b32 v{X2}, 3, v0")
A(f"v_lshl_add_u32 v{X1}, v{X2}, 3, v{X1}")
A(f"v_add_u32 v{vWR(0)}, {WOFF}, v{X1}")
A(f"v_add_u32 v{vW3}, {WOFF + tile(0,3)}, v{X1}")
A(f"v_lshlrev_b32 v{vW3C}, 1, v{X1}")
A(f"v_add_u32 v{vW3C}, {2*SLOT + WOFF + tile(0,3) + SPARE}, v{vW3C}")
for k in (1, 2):
    A(f"v_add_u32 v{k+2}, {SLOT}, v{k}")
    A(f"v_add_u32 v{k+4}, {2*SLOT}, v{k}")
if P["red"]:
    CM("after the reduce-scatter lane r of group g holds channel 4g + (r>>2)")
    A(f"v_lshrrev_b32 v{X1}, 2, v{R}")
    A(f"v_lshl_add_u32 v{vGA}, v{G_}, 2, v{X1}")
else:
    A(f"v_lshl_add_u32 v{vGA}, v{G_}, 2, v{R}")
A(f"v_lshlrev_b32 v{vGA}, 4, v{vGA}")
A(f"s_lshl_b32 s{sTMP}, s{sWAVE}, 2")
A(f"v_add_u32 v{X1}, s{sTMP}, v{G_}")
A(f"v_lshrrev_b32 v{X2}, 1, v{X1}")
A(f"v_and_b32 v{X1}, 1, v{X1}")
A(f"v_lshl_or_b32 v{X1}, v{X1}, 3, v{X2}")
A(f"v_and_b32 v{X2}, 7, v{R}")
A(f"v_xor_b32 v{X1}, v{X1}, v{X2}")
A(f"v_lshlrev_b32 v{X1}, 4, v{X1}")
A(f"v_lshl_add_u32 v{vYW}, v{R}, 12, v{X1}")
A(f"v_xor_b32 v{vYW+1}, 0x80, v{vYW}")
final_addr(FA)
for i in range(0, 96, 2):
    A(f"v_pk_mov_b32 v[{16+i}:{17+i}], 0, 0")
if P["cv"]:
    A(f"s_mul_i32 s{sTMP}, s{sWAVE}, {4*XB}")
    A(f"s_add_u32 s{sTMP}, s{sTMP}, {SLOT}")
    A(f"v_lshl_add_u32 v{vCL}, v0, 4, s{sTMP}")
if P["cv"] == 2: cx_loads()
A(f"s_waitcnt vmcnt({8 if P['cv'] else 0})")
for t in addbf_list(CWA, CWA, CWB, 224, True): A(t)
A(f"buffer_store_dwordx4 v[{CWA}:{CWA+3}], v{TP+2}, s[{sWS}:{sWS+3}], s{sPO} offen sc0 sc1")
if P["cv"]:
    for j in range(4):
        A(f"s_waitcnt vmcnt({1 + 2*(3-j) if P['cv'] == 2 else 1})") if (j == 0 or P["cv"] == 2) else None
        for t in addbf_list(CV[j], CU1+4*j, CU0+4*j, 224, True): A(t)
nct = 0
def c_touch():
    global nct
    if not P["ct"]: return
    if not P["cv"]:
        srd(sX, 32, X_BYTES)
    A(f"s_mul_i32 s{sXO}, s{sB}, {16000*512}")
    A(f"s_mul_i32 s{sTMP}, s{sT}, {500*512}")
    A(f"s_add_u32 s{sXO}, s{sXO}, s{sTMP}")
    A(f"s_lshl_b32 s{sTMP}, s{sWAVE}, 4")
    A(f"s_lshl_b32 s{sCNT}, s{sNT}, 6")
    A(f"s_add_u32 s{sTMP}, s{sTMP}, s{sCNT}")
    A(f"v_add_u32 v252, s{sTMP}, v0")
    A(f"v_lshlrev_b32 v252, 10, v252")
    for t in P["ct"].split("+"):
        c = int(t[0])
        A(f"s_add_u32 s{sTMP}, s{sXO}, {(c >> 1)*128 + (c & 1)*512}")
        A(f"s_mov_b64 exec, {dict(ab=0xffff, a=0x5555, b=0xaaaa)[t[1:]]:#x}")
        A(f"buffer_load_dword v253, v252, s[{sX}:{sX+3}], s{sTMP} offen")
        nct += 1
    A("s_mov_b64 exec, -1")
c_touch()
if P["prio"]: A(f"s_setprio {P['prio']}")
if not P["lateack"]: A(f"s_waitcnt vmcnt({nct})")

def reads(role, hh, st, ndpp=0, last=False):
    xb = SETS[st]; wb = xb + 44
    def xr(q): return (("X", q), f"ds_read_b128 v[{xb+4*q}:{xb+4*q+3}], v{vXR(role)} offset:{(q & 7)*128 + hh*64 + (XB if q > 7 else 0)}")
    def wr(s, h):
        if role == 0 and s == 3 and not last:
            return (("W", s), f"ds_read_b64_tr_b16 v[{wb+4*s+2*h}:{wb+4*s+2*h+1}], v{vW3} offset:{hh*4096 + h*512}")
        return (("W", s), f"ds_read_b64_tr_b16 v[{wb+4*s+2*h}:{wb+4*s+2*h+1}], v{vWR(role)} offset:{tile(hh, s) + h*512}")
    if role == 1 and P["u3"]:
        r = [wr(0, 0), wr(0, 1), xr(0), wr(1, 0), wr(1, 1), xr(1), wr(2, 0), wr(2, 1)] + [xr(q) for q in range(2, 10)] + [wr(3, 0), wr(3, 1), xr(10)]
    else:
        r = [wr(0, 0), wr(0, 1), xr(0), wr(1, 0), wr(1, 1)] + [xr(q) for q in range(1, 9)] + [wr(2, 0), wr(2, 1), wr(3, 0), wr(3, 1), xr(9), xr(10)]
    dq = list(range(11 - ndpp, 11))
    r = [e for e in r if not (e[0][0] == "X" and e[0][1] in dq)]
    d = [f"v_mov_b32_dpp v{xb+4*q+i}, v{xb+4*(q-8)+i} row_shl:1 row_mask:0xf bank_mask:0xf bound_ctrl:0" for q in dq for i in range(4)]
    return r, d
def mfma_list(acc, st, split3=False):
    xb = SETS[st]; wb = xb + 44
    pairs = []
    if split3 and P["u3"]:
        pairs = [(s, j) for j in range(8) for s in ((0, 1, 2) if j % 2 == 0 else (2, 1, 0))] + [(3, j) for j in range(8)]
    else:
        for s0 in ((0,) if split3 else (0, 2)):
            for q in range(s0, s0 + 9):
                for s in (s0 + 1, s0):
                    if 0 <= q - s < 8: pairs.append((s, q - s))
        if split3: pairs += [(s, j) for s in (2, 3) for j in range(8)]
    out = []
    for s, j in pairs:
        d = f"v[{acc+4*j}:{acc+4*j+3}]"
        out.append(([("W", s), ("X", j+s)], f"v_mfma_f32_16x16x32_bf16 {d}, v[{wb+4*s}:{wb+4*s+3}], v[{xb+4*(j+s)}:{xb+4*(j+s)+3}], {d}"))
    return out
pending = []
ss_n = [0]
def sstamp():
    if P["sst"] < 0 or ss_n[0] >= 12: return
    k = ss_n[0]; ss_n[0] += 1
    A(f"s_memtime s[{76+2*k}:{77+2*k}]")
def seq(acc, st, rdd, barrier, skip_label=None, extra=None, delay=0, vm0=False, pre=(), c0tail=None):
    global pending
    rd, dpp = rdd
    pre = list(pre)
    nm = 24 if skip_label else 32
    m = mfma_list(acc, st, skip_label is not None)
    rd = [] if P["nords"] else list(rd)
    dpp = list(dpp)
    first = max(P["barslot"], delay) if barrier else 0
    if dpp:
        first = min(first, nm - len(rd) - len(dpp) - 0) if barrier else first
        first = max(first, P["barslot"]) if barrier else first
        last = first + len(rd) - 1
    else:
        last = max(min(first + len(rd) if barrier else P["rdA"], nm - P["rd_gap"]), first + len(rd) - 1) if rd else 0
    slots = [first + (k * (last - first)) // max(len(rd) - 1, 1) for k in range(len(rd))]
    dslots = [min(last + 1 + len(pre) + k, nm - 1) for k in range(len(dpp))]
    if pre:
        extra = dict(extra or {})
        for k, t in enumerate(pre): extra.setdefault(last + 1 + k, []).append(t)
    cur_ = list(pending); newer = 0; nxt = []; nd = 0
    for i, (need, ins) in enumerate(m):
        if i == 24 and skip_label:
            A(f"s_cbranch_scc1 {skip_label}")
            if c0tail:
                A(f"s_cmp_eq_u32 s{sCNT}, 0")
                A("s_cbranch_scc1 L_cfirst")
                c0tail.extend(x for _, x in m[24:])
        W_ = 8 if P["w8"] else 16
        if i % W_ == 0 or (skip_label and i == 24):
            need = [k for nd_, _ in m[i:i+W_ if not (skip_label and i == 16) else 24] for k in nd_]
            if barrier and i == 0: need = [k for nd_, _ in m[:P["barslot"]+1] for k in nd_]
            idx = max([k for k, key in enumerate(cur_) if key in need], default=-1)
            if idx >= 0:
                n = len(cur_) - 1 - idx + newer
                if n < 15: A(f"s_waitcnt lgkmcnt({n})")
                cur_ = cur_[idx+1:]
        A(ins)
        if barrier and i == P["barslot"]:
            if cur_ or vm0: A("s_waitcnt" + (" vmcnt(0)" if vm0 else "") + " lgkmcnt(0)"); cur_ = []
            sstamp()
            A("s_barrier")
            sstamp()
        while rd and slots[len(nxt)] <= i:
            key, s = rd.pop(0); A(s); nxt.append(key); newer += 1
        while nd < len(dpp) and dslots[nd] <= i:
            if nd == 0:
                k = max(nxt.index(("X", q)) for q in range(3) if ("X", q) in nxt)
                A(f"s_waitcnt lgkmcnt({min(len(nxt) - 1 - k, 15)})")
            A(dpp[nd]); nd += 1
        if extra and i in extra:
            for s in extra[i]: A(s)
    assert not rd and nd == len(dpp)
    if skip_label: LBL(skip_label)
    pending = nxt
    sstamp()
A("s_barrier")
if P["sst0"]: A("s_memtime s[98:99]")
stamp(1)
if plain: A("s_memtime s[92:93]"); A("s_waitcnt lgkmcnt(0)")
D2, D3 = (2 if P["dpp"] else 0), (3 if P["dpp"] else 0)
r0, _ = reads(0, 0, 0)
for _, s in r0: A(s)
LATE = reads(0, 0, 0, 2)[1] if P["dpp"] & 8 else []
pending = [k for k, _ in reads(0, 0, 0, D2 if P["dpp"] & 12 else 0)[0]]
loop_entry = list(pending)
A(f"s_mov_b32 s{sCNT}, 0")
if P["dpp"] & 12: A("s_waitcnt lgkmcnt(0)")
A("s_branch L_cloop")

cur[0] = "cloop"
def cstamp(idx=None):
    if not P["cst"]: return
    A("s_memtime s[100:101]")
    A("s_waitcnt lgkmcnt(0)")
    if idx is None:
        A(f"s_mov_b32 m0, s{sCNT}")
        A("s_nop 0")
        A("s_movreld_b32 s76, s100")
    else:
        A(f"s_mov_b32 s{76+idx}, s100")
LBL("L_cloop")
if P["sst"] >= 0:
    A(f"s_cmp_lg_u32 s{sCNT}, {P['sst'] + 1}")
    A("s_cbranch_scc1 L_nss")
    A("s_waitcnt lgkmcnt(0)")
    for k in range(12): A(f"v_writelane_b32 v255, s{76+2*k}, {k}")
    LBL("L_nss")
cstamp()
if P["sst0"]: sstamp()
seq(G00, 0, reads(0, 1, 1, D2), False, pre=LATE)
seq(G00, 1, reads(1, 0, 0, D3 if P["dpp"] & 2 else 0), True, extra={28: [f"v_sub_u32 v{vW3}, v{vW3C}, v{vW3}"]}, delay=P["dly0"], vm0=bool(P["lateack"]))
A(f"s_bitcmp1_b32 s{sCNT}, 0")
seq(G11, 0, reads(1, 1, 1), False, "L_skipa")
c0l = ["x"] if (P["cv"] and P["c0t"]) else None
seq(G11, 1, reads(2, 0, 0), True, "L_skipb", c0tail=c0l)
if not c0l:
    A(f"s_cmp_eq_u32 s{sCNT}, 0")
    A("s_cbranch_scc1 L_cfirst")
LBL("L_gs")
pend_gs = list(pending)
seq(GS, 0, reads(2, 1, 1, D3), False)
A(f"s_add_u32 s{sCNT}, s{sCNT}, 1")
A(f"s_cmp_lt_u32 s{sCNT}, 8")
seq(GS, 1, (reads(0, 0, 0, 2)[0], []) if P["dpp"] & 8 else reads(0, 0, 0, D2 if P["dpp"] & 4 else 0), True, delay=P["dly2"] + (2 if P["dpp"] & 8 else 0))
pend_loop = list(pending)
assert pend_loop == loop_entry
A("s_cbranch_scc1 L_cloop")
if not P["peel"]:
    A(f"s_cmp_eq_u32 s{sCNT}, 9")
    A("s_cbranch_scc1 L_cdone")
    cstamp(8)
    for k in (5, 6): A(f"v_mov_b32 v{k}, v{k-4}")
    if pend_loop != pend_gs: A("s_waitcnt lgkmcnt(0)")
    A("s_branch L_gs")
else:
    A("s_branch L_cdone")
LBL("L_cfirst")
if c0l:
    for k, t in enumerate(c0l[1:]):
        A(t)
        if k % 2 == 0: A(f"ds_write_b128 v{vCL}, v[{CV[k//2]}:{CV[k//2]+3}] offset:{(k//2)*XB}")
elif P["cv"]:
    for j in range(4): A(f"ds_write_b128 v{vCL}, v[{CV[j]}:{CV[j]+3}] offset:{j*XB}")
if not P["pubst"]: stamp(3)
for k in (1, 2):
    A(f"v_add_u32 v{k}, {2*SLOT}, v{k}")
    A(f"v_subrev_u32 v{k+2}, {SLOT}, v{k+2}")
    A(f"v_subrev_u32 v{k+4}, {SLOT}, v{k+4}")
A(f"v_add_u32 v{vW3}, {tile(0,3)}, v2")
A(f"s_mov_b32 s{sCNT}, 1")
if P["sst0"]: A("s_waitcnt lgkmcnt(0)"); A("s_memtime s[94:95]")
if not c0l and (pend_loop != pend_gs or P["cv"]): A("s_waitcnt lgkmcnt(0)")
assert pend_gs[:len(pend_loop)] == pend_loop
A("s_branch L_cloop")

cur[0] = "cepi"
LBL("L_cdone")
def yreg(idx): return ((SETS[0] if P["pp"] else G11) if idx % 2 == 0 else GS) + 4 * (idx // 2)
S1, S2 = 16, 20
dppl = [f"v_mov_b32_dpp v{T+i}, v{G00+i} row_shl:1 row_mask:0xf bank_mask:0xf bound_ctrl:0" for i in range(4)]
if P["peel"]:
    cstamp(8)
    pending = pend_loop
    CM("last stage, with the G00/G11 part of the output transform in its shadow: G11 <- y0, G00[j] <- G11[j] + G00[j+1]")
    exA = {20 + i: [dppl[i]] for i in range(4)}
    exA[19] = [f"v_mov_b32 v12, {MISC}", "ds_read_b64 v[238:239], v12"]
    Y0 = SETS[0]
    ex = []
    if P["pp"]:
        def op2(d, x, y):
            return [pks("add", d, x, y), pks("add", d+2, x+2, y+2)] if P["pp"] == 2 else [f"v_add_f32 v{d+i}, v{x+i}, v{y+i}" for i in range(4)]
        for j in range(8):
            ex += op2(Y0+4*j, G00+4*j, G11+4*j)
        for j in range(8):
            ex += op2(G11+4*j, G11+4*j, G00+4*(j+1) if j < 7 else T)
    if LATE:
        exA = {(k + 8 if k >= 20 else k): v for k, v in exA.items()}
        for k, t in enumerate(LATE): exA[20 + k] = [t]
    seq(GS, 0, reads(0, 1, 1, 0, True), False, extra=exA)
    pending = pending + [("N", 0)]
    nh = min(len(ex), P["ppn"])
    seq(GS, 1, ([], []), False, extra={1 + (k * 31) // max(nh, 1): [] for k in range(nh)} and
        {i: [ex[k] for k in range(nh) if 1 + (k * 31) // nh == i] for i in range(32)} if nh else None)
    if P["pp"] == 1 and nh % 4 == 0 and nh >= 32:
        for j in range((nh - 32) // 4, 8):
            for h in (0, 2): pk("add", G11+4*j+h, G11+4*j+h, (G00+4*(j+1) if j < 7 else T) + h)
    else:
        for t in ex[nh:]: A(t)
    A("s_nop 7")
else:
    A(f"v_mov_b32 v12, {MISC}")
    A("ds_read_b64 v[238:239], v12")
    for t in dppl: A(t)
    A("s_nop 2")
cstamp(9)
stamp(2)
if plain: A("s_memtime s[94:95]")
if P["prio"]: A("s_setprio 0")
for j in range(8):
    for h in (0, 2):
        pk("add", GS+4*j+h, GS+4*j+h, G11+4*j+h, neg=not P["dif"])
for j in range(8):
    for h in (0, 2):
        if P["pp"]: continue
        nx = G00+4*(j+1)+h if j < 7 else T+h
        pk("add", GS+4*j+h, GS+4*j+h, nx, neg=not P["dif"])
        pk("add", G11+4*j+h, G11+4*j+h, G00+4*j+h)
for h in (0, 2):
    pk("add", S1+h, yreg(0)+h, yreg(1)+h)
    pk("mul", S2+h, yreg(0)+h, yreg(0)+h)
for idx in range(1, 16):
    if idx == 3: A(f"s_mov_b64 exec, s[{sMID}:{sMID+1}]")
    if idx == 10:
        A("s_mov_b32 exec_lo, 0x7fff7fff")
        A("s_mov_b32 exec_hi, 0x7fff7fff")
    for h in (0, 2):
        if idx > 1: pk("add", S1+h, S1+h, yreg(idx)+h)
        pk("fma", S2+h, yreg(idx)+h, yreg(idx)+h, c=S2+h)
A("s_mov_b64 exec, -1")
A("s_nop 1")
def dadd(d, s, ctl, bm="0xf"): A(f"v_add_f32_dpp v{d}, v{s}, v{s} {ctl} row_mask:0xf bank_mask:{bm}")
if P["red"]:
    CM("reduce-scatter over the 16 lanes of a row: banks (r>>2) end up with channel r>>2")
    for b in (S1, S2):
        dadd(b+8, b, "row_ror:8"); dadd(b+9, b+1, "row_ror:8")
    for b in (S1, S2):
        dadd(b+8, b+2, "row_ror:8", "0xc"); dadd(b+9, b+3, "row_ror:8", "0xc")
    A("s_nop 0")
    dadd(236, S1+8, "row_half_mirror"); dadd(237, S2+8, "row_half_mirror")
    dadd(236, S1+9, "row_half_mirror", "0xa"); dadd(237, S2+9, "row_half_mirror", "0xa")
    A("s_nop 0")
    dadd(236, 236, "quad_perm:[1,0,3,2]"); dadd(237, 237, "quad_perm:[1,0,3,2]")
    A("s_nop 0")
    dadd(236, 236, "quad_perm:[2,3,0,1]"); dadd(237, 237, "quad_perm:[2,3,0,1]")
    A("s_mov_b32 exec_lo, 0x11111111")
    A("s_mov_b32 exec_hi, 0x11111111")
else:
    for sh in (8, 4, 2, 1):
        for i in range(8): dadd(16+i, 16+i, f"row_ror:{sh}")
    A("v_mov_b32 v236, v16")
    A("v_mov_b32 v237, v20")
    for i in (1, 2, 3):
        mk = (1 << i) * 0x00010001
        A(f"s_mov_b32 exec_lo, {mk:#x}")
        A(f"s_mov_b32 exec_hi, {mk:#x}")
        A(f"v_mov_b32 v236, v{16+i}")
        A(f"v_mov_b32 v237, v{20+i}")
    A("s_mov_b32 exec_lo, 0x000f000f")
    A("s_mov_b32 exec_hi, 0x000f000f")
A("s_waitcnt lgkmcnt(0)")
A(f"buffer_store_dwordx4 v[236:239], v{vGA}, s[{sWS}:{sWS+3}], s{sGR} offen sc0 sc1")
A("s_mov_b64 exec, -1")
if P["pubst"]: stamp(3)
for idx in range(16):
    A(f"ds_write_b128 v{vYW + ((idx // 2) & 1)}, v[{yreg(idx)}:{yreg(idx)+3}] offset:{idx*256}")
A("s_waitcnt lgkmcnt(0)")
A("s_barrier")
y_reads()
A("s_branch L_final")
if P["spoll"]: SEC["cepi"] += tail_cepi

ALG = "" if not P["algn"] else f".p2align 12\n.fill {(4096 - 0x300 + (P['algn'] - 1) * 256) // 4}, 4, 0xbf810000\n"
out = [f"""; conv stem (K=15, stride 2) as a 2-parallel fast-FIR GEMM + per-channel GroupNorm + tanh GELU, one launch.
; The bias is constant over time per channel, so it cancels exactly in (y - mean_t y).
;   y[2m] = G00[m] + G11[m],  y[2m+1] = Gs[m] + G11[m] + G00[m+1]      (23 instead of 30 tap products per output pair)
; @launch grid=(256,1,1) block=(512,1,1) lds={LDS_BYTES}
.amdgcn_target "amdgcn-amd-amdhsa--gfx950"
.text
.globl {KN}
{ALG}.p2align 8
.type {KN},@function
{KN}:"""]
wk = 0
for sec in ("entry", "lpro", "cpro", "cloop", "lloop", "cepi", "llast", "final"):
    if P["warm"] and sec in ("cloop", "lloop", "cepi", "llast"):
        out += [f"L_warm{wk}:", f"  s_branch L_warm{wk+1}"]; wk += 1
    if sec in ("cloop", "lloop"): out.append(".p2align 6")
    out += SEC[sec]
if P["warm"]: out += [f"L_warm{wk}:", "  s_branch L_warmret"]
out.append(f""".p2align 8
.fill 1024, 4, 0xbf810000
.section .rodata,"a"
.p2align 6
.amdhsa_kernel {KN}
  .amdhsa_next_free_vgpr 256
  .amdhsa_next_free_sgpr 102
  .amdhsa_accum_offset 256
  .amdhsa_group_segment_fixed_size 0
  .amdhsa_kernarg_size 64
  .amdhsa_user_sgpr_count 2
  .amdhsa_user_sgpr_kernarg_segment_ptr 1
  .amdhsa_system_sgpr_workgroup_id_x 1
.end_amdhsa_kernel""")
print("\n".join(out))
```

```python
import sys, struct, math
P = dict(prio=2, lprio=0, dsprio=3, stamps=0, novalu=0, nodma=0, nords=0, barslot=1, rd_gap=5, rdA=19, dly0=13, dly2=13,
         touch=1, lst=-1, cst=0, pst=0, sst=-1, vsplit=2, wsplit=2, cpf=1, stf=2, dbgt=0, dpp=9, u3=1, red=1, wend=0, wend2=0, u0first=0, warm=0, pq=0, xnt=0, tnt=0, wnt=0, pnt=0, vpk=0, pubst=0, x1st=1, algn=0, fresh=1, burst1=0, early2=0, w8=1, cv=0, sst0=0, c0t=1, ct="", ctpos=1, dif=1, wq=0, sk="", lk="", nochk=0, v1=2, g5=1, spoll=0, lateack=1, peel=1, pp=1, ppn=48,
         pro="D0:0:4.D1:0:4.D0.N.D1.S.B.U.V02.D2:0:8.B.F.V24.D2.D3.B.G.w.r.C.D4.T2ab.T3ab.B")
for a in sys.argv[1:]:
    k, v = a.split("=")
    P[k] = v if k in ("pro", "ct", "sk", "lk") else int(v)

KN = "standalone__self_sup_conv_stem_hubert__speech_kernel"
XB = 1056
XSZ = 16 * XB + 128
WOFF = XSZ
SLOT = WOFF + 32768
SPARE = 3 * SLOT
MISC = SPARE + 8192
LDS_BYTES = MISC + 1024
X_BYTES = 2 * 16000 * 256 * 2
W_BYTES = 15 * 256 * 256 * 2
FL_OFF, WP_OFF, WS_BYTES = 0x40000, 0x80000, 0x180000
OOB = 0x40000000
SPIN = 0x4000
def tile(hh, s): return (hh * 3 + s if s < 3 else 6 + hh) * 4096

SEC = {k: [] for k in ("entry", "lpro", "lloop", "llast", "final", "cpro", "cloop", "cepi")}
cur = ["entry"]
def A(s): SEC[cur[0]].append("  " + s)
def LBL(s): SEC[cur[0]].append(s + ":")
def CM(s): SEC[cur[0]].append("  ; " + s)
def f32(x): return "0x%08x" % struct.unpack("<I", struct.pack("<f", x))[0]

sX, sW, sO, sWS, sDBG, sGA, sBE = 4, 8, 12, 16, 20, 24, 28
sWAVE, sT, sNT, sB = 46, 47, 48, 49
sWN, sXO, sWO, sPO, sTMP, sCNT, sMASK16 = 50, 51, 52, 53, 55, 56, 57
sTA = 58
sD, sXB = 60, 61
sN0, sN1 = 62, 63
sMID = 64
sGR, sFO = 66, 67
sK = 68
sM0, sMX = 73, 74
sXW = 75
sST = 76

def srd(d, lo, nbytes):
    A(f"s_mov_b32 s{d}, s{lo}")
    A(f"s_and_b32 s{d+1}, s{lo+1}, 0xffff")
    A(f"s_mov_b32 s{d+2}, {nbytes}")
    A(f"s_mov_b32 s{d+3}, 0x20000")
def out_srd():
    A(f"s_mul_i32 s{sTMP}, s{sB}, {7993*512}")
    A(f"s_mul_i32 s{sCNT}, s{sT}, {250*512}")
    A(f"s_add_u32 s{sTMP}, s{sTMP}, s{sCNT}")
    A(f"s_add_u32 s{sO}, s40, s{sTMP}")
    A(f"s_addc_u32 s{sO+1}, s41, 0")
    A(f"s_and_b32 s{sO+1}, s{sO+1}, 0xffff")
    A(f"s_cmp_eq_u32 s{sT}, 31")
    A(f"s_mov_b32 s{sO+2}, {243*512}")
    A(f"s_cselect_b32 s{sO+2}, s{sO+2}, {250*512}")
    A(f"s_mov_b32 s{sO+3}, 0x20000")
def granule_off():
    A(f"s_lshl_b32 s{sGR}, s{sB}, 2")
    A(f"s_add_u32 s{sGR}, s{sGR}, s{sNT}")
    A(f"s_lshl_b32 s{sGR}, s{sGR}, 15")
    A(f"s_lshl_b32 s{sTMP}, s{sWAVE}, 8")
    A(f"s_add_u32 s{sGR}, s{sGR}, s{sTMP}")
plain = P["stamps"] and P["lst"] < 0 and not P["cst"] and P["sst"] < 0
def stamp(k):
    if not plain: return
    if P["pst"] and k > 0 and cur[0] not in ("cpro", "cloop", "cepi"): return
    A(f"s_memrealtime s[{sST+2*k}:{sST+2*k+1}]")
def pstamp(k):
    if P["pst"] == 1: A(f"s_memrealtime s[{sST+2*k}:{sST+2*k+1}]")
def addbf_list(d, a, b, t, force=False):
    r = []
    if P["novalu"] and not force: return r
    for i0 in (0, 2):
        if P["vpk"]:
            for i in (i0, i0 + 1):
                u = t + 4 * (i - i0)
                r += [f"v_lshlrev_b32 v{u}, 16, v{a+i}", f"v_and_b32 v{u+1}, s{sMASK16}, v{a+i}",
                      f"v_lshlrev_b32 v{u+2}, 16, v{b+i}", f"v_and_b32 v{u+3}, s{sMASK16}, v{b+i}"]
            for i in (i0, i0 + 1):
                u = t + 4 * (i - i0)
                r += [f"v_pk_add_f32 v[{u}:{u+1}], v[{u}:{u+1}], v[{u+2}:{u+3}]"]
            for i in (i0, i0 + 1):
                u = t + 4 * (i - i0)
                r += [f"v_cvt_pk_bf16_f32 v{d+i}, v{u}, v{u+1}"]
            continue
        for i in (i0, i0 + 1):
            u = t + 4 * (i - i0)
            r += [f"v_lshlrev_b32 v{u}, 16, v{a+i}", f"v_lshlrev_b32 v{u+1}, 16, v{b+i}",
                  f"v_and_b32 v{u+2}, s{sMASK16}, v{a+i}", f"v_and_b32 v{u+3}, s{sMASK16}, v{b+i}"]
        for i in (i0, i0 + 1):
            u = t + 4 * (i - i0)
            op = "v_sub_f32" if P["dif"] else "v_add_f32"
            r += [f"{op} v{u}, v{u}, v{u+1}", f"{op} v{u+2}, v{u+2}, v{u+3}"]
        for i in (i0, i0 + 1):
            u = t + 4 * (i - i0)
            r += [f"v_cvt_pk_bf16_f32 v{d+i}, v{u}, v{u+2}"]
    return r
def pks(op, d, a, b, neg=False, c=None):
    s = f"v_pk_{op}_f32 v[{d}:{d+1}], v[{a}:{a+1}], v[{b}:{b+1}]"
    if c is not None: s += f", v[{c}:{c+1}]"
    if neg: s += " neg_lo:[0,1] neg_hi:[0,1]"
    return s
def pk(*a, **k): A(pks(*a, **k))
def final_addr(base):
    b = base
    A(f"v_lshrrev_b32 v{b+4}, 3, v0")
    A(f"v_and_b32 v{b+6}, 7, v0")
    A(f"s_lshl_b32 s{sTMP}, s{sWAVE}, 5")
    A(f"v_add_u32 v{b+4}, s{sTMP}, v{b+4}")
    A(f"v_bfe_u32 v{b}, v0, 4, 1")
    A(f"v_lshl_or_b32 v{b}, v{b}, 3, v{b+6}")
    A(f"s_lshl_b32 s{sTMP}, s{sWAVE}, 1")
    A(f"s_and_b32 s{sTMP}, s{sTMP}, 7")
    A(f"v_xor_b32 v{b}, s{sTMP}, v{b}")
    A(f"v_lshlrev_b32 v{b}, 4, v{b}")
    A(f"v_lshl_add_u32 v{b}, v{b+4}, 8, v{b}")
    A(f"v_xor_b32 v{b+1}, 0x80, v{b}")
    A(f"v_xor_b32 v{b+2}, 0x10, v{b}")
    A(f"v_xor_b32 v{b+3}, 0x90, v{b}")
    A(f"v_lshlrev_b32 v{b+4}, 9, v{b+4}")
    A(f"v_lshl_add_u32 v{b+4}, v{b+6}, 4, v{b+4}")
    A(f"s_lshl_b32 s{sTMP}, s{sNT}, 7")
    A(f"v_add_u32 v{b+4}, s{sTMP}, v{b+4}")
    A(f"v_add_u32 v{b+5}, 0x2000, v{b+4}")
    A(f"v_lshlrev_b32 v{b+6}, 5, v{b+6}")
    A(f"v_add_u32 v{b+6}, {MISC+64}, v{b+6}")
FA = 244
Y = 112
def y_reads():
    for n in range(4):
        for h in range(2):
            A(f"ds_read_b128 v[{Y+8*n+4*h}:{Y+8*n+4*h+3}], v{FA + h + 2*(n >> 1)} offset:{n*2048}")

def sm_base():
    A(f"s_mul_i32 s96, s{sB}, {16000*512}")
    A(f"s_mul_i32 s97, s{sT}, {500*512}")
    A(f"s_add_u32 s96, s96, s97")
    A(f"s_lshl_b32 s97, s{sNT}, 16")
    A(f"s_add_u32 s96, s96, s97")
    A(f"s_lshl_b32 s97, s{sWAVE}, 14")
    A(f"s_add_u32 s96, s96, s97")
    A(f"s_min_u32 s96, s96, {X_BYTES - 16384}")
    A(f"s_add_u32 s96, s96, s32")
    A(f"s_addc_u32 s97, s33, 0")
def sm_list(spec):
    r = []
    for t in spec.split("+"):
        c = int(t[0])
        for h in t[1:]:
            r += [(c >> 1)*128 + (c & 1)*512 + (2*i + (h == "b"))*1024 + 60 for i in range(8)]
    return r
sm_n = [0]
def sm_emit(offs):
    for o in offs:
        A(f"s_load_dwordx2 s[{98 + 2*(sm_n[0] % 2)}:{99 + 2*(sm_n[0] % 2)}], s[96:97], {o}"); sm_n[0] += 1
stamp(0)
A("s_load_dwordx4 s[32:35], s[0:1], 0")
A("s_load_dwordx4 s[40:43], s[0:1], 40")
A("s_load_dwordx2 s[44:45], s[0:1], 56")
A("s_load_dwordx4 s[36:39], s[0:1], 24")
A("s_cmp_ge_u32 s2, 256")
A("s_cbranch_scc1 L_end")
A(f"v_readfirstlane_b32 s{sWAVE}, v0")
A("v_and_b32 v0, 63, v0")
A(f"s_and_b32 s{sT}, s2, 7")
A(f"s_lshl_b32 s{sT}, s{sT}, 3")
A(f"s_lshr_b32 s{sTMP}, s2, 5")
A(f"s_add_u32 s{sT}, s{sT}, s{sTMP}")
A(f"s_bfe_u32 s{sNT}, s2, 0x20003")
A(f"s_lshr_b32 s{sB}, s{sT}, 5")
A(f"s_and_b32 s{sT}, s{sT}, 31")
A(f"s_mov_b32 s{sMASK16}, 0xffff0000")
A(f"s_cmp_lt_u32 s{sWAVE}, 256")
A("s_cbranch_scc1 L_compute")

cur[0] = "lpro"
vXG, vWG, vLIN, vLIN2, vU0, vFL, vZ, vTC = 1, 3, 4, 5, 6, 8, 9, 15
U0, U1, TT, FLG, NON, JUNK, GAM, VV = 16, 32, 48, 56, 64, 66, 68, 80
sTS, sTB = 24, 68
A(f"s_bfe_u32 s{sWAVE}, s{sWAVE}, 0x20006")
if P["fresh"]: A("s_memrealtime s[70:71]")
A(f"s_mul_i32 s{sXB}, s{sB}, {16000*512}")
A(f"s_mul_i32 s{sTMP}, s{sT}, {500*512}")
A(f"s_add_u32 s{sXB}, s{sXB}, s{sTMP}")
A("v_lshrrev_b32 v10, 3, v0")
A("v_and_b32 v11, 7, v0")
A("v_lshlrev_b32 v12, 4, v11")
A(f"v_lshl_add_u32 v{vXG}, v10, 11, v12")
A(f"s_lshl_b32 s{sXW}, s{sWAVE}, 16")
A(f"s_add_u32 s{sXO}, s{sXB}, s{sXW}")
A(f"s_mul_i32 s{sMX}, s{sWAVE}, {4*XB}")
A("v_bfe_u32 v13, v0, 4, 1")
A(f"s_and_b32 s{sTMP}, s{sWAVE}, 1")
A(f"s_lshl_b32 s{sTMP}, s{sTMP}, 1")
A(f"v_or_b32 v13, s{sTMP}, v13")
A("v_lshlrev_b32 v13, 5, v13")
A("v_xor_b32 v13, v13, v12")
A("v_lshl_add_u32 v13, v10, 9, v13")
A(f"s_lshl_b32 s{sTMP}, s{sNT}, 7")
A(f"s_lshl_b32 s{sM0}, s{sWAVE}, 12")
A(f"s_add_u32 s{sTMP}, s{sTMP}, s{sM0}")
A(f"v_add_u32 v{vWG}, s{sTMP}, v13")
A(f"s_lshl_b32 s{sM0}, s{sWAVE}, 10")
A(f"s_mov_b32 s{sWO}, 0")
A(f"v_mov_b32 v{vZ}, 0")
A(f"s_lshl_b32 s{sTMP}, s{sWAVE}, 4")
A(f"s_lshl_b32 s{sCNT}, s{sNT}, 6")
A(f"s_add_u32 s{sTMP}, s{sTMP}, s{sCNT}")
A(f"v_add_u32 v14, s{sTMP}, v0")
A(f"v_lshlrev_b32 v{vTC}, 10, v14")
A("s_waitcnt lgkmcnt(0)")
pstamp(1)
srd(sX, 32, X_BYTES)
srd(sW, 34, W_BYTES)
LK = sm_list(P["lk"]) if P["lk"] else []

TAPS = {("G00", 0): [0, 4, 8, 12], ("G11", 0): [2, 6, 10, 14], ("G00", 1): [1, 5, 9, 13], ("G11", 1): [3, 7, 11]}
def dw(lds, so, tap, hh):
    return [f"s_add_u32 m0, s{sM0}, {lds}",
            f"s_add_u32 s{sTMP}, s{so}, {tap*131072 + hh*16384}",
            f"buffer_load_dwordx4 v{vWG}, s[{sW}:{sW+3}], s{sTMP} offen" + (" nt" if (P["wnt"] == 2 or (P["wnt"] == 1 and cur[0] == "lpro")) else "") + " lds"]
def dma_w(slot, taps, ss=(0, 1, 2, 3), so=None):
    return [dw(slot*SLOT + WOFF + tile(hh, s), so or sWO, taps[s], hh) for hh in (0, 1) for s in ss if s < len(taps)]
def dma_wp(par, slot, spare0=False):
    r = []
    for hh in (0, 1):
        for s in range(4):
            dst = SPARE if (spare0 and hh == 0 and s == 3) else slot*SLOT + WOFF + tile(hh, s)
            r.append([f"s_add_u32 m0, s{sM0}, {dst}",
                      f"s_add_u32 s{sTMP}, s{sPO}, {WP_OFF + (par*4+s)*131072 + hh*16384}",
                      f"buffer_load_dwordx4 v{vWG}, s[{sWS}:{sWS+3}], s{sTMP} offen sc1 lds"])
    return r
def dma_x(slot, phi):
    nt_ = " nt" if (P["xnt"] == 2 or (P["xnt"] == 1 and cur[0] == "lpro")) else ""
    return [[f"s_add_u32 m0, s{sMX}, {slot*SLOT + j*XB}",
             f"s_add_u32 s{sTMP}, s{sXO}, {j*16384 + phi*512}",
             f"buffer_load_dwordx4 v{vXG}, s[{sX}:{sX+3}], s{sTMP} offen{nt_} lds"] for j in range(4)]
tl_n = [0]
def tail_g(slot, phi):
    k = tl_n[0]; tl_n[0] += 1
    return [f"s_cmp_lg_u32 s{sWAVE}, 0", f"s_cbranch_scc1 L_nt{k}",
            f"s_mov_b32 m0, {slot*SLOT + 16*XB}",
            f"s_add_u32 s{sTMP}, s{sXO}, {(512 + phi)*512}",
            "s_mov_b64 exec, 0xff",
            f"buffer_load_dwordx4 v{vXG}, s[{sX}:{sX+3}], s{sTMP} offen lds",
            "s_mov_b64 exec, -1", f"L_nt{k}:"]
def touch_g(dd, par, half="ab", const=False):
    if const:
        r = [f"s_add_u32 s{sTMP}, s{sXB}, {dd*128 + par*512}"]
    else:
        r = [f"s_cmp_lt_u32 s{sD}, {4 - dd}", f"s_cselect_b32 s{sCNT}, s{sXB}, {OOB}",
             f"s_lshl_b32 s{sTMP}, s{sD}, 7", f"s_add_u32 s{sTMP}, s{sTMP}, s{sCNT}", f"s_add_u32 s{sTMP}, s{sTMP}, {dd*128 + par*512}"]
    r.append(f"s_mov_b64 exec, {dict(ab=0xffff, a=0x5555, b=0xaaaa)[half]:#x}")
    r += [f"buffer_load_dword v{JUNK}, v{vTC}, s[{sX}:{sX+3}], s{sTMP} offen" + (" nt" if P["tnt"] else ""), "s_mov_b64 exec, -1"]
    return r
def emit_groups(gs):
    if P["nodma"]: return
    for g in gs:
        for s in g: A(s)
def mix(valu, gs):
    if P["nodma"]: gs = []
    n = len(gs)
    if not valu:
        emit_groups(gs); return
    pos = [(k * len(valu)) // n for k in range(n)] if n else []
    gi = 0
    for i, v in enumerate(valu):
        while gi < n and pos[gi] == i:
            for s in gs[gi]: A(s)
            gi += 1
        A(v)
def rd_u0(): return [f"ds_read_b128 v[{U0+4*j}:{U0+4*j+3}], v{vU0} offset:{j*XB}" for j in range(4)]
def rd_u1(lin, off): return [f"ds_read_b128 v[{U1+4*j}:{U1+4*j+3}], v{lin} offset:{off + j*XB}" for j in range(4)]
def wr_v(lin, off): return [f"ds_write_b128 v{lin}, v[{VV+4*j}:{VV+4*j+3}] offset:{off + j*XB}" for j in range(4)]
def vadd(js):
    r = []
    for j in js: r += addbf_list(VV+4*j, U1+4*j, U0+4*j, TT)
    return r
def hi(lst):
    if P["dsprio"]: A(f"s_setprio {P['dsprio']}")
    for d in lst: A(d)
    if P["dsprio"]: A(f"s_setprio {P['lprio']}")
def lsetup():
    A("v_lshlrev_b32 v13, 4, v0")
    A(f"v_add_u32 v{vLIN}, s{sMX}, v13")
    A(f"v_add_u32 v{vLIN2}, {2*SLOT}, v{vLIN}")
    A("v_cmp_eq_u32 vcc, 7, v10")
    A(f"v_add_u32 v{vU0}, 128, v{vLIN}")
    A(f"v_add_u32 v12, 160, v{vLIN}")
    A(f"v_cndmask_b32 v{vU0}, v{vU0}, v12, vcc")
    A(f"v_lshlrev_b32 v{vFL}, 3, v0")
    srd(sWS, 44, WS_BYTES)
    out_srd()
    granule_off()
    A(f"s_mov_b32 s{sWN}, 32768")
    A(f"s_mov_b32 s{sD}, 0")
    A(f"s_mov_b32 s{sPO}, 0")
    A(f"s_lshl_b32 s{sFO}, s{sWAVE}, 9")
    A(f"s_add_u32 s{sFO}, s{sFO}, {FL_OFF}")
    if P["lprio"]: A(f"s_setprio {P['lprio']}")
STG = {0: None, 1: None, 2: None, 3: None, 4: None}
w_ = dma_w(0, TAPS[("G00", 0)]); x_ = dma_x(0, 0)
STG[0] = [tail_g(0, 0) + x_[0]] + x_[1:2] + w_[:4] + x_[2:] + w_[4:]
if P["x1st"]: STG[0] = [tail_g(0, 0) + x_[0]] + x_[1:] + w_
STG[1] = dma_x(1, 2) + dma_w(1, TAPS[("G11", 0)])
x_ = dma_x(2, 1)
STG[2] = [tail_g(2, 1) + x_[0]] + x_[1:] + dma_w(2, TAPS[("G00", 1)])
STG[3] = dma_x(0, 3) + dma_w(0, TAPS[("G11", 1)]) + dma_w(0, TAPS[("G11", 0)], ss=(3,), so=sWN)
STG[4] = dma_wp(0, 1) + [dw(SPARE + hh*4096, sWN, TAPS[("G00", 0)][3], hh) for hh in (0, 1)]
issued = []; period = 0; seen = {k: 0 for k in STG}; mixv = []; pendg = []
def flush():
    global mixv, pendg
    mix(mixv, [g for _, g in pendg])
    if not P["nodma"]: issued.extend(k for k, _ in pendg)
    mixv = []; pendg = []
def wait_for(keys, extra=""):
    flush()
    last = max(i for i, k in enumerate(issued) if k in keys)
    A(f"s_waitcnt vmcnt({len(issued) - 1 - last}){extra}")
def flag_load(so): A(f"buffer_load_dwordx2 v[{FLG}:{FLG+1}], v{vFL}, s[{sWS}:{sWS+3}], {so} offen sc0 sc1")
def check_flags(name, so):
    A(f"s_mov_b32 s{sCNT}, {SPIN}")
    LBL(name)
    A(f"v_cmp_eq_u64 vcc, s[{sN0}:{sN1}], v[{FLG}:{FLG+1}]")
    A("s_cmp_eq_u64 vcc, -1")
    A(f"s_cbranch_scc1 {name}_ok")
    A(f"s_sub_u32 s{sCNT}, s{sCNT}, 1")
    A(f"s_cbranch_scc1 {name}_ok")
    flag_load(so)
    A("s_waitcnt vmcnt(0)")
    A(f"s_branch {name}")
    LBL(name + "_ok")
def nonce_load(): A(f"buffer_load_dwordx2 v[{NON}:{NON+1}], v{vZ}, s[{sDBG}:{sDBG+3}], 0 offen sc0 sc1")
if P["nodma"]: issued.extend([0, 1, 2, 3, 4])
for tok in P["pro"].split("."):
    if tok[0] == "D":
        f = tok[1:].split(":"); st = int(f[0]); gs = STG[st]
        lo, hi_ = (int(f[1]), int(f[2])) if len(f) > 1 else (seen[st], len(gs))
        assert lo == seen[st]; seen[st] = min(hi_, len(gs))
        assert st < 3 or period >= st - 1
        pendg += [(st, g) for g in gs[lo:hi_]]
        continue
    if tok[0] == "T":
        c = int(tok[1])
        if P["touch"]: pendg.append(("t", touch_g(c >> 1, c & 1, tok[2:], True)))
        continue
    flush()
    if tok[0] == "S":
        pstamp(2); lsetup()
    elif tok[0] == "Z":
        k = int(tok[1]); A(f"s_memrealtime s[{sST+2*k}:{sST+2*k+1}]")
    elif tok[0] == "X":
        for j in range(4):
            A(f"s_add_u32 s{sTMP}, s{sXO}, {j*16384 + 2048}")
            A(f"buffer_load_dwordx4 v[{U0+4*j}:{U0+4*j+3}], v{vXG}, s[{sX}:{sX+3}], s{sTMP} offen")
            A(f"s_add_u32 s{sTMP}, s{sXO}, {j*16384 + 1024}")
            A(f"buffer_load_dwordx4 v[{U1+4*j}:{U1+4*j+3}], v{vXG}, s[{sX}:{sX+3}], s{sTMP} offen")
            issued.extend(["x", "x"])
    elif tok[0] == "Y":
        wait_for(["x"])
    elif tok[0] == "K":
        n = int(tok[1:])
        if sm_n[0] == 0: sm_base()
        sm_emit(LK[:n]); del LK[:n]
    elif tok[0] == "N":
        srd(sDBG, 42, 256); nonce_load(); issued.append("n")
    elif tok[0] == "U":
        k4 = [i for i, k in enumerate(issued) if k == 1][3] if not P["nodma"] else len(issued) - 1
        A(f"s_waitcnt vmcnt({len(issued) - 1 - k4})")
        hi(rd_u1(vLIN, SLOT))
        A("s_waitcnt lgkmcnt(0)")
    elif tok[0] == "V":
        mixv = vadd(range(int(tok[1]), int(tok[2])))
    elif tok[0] == "F":
        assert period == (2 if P["lateack"] else 1)
        wait_for(["n"])
        A(f"s_mov_b32 s{sCNT}, {SPIN}")
        LBL("L_cn")
        A(f"v_readfirstlane_b32 s{sN0}, v{NON}")
        A(f"v_readfirstlane_b32 s{sN1}, v{NON+1}")
        if P["fresh"]:
            CM("a tag much older than this wave is re-read a few times (only matters if d_debug was not cleared)")
            A(f"s_sub_u32 s{sTMP}, s70, s{sN0}")
            A(f"s_cmp_lt_i32 s{sTMP}, 1000")
            A(f"s_cselect_b32 s{sTMP}, s{sN0}, 0")
            A(f"s_cmp_lt_u32 s{sCNT}, {SPIN - 256}")
            A(f"s_cselect_b32 s{sTMP}, s{sN0}, s{sTMP}")
            A(f"s_cmp_lg_u32 s{sTMP}, 0")
        else:
            A(f"s_cmp_lg_u32 s{sN0}, 0")
        A("s_cbranch_scc1 L_cn_ok")
        A(f"s_sub_u32 s{sCNT}, s{sCNT}, 1")
        A("s_cbranch_scc1 L_cn_ok")
        nonce_load()
        A("s_waitcnt vmcnt(0)")
        A("s_branch L_cn")
        LBL("L_cn_ok")
        A(f"s_lshl_b32 s{sTMP}, s2, 3")
        A(f"s_add_u32 s{sTMP}, s{sTMP}, {FL_OFF}")
        A(f"s_cmp_eq_u32 s{sWAVE}, 0")
        A(f"s_cselect_b32 s{sTMP}, s{sTMP}, {OOB}")
        A("s_mov_b64 exec, 1")
        A(f"buffer_store_dwordx2 v[{NON}:{NON+1}], v{vZ}, s[{sWS}:{sWS+3}], s{sTMP} offen sc0 sc1")
        A(f"v_mov_b32 v12, {MISC}")
        A(f"ds_write_b64 v12, v[{NON}:{NON+1}]")
        A("s_mov_b64 exec, -1")
        issued.append("f")
        pstamp(7)
    elif tok[0] == "G":
        A(f"s_mov_b32 s{sTA}, {FL_OFF}"); flag_load(f"s{sTA}"); issued.append("g")
    elif tok[0] == "C":
        wait_for(["g"])
        A(f"s_mov_b32 s{sTA}, {FL_OFF}")
        check_flags("L_spin0", f"s{sTA}")
    elif tok[0] == "W":
        assert period == 3
        hi(wr_v(vLIN, SLOT)[:P["wsplit"]] + rd_u0())
    elif tok[0] == "w":
        assert period == 3
        for d in wr_v(vLIN, SLOT)[:P["wsplit"]]: A(d)
    elif tok[0] == "r":
        assert period == 3
        for d in rd_u0(): A(d)
    elif tok[0] == "B":
        assert seen[period] == len(STG[period])
        if period == 0: pstamp(3)
        wait_for([period], " lgkmcnt(0)" if period >= 2 else "")
        if period == 0: pstamp(4)
        if period == 1:
            if "U" not in P["pro"].split(".") and "X" not in P["pro"].split(".") and not P["cv"]:
                for d in rd_u1(vLIN, SLOT): A(d)
            A("s_waitcnt lgkmcnt(0)")
            A(f"v_add_u32 v{vU0}, {2*SLOT}, v{vU0}")
        if period == 3:
            assert seen[4] == 10
            A("s_branch L_join")
            break
        A("s_barrier")
        if period < 2: pstamp(5 + period)
        period += 1
        CM(f"P({period-1})")
        if period == 1: pend_u0 = "X" not in P["pro"].split(".") and not P["cv"]
    if tok[0] in "FB" and period == 1 and pend_u0 and (tok[0] == "F" or P["lateack"]):
        hi(rd_u0()); pend_u0 = False
n_after_wp = len(issued) - 1 - max(i for i, k in enumerate(issued) if k == 4) + 2

cur[0] = "lloop"
lb_n = [0]
def lbar():
    k = lb_n[0]; lb_n[0] += 1
    if P["lst"] >= 0:
        A(f"s_cmp_lg_u32 s{sD}, {P['lst'] + 1}")
        A(f"s_cbranch_scc1 L_nb{k}")
        A(f"s_memtime s[{76+4*k}:{77+4*k}]")
        A("s_barrier")
        A(f"s_memtime s[{78+4*k}:{79+4*k}]")
        A(f"s_branch L_nc{k}")
        LBL(f"L_nb{k}")
        A("s_barrier")
        LBL(f"L_nc{k}")
    else:
        A("s_barrier")
nt = 1 if P["touch"] else 0
assert P["nodma"] or n_after_wp >= (0 if P['early2'] else 2) + nt, n_after_wp
assert P["nochk"] or P["vsplit"] <= P["wsplit"] <= P["vsplit"] + P["v1"] <= 4
LBL("L_lloop")
for par in (1, 0):
    npar = 1 - par
    CM(f"P(3c-1) par={par}")
    if par == 1:
        A(f"s_cmp_eq_u32 s{sD}, 3")
        A("s_cbranch_scc1 L_last")
    WV = wr_v(vLIN, SLOT)
    def endw(lst):
        if P["wq"] & 4: hi(lst)
        else:
            for d in lst: A(d)
    if P["wq"] & 1: hi(WV[:1])
    elif not P["wend"]: hi(wr_v(vLIN, SLOT)[:P["wsplit"]])
    if P["u0first"]: hi(rd_u0())
    early = [dw((SPARE if par == 1 else 2*SLOT + WOFF + tile(0, 3)) + hh*4096, sWN if par else sWO, TAPS[("G00", npar)][3], hh) for hh in (0, 1)]
    if P["early2"]: early = []
    ne = len(early)
    mix(vadd(range(P["vsplit"] + P["v1"], 4)), dma_wp(npar, 1) + early)
    if not P["u0first"]:
        for d in rd_u0(): A(d)
    if nt: emit_groups([touch_g(1, par)])
    if P["wend"] == 1: hi(wr_v(vLIN, SLOT)[:P["wsplit"]])
    if P["wend"] == 2:
        for d in wr_v(vLIN, SLOT)[:P["wsplit"]]: A(d)
    if P["wq"] & 1: endw(WV[1:2])
    A(f"s_waitcnt vmcnt({8 + ne + nt})")
    if par == 1: LBL("L_join")
    for d in rd_u1(vLIN, 0): A(d)
    A(f"s_mov_b32 s{sPO}, s{sWO}")
    if par == 1:
        A(f"s_add_u32 s{sD}, s{sD}, 1")
        A(f"s_mov_b32 s{sWO}, s{sWN}")
        A(f"s_add_u32 s{sWN}, s{sWN}, 32768")
        A(f"s_cmp_eq_u32 s{sD}, 3")
        A(f"s_cselect_b32 s{sWN}, {OOB}, s{sWN}")
        A(f"s_add_u32 s{sXO}, s{sXO}, 128")
    A("s_waitcnt lgkmcnt(0)")
    lbar()
    CM(f"P(3c) par={par}")
    if P["cv"] and par == 1:
        A(f"s_cmp_eq_u32 s{sD}, 1")
        A("s_cbranch_scc1 L_nolw")
    if P["wq"] & 2: hi(WV[2:3])
    elif not P["wend2"]: hi(wr_v(vLIN, SLOT)[P["wsplit"]:])
    if P["cv"] and par == 1: LBL("L_nolw")
    x_ = dma_x(2, npar)
    gs = [tail_g(2, npar) + x_[0]] + x_[1:] + dma_w(2, TAPS[("G00", npar)], ss=(0, 1, 2))
    mix(vadd(range(P["vsplit"])), gs)
    if P["wq"] & 2: endw(WV[3:4])
    if P["wend2"] == 1: hi(wr_v(vLIN, SLOT)[P["wsplit"]:])
    if P["wend2"] == 2:
        for d in wr_v(vLIN, SLOT)[P["wsplit"]:]: A(d)
    A(f"s_waitcnt vmcnt({10 + ne + nt}) lgkmcnt(0)")
    lbar()
    CM(f"P(3c+1) par={par}")
    gs = dma_x(0, 2 + npar) + dma_w(0, TAPS[("G11", npar)], ss=(0, 1, 2))
    if par == 0: gs += dma_w(0, TAPS[("G11", 0)], ss=(3,), so=sWN)
    if P["early2"]:
        gs += [dw((SPARE if par == 0 else 2*SLOT + WOFF + tile(0, 3)) + hh*4096, sWN if par == 0 else sWO, TAPS[("G00", par)][3], hh) for hh in (0, 1)]
    if par == 1:
        A(f"s_cmp_lg_u32 s{sD}, 1")
        A("s_cbranch_scc1 L_nf2")
        flag_load(f"s{sFO}")
        LBL("L_nf2")
    va = vadd(range(P["vsplit"], P["vsplit"] + P["v1"]))
    if P["burst1"]:
        k = len(va) * (P["burst1"] - 1) // 4
        mix(va[:k], gs)
        for t in va[k:]: A(t)
    else:
        mix(va, gs)
    A(f"s_waitcnt vmcnt({len(gs)})")
    if par == 1:
        A(f"s_cmp_lg_u32 s{sD}, 1")
        A("s_cbranch_scc1 L_spin1_ok")
        check_flags("L_spin1", f"s{sFO}")
    lbar()
A("s_branch L_lloop")

cur[0] = "llast"
LBL("L_last")
CM("P(20)")
hi(wr_v(vLIN, SLOT)[:P["wsplit"]])
mix(vadd(range(P["vsplit"] + P["v1"], 4)), dma_wp(0, 1))
for d in rd_u0(): A(d)
srd(sGA, 36, 512)
srd(sBE, 38, 512)
A("s_waitcnt vmcnt(8)")
for d in rd_u1(vLIN, 0): A(d)
A("s_waitcnt lgkmcnt(0)")
A("s_barrier")
CM("P(21)")
gs = dma_wp(1, 2, True)
hi(wr_v(vLIN, SLOT)[P["wsplit"]:])
mix(vadd(range(2)), gs[:5])
A("s_waitcnt lgkmcnt(0)")
mix(vadd(range(2, 3)), gs[5:])
A("s_waitcnt vmcnt(8)")
A("s_barrier")
CM("P(22)")
wv = wr_v(vLIN2, 0)
for t in vadd(range(3, 4)): A(t)
for d in wv: A(d)
A("v_and_b32 v10, 15, v0")
A(f"s_lshl_b32 s{sTMP}, s{sNT}, 2")
A(f"s_add_u32 s{sTMP}, s{sTMP}, s{sWAVE}")
A(f"s_lshl_b32 s{sTMP}, s{sTMP}, 5")
A("v_lshlrev_b32 v14, 1, v10")
A(f"buffer_load_ushort v{GAM}, v14, s[{sGA}:{sGA+3}], s{sTMP} offen")
A(f"buffer_load_ushort v{GAM+1}, v14, s[{sBE}:{sBE+3}], s{sTMP} offen")
A("s_waitcnt vmcnt(2) lgkmcnt(0)")
A("s_barrier")
A("v_lshrrev_b32 v11, 4, v0")
A("v_lshlrev_b32 v12, 4, v10")
A("v_lshl_add_u32 v12, v11, 10, v12")
A(f"s_lshl_b32 s{sTMP}, s{sWAVE}, 6")
A(f"s_add_u32 s{sTMP}, s{sTMP}, {MISC+64}")
A(f"v_lshl_add_u32 v10, v10, 2, s{sTMP}")
if P["lprio"]: A("s_setprio 0")
A(f"s_add_u32 s{sWAVE}, s{sWAVE}, 4")
final_addr(FA)
A("s_waitcnt vmcnt(0)")
A(f"v_lshlrev_b32 v{GAM}, 16, v{GAM}")
A(f"v_lshlrev_b32 v{GAM+1}, 16, v{GAM+1}")
k0 = -2.0 * math.sqrt(2.0 / math.pi) * math.log2(math.e)
k1 = k0 * 0.044715
gam3 = -((-k1) ** (1.0 / 3.0))
if P["g5"]:
    A(f"v_mul_f32 v{GAM}, {f32(gam3)}, v{GAM}")
    A(f"v_mul_f32 v{GAM+1}, {f32(gam3)}, v{GAM+1}")
if not P["peel"]: A("s_barrier")
A("s_barrier")
stamp(1)
PG = 16
A(f"s_mov_b32 s{sCNT}, {SPIN}")
y_reads()
if P["spoll"]:
    for i in range(8):
        A(f"s_add_u32 s{84+i}, s{sGR}, {i*4096}")
    def pl(i): A(f"buffer_load_dwordx4 v[{PG+4*i}:{PG+4*i+3}], v12, s[{sWS}:{sWS+3}], s{84+i} offen sc0 sc1")
    for i in range(8): pl(i)
    for i in range(8):
        A(f"s_waitcnt vmcnt({7-i})")
        LBL(f"L_pc{i}")
        A(f"v_cmp_eq_u64 vcc, s[{sN0}:{sN1}], v[{PG+4*i+2}:{PG+4*i+3}]")
        A("s_cmp_eq_u64 vcc, -1")
        A(f"s_cbranch_scc0 L_pr{i}")
        LBL(f"L_pd{i}")
else:
    LBL("L_poll")
    for i in range(8):
        so = f"s{sGR}" if i == 0 else f"s{sTMP}"
        if i: A(f"s_add_u32 s{sTMP}, s{sGR}, {i*4096}")
        A(f"buffer_load_dwordx4 v[{PG+4*i}:{PG+4*i+3}], v12, s[{sWS}:{sWS+3}], {so} offen sc0 sc1")
    A(f"s_mov_b64 s[{sTA}:{sTA+1}], -1")
    for i in range(8):
        A(f"s_waitcnt vmcnt({7-i})")
        A(f"v_cmp_eq_u64 vcc, s[{sN0}:{sN1}], v[{PG+4*i+2}:{PG+4*i+3}]")
        A(f"s_and_b64 s[{sTA}:{sTA+1}], s[{sTA}:{sTA+1}], vcc")
    A(f"s_sub_u32 s{sCNT}, s{sCNT}, 1")
    A("s_cbranch_scc1 L_poll_ok")
    A(f"s_cmp_eq_u64 s[{sTA}:{sTA+1}], -1")
    A("s_cbranch_scc0 L_poll")
LBL("L_poll_ok")
stamp(2)
for st in (4, 2, 1):
    for i in range(st):
        pk("add", PG+4*i, PG+4*i, PG+4*(i+st))
for sw in ("v_permlane32_swap_b32", "v_permlane16_swap_b32"):
    A(f"v_mov_b32 v{PG+2}, v{PG}")
    A(f"v_mov_b32 v{PG+3}, v{PG+1}")
    A("s_nop 1")
    A(f"{sw} v{PG}, v{PG+2}")
    A(f"{sw} v{PG+1}, v{PG+3}")
    A("s_nop 1")
    pk("add", PG, PG, PG+2)
A(f"v_mul_f32 v{PG}, {f32(1.0/7993)}, v{PG}")
A(f"v_mul_f32 v{PG+1}, {f32(1.0/7993)}, v{PG+1}")
A(f"v_fma_f32 v{PG+1}, -v{PG}, v{PG}, v{PG+1}")
A(f"v_max_f32 v{PG+1}, 0, v{PG+1}")
A(f"v_add_f32 v{PG+1}, {f32(1e-5)}, v{PG+1}")
A(f"v_rsq_f32 v{PG+1}, v{PG+1}")
A("s_nop 0")
A(f"v_mul_f32 v{PG+1}, v{PG+1}, v{GAM}")
A(f"ds_write_b32 v10, v{PG+1}")
A(f"v_fma_f32 v{PG}, -v{PG}, v{PG+1}, v{GAM+1}")
A(f"ds_write_b32 v10, v{PG} offset:256")

if P["spoll"]:
    cur[0] = "cepi"
    for i in range(8):
        LBL(f"L_pr{i}")
        A(f"s_sub_u32 s{sCNT}, s{sCNT}, 1")
        A(f"s_cbranch_scc1 L_pd{i}")
        pl(i)
        for k in range(i + 1, min(i + 1 + P["spoll"] - 1, 8)): pl(k)
        A("s_waitcnt vmcnt(0)")
        A(f"s_branch L_pc{i}")
    tail_cepi = SEC["cepi"]; SEC["cepi"] = []
cur[0] = "final"
LBL("L_final")
k0 = -2.0 * math.sqrt(2.0 / math.pi) * math.log2(math.e)
k1 = k0 * 0.044715
A(f"s_mov_b32 s{sK+2}, {f32(gam3 if P['g5'] else k1)}")
A(f"s_mov_b32 s{sK+3}, {f32(gam3 if P['g5'] else k1)}")
A(f"s_mov_b32 s{sK+4}, 4096")
A(f"v_mov_b32 v56, {f32(k0/gam3 if P['g5'] else k0)}")
A(f"v_mov_b32 v57, {f32(k0/gam3 if P['g5'] else k0)}")
A("s_waitcnt lgkmcnt(0)")
A("s_barrier")
stamp(4)
CA, CC = 16, 24
A(f"ds_read_b128 v[{CA}:{CA+3}], v{FA+6}")
A(f"ds_read_b128 v[{CC}:{CC+3}], v{FA+6} offset:256")
A(f"ds_read_b128 v[{CA+4}:{CA+7}], v{FA+6} offset:16")
A(f"ds_read_b128 v[{CC+4}:{CC+7}], v{FA+6} offset:272")
Z, U = 32, 40
for n in range(4):
    y = Y + 8 * n
    for h in range(0, 8, 2):
        if n == 0 and h in (0, 4): A(f"s_waitcnt lgkmcnt({2 if h == 0 else 0})")
        pk("fma", y+h, y+h, CA+h, c=CC+h)
    if P["g5"]:
        for h in range(0, 8, 2): pk("fma", U+h, y+h, y+h, c=56)
    else:
        for h in range(0, 8, 2): pk("mul", U+h, y+h, y+h)
        for h in range(0, 8, 2): A(f"v_pk_fma_f32 v[{U+h}:{U+h+1}], v[{U+h}:{U+h+1}], s[{sK+2}:{sK+3}], v[56:57]")
    for h in range(0, 8, 2): pk("mul", U+h, U+h, y+h)
    for h in range(8): A(f"v_exp_f32 v{U+h}, v{U+h}")
    for h in range(0, 8, 2):
        if P["g5"]: A(f"v_pk_fma_f32 v[{U+h}:{U+h+1}], v[{U+h}:{U+h+1}], s[{sK+2}:{sK+3}], s[{sK+2}:{sK+3}]")
        else: A(f"v_pk_add_f32 v[{U+h}:{U+h+1}], v[{U+h}:{U+h+1}], 1.0 op_sel_hi:[1,0]")
    for h in range(8): A(f"v_rcp_f32 v{U+h}, v{U+h}")
    for h in range(0, 8, 2): pk("mul", y+h, y+h, U+h)
    o = Z + 4 * (n & 1)
    for h in range(4): A(f"v_cvt_pk_bf16_f32 v{o+h}, v{y+2*h}, v{y+2*h+1}")
    A(f"buffer_store_dwordx4 v[{o}:{o+3}], v{FA+4 if n < 2 else FA+5}, s[{sO}:{sO+3}], {'0' if n % 2 == 0 else 's'+str(sK+4)} offen" + ["", " nt", " sc1", " sc0 sc1", " sc1 nt"][P["stf"]])
if P["stamps"]:
    stamp(5)
    A("s_waitcnt vmcnt(0)")
    stamp(6)
    A("s_waitcnt lgkmcnt(0)")
    A(f"s_mov_b32 s{sWS+2}, 0x1000000")
    A(f"s_lshl_b32 s{sTMP}, s2, 3")
    A(f"s_add_u32 s{sTMP}, s{sTMP}, s{sWAVE}")
    A(f"s_lshl_b32 s{sTMP}, s{sTMP}, 5")
    A(f"s_add_u32 s{sTMP}, s{sTMP}, 0x200000")
    A("v_mov_b32 v1, 0")
    if plain and not P["pst"]: A("s_sub_u32 s90, s94, s92")
    for k in range(8): A(f"v_mov_b32 v{2+k}, s{sST+(k if P['cst'] else 2*k)}")
    A("s_mov_b64 exec, 1")
    if P["sst"] >= 0:
        for k in range(12): A(f"v_mov_b32 v{2+k}, v{MS+k}") if False else None
    if P["lst"] >= 0 or P["cst"] or P["sst"] >= 0:
        if P["sst"] >= 0:
            for k in range(12): A(f"v_readlane_b32 s{76+k}, v255, {k}")
            A("s_nop 1")
            for k in range(12): A(f"v_mov_b32 v{2+k}, s{76+k}")
        else:
            for k in range(4): A(f"v_mov_b32 v{10+k}, s{sST+8+k if P['cst'] else sST+16+2*k}")
        A(f"s_add_u32 s{sCNT}, s{sTMP}, 0x100000")
        A(f"buffer_store_dwordx4 v[10:13], v1, s[{sWS}:{sWS+3}], s{sCNT} offen")
    A(f"buffer_store_dwordx4 v[2:5], v1, s[{sWS}:{sWS+3}], s{sTMP} offen")
    A(f"buffer_store_dwordx4 v[6:9], v1, s[{sWS}:{sWS+3}], s{sTMP} offen offset:16")
if P["dbgt"]:
    A(f"s_cmp_lg_u32 s{sWAVE}, 0")
    A("s_cbranch_scc1 L_end")
    A("s_cmp_eq_u32 s2, 0")
    A(f"s_cselect_b32 s{sTMP}, 8, 36")
    A("s_cbranch_scc1 L_dd")
    A("s_cmp_lg_u32 s2, 77")
    A("s_cbranch_scc1 L_end")
    LBL("L_dd")
    for k in range(1, 7): A(f"v_subrev_u32 v{2+k}, v2, v{2+k}")
    A(f"buffer_store_dwordx4 v[2:5], v1, s[{sDBG}:{sDBG+3}], s{sTMP} offen")
    A(f"buffer_store_dwordx3 v[6:8], v1, s[{sDBG}:{sDBG+3}], s{sTMP} offen offset:16")
LBL("L_end")
A("s_endpgm")

cur[0] = "cpro"
LBL("L_compute")
G00, G11, GS = 16, 48, 80
SETS = [112, 172]
def vXR(role): return 1 + 2 * role
def vWR(role): return 2 + 2 * role
vW3, vW3C, vGA, vYW = 7, 8, 9, 10
T = 232
CWA, CWB = 112, 116
TP = 160 if P["cv"] else T
CU0, CU1, vCX, vCL = 128, 144, 168, 251
CV = [232, 236, 240, 12]
A(f"s_lshr_b32 s{sWAVE}, s{sWAVE}, 6")
A(f"s_memrealtime s[{sN0}:{sN1}]")
A(f"v_lshrrev_b32 v{TP}, 5, v0")
A(f"s_lshl_b32 s{sTMP}, s{sWAVE}, 1")
A(f"v_add_u32 v{TP}, s{sTMP}, v{TP}")
A(f"v_and_b32 v{TP+1}, 31, v0")
A(f"v_lshlrev_b32 v{TP+1}, 4, v{TP+1}")
A(f"s_lshl_b32 s{sTMP}, s2, 9")
A(f"v_add_u32 v{TP+1}, s{sTMP}, v{TP+1}")
A(f"v_lshl_add_u32 v{TP+2}, v{TP}, 17, v{TP+1}")
A(f"v_and_b32 v{TP}, 3, v{TP}")
A(f"v_lshl_add_u32 v{TP+1}, v{TP}, 19, v{TP+1}")
A(f"s_lshr_b32 s{sWO}, s{sWAVE}, 1")
A(f"s_lshl_b32 s{sWO}, s{sWO}, 17")
A(f"s_add_u32 s{sWN}, s{sWO}, {2*131072}")
if P["cv"]:
    A(f"v_lshrrev_b32 v{vCX}, 3, v0")
    A(f"v_and_b32 v{vCX+1}, 7, v0")
    A(f"v_lshlrev_b32 v{vCX+1}, 4, v{vCX+1}")
    A(f"v_lshl_add_u32 v{vCX}, v{vCX}, 11, v{vCX+1}")
    A(f"s_mul_i32 s{sXB}, s{sB}, {16000*512}")
    A(f"s_mul_i32 s{sTMP}, s{sT}, {500*512}")
    A(f"s_add_u32 s{sXB}, s{sXB}, s{sTMP}")
    A(f"s_lshl_b32 s{sTMP}, s{sWAVE}, 16")
    A(f"s_add_u32 s{sXB}, s{sXB}, s{sTMP}")
A("s_waitcnt lgkmcnt(0)")
srd(sW, 34, W_BYTES)
if P["pq"]:
    A(f"s_cmp_eq_u32 s{sWAVE}, 0")
    A(f"s_cselect_b32 s{sW+2}, s{sW+2}, 0")
A(f"buffer_load_dwordx4 v[{CWA}:{CWA+3}], v{TP+1}, s[{sW}:{sW+3}], s{sWO} offen" + (" nt" if P["pnt"] else ""))
A(f"buffer_load_dwordx4 v[{CWB}:{CWB+3}], v{TP+1}, s[{sW}:{sW+3}], s{sWN} offen" + (" nt" if P["pnt"] else ""))
def cx_loads():
    srd(sX, 32, X_BYTES)
    for j in range(4):
        A(f"s_add_u32 s{sTMP}, s{sXB}, {j*16384 + 2048}")
        A(f"buffer_load_dwordx4 v[{CU0+4*j}:{CU0+4*j+3}], v{vCX}, s[{sX}:{sX+3}], s{sTMP} offen")
        A(f"s_add_u32 s{sTMP}, s{sXB}, {j*16384 + 1024}")
        A(f"buffer_load_dwordx4 v[{CU1+4*j}:{CU1+4*j+3}], v{vCX}, s[{sX}:{sX+3}], s{sTMP} offen")
if P["cv"] == 1: cx_loads()
SK = sm_list(P["sk"]) if P["sk"] else []
if SK: sm_base(); sm_emit(SK[:7]); del SK[:7]
srd(sDBG, 42, 256)
A(f"s_or_b32 s{sTMP}, s2, s{sWAVE}")
A(f"s_cmp_lg_u32 s{sTMP}, 0")
A("s_cbranch_scc1 L_nononce")
A(f"s_or_b32 s{sN0}, s{sN0}, 1")
A(f"v_mov_b32 v{TP+3}, 0")
A(f"v_mov_b32 v{TP+6}, s{sN0}")
A(f"v_mov_b32 v{TP+7}, s{sN1}")
A("s_mov_b64 exec, 1")
A(f"buffer_store_dwordx2 v[{TP+6}:{TP+7}], v{TP+3}, s[{sDBG}:{sDBG+3}], 0 offen sc0 sc1")
A("s_mov_b64 exec, -1")
LBL("L_nononce")
if P["cpf"]:
    A(f"s_cmp_lg_u32 s{sWAVE}, 1")
    A("s_cbranch_scc1 L_nocpf")
    A("s_getpc_b64 s[74:75]")
    LBL("L_pc")
    A(f"s_lshr_b32 s{sTMP}, s2, 3")
    A(f"s_lshl_b32 s{sTMP}, s{sTMP}, 9")
    A(f"s_add_u32 s74, s74, s{sTMP}")
    A("s_addc_u32 s75, s75, 0")
    A(f"s_sub_u32 s74, s74, L_pc-{KN}")
    A("s_subb_u32 s75, s75, 0")
    A(f"v_lshlrev_b32 v{TP+4}, 7, v0")
    A("s_mov_b64 exec, 15")
    A(f"global_load_dword v{TP+5}, v{TP+4}, s[74:75]")
    A("s_mov_b64 exec, -1")
    LBL("L_nocpf")
if P["warm"]:
    CM("visit one instruction in every later code page while the first loads are in flight")
    A("s_branch L_warm0")
    LBL("L_warmret")
srd(sWS, 44, WS_BYTES)
A(f"s_mov_b32 s{sPO}, {WP_OFF}")
out_srd()
A(f"s_mov_b32 s{sMID}, 0x7fff7fff")
A(f"s_cselect_b32 s{sMID}, s{sMID}, -1")
A(f"s_mov_b32 s{sMID+1}, s{sMID}")
granule_off()
A(f"s_lshl_b32 s{sTMP}, s{sT}, 10")
A(f"s_add_u32 s{sGR}, s{sGR}, s{sTMP}")
R, G_, X1, X2 = 120, 121, 122, 124
A(f"v_and_b32 v{R}, 15, v0")
A(f"v_lshrrev_b32 v{G_}, 4, v0")
A(f"v_mul_u32_u24 v{X1}, {XB}, v{R}")
A(f"v_lshl_add_u32 v{vXR(0)}, v{G_}, 4, v{X1}")
A(f"v_bfe_u32 v{X2}, v0, 2, 2")
A(f"v_lshl_add_u32 v{X1}, v{G_}, 3, v{X2}")
A(f"v_lshlrev_b32 v{X1}, 7, v{X1}")
A(f"v_lshrrev_b32 v{X2}, 1, v{X2}")
A(f"v_and_b32 v{X2+1}, 1, v{G_}")
A(f"v_lshl_or_b32 v{X2}, v{X2+1}, 1, v{X2}")
A(f"v_xor_b32 v{X2}, s{sWAVE}, v{X2}")
A(f"v_lshl_add_u32 v{X1}, v{X2}, 5, v{X1}")
A(f"v_and_b32 v{X2}, 3, v0")
A(f"v_lshl_add_u32 v{X1}, v{X2}, 3, v{X1}")
A(f"v_add_u32 v{vWR(0)}, {WOFF}, v{X1}")
A(f"v_add_u32 v{vW3}, {WOFF + tile(0,3)}, v{X1}")
A(f"v_lshlrev_b32 v{vW3C}, 1, v{X1}")
A(f"v_add_u32 v{vW3C}, {2*SLOT + WOFF + tile(0,3) + SPARE}, v{vW3C}")
for k in (1, 2):
    A(f"v_add_u32 v{k+2}, {SLOT}, v{k}")
    A(f"v_add_u32 v{k+4}, {2*SLOT}, v{k}")
if P["red"]:
    CM("after the reduce-scatter lane r of group g holds channel 4g + (r>>2)")
    A(f"v_lshrrev_b32 v{X1}, 2, v{R}")
    A(f"v_lshl_add_u32 v{vGA}, v{G_}, 2, v{X1}")
else:
    A(f"v_lshl_add_u32 v{vGA}, v{G_}, 2, v{R}")
A(f"v_lshlrev_b32 v{vGA}, 4, v{vGA}")
A(f"s_lshl_b32 s{sTMP}, s{sWAVE}, 2")
A(f"v_add_u32 v{X1}, s{sTMP}, v{G_}")
A(f"v_lshrrev_b32 v{X2}, 1, v{X1}")
A(f"v_and_b32 v{X1}, 1, v{X1}")
A(f"v_lshl_or_b32 v{X1}, v{X1}, 3, v{X2}")
A(f"v_and_b32 v{X2}, 7, v{R}")
A(f"v_xor_b32 v{X1}, v{X1}, v{X2}")
A(f"v_lshlrev_b32 v{X1}, 4, v{X1}")
A(f"v_lshl_add_u32 v{vYW}, v{R}, 12, v{X1}")
A(f"v_xor_b32 v{vYW+1}, 0x80, v{vYW}")
final_addr(FA)
for i in range(0, 96, 2):
    A(f"v_pk_mov_b32 v[{16+i}:{17+i}], 0, 0")
if P["cv"]:
    A(f"s_mul_i32 s{sTMP}, s{sWAVE}, {4*XB}")
    A(f"s_add_u32 s{sTMP}, s{sTMP}, {SLOT}")
    A(f"v_lshl_add_u32 v{vCL}, v0, 4, s{sTMP}")
sm_emit(SK[:9]); del SK[:9]
if P["cv"] == 2: cx_loads()
A(f"s_waitcnt vmcnt({8 if P['cv'] else 0})")
for t in addbf_list(CWA, CWA, CWB, 224, True): A(t)
A(f"buffer_store_dwordx4 v[{CWA}:{CWA+3}], v{TP+2}, s[{sWS}:{sWS+3}], s{sPO} offen sc0 sc1")
if P["cv"]:
    for j in range(4):
        A(f"s_waitcnt vmcnt({1 + 2*(3-j) if P['cv'] == 2 else 1})") if (j == 0 or P["cv"] == 2) else None
        for t in addbf_list(CV[j], CU1+4*j, CU0+4*j, 224, True): A(t)
nct = 0
def c_touch():
    global nct
    if not P["ct"]: return
    if not P["cv"]:
        srd(sX, 32, X_BYTES)
    A(f"s_mul_i32 s{sXO}, s{sB}, {16000*512}")
    A(f"s_mul_i32 s{sTMP}, s{sT}, {500*512}")
    A(f"s_add_u32 s{sXO}, s{sXO}, s{sTMP}")
    A(f"s_lshl_b32 s{sTMP}, s{sWAVE}, 4")
    A(f"s_lshl_b32 s{sCNT}, s{sNT}, 6")
    A(f"s_add_u32 s{sTMP}, s{sTMP}, s{sCNT}")
    A(f"v_add_u32 v252, s{sTMP}, v0")
    A(f"v_lshlrev_b32 v252, 10, v252")
    for t in P["ct"].split("+"):
        c = int(t[0])
        A(f"s_add_u32 s{sTMP}, s{sXO}, {(c >> 1)*128 + (c & 1)*512}")
        A(f"s_mov_b64 exec, {dict(ab=0xffff, a=0x5555, b=0xaaaa)[t[1:]]:#x}")
        A(f"buffer_load_dword v253, v252, s[{sX}:{sX+3}], s{sTMP} offen")
        nct += 1
    A("s_mov_b64 exec, -1")
c_touch()
sm_emit(SK)
if P["sk"]: A("s_waitcnt lgkmcnt(0)")
if P["prio"]: A(f"s_setprio {P['prio']}")
if not P["lateack"]: A(f"s_waitcnt vmcnt({nct})")

def reads(role, hh, st, ndpp=0, last=False):
    xb = SETS[st]; wb = xb + 44
    def xr(q): return (("X", q), f"ds_read_b128 v[{xb+4*q}:{xb+4*q+3}], v{vXR(role)} offset:{(q & 7)*128 + hh*64 + (XB if q > 7 else 0)}")
    def wr(s, h):
        if role == 0 and s == 3 and not last:
            return (("W", s), f"ds_read_b64_tr_b16 v[{wb+4*s+2*h}:{wb+4*s+2*h+1}], v{vW3} offset:{hh*4096 + h*512}")
        return (("W", s), f"ds_read_b64_tr_b16 v[{wb+4*s+2*h}:{wb+4*s+2*h+1}], v{vWR(role)} offset:{tile(hh, s) + h*512}")
    if role == 1 and P["u3"]:
        r = [wr(0, 0), wr(0, 1), xr(0), wr(1, 0), wr(1, 1), xr(1), wr(2, 0), wr(2, 1)] + [xr(q) for q in range(2, 10)] + [wr(3, 0), wr(3, 1), xr(10)]
    else:
        r = [wr(0, 0), wr(0, 1), xr(0), wr(1, 0), wr(1, 1)] + [xr(q) for q in range(1, 9)] + [wr(2, 0), wr(2, 1), wr(3, 0), wr(3, 1), xr(9), xr(10)]
    dq = list(range(11 - ndpp, 11))
    r = [e for e in r if not (e[0][0] == "X" and e[0][1] in dq)]
    d = [f"v_mov_b32_dpp v{xb+4*q+i}, v{xb+4*(q-8)+i} row_shl:1 row_mask:0xf bank_mask:0xf bound_ctrl:0" for q in dq for i in range(4)]
    return r, d
def mfma_list(acc, st, split3=False):
    xb = SETS[st]; wb = xb + 44
    pairs = []
    if split3 and P["u3"]:
        pairs = [(s, j) for j in range(8) for s in ((0, 1, 2) if j % 2 == 0 else (2, 1, 0))] + [(3, j) for j in range(8)]
    else:
        for s0 in ((0,) if split3 else (0, 2)):
            for q in range(s0, s0 + 9):
                for s in (s0 + 1, s0):
                    if 0 <= q - s < 8: pairs.append((s, q - s))
        if split3: pairs += [(s, j) for s in (2, 3) for j in range(8)]
    out = []
    for s, j in pairs:
        d = f"v[{acc+4*j}:{acc+4*j+3}]"
        out.append(([("W", s), ("X", j+s)], f"v_mfma_f32_16x16x32_bf16 {d}, v[{wb+4*s}:{wb+4*s+3}], v[{xb+4*(j+s)}:{xb+4*(j+s)+3}], {d}"))
    return out
pending = []
ss_n = [0]
def sstamp():
    if P["sst"] < 0 or ss_n[0] >= 12: return
    k = ss_n[0]; ss_n[0] += 1
    A(f"s_memtime s[{76+2*k}:{77+2*k}]")
def seq(acc, st, rdd, barrier, skip_label=None, extra=None, delay=0, vm0=False, pre=(), c0tail=None):
    global pending
    rd, dpp = rdd
    pre = list(pre)
    nm = 24 if skip_label else 32
    m = mfma_list(acc, st, skip_label is not None)
    rd = [] if P["nords"] else list(rd)
    dpp = list(dpp)
    first = max(P["barslot"], delay) if barrier else 0
    if dpp:
        first = min(first, nm - len(rd) - len(dpp) - 0) if barrier else first
        first = max(first, P["barslot"]) if barrier else first
        last = first + len(rd) - 1
    else:
        last = max(min(first + len(rd) if barrier else P["rdA"], nm - P["rd_gap"]), first + len(rd) - 1) if rd else 0
    slots = [first + (k * (last - first)) // max(len(rd) - 1, 1) for k in range(len(rd))]
    dslots = [min(last + 1 + len(pre) + k, nm - 1) for k in range(len(dpp))]
    if pre:
        extra = dict(extra or {})
        for k, t in enumerate(pre): extra.setdefault(last + 1 + k, []).append(t)
    cur_ = list(pending); newer = 0; nxt = []; nd = 0
    for i, (need, ins) in enumerate(m):
        if i == 24 and skip_label:
            A(f"s_cbranch_scc1 {skip_label}")
            if c0tail:
                A(f"s_cmp_eq_u32 s{sCNT}, 0")
                A("s_cbranch_scc1 L_cfirst")
                c0tail.extend(x for _, x in m[24:])
        W_ = 8 if P["w8"] else 16
        if i % W_ == 0 or (skip_label and i == 24):
            need = [k for nd_, _ in m[i:i+W_ if not (skip_label and i == 16) else 24] for k in nd_]
            if barrier and i == 0: need = [k for nd_, _ in m[:P["barslot"]+1] for k in nd_]
            idx = max([k for k, key in enumerate(cur_) if key in need], default=-1)
            if idx >= 0:
                n = len(cur_) - 1 - idx + newer
                if n < 15: A(f"s_waitcnt lgkmcnt({n})")
                cur_ = cur_[idx+1:]
        A(ins)
        if barrier and i == P["barslot"]:
            if cur_ or vm0: A("s_waitcnt" + (" vmcnt(0)" if vm0 else "") + " lgkmcnt(0)"); cur_ = []
            sstamp()
            A("s_barrier")
            sstamp()
        while rd and slots[len(nxt)] <= i:
            key, s = rd.pop(0); A(s); nxt.append(key); newer += 1
        while nd < len(dpp) and dslots[nd] <= i:
            if nd == 0:
                k = max(nxt.index(("X", q)) for q in range(3) if ("X", q) in nxt)
                A(f"s_waitcnt lgkmcnt({min(len(nxt) - 1 - k, 15)})")
            A(dpp[nd]); nd += 1
        if extra and i in extra:
            for s in extra[i]: A(s)
    assert not rd and nd == len(dpp)
    if skip_label: LBL(skip_label)
    pending = nxt
    sstamp()
A("s_barrier")
if P["sst0"]: A("s_memtime s[98:99]")
stamp(1)
if plain: A("s_memtime s[92:93]"); A("s_waitcnt lgkmcnt(0)")
D2, D3 = (2 if P["dpp"] else 0), (3 if P["dpp"] else 0)
r0, _ = reads(0, 0, 0)
for _, s in r0: A(s)
LATE = reads(0, 0, 0, 2)[1] if P["dpp"] & 8 else []
pending = [k for k, _ in reads(0, 0, 0, D2 if P["dpp"] & 12 else 0)[0]]
loop_entry = list(pending)
A(f"s_mov_b32 s{sCNT}, 0")
if P["dpp"] & 12: A("s_waitcnt lgkmcnt(0)")
A("s_branch L_cloop")

cur[0] = "cloop"
def cstamp(idx=None):
    if not P["cst"]: return
    A("s_memtime s[100:101]")
    A("s_waitcnt lgkmcnt(0)")
    if idx is None:
        A(f"s_mov_b32 m0, s{sCNT}")
        A("s_nop 0")
        A("s_movreld_b32 s76, s100")
    else:
        A(f"s_mov_b32 s{76+idx}, s100")
LBL("L_cloop")
if P["sst"] >= 0:
    A(f"s_cmp_lg_u32 s{sCNT}, {P['sst'] + 1}")
    A("s_cbranch_scc1 L_nss")
    A("s_waitcnt lgkmcnt(0)")
    for k in range(12): A(f"v_writelane_b32 v255, s{76+2*k}, {k}")
    LBL("L_nss")
cstamp()
if P["sst0"]: sstamp()
seq(G00, 0, reads(0, 1, 1, D2), False, pre=LATE)
seq(G00, 1, reads(1, 0, 0, D3 if P["dpp"] & 2 else 0), True, extra={28: [f"v_sub_u32 v{vW3}, v{vW3C}, v{vW3}"]}, delay=P["dly0"], vm0=bool(P["lateack"]))
A(f"s_bitcmp1_b32 s{sCNT}, 0")
seq(G11, 0, reads(1, 1, 1), False, "L_skipa")
c0l = ["x"] if (P["cv"] and P["c0t"]) else None
seq(G11, 1, reads(2, 0, 0), True, "L_skipb", c0tail=c0l)
if not c0l:
    A(f"s_cmp_eq_u32 s{sCNT}, 0")
    A("s_cbranch_scc1 L_cfirst")
LBL("L_gs")
pend_gs = list(pending)
seq(GS, 0, reads(2, 1, 1, D3), False)
A(f"s_add_u32 s{sCNT}, s{sCNT}, 1")
A(f"s_cmp_lt_u32 s{sCNT}, 8")
seq(GS, 1, (reads(0, 0, 0, 2)[0], []) if P["dpp"] & 8 else reads(0, 0, 0, D2 if P["dpp"] & 4 else 0), True, delay=P["dly2"] + (2 if P["dpp"] & 8 else 0))
pend_loop = list(pending)
assert pend_loop == loop_entry
A("s_cbranch_scc1 L_cloop")
if not P["peel"]:
    A(f"s_cmp_eq_u32 s{sCNT}, 9")
    A("s_cbranch_scc1 L_cdone")
    cstamp(8)
    for k in (5, 6): A(f"v_mov_b32 v{k}, v{k-4}")
    if pend_loop != pend_gs: A("s_waitcnt lgkmcnt(0)")
    A("s_branch L_gs")
else:
    A("s_branch L_cdone")
LBL("L_cfirst")
if c0l:
    for k, t in enumerate(c0l[1:]):
        A(t)
        if k % 2 == 0: A(f"ds_write_b128 v{vCL}, v[{CV[k//2]}:{CV[k//2]+3}] offset:{(k//2)*XB}")
elif P["cv"]:
    for j in range(4): A(f"ds_write_b128 v{vCL}, v[{CV[j]}:{CV[j]+3}] offset:{j*XB}")
if not P["pubst"]: stamp(3)
for k in (1, 2):
    A(f"v_add_u32 v{k}, {2*SLOT}, v{k}")
    A(f"v_subrev_u32 v{k+2}, {SLOT}, v{k+2}")
    A(f"v_subrev_u32 v{k+4}, {SLOT}, v{k+4}")
A(f"v_add_u32 v{vW3}, {tile(0,3)}, v2")
A(f"s_mov_b32 s{sCNT}, 1")
if P["sst0"]: A("s_waitcnt lgkmcnt(0)"); A("s_memtime s[94:95]")
if not c0l and (pend_loop != pend_gs or P["cv"]): A("s_waitcnt lgkmcnt(0)")
assert pend_gs[:len(pend_loop)] == pend_loop
A("s_branch L_cloop")

cur[0] = "cepi"
LBL("L_cdone")
def yreg(idx): return ((SETS[0] if P["pp"] else G11) if idx % 2 == 0 else GS) + 4 * (idx // 2)
S1, S2 = 16, 20
dppl = [f"v_mov_b32_dpp v{T+i}, v{G00+i} row_shl:1 row_mask:0xf bank_mask:0xf bound_ctrl:0" for i in range(4)]
if P["peel"]:
    cstamp(8)
    pending = pend_loop
    CM("last stage, with the G00/G11 part of the output transform in its shadow: G11 <- y0, G00[j] <- G11[j] + G00[j+1]")
    exA = {20 + i: [dppl[i]] for i in range(4)}
    exA[19] = [f"v_mov_b32 v12, {MISC}", "ds_read_b64 v[238:239], v12"]
    Y0 = SETS[0]
    ex = []
    if P["pp"]:
        def op2(d, x, y):
            return [pks("add", d, x, y), pks("add", d+2, x+2, y+2)] if P["pp"] == 2 else [f"v_add_f32 v{d+i}, v{x+i}, v{y+i}" for i in range(4)]
        for j in range(8):
            ex += op2(Y0+4*j, G00+4*j, G11+4*j)
        for j in range(8):
            ex += op2(G11+4*j, G11+4*j, G00+4*(j+1) if j < 7 else T)
    if LATE:
        exA = {(k + 8 if k >= 20 else k): v for k, v in exA.items()}
        for k, t in enumerate(LATE): exA[20 + k] = [t]
    seq(GS, 0, reads(0, 1, 1, 0, True), False, extra=exA)
    pending = pending + [("N", 0)]
    nh = min(len(ex), P["ppn"])
    seq(GS, 1, ([], []), False, extra={1 + (k * 31) // max(nh, 1): [] for k in range(nh)} and
        {i: [ex[k] for k in range(nh) if 1 + (k * 31) // nh == i] for i in range(32)} if nh else None)
    if P["pp"] == 1 and nh % 4 == 0 and nh >= 32:
        for j in range((nh - 32) // 4, 8):
            for h in (0, 2): pk("add", G11+4*j+h, G11+4*j+h, (G00+4*(j+1) if j < 7 else T) + h)
    else:
        for t in ex[nh:]: A(t)
    A("s_nop 7")
else:
    A(f"v_mov_b32 v12, {MISC}")
    A("ds_read_b64 v[238:239], v12")
    for t in dppl: A(t)
    A("s_nop 2")
cstamp(9)
stamp(2)
if plain: A("s_memtime s[94:95]")
if P["prio"]: A("s_setprio 0")
for j in range(8):
    for h in (0, 2):
        pk("add", GS+4*j+h, GS+4*j+h, G11+4*j+h, neg=not P["dif"])
for j in range(8):
    for h in (0, 2):
        if P["pp"]: continue
        nx = G00+4*(j+1)+h if j < 7 else T+h
        pk("add", GS+4*j+h, GS+4*j+h, nx, neg=not P["dif"])
        pk("add", G11+4*j+h, G11+4*j+h, G00+4*j+h)
for h in (0, 2):
    pk("add", S1+h, yreg(0)+h, yreg(1)+h)
    pk("mul", S2+h, yreg(0)+h, yreg(0)+h)
for idx in range(1, 16):
    if idx == 3: A(f"s_mov_b64 exec, s[{sMID}:{sMID+1}]")
    if idx == 10:
        A("s_mov_b32 exec_lo, 0x7fff7fff")
        A("s_mov_b32 exec_hi, 0x7fff7fff")
    for h in (0, 2):
        if idx > 1: pk("add", S1+h, S1+h, yreg(idx)+h)
        pk("fma", S2+h, yreg(idx)+h, yreg(idx)+h, c=S2+h)
A("s_mov_b64 exec, -1")
A("s_nop 1")
def dadd(d, s, ctl, bm="0xf"): A(f"v_add_f32_dpp v{d}, v{s}, v{s} {ctl} row_mask:0xf bank_mask:{bm}")
if P["red"]:
    CM("reduce-scatter over the 16 lanes of a row: banks (r>>2) end up with channel r>>2")
    for b in (S1, S2):
        dadd(b+8, b, "row_ror:8"); dadd(b+9, b+1, "row_ror:8")
    for b in (S1, S2):
        dadd(b+8, b+2, "row_ror:8", "0xc"); dadd(b+9, b+3, "row_ror:8", "0xc")
    A("s_nop 0")
    dadd(236, S1+8, "row_half_mirror"); dadd(237, S2+8, "row_half_mirror")
    dadd(236, S1+9, "row_half_mirror", "0xa"); dadd(237, S2+9, "row_half_mirror", "0xa")
    A("s_nop 0")
    dadd(236, 236, "quad_perm:[1,0,3,2]"); dadd(237, 237, "quad_perm:[1,0,3,2]")
    A("s_nop 0")
    dadd(236, 236, "quad_perm:[2,3,0,1]"); dadd(237, 237, "quad_perm:[2,3,0,1]")
    A("s_mov_b32 exec_lo, 0x11111111")
    A("s_mov_b32 exec_hi, 0x11111111")
else:
    for sh in (8, 4, 2, 1):
        for i in range(8): dadd(16+i, 16+i, f"row_ror:{sh}")
    A("v_mov_b32 v236, v16")
    A("v_mov_b32 v237, v20")
    for i in (1, 2, 3):
        mk = (1 << i) * 0x00010001
        A(f"s_mov_b32 exec_lo, {mk:#x}")
        A(f"s_mov_b32 exec_hi, {mk:#x}")
        A(f"v_mov_b32 v236, v{16+i}")
        A(f"v_mov_b32 v237, v{20+i}")
    A("s_mov_b32 exec_lo, 0x000f000f")
    A("s_mov_b32 exec_hi, 0x000f000f")
A("s_waitcnt lgkmcnt(0)")
A(f"buffer_store_dwordx4 v[236:239], v{vGA}, s[{sWS}:{sWS+3}], s{sGR} offen sc0 sc1")
A("s_mov_b64 exec, -1")
if P["pubst"]: stamp(3)
for idx in range(16):
    A(f"ds_write_b128 v{vYW + ((idx // 2) & 1)}, v[{yreg(idx)}:{yreg(idx)+3}] offset:{idx*256}")
A("s_waitcnt lgkmcnt(0)")
A("s_barrier")
y_reads()
A("s_branch L_final")
if P["spoll"]: SEC["cepi"] += tail_cepi

ALG = "" if not P["algn"] else f".p2align 12\n.fill {(4096 - 0x300 + (P['algn'] - 1) * 256) // 4}, 4, 0xbf810000\n"
out = [f"""; conv stem (K=15, stride 2) as a 2-parallel fast-FIR GEMM + per-channel GroupNorm + tanh GELU, one launch.
; The bias is constant over time per channel, so it cancels exactly in (y - mean_t y).
;   y[2m] = G00[m] + G11[m],  y[2m+1] = Gs[m] + G11[m] + G00[m+1]      (23 instead of 30 tap products per output pair)
; @launch grid=(256,1,1) block=(512,1,1) lds={LDS_BYTES}
.amdgcn_target "amdgcn-amd-amdhsa--gfx950"
.text
.globl {KN}
{ALG}.p2align 8
.type {KN},@function
{KN}:"""]
wk = 0
for sec in ("entry", "lpro", "cpro", "cloop", "lloop", "cepi", "llast", "final"):
    if P["warm"] and sec in ("cloop", "lloop", "cepi", "llast"):
        out += [f"L_warm{wk}:", f"  s_branch L_warm{wk+1}"]; wk += 1
    if sec in ("cloop", "lloop"): out.append(".p2align 6")
    out += SEC[sec]
if P["warm"]: out += [f"L_warm{wk}:", "  s_branch L_warmret"]
out.append(f""".p2align 8
.fill 1024, 4, 0xbf810000
.section .rodata,"a"
.p2align 6
.amdhsa_kernel {KN}
  .amdhsa_next_free_vgpr 256
  .amdhsa_next_free_sgpr 102
  .amdhsa_accum_offset 256
  .amdhsa_group_segment_fixed_size 0
  .amdhsa_kernarg_size 64
  .amdhsa_user_sgpr_count 2
  .amdhsa_user_sgpr_kernarg_segment_ptr 1
  .amdhsa_system_sgpr_workgroup_id_x 1
.end_amdhsa_kernel""")
print("\n".join(out))
```

```python
import sys, struct, math
P = dict(prio=2, lprio=0, dsprio=3, stamps=0, novalu=0, nodma=0, nords=0, barslot=1, rd_gap=5, rdA=19, dly0=13, dly2=13,
         touch=1, lst=-1, cst=0, pst=0, sst=-1, vsplit=2, wsplit=2, cpf=1, stf=2, dbgt=0, dpp=9, u3=1, red=1, wend=0, wend2=0, u0first=0, warm=0, pq=0, xnt=0, tnt=0, wnt=0, pnt=0, vpk=0, pubst=0, x1st=1, algn=0, fresh=1, burst1=0, early2=0, w8=1, cv=0, sst0=0, c0t=1, ct="", ctpos=1, dif=1, wq=0, sk="", lk="", pdel=0, cfirst=1, nochk=0, v1=2, g5=1, spoll=0, lateack=1, peel=1, pp=1, ppn=48,
         pro="D0:0:4.D1:0:4.D0.N.D1.S.B.U.V02.D2:0:8.B.F.V24.D2.D3.B.G.w.r.C.D4.T2ab.T3ab.B")
for a in sys.argv[1:]:
    k, v = a.split("=")
    P[k] = v if k in ("pro", "ct", "sk", "lk") else int(v)

KN = "standalone__self_sup_conv_stem_hubert__speech_kernel"
XB = 1056
XSZ = 16 * XB + 128
WOFF = XSZ
SLOT = WOFF + 32768
SPARE = 3 * SLOT
MISC = SPARE + 8192
LDS_BYTES = MISC + 1024
X_BYTES = 2 * 16000 * 256 * 2
W_BYTES = 15 * 256 * 256 * 2
FL_OFF, WP_OFF, WS_BYTES = 0x40000, 0x80000, 0x180000
OOB = 0x40000000
SPIN = 0x4000
def tile(hh, s): return (hh * 3 + s if s < 3 else 6 + hh) * 4096

SEC = {k: [] for k in ("cp0", "entry", "lpro", "lloop", "llast", "final", "cpro", "cloop", "cepi")}
cur = ["entry"]
def A(s): SEC[cur[0]].append("  " + s)
def LBL(s): SEC[cur[0]].append(s + ":")
def CM(s): SEC[cur[0]].append("  ; " + s)
def f32(x): return "0x%08x" % struct.unpack("<I", struct.pack("<f", x))[0]

sX, sW, sO, sWS, sDBG, sGA, sBE = 4, 8, 12, 16, 20, 24, 28
sWAVE, sT, sNT, sB = 46, 47, 48, 49
sWN, sXO, sWO, sPO, sTMP, sCNT, sMASK16 = 50, 51, 52, 53, 55, 56, 57
sTA = 58
sD, sXB = 60, 61
sN0, sN1 = 62, 63
sMID = 64
sGR, sFO = 66, 67
sK = 68
sM0, sMX = 73, 74
sXW = 75
sST = 76

def srd(d, lo, nbytes):
    A(f"s_mov_b32 s{d}, s{lo}")
    A(f"s_and_b32 s{d+1}, s{lo+1}, 0xffff")
    A(f"s_mov_b32 s{d+2}, {nbytes}")
    A(f"s_mov_b32 s{d+3}, 0x20000")
def out_srd():
    A(f"s_mul_i32 s{sTMP}, s{sB}, {7993*512}")
    A(f"s_mul_i32 s{sCNT}, s{sT}, {250*512}")
    A(f"s_add_u32 s{sTMP}, s{sTMP}, s{sCNT}")
    A(f"s_add_u32 s{sO}, s40, s{sTMP}")
    A(f"s_addc_u32 s{sO+1}, s41, 0")
    A(f"s_and_b32 s{sO+1}, s{sO+1}, 0xffff")
    A(f"s_cmp_eq_u32 s{sT}, 31")
    A(f"s_mov_b32 s{sO+2}, {243*512}")
    A(f"s_cselect_b32 s{sO+2}, s{sO+2}, {250*512}")
    A(f"s_mov_b32 s{sO+3}, 0x20000")
def granule_off():
    A(f"s_lshl_b32 s{sGR}, s{sB}, 2")
    A(f"s_add_u32 s{sGR}, s{sGR}, s{sNT}")
    A(f"s_lshl_b32 s{sGR}, s{sGR}, 15")
    A(f"s_lshl_b32 s{sTMP}, s{sWAVE}, 8")
    A(f"s_add_u32 s{sGR}, s{sGR}, s{sTMP}")
plain = P["stamps"] and P["lst"] < 0 and not P["cst"] and P["sst"] < 0
def stamp(k):
    if not plain: return
    if P["pst"] and k > 0 and cur[0] not in ("cpro", "cloop", "cepi"): return
    A(f"s_memrealtime s[{sST+2*k}:{sST+2*k+1}]")
def pstamp(k):
    if P["pst"] == 1: A(f"s_memrealtime s[{sST+2*k}:{sST+2*k+1}]")
def addbf_list(d, a, b, t, force=False):
    r = []
    if P["novalu"] and not force: return r
    for i0 in (0, 2):
        if P["vpk"]:
            for i in (i0, i0 + 1):
                u = t + 4 * (i - i0)
                r += [f"v_lshlrev_b32 v{u}, 16, v{a+i}", f"v_and_b32 v{u+1}, s{sMASK16}, v{a+i}",
                      f"v_lshlrev_b32 v{u+2}, 16, v{b+i}", f"v_and_b32 v{u+3}, s{sMASK16}, v{b+i}"]
            for i in (i0, i0 + 1):
                u = t + 4 * (i - i0)
                r += [f"v_pk_add_f32 v[{u}:{u+1}], v[{u}:{u+1}], v[{u+2}:{u+3}]"]
            for i in (i0, i0 + 1):
                u = t + 4 * (i - i0)
                r += [f"v_cvt_pk_bf16_f32 v{d+i}, v{u}, v{u+1}"]
            continue
        for i in (i0, i0 + 1):
            u = t + 4 * (i - i0)
            r += [f"v_lshlrev_b32 v{u}, 16, v{a+i}", f"v_lshlrev_b32 v{u+1}, 16, v{b+i}",
                  f"v_and_b32 v{u+2}, s{sMASK16}, v{a+i}", f"v_and_b32 v{u+3}, s{sMASK16}, v{b+i}"]
        for i in (i0, i0 + 1):
            u = t + 4 * (i - i0)
            op = "v_sub_f32" if P["dif"] else "v_add_f32"
            r += [f"{op} v{u}, v{u}, v{u+1}", f"{op} v{u+2}, v{u+2}, v{u+3}"]
        for i in (i0, i0 + 1):
            u = t + 4 * (i - i0)
            r += [f"v_cvt_pk_bf16_f32 v{d+i}, v{u}, v{u+2}"]
    return r
def pks(op, d, a, b, neg=False, c=None):
    s = f"v_pk_{op}_f32 v[{d}:{d+1}], v[{a}:{a+1}], v[{b}:{b+1}]"
    if c is not None: s += f", v[{c}:{c+1}]"
    if neg: s += " neg_lo:[0,1] neg_hi:[0,1]"
    return s
def pk(*a, **k): A(pks(*a, **k))
def final_addr(base):
    b = base
    A(f"v_lshrrev_b32 v{b+4}, 3, v0")
    A(f"v_and_b32 v{b+6}, 7, v0")
    A(f"s_lshl_b32 s{sTMP}, s{sWAVE}, 5")
    A(f"v_add_u32 v{b+4}, s{sTMP}, v{b+4}")
    A(f"v_bfe_u32 v{b}, v0, 4, 1")
    A(f"v_lshl_or_b32 v{b}, v{b}, 3, v{b+6}")
    A(f"s_lshl_b32 s{sTMP}, s{sWAVE}, 1")
    A(f"s_and_b32 s{sTMP}, s{sTMP}, 7")
    A(f"v_xor_b32 v{b}, s{sTMP}, v{b}")
    A(f"v_lshlrev_b32 v{b}, 4, v{b}")
    A(f"v_lshl_add_u32 v{b}, v{b+4}, 8, v{b}")
    A(f"v_xor_b32 v{b+1}, 0x80, v{b}")
    A(f"v_xor_b32 v{b+2}, 0x10, v{b}")
    A(f"v_xor_b32 v{b+3}, 0x90, v{b}")
    A(f"v_lshlrev_b32 v{b+4}, 9, v{b+4}")
    A(f"v_lshl_add_u32 v{b+4}, v{b+6}, 4, v{b+4}")
    A(f"s_lshl_b32 s{sTMP}, s{sNT}, 7")
    A(f"v_add_u32 v{b+4}, s{sTMP}, v{b+4}")
    A(f"v_add_u32 v{b+5}, 0x2000, v{b+4}")
    A(f"v_lshlrev_b32 v{b+6}, 5, v{b+6}")
    A(f"v_add_u32 v{b+6}, {MISC+64}, v{b+6}")
FA = 244
Y = 112
def y_reads():
    for n in range(4):
        for h in range(2):
            A(f"ds_read_b128 v[{Y+8*n+4*h}:{Y+8*n+4*h+3}], v{FA + h + 2*(n >> 1)} offset:{n*2048}")

def sm_base():
    A(f"s_mul_i32 s96, s{sB}, {16000*512}")
    A(f"s_mul_i32 s97, s{sT}, {500*512}")
    A(f"s_add_u32 s96, s96, s97")
    A(f"s_lshl_b32 s97, s{sNT}, 16")
    A(f"s_add_u32 s96, s96, s97")
    A(f"s_lshl_b32 s97, s{sWAVE}, 14")
    A(f"s_add_u32 s96, s96, s97")
    A(f"s_min_u32 s96, s96, {X_BYTES - 16384}")
    A(f"s_add_u32 s96, s96, s32")
    A(f"s_addc_u32 s97, s33, 0")
def sm_list(spec):
    r = []
    for t in spec.split("+"):
        c = int(t[0])
        for h in t[1:]:
            r += [(c >> 1)*128 + (c & 1)*512 + (2*i + (h == "b"))*1024 + 60 for i in range(8)]
    return r
sm_n = [0]
def sm_emit(offs):
    for o in offs:
        A(f"s_load_dwordx2 s[{98 + 2*(sm_n[0] % 2)}:{99 + 2*(sm_n[0] % 2)}], s[96:97], {o}"); sm_n[0] += 1
stamp(0)
A("s_load_dwordx4 s[32:35], s[0:1], 0")
A("s_load_dwordx4 s[40:43], s[0:1], 40")
A("s_load_dwordx2 s[44:45], s[0:1], 56")
A("s_load_dwordx4 s[36:39], s[0:1], 24")
A("s_cmp_ge_u32 s2, 256")
A("s_cbranch_scc1 L_end")
A(f"v_readfirstlane_b32 s{sWAVE}, v0")
A("v_and_b32 v0, 63, v0")
A(f"s_and_b32 s{sT}, s2, 7")
A(f"s_lshl_b32 s{sT}, s{sT}, 3")
A(f"s_lshr_b32 s{sTMP}, s2, 5")
A(f"s_add_u32 s{sT}, s{sT}, s{sTMP}")
A(f"s_bfe_u32 s{sNT}, s2, 0x20003")
A(f"s_lshr_b32 s{sB}, s{sT}, 5")
A(f"s_and_b32 s{sT}, s{sT}, 31")
A(f"s_mov_b32 s{sMASK16}, 0xffff0000")
A(f"s_cmp_lt_u32 s{sWAVE}, 256")
A("s_cbranch_scc0 L_loader" if P["cfirst"] else "s_cbranch_scc1 L_compute")

cur[0] = "lpro"
LBL("L_loader")
vXG, vWG, vLIN, vLIN2, vU0, vFL, vZ, vTC = 1, 3, 4, 5, 6, 8, 9, 15
U0, U1, TT, FLG, NON, JUNK, GAM, VV = 16, 32, 48, 56, 64, 66, 68, 80
sTS, sTB = 24, 68
A(f"s_bfe_u32 s{sWAVE}, s{sWAVE}, 0x20006")
if P["fresh"]: A("s_memrealtime s[70:71]")
A(f"s_mul_i32 s{sXB}, s{sB}, {16000*512}")
A(f"s_mul_i32 s{sTMP}, s{sT}, {500*512}")
A(f"s_add_u32 s{sXB}, s{sXB}, s{sTMP}")
A("v_lshrrev_b32 v10, 3, v0")
A("v_and_b32 v11, 7, v0")
A("v_lshlrev_b32 v12, 4, v11")
A(f"v_lshl_add_u32 v{vXG}, v10, 11, v12")
A(f"s_lshl_b32 s{sXW}, s{sWAVE}, 16")
A(f"s_add_u32 s{sXO}, s{sXB}, s{sXW}")
A(f"s_mul_i32 s{sMX}, s{sWAVE}, {4*XB}")
A("v_bfe_u32 v13, v0, 4, 1")
A(f"s_and_b32 s{sTMP}, s{sWAVE}, 1")
A(f"s_lshl_b32 s{sTMP}, s{sTMP}, 1")
A(f"v_or_b32 v13, s{sTMP}, v13")
A("v_lshlrev_b32 v13, 5, v13")
A("v_xor_b32 v13, v13, v12")
A("v_lshl_add_u32 v13, v10, 9, v13")
A(f"s_lshl_b32 s{sTMP}, s{sNT}, 7")
A(f"s_lshl_b32 s{sM0}, s{sWAVE}, 12")
A(f"s_add_u32 s{sTMP}, s{sTMP}, s{sM0}")
A(f"v_add_u32 v{vWG}, s{sTMP}, v13")
A(f"s_lshl_b32 s{sM0}, s{sWAVE}, 10")
A(f"s_mov_b32 s{sWO}, 0")
A(f"v_mov_b32 v{vZ}, 0")
A(f"s_lshl_b32 s{sTMP}, s{sWAVE}, 4")
A(f"s_lshl_b32 s{sCNT}, s{sNT}, 6")
A(f"s_add_u32 s{sTMP}, s{sTMP}, s{sCNT}")
A(f"v_add_u32 v14, s{sTMP}, v0")
A(f"v_lshlrev_b32 v{vTC}, 10, v14")
A("s_waitcnt lgkmcnt(0)")
pstamp(1)
srd(sX, 32, X_BYTES)
srd(sW, 34, W_BYTES)
LK = sm_list(P["lk"]) if P["lk"] else []

TAPS = {("G00", 0): [0, 4, 8, 12], ("G11", 0): [2, 6, 10, 14], ("G00", 1): [1, 5, 9, 13], ("G11", 1): [3, 7, 11]}
def dw(lds, so, tap, hh):
    return [f"s_add_u32 m0, s{sM0}, {lds}",
            f"s_add_u32 s{sTMP}, s{so}, {tap*131072 + hh*16384}",
            f"buffer_load_dwordx4 v{vWG}, s[{sW}:{sW+3}], s{sTMP} offen" + (" nt" if (P["wnt"] == 2 or (P["wnt"] == 1 and cur[0] == "lpro")) else "") + " lds"]
def dma_w(slot, taps, ss=(0, 1, 2, 3), so=None):
    return [dw(slot*SLOT + WOFF + tile(hh, s), so or sWO, taps[s], hh) for hh in (0, 1) for s in ss if s < len(taps)]
def dma_wp(par, slot, spare0=False):
    r = []
    for hh in (0, 1):
        for s in range(4):
            dst = SPARE if (spare0 and hh == 0 and s == 3) else slot*SLOT + WOFF + tile(hh, s)
            r.append([f"s_add_u32 m0, s{sM0}, {dst}",
                      f"s_add_u32 s{sTMP}, s{sPO}, {WP_OFF + (par*4+s)*131072 + hh*16384}",
                      f"buffer_load_dwordx4 v{vWG}, s[{sWS}:{sWS+3}], s{sTMP} offen sc1 lds"])
    return r
def dma_x(slot, phi):
    nt_ = " nt" if (P["xnt"] == 2 or (P["xnt"] == 1 and cur[0] == "lpro")) else ""
    return [[f"s_add_u32 m0, s{sMX}, {slot*SLOT + j*XB}",
             f"s_add_u32 s{sTMP}, s{sXO}, {j*16384 + phi*512}",
             f"buffer_load_dwordx4 v{vXG}, s[{sX}:{sX+3}], s{sTMP} offen{nt_} lds"] for j in range(4)]
tl_n = [0]
def tail_g(slot, phi):
    k = tl_n[0]; tl_n[0] += 1
    return [f"s_cmp_lg_u32 s{sWAVE}, 0", f"s_cbranch_scc1 L_nt{k}",
            f"s_mov_b32 m0, {slot*SLOT + 16*XB}",
            f"s_add_u32 s{sTMP}, s{sXO}, {(512 + phi)*512}",
            "s_mov_b64 exec, 0xff",
            f"buffer_load_dwordx4 v{vXG}, s[{sX}:{sX+3}], s{sTMP} offen lds",
            "s_mov_b64 exec, -1", f"L_nt{k}:"]
def touch_g(dd, par, half="ab", const=False):
    if const:
        r = [f"s_add_u32 s{sTMP}, s{sXB}, {dd*128 + par*512}"]
    else:
        r = [f"s_cmp_lt_u32 s{sD}, {4 - dd}", f"s_cselect_b32 s{sCNT}, s{sXB}, {OOB}",
             f"s_lshl_b32 s{sTMP}, s{sD}, 7", f"s_add_u32 s{sTMP}, s{sTMP}, s{sCNT}", f"s_add_u32 s{sTMP}, s{sTMP}, {dd*128 + par*512}"]
    r.append(f"s_mov_b64 exec, {dict(ab=0xffff, a=0x5555, b=0xaaaa)[half]:#x}")
    r += [f"buffer_load_dword v{JUNK}, v{vTC}, s[{sX}:{sX+3}], s{sTMP} offen" + (" nt" if P["tnt"] else ""), "s_mov_b64 exec, -1"]
    return r
def emit_groups(gs):
    if P["nodma"]: return
    for g in gs:
        for s in g: A(s)
def mix(valu, gs):
    if P["nodma"]: gs = []
    n = len(gs)
    if not valu:
        emit_groups(gs); return
    pos = [(k * len(valu)) // n for k in range(n)] if n else []
    gi = 0
    for i, v in enumerate(valu):
        while gi < n and pos[gi] == i:
            for s in gs[gi]: A(s)
            gi += 1
        A(v)
def rd_u0(): return [f"ds_read_b128 v[{U0+4*j}:{U0+4*j+3}], v{vU0} offset:{j*XB}" for j in range(4)]
def rd_u1(lin, off): return [f"ds_read_b128 v[{U1+4*j}:{U1+4*j+3}], v{lin} offset:{off + j*XB}" for j in range(4)]
def wr_v(lin, off): return [f"ds_write_b128 v{lin}, v[{VV+4*j}:{VV+4*j+3}] offset:{off + j*XB}" for j in range(4)]
def vadd(js):
    r = []
    for j in js: r += addbf_list(VV+4*j, U1+4*j, U0+4*j, TT)
    return r
def hi(lst):
    if P["dsprio"]: A(f"s_setprio {P['dsprio']}")
    for d in lst: A(d)
    if P["dsprio"]: A(f"s_setprio {P['lprio']}")
def lsetup():
    A("v_lshlrev_b32 v13, 4, v0")
    A(f"v_add_u32 v{vLIN}, s{sMX}, v13")
    A(f"v_add_u32 v{vLIN2}, {2*SLOT}, v{vLIN}")
    A("v_cmp_eq_u32 vcc, 7, v10")
    A(f"v_add_u32 v{vU0}, 128, v{vLIN}")
    A(f"v_add_u32 v12, 160, v{vLIN}")
    A(f"v_cndmask_b32 v{vU0}, v{vU0}, v12, vcc")
    A(f"v_lshlrev_b32 v{vFL}, 3, v0")
    srd(sWS, 44, WS_BYTES)
    out_srd()
    granule_off()
    A(f"s_mov_b32 s{sWN}, 32768")
    A(f"s_mov_b32 s{sD}, 0")
    A(f"s_mov_b32 s{sPO}, 0")
    A(f"s_lshl_b32 s{sFO}, s{sWAVE}, 9")
    A(f"s_add_u32 s{sFO}, s{sFO}, {FL_OFF}")
    if P["lprio"]: A(f"s_setprio {P['lprio']}")
STG = {0: None, 1: None, 2: None, 3: None, 4: None}
w_ = dma_w(0, TAPS[("G00", 0)]); x_ = dma_x(0, 0)
STG[0] = [tail_g(0, 0) + x_[0]] + x_[1:2] + w_[:4] + x_[2:] + w_[4:]
if P["x1st"]: STG[0] = [tail_g(0, 0) + x_[0]] + x_[1:] + w_
STG[1] = dma_x(1, 2) + dma_w(1, TAPS[("G11", 0)])
x_ = dma_x(2, 1)
STG[2] = [tail_g(2, 1) + x_[0]] + x_[1:] + dma_w(2, TAPS[("G00", 1)])
STG[3] = dma_x(0, 3) + dma_w(0, TAPS[("G11", 1)]) + dma_w(0, TAPS[("G11", 0)], ss=(3,), so=sWN)
STG[4] = dma_wp(0, 1) + [dw(SPARE + hh*4096, sWN, TAPS[("G00", 0)][3], hh) for hh in (0, 1)]
issued = []; period = 0; seen = {k: 0 for k in STG}; mixv = []; pendg = []
def flush():
    global mixv, pendg
    mix(mixv, [g for _, g in pendg])
    if not P["nodma"]: issued.extend(k for k, _ in pendg)
    mixv = []; pendg = []
def wait_for(keys, extra=""):
    flush()
    last = max(i for i, k in enumerate(issued) if k in keys)
    A(f"s_waitcnt vmcnt({len(issued) - 1 - last}){extra}")
def flag_load(so): A(f"buffer_load_dwordx2 v[{FLG}:{FLG+1}], v{vFL}, s[{sWS}:{sWS+3}], {so} offen sc0 sc1")
def check_flags(name, so):
    A(f"s_mov_b32 s{sCNT}, {SPIN}")
    LBL(name)
    A(f"v_cmp_eq_u64 vcc, s[{sN0}:{sN1}], v[{FLG}:{FLG+1}]")
    A("s_cmp_eq_u64 vcc, -1")
    A(f"s_cbranch_scc1 {name}_ok")
    A(f"s_sub_u32 s{sCNT}, s{sCNT}, 1")
    A(f"s_cbranch_scc1 {name}_ok")
    flag_load(so)
    A("s_waitcnt vmcnt(0)")
    A(f"s_branch {name}")
    LBL(name + "_ok")
def nonce_load(): A(f"buffer_load_dwordx2 v[{NON}:{NON+1}], v{vZ}, s[{sDBG}:{sDBG+3}], 0 offen sc0 sc1")
if P["nodma"]: issued.extend([0, 1, 2, 3, 4])
for tok in P["pro"].split("."):
    if tok[0] == "D":
        f = tok[1:].split(":"); st = int(f[0]); gs = STG[st]
        lo, hi_ = (int(f[1]), int(f[2])) if len(f) > 1 else (seen[st], len(gs))
        assert lo == seen[st]; seen[st] = min(hi_, len(gs))
        assert st < 3 or period >= st - 1
        pendg += [(st, g) for g in gs[lo:hi_]]
        continue
    if tok[0] == "T":
        c = int(tok[1])
        if P["touch"]: pendg.append(("t", touch_g(c >> 1, c & 1, tok[2:], True)))
        continue
    flush()
    if tok[0] == "S":
        pstamp(2); lsetup()
    elif tok[0] == "Z":
        k = int(tok[1]); A(f"s_memrealtime s[{sST+2*k}:{sST+2*k+1}]")
    elif tok[0] == "X":
        for j in range(4):
            A(f"s_add_u32 s{sTMP}, s{sXO}, {j*16384 + 2048}")
            A(f"buffer_load_dwordx4 v[{U0+4*j}:{U0+4*j+3}], v{vXG}, s[{sX}:{sX+3}], s{sTMP} offen")
            A(f"s_add_u32 s{sTMP}, s{sXO}, {j*16384 + 1024}")
            A(f"buffer_load_dwordx4 v[{U1+4*j}:{U1+4*j+3}], v{vXG}, s[{sX}:{sX+3}], s{sTMP} offen")
            issued.extend(["x", "x"])
    elif tok[0] == "Y":
        wait_for(["x"])
    elif tok[0] == "K":
        n = int(tok[1:])
        if sm_n[0] == 0: sm_base()
        sm_emit(LK[:n]); del LK[:n]
    elif tok[0] == "N":
        srd(sDBG, 42, 256); nonce_load(); issued.append("n")
    elif tok[0] == "U":
        k4 = [i for i, k in enumerate(issued) if k == 1][3] if not P["nodma"] else len(issued) - 1
        A(f"s_waitcnt vmcnt({len(issued) - 1 - k4})")
        hi(rd_u1(vLIN, SLOT))
        A("s_waitcnt lgkmcnt(0)")
    elif tok[0] == "V":
        mixv = vadd(range(int(tok[1]), int(tok[2])))
    elif tok[0] == "F":
        assert period == (2 if P["lateack"] else 1)
        wait_for(["n"])
        A(f"s_mov_b32 s{sCNT}, {SPIN}")
        LBL("L_cn")
        A(f"v_readfirstlane_b32 s{sN0}, v{NON}")
        A(f"v_readfirstlane_b32 s{sN1}, v{NON+1}")
        if P["fresh"]:
            CM("a tag much older than this wave is re-read a few times (only matters if d_debug was not cleared)")
            A(f"s_sub_u32 s{sTMP}, s70, s{sN0}")
            A(f"s_cmp_lt_i32 s{sTMP}, 1000")
            A(f"s_cselect_b32 s{sTMP}, s{sN0}, 0")
            A(f"s_cmp_lt_u32 s{sCNT}, {SPIN - 256}")
            A(f"s_cselect_b32 s{sTMP}, s{sN0}, s{sTMP}")
            A(f"s_cmp_lg_u32 s{sTMP}, 0")
        else:
            A(f"s_cmp_lg_u32 s{sN0}, 0")
        A("s_cbranch_scc1 L_cn_ok")
        A(f"s_sub_u32 s{sCNT}, s{sCNT}, 1")
        A("s_cbranch_scc1 L_cn_ok")
        nonce_load()
        A("s_waitcnt vmcnt(0)")
        A("s_branch L_cn")
        LBL("L_cn_ok")
        A(f"s_lshl_b32 s{sTMP}, s2, 3")
        A(f"s_add_u32 s{sTMP}, s{sTMP}, {FL_OFF}")
        A(f"s_cmp_eq_u32 s{sWAVE}, 0")
        A(f"s_cselect_b32 s{sTMP}, s{sTMP}, {OOB}")
        A("s_mov_b64 exec, 1")
        A(f"buffer_store_dwordx2 v[{NON}:{NON+1}], v{vZ}, s[{sWS}:{sWS+3}], s{sTMP} offen sc0 sc1")
        A(f"v_mov_b32 v12, {MISC}")
        A(f"ds_write_b64 v12, v[{NON}:{NON+1}]")
        A("s_mov_b64 exec, -1")
        issued.append("f")
        pstamp(7)
    elif tok[0] == "G":
        A(f"s_mov_b32 s{sTA}, {FL_OFF}"); flag_load(f"s{sTA}"); issued.append("g")
    elif tok[0] == "C":
        wait_for(["g"])
        A(f"s_mov_b32 s{sTA}, {FL_OFF}")
        check_flags("L_spin0", f"s{sTA}")
    elif tok[0] == "W":
        assert period == 3
        hi(wr_v(vLIN, SLOT)[:P["wsplit"]] + rd_u0())
    elif tok[0] == "w":
        assert period == 3
        for d in wr_v(vLIN, SLOT)[:P["wsplit"]]: A(d)
    elif tok[0] == "r":
        assert period == 3
        for d in rd_u0(): A(d)
    elif tok[0] == "B":
        assert seen[period] == len(STG[period])
        if period == 0: pstamp(3)
        wait_for([period], " lgkmcnt(0)" if period >= 2 else "")
        if period == 0: pstamp(4)
        if period == 1:
            if "U" not in P["pro"].split(".") and "X" not in P["pro"].split(".") and not P["cv"]:
                for d in rd_u1(vLIN, SLOT): A(d)
            A("s_waitcnt lgkmcnt(0)")
            A(f"v_add_u32 v{vU0}, {2*SLOT}, v{vU0}")
        if period == 3:
            assert seen[4] == 10
            A("s_branch L_join")
            break
        A("s_barrier")
        if period < 2: pstamp(5 + period)
        period += 1
        CM(f"P({period-1})")
        if period == 1: pend_u0 = "X" not in P["pro"].split(".") and not P["cv"]
    if tok[0] in "FB" and period == 1 and pend_u0 and (tok[0] == "F" or P["lateack"]):
        hi(rd_u0()); pend_u0 = False
n_after_wp = len(issued) - 1 - max(i for i, k in enumerate(issued) if k == 4) + 2

cur[0] = "lloop"
lb_n = [0]
def lbar():
    k = lb_n[0]; lb_n[0] += 1
    if P["lst"] >= 0:
        A(f"s_cmp_lg_u32 s{sD}, {P['lst'] + 1}")
        A(f"s_cbranch_scc1 L_nb{k}")
        A(f"s_memtime s[{76+4*k}:{77+4*k}]")
        A("s_barrier")
        A(f"s_memtime s[{78+4*k}:{79+4*k}]")
        A(f"s_branch L_nc{k}")
        LBL(f"L_nb{k}")
        A("s_barrier")
        LBL(f"L_nc{k}")
    else:
        A("s_barrier")
nt = 1 if P["touch"] else 0
assert P["nodma"] or n_after_wp >= (0 if P['early2'] else 2) + nt, n_after_wp
assert P["nochk"] or P["vsplit"] <= P["wsplit"] <= P["vsplit"] + P["v1"] <= 4
LBL("L_lloop")
for par in (1, 0):
    npar = 1 - par
    CM(f"P(3c-1) par={par}")
    if par == 1:
        A(f"s_cmp_eq_u32 s{sD}, 3")
        A("s_cbranch_scc1 L_last")
    WV = wr_v(vLIN, SLOT)
    def endw(lst):
        if P["wq"] & 4: hi(lst)
        else:
            for d in lst: A(d)
    if P["wq"] & 1: hi(WV[:1])
    elif not P["wend"]: hi(wr_v(vLIN, SLOT)[:P["wsplit"]])
    if P["u0first"]: hi(rd_u0())
    early = [dw((SPARE if par == 1 else 2*SLOT + WOFF + tile(0, 3)) + hh*4096, sWN if par else sWO, TAPS[("G00", npar)][3], hh) for hh in (0, 1)]
    if P["early2"]: early = []
    ne = len(early)
    mix(vadd(range(P["vsplit"] + P["v1"], 4)), dma_wp(npar, 1) + early)
    if not P["u0first"]:
        for d in rd_u0(): A(d)
    if nt: emit_groups([touch_g(1, par)])
    if P["wend"] == 1: hi(wr_v(vLIN, SLOT)[:P["wsplit"]])
    if P["wend"] == 2:
        for d in wr_v(vLIN, SLOT)[:P["wsplit"]]: A(d)
    if P["wq"] & 1: endw(WV[1:2])
    A(f"s_waitcnt vmcnt({8 + ne + nt})")
    if par == 1: LBL("L_join")
    for d in rd_u1(vLIN, 0): A(d)
    A(f"s_mov_b32 s{sPO}, s{sWO}")
    if par == 1:
        A(f"s_add_u32 s{sD}, s{sD}, 1")
        A(f"s_mov_b32 s{sWO}, s{sWN}")
        A(f"s_add_u32 s{sWN}, s{sWN}, 32768")
        A(f"s_cmp_eq_u32 s{sD}, 3")
        A(f"s_cselect_b32 s{sWN}, {OOB}, s{sWN}")
        A(f"s_add_u32 s{sXO}, s{sXO}, 128")
    A("s_waitcnt lgkmcnt(0)")
    lbar()
    CM(f"P(3c) par={par}")
    if P["cv"] and par == 1:
        A(f"s_cmp_eq_u32 s{sD}, 1")
        A("s_cbranch_scc1 L_nolw")
    if P["wq"] & 2: hi(WV[2:3])
    elif not P["wend2"]: hi(wr_v(vLIN, SLOT)[P["wsplit"]:])
    if P["cv"] and par == 1: LBL("L_nolw")
    x_ = dma_x(2, npar)
    gs = [tail_g(2, npar) + x_[0]] + x_[1:] + dma_w(2, TAPS[("G00", npar)], ss=(0, 1, 2))
    mix(vadd(range(P["vsplit"])), gs)
    if P["wq"] & 2: endw(WV[3:4])
    if P["wend2"] == 1: hi(wr_v(vLIN, SLOT)[P["wsplit"]:])
    if P["wend2"] == 2:
        for d in wr_v(vLIN, SLOT)[P["wsplit"]:]: A(d)
    A(f"s_waitcnt vmcnt({10 + ne + nt}) lgkmcnt(0)")
    lbar()
    CM(f"P(3c+1) par={par}")
    gs = dma_x(0, 2 + npar) + dma_w(0, TAPS[("G11", npar)], ss=(0, 1, 2))
    if par == 0: gs += dma_w(0, TAPS[("G11", 0)], ss=(3,), so=sWN)
    if P["early2"]:
        gs += [dw((SPARE if par == 0 else 2*SLOT + WOFF + tile(0, 3)) + hh*4096, sWN if par == 0 else sWO, TAPS[("G00", par)][3], hh) for hh in (0, 1)]
    if par == 1:
        A(f"s_cmp_lg_u32 s{sD}, 1")
        A("s_cbranch_scc1 L_nf2")
        flag_load(f"s{sFO}")
        LBL("L_nf2")
    va = vadd(range(P["vsplit"], P["vsplit"] + P["v1"]))
    if P["burst1"]:
        k = len(va) * (P["burst1"] - 1) // 4
        mix(va[:k], gs)
        for t in va[k:]: A(t)
    else:
        mix(va, gs)
    A(f"s_waitcnt vmcnt({len(gs)})")
    if par == 1:
        A(f"s_cmp_lg_u32 s{sD}, 1")
        A("s_cbranch_scc1 L_spin1_ok")
        check_flags("L_spin1", f"s{sFO}")
    lbar()
A("s_branch L_lloop")

cur[0] = "llast"
LBL("L_last")
CM("P(20)")
hi(wr_v(vLIN, SLOT)[:P["wsplit"]])
mix(vadd(range(P["vsplit"] + P["v1"], 4)), dma_wp(0, 1))
for d in rd_u0(): A(d)
srd(sGA, 36, 512)
srd(sBE, 38, 512)
A("s_waitcnt vmcnt(8)")
for d in rd_u1(vLIN, 0): A(d)
A("s_waitcnt lgkmcnt(0)")
A("s_barrier")
CM("P(21)")
gs = dma_wp(1, 2, True)
hi(wr_v(vLIN, SLOT)[P["wsplit"]:])
mix(vadd(range(2)), gs[:5])
A("s_waitcnt lgkmcnt(0)")
mix(vadd(range(2, 3)), gs[5:])
A("s_waitcnt vmcnt(8)")
A("s_barrier")
CM("P(22)")
wv = wr_v(vLIN2, 0)
for t in vadd(range(3, 4)): A(t)
for d in wv: A(d)
A("v_and_b32 v10, 15, v0")
A(f"s_lshl_b32 s{sTMP}, s{sNT}, 2")
A(f"s_add_u32 s{sTMP}, s{sTMP}, s{sWAVE}")
A(f"s_lshl_b32 s{sTMP}, s{sTMP}, 5")
A("v_lshlrev_b32 v14, 1, v10")
A(f"buffer_load_ushort v{GAM}, v14, s[{sGA}:{sGA+3}], s{sTMP} offen")
A(f"buffer_load_ushort v{GAM+1}, v14, s[{sBE}:{sBE+3}], s{sTMP} offen")
A("s_waitcnt vmcnt(2) lgkmcnt(0)")
A("s_barrier")
A("v_lshrrev_b32 v11, 4, v0")
A("v_lshlrev_b32 v12, 4, v10")
A("v_lshl_add_u32 v12, v11, 10, v12")
A(f"s_lshl_b32 s{sTMP}, s{sWAVE}, 6")
A(f"s_add_u32 s{sTMP}, s{sTMP}, {MISC+64}")
A(f"v_lshl_add_u32 v10, v10, 2, s{sTMP}")
if P["lprio"]: A("s_setprio 0")
A(f"s_add_u32 s{sWAVE}, s{sWAVE}, 4")
final_addr(FA)
A("s_waitcnt vmcnt(0)")
A(f"v_lshlrev_b32 v{GAM}, 16, v{GAM}")
A(f"v_lshlrev_b32 v{GAM+1}, 16, v{GAM+1}")
k0 = -2.0 * math.sqrt(2.0 / math.pi) * math.log2(math.e)
k1 = k0 * 0.044715
gam3 = -((-k1) ** (1.0 / 3.0))
if P["g5"]:
    A(f"v_mul_f32 v{GAM}, {f32(gam3)}, v{GAM}")
    A(f"v_mul_f32 v{GAM+1}, {f32(gam3)}, v{GAM+1}")
if not P["peel"]: A("s_barrier")
A("s_barrier")
stamp(1)
PG = 16
A(f"s_mov_b32 s{sCNT}, {SPIN}")
y_reads()
if P["spoll"]:
    for i in range(8):
        A(f"s_add_u32 s{84+i}, s{sGR}, {i*4096}")
    def pl(i): A(f"buffer_load_dwordx4 v[{PG+4*i}:{PG+4*i+3}], v12, s[{sWS}:{sWS+3}], s{84+i} offen sc0 sc1")
    for i in range(8): pl(i)
    for i in range(8):
        A(f"s_waitcnt vmcnt({7-i})")
        LBL(f"L_pc{i}")
        A(f"v_cmp_eq_u64 vcc, s[{sN0}:{sN1}], v[{PG+4*i+2}:{PG+4*i+3}]")
        A("s_cmp_eq_u64 vcc, -1")
        A(f"s_cbranch_scc0 L_pr{i}")
        LBL(f"L_pd{i}")
else:
    LBL("L_poll")
    for i in range(8):
        so = f"s{sGR}" if i == 0 else f"s{sTMP}"
        if i: A(f"s_add_u32 s{sTMP}, s{sGR}, {i*4096}")
        A(f"buffer_load_dwordx4 v[{PG+4*i}:{PG+4*i+3}], v12, s[{sWS}:{sWS+3}], {so} offen sc0 sc1")
    A(f"s_mov_b64 s[{sTA}:{sTA+1}], -1")
    for i in range(8):
        A(f"s_waitcnt vmcnt({7-i})")
        A(f"v_cmp_eq_u64 vcc, s[{sN0}:{sN1}], v[{PG+4*i+2}:{PG+4*i+3}]")
        A(f"s_and_b64 s[{sTA}:{sTA+1}], s[{sTA}:{sTA+1}], vcc")
    A(f"s_sub_u32 s{sCNT}, s{sCNT}, 1")
    A("s_cbranch_scc1 L_poll_ok")
    A(f"s_cmp_eq_u64 s[{sTA}:{sTA+1}], -1")
    A("s_cbranch_scc0 L_poll")
LBL("L_poll_ok")
stamp(2)
for st in (4, 2, 1):
    for i in range(st):
        pk("add", PG+4*i, PG+4*i, PG+4*(i+st))
for sw in ("v_permlane32_swap_b32", "v_permlane16_swap_b32"):
    A(f"v_mov_b32 v{PG+2}, v{PG}")
    A(f"v_mov_b32 v{PG+3}, v{PG+1}")
    A("s_nop 1")
    A(f"{sw} v{PG}, v{PG+2}")
    A(f"{sw} v{PG+1}, v{PG+3}")
    A("s_nop 1")
    pk("add", PG, PG, PG+2)
A(f"v_mul_f32 v{PG}, {f32(1.0/7993)}, v{PG}")
A(f"v_mul_f32 v{PG+1}, {f32(1.0/7993)}, v{PG+1}")
A(f"v_fma_f32 v{PG+1}, -v{PG}, v{PG}, v{PG+1}")
A(f"v_max_f32 v{PG+1}, 0, v{PG+1}")
A(f"v_add_f32 v{PG+1}, {f32(1e-5)}, v{PG+1}")
A(f"v_rsq_f32 v{PG+1}, v{PG+1}")
A("s_nop 0")
A(f"v_mul_f32 v{PG+1}, v{PG+1}, v{GAM}")
A(f"ds_write_b32 v10, v{PG+1}")
A(f"v_fma_f32 v{PG}, -v{PG}, v{PG+1}, v{GAM+1}")
A(f"ds_write_b32 v10, v{PG} offset:256")

if P["spoll"]:
    cur[0] = "cepi"
    for i in range(8):
        LBL(f"L_pr{i}")
        A(f"s_sub_u32 s{sCNT}, s{sCNT}, 1")
        A(f"s_cbranch_scc1 L_pd{i}")
        pl(i)
        for k in range(i + 1, min(i + 1 + P["spoll"] - 1, 8)): pl(k)
        A("s_waitcnt vmcnt(0)")
        A(f"s_branch L_pc{i}")
    tail_cepi = SEC["cepi"]; SEC["cepi"] = []
cur[0] = "final"
LBL("L_final")
k0 = -2.0 * math.sqrt(2.0 / math.pi) * math.log2(math.e)
k1 = k0 * 0.044715
A(f"s_mov_b32 s{sK+2}, {f32(gam3 if P['g5'] else k1)}")
A(f"s_mov_b32 s{sK+3}, {f32(gam3 if P['g5'] else k1)}")
A(f"s_mov_b32 s{sK+4}, 4096")
A(f"v_mov_b32 v56, {f32(k0/gam3 if P['g5'] else k0)}")
A(f"v_mov_b32 v57, {f32(k0/gam3 if P['g5'] else k0)}")
A("s_waitcnt lgkmcnt(0)")
A("s_barrier")
stamp(4)
CA, CC = 16, 24
A(f"ds_read_b128 v[{CA}:{CA+3}], v{FA+6}")
A(f"ds_read_b128 v[{CC}:{CC+3}], v{FA+6} offset:256")
A(f"ds_read_b128 v[{CA+4}:{CA+7}], v{FA+6} offset:16")
A(f"ds_read_b128 v[{CC+4}:{CC+7}], v{FA+6} offset:272")
Z, U = 32, 40
for n in range(4):
    y = Y + 8 * n
    for h in range(0, 8, 2):
        if n == 0 and h in (0, 4): A(f"s_waitcnt lgkmcnt({2 if h == 0 else 0})")
        pk("fma", y+h, y+h, CA+h, c=CC+h)
    if P["g5"]:
        for h in range(0, 8, 2): pk("fma", U+h, y+h, y+h, c=56)
    else:
        for h in range(0, 8, 2): pk("mul", U+h, y+h, y+h)
        for h in range(0, 8, 2): A(f"v_pk_fma_f32 v[{U+h}:{U+h+1}], v[{U+h}:{U+h+1}], s[{sK+2}:{sK+3}], v[56:57]")
    for h in range(0, 8, 2): pk("mul", U+h, U+h, y+h)
    for h in range(8): A(f"v_exp_f32 v{U+h}, v{U+h}")
    for h in range(0, 8, 2):
        if P["g5"]: A(f"v_pk_fma_f32 v[{U+h}:{U+h+1}], v[{U+h}:{U+h+1}], s[{sK+2}:{sK+3}], s[{sK+2}:{sK+3}]")
        else: A(f"v_pk_add_f32 v[{U+h}:{U+h+1}], v[{U+h}:{U+h+1}], 1.0 op_sel_hi:[1,0]")
    for h in range(8): A(f"v_rcp_f32 v{U+h}, v{U+h}")
    for h in range(0, 8, 2): pk("mul", y+h, y+h, U+h)
    o = Z + 4 * (n & 1)
    for h in range(4): A(f"v_cvt_pk_bf16_f32 v{o+h}, v{y+2*h}, v{y+2*h+1}")
    A(f"buffer_store_dwordx4 v[{o}:{o+3}], v{FA+4 if n < 2 else FA+5}, s[{sO}:{sO+3}], {'0' if n % 2 == 0 else 's'+str(sK+4)} offen" + ["", " nt", " sc1", " sc0 sc1", " sc1 nt"][P["stf"]])
if P["stamps"]:
    stamp(5)
    A("s_waitcnt vmcnt(0)")
    stamp(6)
    A("s_waitcnt lgkmcnt(0)")
    A(f"s_mov_b32 s{sWS+2}, 0x1000000")
    A(f"s_lshl_b32 s{sTMP}, s2, 3")
    A(f"s_add_u32 s{sTMP}, s{sTMP}, s{sWAVE}")
    A(f"s_lshl_b32 s{sTMP}, s{sTMP}, 5")
    A(f"s_add_u32 s{sTMP}, s{sTMP}, 0x200000")
    A("v_mov_b32 v1, 0")
    if plain and not P["pst"]: A("s_sub_u32 s90, s94, s92")
    for k in range(8): A(f"v_mov_b32 v{2+k}, s{sST+(k if P['cst'] else 2*k)}")
    A("s_mov_b64 exec, 1")
    if P["sst"] >= 0:
        for k in range(12): A(f"v_mov_b32 v{2+k}, v{MS+k}") if False else None
    if P["lst"] >= 0 or P["cst"] or P["sst"] >= 0:
        if P["sst"] >= 0:
            for k in range(12): A(f"v_readlane_b32 s{76+k}, v255, {k}")
            A("s_nop 1")
            for k in range(12): A(f"v_mov_b32 v{2+k}, s{76+k}")
        else:
            for k in range(4): A(f"v_mov_b32 v{10+k}, s{sST+8+k if P['cst'] else sST+16+2*k}")
        A(f"s_add_u32 s{sCNT}, s{sTMP}, 0x100000")
        A(f"buffer_store_dwordx4 v[10:13], v1, s[{sWS}:{sWS+3}], s{sCNT} offen")
    A(f"buffer_store_dwordx4 v[2:5], v1, s[{sWS}:{sWS+3}], s{sTMP} offen")
    A(f"buffer_store_dwordx4 v[6:9], v1, s[{sWS}:{sWS+3}], s{sTMP} offen offset:16")
if P["dbgt"]:
    A(f"s_cmp_lg_u32 s{sWAVE}, 0")
    A("s_cbranch_scc1 L_end")
    A("s_cmp_eq_u32 s2, 0")
    A(f"s_cselect_b32 s{sTMP}, 8, 36")
    A("s_cbranch_scc1 L_dd")
    A("s_cmp_lg_u32 s2, 77")
    A("s_cbranch_scc1 L_end")
    LBL("L_dd")
    for k in range(1, 7): A(f"v_subrev_u32 v{2+k}, v2, v{2+k}")
    A(f"buffer_store_dwordx4 v[2:5], v1, s[{sDBG}:{sDBG+3}], s{sTMP} offen")
    A(f"buffer_store_dwordx3 v[6:8], v1, s[{sDBG}:{sDBG+3}], s{sTMP} offen offset:16")
LBL("L_end")
A("s_endpgm")

cur[0] = "cp0" if P["cfirst"] else "cpro"
if not P["cfirst"]: LBL("L_compute")
G00, G11, GS = 16, 48, 80
SETS = [112, 172]
def vXR(role): return 1 + 2 * role
def vWR(role): return 2 + 2 * role
vW3, vW3C, vGA, vYW = 7, 8, 9, 10
T = 232
CWA, CWB = 112, 116
TP = 160 if P["cv"] else T
CU0, CU1, vCX, vCL = 128, 144, 168, 251
CV = [232, 236, 240, 12]
A(f"s_lshr_b32 s{sWAVE}, s{sWAVE}, 6")
A(f"s_memrealtime s[{sN0}:{sN1}]")
A(f"v_lshrrev_b32 v{TP}, 5, v0")
A(f"s_lshl_b32 s{sTMP}, s{sWAVE}, 1")
A(f"v_add_u32 v{TP}, s{sTMP}, v{TP}")
A(f"v_and_b32 v{TP+1}, 31, v0")
A(f"v_lshlrev_b32 v{TP+1}, 4, v{TP+1}")
A(f"s_lshl_b32 s{sTMP}, s2, 9")
A(f"v_add_u32 v{TP+1}, s{sTMP}, v{TP+1}")
A(f"v_lshl_add_u32 v{TP+2}, v{TP}, 17, v{TP+1}")
A(f"v_and_b32 v{TP}, 3, v{TP}")
A(f"v_lshl_add_u32 v{TP+1}, v{TP}, 19, v{TP+1}")
A(f"s_lshr_b32 s{sWO}, s{sWAVE}, 1")
A(f"s_lshl_b32 s{sWO}, s{sWO}, 17")
A(f"s_add_u32 s{sWN}, s{sWO}, {2*131072}")
if P["cv"]:
    A(f"v_lshrrev_b32 v{vCX}, 3, v0")
    A(f"v_and_b32 v{vCX+1}, 7, v0")
    A(f"v_lshlrev_b32 v{vCX+1}, 4, v{vCX+1}")
    A(f"v_lshl_add_u32 v{vCX}, v{vCX}, 11, v{vCX+1}")
    A(f"s_mul_i32 s{sXB}, s{sB}, {16000*512}")
    A(f"s_mul_i32 s{sTMP}, s{sT}, {500*512}")
    A(f"s_add_u32 s{sXB}, s{sXB}, s{sTMP}")
    A(f"s_lshl_b32 s{sTMP}, s{sWAVE}, 16")
    A(f"s_add_u32 s{sXB}, s{sXB}, s{sTMP}")
A("s_waitcnt lgkmcnt(0)")
srd(sW, 34, W_BYTES)
if P["pq"]:
    A(f"s_cmp_eq_u32 s{sWAVE}, 0")
    A(f"s_cselect_b32 s{sW+2}, s{sW+2}, 0")
def p_loads():
    A(f"buffer_load_dwordx4 v[{CWA}:{CWA+3}], v{TP+1}, s[{sW}:{sW+3}], s{sWO} offen" + (" nt" if P["pnt"] else ""))
    A(f"buffer_load_dwordx4 v[{CWB}:{CWB+3}], v{TP+1}, s[{sW}:{sW+3}], s{sWN} offen" + (" nt" if P["pnt"] else ""))
if not P["pdel"]: p_loads()
def c_split():
    A("s_branch L_compute")
    cur[0] = "cpro"
    LBL("L_compute")
if P["cfirst"] == 1: c_split()
def cx_loads():
    srd(sX, 32, X_BYTES)
    for j in range(4):
        A(f"s_add_u32 s{sTMP}, s{sXB}, {j*16384 + 2048}")
        A(f"buffer_load_dwordx4 v[{CU0+4*j}:{CU0+4*j+3}], v{vCX}, s[{sX}:{sX+3}], s{sTMP} offen")
        A(f"s_add_u32 s{sTMP}, s{sXB}, {j*16384 + 1024}")
        A(f"buffer_load_dwordx4 v[{CU1+4*j}:{CU1+4*j+3}], v{vCX}, s[{sX}:{sX+3}], s{sTMP} offen")
if P["cv"] == 1: cx_loads()
SK = sm_list(P["sk"]) if P["sk"] else []
if SK: sm_base(); sm_emit(SK[:7]); del SK[:7]
srd(sDBG, 42, 256)
A(f"s_or_b32 s{sTMP}, s2, s{sWAVE}")
A(f"s_cmp_lg_u32 s{sTMP}, 0")
A("s_cbranch_scc1 L_nononce")
A(f"s_or_b32 s{sN0}, s{sN0}, 1")
A(f"v_mov_b32 v{TP+3}, 0")
A(f"v_mov_b32 v{TP+6}, s{sN0}")
A(f"v_mov_b32 v{TP+7}, s{sN1}")
A("s_mov_b64 exec, 1")
A(f"buffer_store_dwordx2 v[{TP+6}:{TP+7}], v{TP+3}, s[{sDBG}:{sDBG+3}], 0 offen sc0 sc1")
A("s_mov_b64 exec, -1")
LBL("L_nononce")
if P["cfirst"] == 2: c_split()
if P["cpf"]:
    A(f"s_cmp_lg_u32 s{sWAVE}, 1")
    A("s_cbranch_scc1 L_nocpf")
    A("s_getpc_b64 s[74:75]")
    LBL("L_pc")
    A(f"s_lshr_b32 s{sTMP}, s2, 3")
    A(f"s_lshl_b32 s{sTMP}, s{sTMP}, 9")
    A(f"s_add_u32 s74, s74, s{sTMP}")
    A("s_addc_u32 s75, s75, 0")
    A(f"s_sub_u32 s74, s74, L_pc-{KN}")
    A("s_subb_u32 s75, s75, 0")
    A(f"v_lshlrev_b32 v{TP+4}, 7, v0")
    A("s_mov_b64 exec, 15")
    A(f"global_load_dword v{TP+5}, v{TP+4}, s[74:75]")
    A("s_mov_b64 exec, -1")
    LBL("L_nocpf")
if P["warm"]:
    CM("visit one instruction in every later code page while the first loads are in flight")
    A("s_branch L_warm0")
    LBL("L_warmret")
srd(sWS, 44, WS_BYTES)
A(f"s_mov_b32 s{sPO}, {WP_OFF}")
out_srd()
A(f"s_mov_b32 s{sMID}, 0x7fff7fff")
A(f"s_cselect_b32 s{sMID}, s{sMID}, -1")
A(f"s_mov_b32 s{sMID+1}, s{sMID}")
granule_off()
A(f"s_lshl_b32 s{sTMP}, s{sT}, 10")
A(f"s_add_u32 s{sGR}, s{sGR}, s{sTMP}")
R, G_, X1, X2 = 120, 121, 122, 124
A(f"v_and_b32 v{R}, 15, v0")
A(f"v_lshrrev_b32 v{G_}, 4, v0")
A(f"v_mul_u32_u24 v{X1}, {XB}, v{R}")
A(f"v_lshl_add_u32 v{vXR(0)}, v{G_}, 4, v{X1}")
A(f"v_bfe_u32 v{X2}, v0, 2, 2")
A(f"v_lshl_add_u32 v{X1}, v{G_}, 3, v{X2}")
A(f"v_lshlrev_b32 v{X1}, 7, v{X1}")
A(f"v_lshrrev_b32 v{X2}, 1, v{X2}")
A(f"v_and_b32 v{X2+1}, 1, v{G_}")
A(f"v_lshl_or_b32 v{X2}, v{X2+1}, 1, v{X2}")
A(f"v_xor_b32 v{X2}, s{sWAVE}, v{X2}")
A(f"v_lshl_add_u32 v{X1}, v{X2}, 5, v{X1}")
A(f"v_and_b32 v{X2}, 3, v0")
A(f"v_lshl_add_u32 v{X1}, v{X2}, 3, v{X1}")
A(f"v_add_u32 v{vWR(0)}, {WOFF}, v{X1}")
A(f"v_add_u32 v{vW3}, {WOFF + tile(0,3)}, v{X1}")
A(f"v_lshlrev_b32 v{vW3C}, 1, v{X1}")
A(f"v_add_u32 v{vW3C}, {2*SLOT + WOFF + tile(0,3) + SPARE}, v{vW3C}")
for k in (1, 2):
    A(f"v_add_u32 v{k+2}, {SLOT}, v{k}")
    A(f"v_add_u32 v{k+4}, {2*SLOT}, v{k}")
if P["red"]:
    CM("after the reduce-scatter lane r of group g holds channel 4g + (r>>2)")
    A(f"v_lshrrev_b32 v{X1}, 2, v{R}")
    A(f"v_lshl_add_u32 v{vGA}, v{G_}, 2, v{X1}")
else:
    A(f"v_lshl_add_u32 v{vGA}, v{G_}, 2, v{R}")
A(f"v_lshlrev_b32 v{vGA}, 4, v{vGA}")
A(f"s_lshl_b32 s{sTMP}, s{sWAVE}, 2")
A(f"v_add_u32 v{X1}, s{sTMP}, v{G_}")
A(f"v_lshrrev_b32 v{X2}, 1, v{X1}")
A(f"v_and_b32 v{X1}, 1, v{X1}")
A(f"v_lshl_or_b32 v{X1}, v{X1}, 3, v{X2}")
A(f"v_and_b32 v{X2}, 7, v{R}")
A(f"v_xor_b32 v{X1}, v{X1}, v{X2}")
A(f"v_lshlrev_b32 v{X1}, 4, v{X1}")
A(f"v_lshl_add_u32 v{vYW}, v{R}, 12, v{X1}")
A(f"v_xor_b32 v{vYW+1}, 0x80, v{vYW}")
final_addr(FA)
for i in range(0, 96, 2):
    A(f"v_pk_mov_b32 v[{16+i}:{17+i}], 0, 0")
if P["cv"]:
    A(f"s_mul_i32 s{sTMP}, s{sWAVE}, {4*XB}")
    A(f"s_add_u32 s{sTMP}, s{sTMP}, {SLOT}")
    A(f"v_lshl_add_u32 v{vCL}, v0, 4, s{sTMP}")
if P["pdel"]: p_loads()
sm_emit(SK[:9]); del SK[:9]
if P["cv"] == 2: cx_loads()
A(f"s_waitcnt vmcnt({8 if P['cv'] else 0})")
for t in addbf_list(CWA, CWA, CWB, 224, True): A(t)
A(f"buffer_store_dwordx4 v[{CWA}:{CWA+3}], v{TP+2}, s[{sWS}:{sWS+3}], s{sPO} offen sc0 sc1")
if P["cv"]:
    for j in range(4):
        A(f"s_waitcnt vmcnt({1 + 2*(3-j) if P['cv'] == 2 else 1})") if (j == 0 or P["cv"] == 2) else None
        for t in addbf_list(CV[j], CU1+4*j, CU0+4*j, 224, True): A(t)
nct = 0
def c_touch():
    global nct
    if not P["ct"]: return
    if not P["cv"]:
        srd(sX, 32, X_BYTES)
    A(f"s_mul_i32 s{sXO}, s{sB}, {16000*512}")
    A(f"s_mul_i32 s{sTMP}, s{sT}, {500*512}")
    A(f"s_add_u32 s{sXO}, s{sXO}, s{sTMP}")
    A(f"s_lshl_b32 s{sTMP}, s{sWAVE}, 4")
    A(f"s_lshl_b32 s{sCNT}, s{sNT}, 6")
    A(f"s_add_u32 s{sTMP}, s{sTMP}, s{sCNT}")
    A(f"v_add_u32 v252, s{sTMP}, v0")
    A(f"v_lshlrev_b32 v252, 10, v252")
    for t in P["ct"].split("+"):
        c = int(t[0])
        A(f"s_add_u32 s{sTMP}, s{sXO}, {(c >> 1)*128 + (c & 1)*512}")
        A(f"s_mov_b64 exec, {dict(ab=0xffff, a=0x5555, b=0xaaaa)[t[1:]]:#x}")
        A(f"buffer_load_dword v253, v252, s[{sX}:{sX+3}], s{sTMP} offen")
        nct += 1
    A("s_mov_b64 exec, -1")
c_touch()
sm_emit(SK)
if P["sk"]: A("s_waitcnt lgkmcnt(0)")
if P["prio"]: A(f"s_setprio {P['prio']}")
if not P["lateack"]: A(f"s_waitcnt vmcnt({nct})")

def reads(role, hh, st, ndpp=0, last=False):
    xb = SETS[st]; wb = xb + 44
    def xr(q): return (("X", q), f"ds_read_b128 v[{xb+4*q}:{xb+4*q+3}], v{vXR(role)} offset:{(q & 7)*128 + hh*64 + (XB if q > 7 else 0)}")
    def wr(s, h):
        if role == 0 and s == 3 and not last:
            return (("W", s), f"ds_read_b64_tr_b16 v[{wb+4*s+2*h}:{wb+4*s+2*h+1}], v{vW3} offset:{hh*4096 + h*512}")
        return (("W", s), f"ds_read_b64_tr_b16 v[{wb+4*s+2*h}:{wb+4*s+2*h+1}], v{vWR(role)} offset:{tile(hh, s) + h*512}")
    if role == 1 and P["u3"]:
        r = [wr(0, 0), wr(0, 1), xr(0), wr(1, 0), wr(1, 1), xr(1), wr(2, 0), wr(2, 1)] + [xr(q) for q in range(2, 10)] + [wr(3, 0), wr(3, 1), xr(10)]
    else:
        r = [wr(0, 0), wr(0, 1), xr(0), wr(1, 0), wr(1, 1)] + [xr(q) for q in range(1, 9)] + [wr(2, 0), wr(2, 1), wr(3, 0), wr(3, 1), xr(9), xr(10)]
    dq = list(range(11 - ndpp, 11))
    r = [e for e in r if not (e[0][0] == "X" and e[0][1] in dq)]
    d = [f"v_mov_b32_dpp v{xb+4*q+i}, v{xb+4*(q-8)+i} row_shl:1 row_mask:0xf bank_mask:0xf bound_ctrl:0" for q in dq for i in range(4)]
    return r, d
def mfma_list(acc, st, split3=False):
    xb = SETS[st]; wb = xb + 44
    pairs = []
    if split3 and P["u3"]:
        pairs = [(s, j) for j in range(8) for s in ((0, 1, 2) if j % 2 == 0 else (2, 1, 0))] + [(3, j) for j in range(8)]
    else:
        for s0 in ((0,) if split3 else (0, 2)):
            for q in range(s0, s0 + 9):
                for s in (s0 + 1, s0):
                    if 0 <= q - s < 8: pairs.append((s, q - s))
        if split3: pairs += [(s, j) for s in (2, 3) for j in range(8)]
    out = []
    for s, j in pairs:
        d = f"v[{acc+4*j}:{acc+4*j+3}]"
        out.append(([("W", s), ("X", j+s)], f"v_mfma_f32_16x16x32_bf16 {d}, v[{wb+4*s}:{wb+4*s+3}], v[{xb+4*(j+s)}:{xb+4*(j+s)+3}], {d}"))
    return out
pending = []
ss_n = [0]
def sstamp():
    if P["sst"] < 0 or ss_n[0] >= 12: return
    k = ss_n[0]; ss_n[0] += 1
    A(f"s_memtime s[{76+2*k}:{77+2*k}]")
def seq(acc, st, rdd, barrier, skip_label=None, extra=None, delay=0, vm0=False, pre=(), c0tail=None):
    global pending
    rd, dpp = rdd
    pre = list(pre)
    nm = 24 if skip_label else 32
    m = mfma_list(acc, st, skip_label is not None)
    rd = [] if P["nords"] else list(rd)
    dpp = list(dpp)
    first = max(P["barslot"], delay) if barrier else 0
    if dpp:
        first = min(first, nm - len(rd) - len(dpp) - 0) if barrier else first
        first = max(first, P["barslot"]) if barrier else first
        last = first + len(rd) - 1
    else:
        last = max(min(first + len(rd) if barrier else P["rdA"], nm - P["rd_gap"]), first + len(rd) - 1) if rd else 0
    slots = [first + (k * (last - first)) // max(len(rd) - 1, 1) for k in range(len(rd))]
    dslots = [min(last + 1 + len(pre) + k, nm - 1) for k in range(len(dpp))]
    if pre:
        extra = dict(extra or {})
        for k, t in enumerate(pre): extra.setdefault(last + 1 + k, []).append(t)
    cur_ = list(pending); newer = 0; nxt = []; nd = 0
    for i, (need, ins) in enumerate(m):
        if i == 24 and skip_label:
            A(f"s_cbranch_scc1 {skip_label}")
            if c0tail:
                A(f"s_cmp_eq_u32 s{sCNT}, 0")
                A("s_cbranch_scc1 L_cfirst")
                c0tail.extend(x for _, x in m[24:])
        W_ = 8 if P["w8"] else 16
        if i % W_ == 0 or (skip_label and i == 24):
            need = [k for nd_, _ in m[i:i+W_ if not (skip_label and i == 16) else 24] for k in nd_]
            if barrier and i == 0: need = [k for nd_, _ in m[:P["barslot"]+1] for k in nd_]
            idx = max([k for k, key in enumerate(cur_) if key in need], default=-1)
            if idx >= 0:
                n = len(cur_) - 1 - idx + newer
                if n < 15: A(f"s_waitcnt lgkmcnt({n})")
                cur_ = cur_[idx+1:]
        A(ins)
        if barrier and i == P["barslot"]:
            if cur_ or vm0: A("s_waitcnt" + (" vmcnt(0)" if vm0 else "") + " lgkmcnt(0)"); cur_ = []
            sstamp()
            A("s_barrier")
            sstamp()
        while rd and slots[len(nxt)] <= i:
            key, s = rd.pop(0); A(s); nxt.append(key); newer += 1
        while nd < len(dpp) and dslots[nd] <= i:
            if nd == 0:
                k = max(nxt.index(("X", q)) for q in range(3) if ("X", q) in nxt)
                A(f"s_waitcnt lgkmcnt({min(len(nxt) - 1 - k, 15)})")
            A(dpp[nd]); nd += 1
        if extra and i in extra:
            for s in extra[i]: A(s)
    assert not rd and nd == len(dpp)
    if skip_label: LBL(skip_label)
    pending = nxt
    sstamp()
A("s_barrier")
if P["sst0"]: A("s_memtime s[98:99]")
stamp(1)
if plain: A("s_memtime s[92:93]"); A("s_waitcnt lgkmcnt(0)")
D2, D3 = (2 if P["dpp"] else 0), (3 if P["dpp"] else 0)
r0, _ = reads(0, 0, 0)
for _, s in r0: A(s)
LATE = reads(0, 0, 0, 2)[1] if P["dpp"] & 8 else []
pending = [k for k, _ in reads(0, 0, 0, D2 if P["dpp"] & 12 else 0)[0]]
loop_entry = list(pending)
A(f"s_mov_b32 s{sCNT}, 0")
if P["dpp"] & 12: A("s_waitcnt lgkmcnt(0)")
A("s_branch L_cloop")

cur[0] = "cloop"
def cstamp(idx=None):
    if not P["cst"]: return
    A("s_memtime s[100:101]")
    A("s_waitcnt lgkmcnt(0)")
    if idx is None:
        A(f"s_mov_b32 m0, s{sCNT}")
        A("s_nop 0")
        A("s_movreld_b32 s76, s100")
    else:
        A(f"s_mov_b32 s{76+idx}, s100")
LBL("L_cloop")
if P["sst"] >= 0:
    A(f"s_cmp_lg_u32 s{sCNT}, {P['sst'] + 1}")
    A("s_cbranch_scc1 L_nss")
    A("s_waitcnt lgkmcnt(0)")
    for k in range(12): A(f"v_writelane_b32 v255, s{76+2*k}, {k}")
    LBL("L_nss")
cstamp()
if P["sst0"]: sstamp()
seq(G00, 0, reads(0, 1, 1, D2), False, pre=LATE)
seq(G00, 1, reads(1, 0, 0, D3 if P["dpp"] & 2 else 0), True, extra={28: [f"v_sub_u32 v{vW3}, v{vW3C}, v{vW3}"]}, delay=P["dly0"], vm0=bool(P["lateack"]))
A(f"s_bitcmp1_b32 s{sCNT}, 0")
seq(G11, 0, reads(1, 1, 1), False, "L_skipa")
c0l = ["x"] if (P["cv"] and P["c0t"]) else None
seq(G11, 1, reads(2, 0, 0), True, "L_skipb", c0tail=c0l)
if not c0l:
    A(f"s_cmp_eq_u32 s{sCNT}, 0")
    A("s_cbranch_scc1 L_cfirst")
LBL("L_gs")
pend_gs = list(pending)
seq(GS, 0, reads(2, 1, 1, D3), False)
A(f"s_add_u32 s{sCNT}, s{sCNT}, 1")
A(f"s_cmp_lt_u32 s{sCNT}, 8")
seq(GS, 1, (reads(0, 0, 0, 2)[0], []) if P["dpp"] & 8 else reads(0, 0, 0, D2 if P["dpp"] & 4 else 0), True, delay=P["dly2"] + (2 if P["dpp"] & 8 else 0))
pend_loop = list(pending)
assert pend_loop == loop_entry
A("s_cbranch_scc1 L_cloop")
if not P["peel"]:
    A(f"s_cmp_eq_u32 s{sCNT}, 9")
    A("s_cbranch_scc1 L_cdone")
    cstamp(8)
    for k in (5, 6): A(f"v_mov_b32 v{k}, v{k-4}")
    if pend_loop != pend_gs: A("s_waitcnt lgkmcnt(0)")
    A("s_branch L_gs")
else:
    A("s_branch L_cdone")
LBL("L_cfirst")
if c0l:
    for k, t in enumerate(c0l[1:]):
        A(t)
        if k % 2 == 0: A(f"ds_write_b128 v{vCL}, v[{CV[k//2]}:{CV[k//2]+3}] offset:{(k//2)*XB}")
elif P["cv"]:
    for j in range(4): A(f"ds_write_b128 v{vCL}, v[{CV[j]}:{CV[j]+3}] offset:{j*XB}")
if not P["pubst"]: stamp(3)
for k in (1, 2):
    A(f"v_add_u32 v{k}, {2*SLOT}, v{k}")
    A(f"v_subrev_u32 v{k+2}, {SLOT}, v{k+2}")
    A(f"v_subrev_u32 v{k+4}, {SLOT}, v{k+4}")
A(f"v_add_u32 v{vW3}, {tile(0,3)}, v2")
A(f"s_mov_b32 s{sCNT}, 1")
if P["sst0"]: A("s_waitcnt lgkmcnt(0)"); A("s_memtime s[94:95]")
if not c0l and (pend_loop != pend_gs or P["cv"]): A("s_waitcnt lgkmcnt(0)")
assert pend_gs[:len(pend_loop)] == pend_loop
A("s_branch L_cloop")

cur[0] = "cepi"
LBL("L_cdone")
def yreg(idx): return ((SETS[0] if P["pp"] else G11) if idx % 2 == 0 else GS) + 4 * (idx // 2)
S1, S2 = 16, 20
dppl = [f"v_mov_b32_dpp v{T+i}, v{G00+i} row_shl:1 row_mask:0xf bank_mask:0xf bound_ctrl:0" for i in range(4)]
if P["peel"]:
    cstamp(8)
    pending = pend_loop
    CM("last stage, with the G00/G11 part of the output transform in its shadow: G11 <- y0, G00[j] <- G11[j] + G00[j+1]")
    exA = {20 + i: [dppl[i]] for i in range(4)}
    exA[19] = [f"v_mov_b32 v12, {MISC}", "ds_read_b64 v[238:239], v12"]
    Y0 = SETS[0]
    ex = []
    if P["pp"]:
        def op2(d, x, y):
            return [pks("add", d, x, y), pks("add", d+2, x+2, y+2)] if P["pp"] == 2 else [f"v_add_f32 v{d+i}, v{x+i}, v{y+i}" for i in range(4)]
        for j in range(8):
            ex += op2(Y0+4*j, G00+4*j, G11+4*j)
        for j in range(8):
            ex += op2(G11+4*j, G11+4*j, G00+4*(j+1) if j < 7 else T)
    if LATE:
        exA = {(k + 8 if k >= 20 else k): v for k, v in exA.items()}
        for k, t in enumerate(LATE): exA[20 + k] = [t]
    seq(GS, 0, reads(0, 1, 1, 0, True), False, extra=exA)
    pending = pending + [("N", 0)]
    nh = min(len(ex), P["ppn"])
    seq(GS, 1, ([], []), False, extra={1 + (k * 31) // max(nh, 1): [] for k in range(nh)} and
        {i: [ex[k] for k in range(nh) if 1 + (k * 31) // nh == i] for i in range(32)} if nh else None)
    if P["pp"] == 1 and nh % 4 == 0 and nh >= 32:
        for j in range((nh - 32) // 4, 8):
            for h in (0, 2): pk("add", G11+4*j+h, G11+4*j+h, (G00+4*(j+1) if j < 7 else T) + h)
    else:
        for t in ex[nh:]: A(t)
    A("s_nop 7")
else:
    A(f"v_mov_b32 v12, {MISC}")
    A("ds_read_b64 v[238:239], v12")
    for t in dppl: A(t)
    A("s_nop 2")
cstamp(9)
stamp(2)
if plain: A("s_memtime s[94:95]")
if P["prio"]: A("s_setprio 0")
for j in range(8):
    for h in (0, 2):
        pk("add", GS+4*j+h, GS+4*j+h, G11+4*j+h, neg=not P["dif"])
for j in range(8):
    for h in (0, 2):
        if P["pp"]: continue
        nx = G00+4*(j+1)+h if j < 7 else T+h
        pk("add", GS+4*j+h, GS+4*j+h, nx, neg=not P["dif"])
        pk("add", G11+4*j+h, G11+4*j+h, G00+4*j+h)
for h in (0, 2):
    pk("add", S1+h, yreg(0)+h, yreg(1)+h)
    pk("mul", S2+h, yreg(0)+h, yreg(0)+h)
for idx in range(1, 16):
    if idx == 3: A(f"s_mov_b64 exec, s[{sMID}:{sMID+1}]")
    if idx == 10:
        A("s_mov_b32 exec_lo, 0x7fff7fff")
        A("s_mov_b32 exec_hi, 0x7fff7fff")
    for h in (0, 2):
        if idx > 1: pk("add", S1+h, S1+h, yreg(idx)+h)
        pk("fma", S2+h, yreg(idx)+h, yreg(idx)+h, c=S2+h)
A("s_mov_b64 exec, -1")
A("s_nop 1")
def dadd(d, s, ctl, bm="0xf"): A(f"v_add_f32_dpp v{d}, v{s}, v{s} {ctl} row_mask:0xf bank_mask:{bm}")
if P["red"]:
    CM("reduce-scatter over the 16 lanes of a row: banks (r>>2) end up with channel r>>2")
    for b in (S1, S2):
        dadd(b+8, b, "row_ror:8"); dadd(b+9, b+1, "row_ror:8")
    for b in (S1, S2):
        dadd(b+8, b+2, "row_ror:8", "0xc"); dadd(b+9, b+3, "row_ror:8", "0xc")
    A("s_nop 0")
    dadd(236, S1+8, "row_half_mirror"); dadd(237, S2+8, "row_half_mirror")
    dadd(236, S1+9, "row_half_mirror", "0xa"); dadd(237, S2+9, "row_half_mirror", "0xa")
    A("s_nop 0")
    dadd(236, 236, "quad_perm:[1,0,3,2]"); dadd(237, 237, "quad_perm:[1,0,3,2]")
    A("s_nop 0")
    dadd(236, 236, "quad_perm:[2,3,0,1]"); dadd(237, 237, "quad_perm:[2,3,0,1]")
    A("s_mov_b32 exec_lo, 0x11111111")
    A("s_mov_b32 exec_hi, 0x11111111")
else:
    for sh in (8, 4, 2, 1):
        for i in range(8): dadd(16+i, 16+i, f"row_ror:{sh}")
    A("v_mov_b32 v236, v16")
    A("v_mov_b32 v237, v20")
    for i in (1, 2, 3):
        mk = (1 << i) * 0x00010001
        A(f"s_mov_b32 exec_lo, {mk:#x}")
        A(f"s_mov_b32 exec_hi, {mk:#x}")
        A(f"v_mov_b32 v236, v{16+i}")
        A(f"v_mov_b32 v237, v{20+i}")
    A("s_mov_b32 exec_lo, 0x000f000f")
    A("s_mov_b32 exec_hi, 0x000f000f")
A("s_waitcnt lgkmcnt(0)")
A(f"buffer_store_dwordx4 v[236:239], v{vGA}, s[{sWS}:{sWS+3}], s{sGR} offen sc0 sc1")
A("s_mov_b64 exec, -1")
if P["pubst"]: stamp(3)
for idx in range(16):
    A(f"ds_write_b128 v{vYW + ((idx // 2) & 1)}, v[{yreg(idx)}:{yreg(idx)+3}] offset:{idx*256}")
A("s_waitcnt lgkmcnt(0)")
A("s_barrier")
y_reads()
A("s_branch L_final")
if P["spoll"]: SEC["cepi"] += tail_cepi

ALG = "" if not P["algn"] else f".p2align 12\n.fill {(4096 - 0x300 + (P['algn'] - 1) * 256) // 4}, 4, 0xbf810000\n"
out = [f"""; conv stem (K=15, stride 2) as a 2-parallel fast-FIR GEMM + per-channel GroupNorm + tanh GELU, one launch.
; The bias is constant over time per channel, so it cancels exactly in (y - mean_t y).
;   y[2m] = G00[m] + G11[m],  y[2m+1] = Gs[m] + G11[m] + G00[m+1]      (23 instead of 30 tap products per output pair)
; @launch grid=(256,1,1) block=(512,1,1) lds={LDS_BYTES}
.amdgcn_target "amdgcn-amd-amdhsa--gfx950"
.text
.globl {KN}
{ALG}.p2align 8
.type {KN},@function
{KN}:"""]
wk = 0
for sec in ("entry", "cp0", "lpro", "cpro", "cloop", "lloop", "cepi", "llast", "final"):
    if P["warm"] and sec in ("cloop", "lloop", "cepi", "llast"):
        out += [f"L_warm{wk}:", f"  s_branch L_warm{wk+1}"]; wk += 1
    if sec in ("cloop", "lloop"): out.append(".p2align 6")
    out += SEC[sec]
if P["warm"]: out += [f"L_warm{wk}:", "  s_branch L_warmret"]
out.append(f""".p2align 8
.fill 1024, 4, 0xbf810000
.section .rodata,"a"
.p2align 6
.amdhsa_kernel {KN}
  .amdhsa_next_free_vgpr 256
  .amdhsa_next_free_sgpr 102
  .amdhsa_accum_offset 256
  .amdhsa_group_segment_fixed_size 0
  .amdhsa_kernarg_size 64
  .amdhsa_user_sgpr_count 2
  .amdhsa_user_sgpr_kernarg_segment_ptr 1
  .amdhsa_system_sgpr_workgroup_id_x 1
.end_amdhsa_kernel""")
print("\n".join(out))
```

```python
import sys, struct, math
P = dict(prio=2, lprio=0, dsprio=3, stamps=0, novalu=0, nodma=0, nords=0, barslot=1, rd_gap=5, rdA=19, dly0=13, dly2=13,
         touch=1, lst=-1, cst=0, pst=0, sst=-1, vsplit=2, wsplit=2, cpf=1, stf=2, dbgt=0, dpp=9, u3=1, red=1, wend=0, wend2=0, u0first=0, warm=0, pq=0, xnt=0, tnt=0, wnt=0, pnt=0, vpk=0, pubst=0, x1st=1, algn=0, fresh=1, burst1=0, early2=0, w8=1, cv=0, sst0=0, c0t=1, ct="", ctpos=1, dif=1, wq=0, sk="", lk="", pdel=0, cfirst=0, mg=0, psl=0, pfl=0, nochk=0, v1=2, g5=1, spoll=0, lateack=1, peel=1, pp=1, ppn=48,
         pro="D0:0:4.D1:0:4.D0.N.D1.S.B.U.V02.D2:0:8.B.F.V24.D2.D3.B.G.w.r.C.D4.T2ab.T3ab.B")
for a in sys.argv[1:]:
    k, v = a.split("=")
    P[k] = v if k in ("pro", "ct", "sk", "lk") else int(v)

KN = "standalone__self_sup_conv_stem_hubert__speech_kernel"
XB = 1056
XSZ = 16 * XB + 128
WOFF = XSZ
SLOT = WOFF + 32768
SPARE = 3 * SLOT
MISC = SPARE + 8192
LDS_BYTES = MISC + 1024
X_BYTES = 2 * 16000 * 256 * 2
W_BYTES = 15 * 256 * 256 * 2
FL_OFF, WP_OFF, WS_BYTES = 0x40000, 0x80000, 0x180000
OOB = 0x40000000
SPIN = 0x4000
def tile(hh, s): return (hh * 3 + s if s < 3 else 6 + hh) * 4096

SEC = {k: [] for k in ("cp0", "entry", "lpro", "lloop", "llast", "final", "cpro", "cloop", "cepi")}
cur = ["entry"]
def A(s): SEC[cur[0]].append("  " + s)
def LBL(s): SEC[cur[0]].append(s + ":")
def CM(s): SEC[cur[0]].append("  ; " + s)
def f32(x): return "0x%08x" % struct.unpack("<I", struct.pack("<f", x))[0]

sX, sW, sO, sWS, sDBG, sGA, sBE = 4, 8, 12, 16, 20, 24, 28
sWAVE, sT, sNT, sB = 46, 47, 48, 49
sWN, sXO, sWO, sPO, sTMP, sCNT, sMASK16 = 50, 51, 52, 53, 55, 56, 57
sTA = 58
sD, sXB = 60, 61
sN0, sN1 = 62, 63
sMID = 64
sGR, sFO = 66, 67
sK = 68
sM0, sMX = 73, 74
sXW = 75
sST = 76

def srd(d, lo, nbytes):
    A(f"s_mov_b32 s{d}, s{lo}")
    A(f"s_and_b32 s{d+1}, s{lo+1}, 0xffff")
    A(f"s_mov_b32 s{d+2}, {nbytes}")
    A(f"s_mov_b32 s{d+3}, 0x20000")
def out_srd():
    A(f"s_mul_i32 s{sTMP}, s{sB}, {7993*512}")
    A(f"s_mul_i32 s{sCNT}, s{sT}, {250*512}")
    A(f"s_add_u32 s{sTMP}, s{sTMP}, s{sCNT}")
    A(f"s_add_u32 s{sO}, s40, s{sTMP}")
    A(f"s_addc_u32 s{sO+1}, s41, 0")
    A(f"s_and_b32 s{sO+1}, s{sO+1}, 0xffff")
    A(f"s_cmp_eq_u32 s{sT}, 31")
    A(f"s_mov_b32 s{sO+2}, {243*512}")
    A(f"s_cselect_b32 s{sO+2}, s{sO+2}, {250*512}")
    A(f"s_mov_b32 s{sO+3}, 0x20000")
def granule_off():
    A(f"s_lshl_b32 s{sGR}, s{sB}, 2")
    A(f"s_add_u32 s{sGR}, s{sGR}, s{sNT}")
    A(f"s_lshl_b32 s{sGR}, s{sGR}, 15")
    A(f"s_lshl_b32 s{sTMP}, s{sWAVE}, 8")
    A(f"s_add_u32 s{sGR}, s{sGR}, s{sTMP}")
plain = P["stamps"] and P["lst"] < 0 and not P["cst"] and P["sst"] < 0
def stamp(k):
    if not plain: return
    if P["pst"] and k > 0 and cur[0] not in ("cpro", "cloop", "cepi"): return
    A(f"s_memrealtime s[{sST+2*k}:{sST+2*k+1}]")
def pstamp(k):
    if P["pst"] == 1: A(f"s_memrealtime s[{sST+2*k}:{sST+2*k+1}]")
def addbf_list(d, a, b, t, force=False):
    r = []
    if P["novalu"] and not force: return r
    for i0 in (0, 2):
        if P["vpk"]:
            for i in (i0, i0 + 1):
                u = t + 4 * (i - i0)
                r += [f"v_lshlrev_b32 v{u}, 16, v{a+i}", f"v_and_b32 v{u+1}, s{sMASK16}, v{a+i}",
                      f"v_lshlrev_b32 v{u+2}, 16, v{b+i}", f"v_and_b32 v{u+3}, s{sMASK16}, v{b+i}"]
            for i in (i0, i0 + 1):
                u = t + 4 * (i - i0)
                r += [f"v_pk_add_f32 v[{u}:{u+1}], v[{u}:{u+1}], v[{u+2}:{u+3}]"]
            for i in (i0, i0 + 1):
                u = t + 4 * (i - i0)
                r += [f"v_cvt_pk_bf16_f32 v{d+i}, v{u}, v{u+1}"]
            continue
        for i in (i0, i0 + 1):
            u = t + 4 * (i - i0)
            r += [f"v_lshlrev_b32 v{u}, 16, v{a+i}", f"v_lshlrev_b32 v{u+1}, 16, v{b+i}",
                  f"v_and_b32 v{u+2}, s{sMASK16}, v{a+i}", f"v_and_b32 v{u+3}, s{sMASK16}, v{b+i}"]
        for i in (i0, i0 + 1):
            u = t + 4 * (i - i0)
            op = "v_sub_f32" if P["dif"] else "v_add_f32"
            r += [f"{op} v{u}, v{u}, v{u+1}", f"{op} v{u+2}, v{u+2}, v{u+3}"]
        for i in (i0, i0 + 1):
            u = t + 4 * (i - i0)
            r += [f"v_cvt_pk_bf16_f32 v{d+i}, v{u}, v{u+2}"]
    return r
def pks(op, d, a, b, neg=False, c=None):
    s = f"v_pk_{op}_f32 v[{d}:{d+1}], v[{a}:{a+1}], v[{b}:{b+1}]"
    if c is not None: s += f", v[{c}:{c+1}]"
    if neg: s += " neg_lo:[0,1] neg_hi:[0,1]"
    return s
def pk(*a, **k): A(pks(*a, **k))
def final_addr(base):
    b = base
    A(f"v_lshrrev_b32 v{b+4}, 3, v0")
    A(f"v_and_b32 v{b+6}, 7, v0")
    A(f"s_lshl_b32 s{sTMP}, s{sWAVE}, 5")
    A(f"v_add_u32 v{b+4}, s{sTMP}, v{b+4}")
    A(f"v_bfe_u32 v{b}, v0, 4, 1")
    A(f"v_lshl_or_b32 v{b}, v{b}, 3, v{b+6}")
    A(f"s_lshl_b32 s{sTMP}, s{sWAVE}, 1")
    A(f"s_and_b32 s{sTMP}, s{sTMP}, 7")
    A(f"v_xor_b32 v{b}, s{sTMP}, v{b}")
    A(f"v_lshlrev_b32 v{b}, 4, v{b}")
    A(f"v_lshl_add_u32 v{b}, v{b+4}, 8, v{b}")
    A(f"v_xor_b32 v{b+1}, 0x80, v{b}")
    A(f"v_xor_b32 v{b+2}, 0x10, v{b}")
    A(f"v_xor_b32 v{b+3}, 0x90, v{b}")
    A(f"v_lshlrev_b32 v{b+4}, 9, v{b+4}")
    A(f"v_lshl_add_u32 v{b+4}, v{b+6}, 4, v{b+4}")
    A(f"s_lshl_b32 s{sTMP}, s{sNT}, 7")
    A(f"v_add_u32 v{b+4}, s{sTMP}, v{b+4}")
    A(f"v_add_u32 v{b+5}, 0x2000, v{b+4}")
    A(f"v_lshlrev_b32 v{b+6}, 5, v{b+6}")
    A(f"v_add_u32 v{b+6}, {MISC+64}, v{b+6}")
FA = 244
Y = 112
def y_reads():
    for n in range(4):
        for h in range(2):
            A(f"ds_read_b128 v[{Y+8*n+4*h}:{Y+8*n+4*h+3}], v{FA + h + 2*(n >> 1)} offset:{n*2048}")

def sm_base():
    A(f"s_mul_i32 s96, s{sB}, {16000*512}")
    A(f"s_mul_i32 s97, s{sT}, {500*512}")
    A(f"s_add_u32 s96, s96, s97")
    A(f"s_lshl_b32 s97, s{sNT}, 16")
    A(f"s_add_u32 s96, s96, s97")
    A(f"s_lshl_b32 s97, s{sWAVE}, 14")
    A(f"s_add_u32 s96, s96, s97")
    A(f"s_min_u32 s96, s96, {X_BYTES - 16384}")
    A(f"s_add_u32 s96, s96, s32")
    A(f"s_addc_u32 s97, s33, 0")
def sm_list(spec):
    r = []
    for t in spec.split("+"):
        c = int(t[0])
        for h in t[1:]:
            r += [(c >> 1)*128 + (c & 1)*512 + (2*i + (h == "b"))*1024 + 60 for i in range(8)]
    return r
sm_n = [0]
def sm_emit(offs):
    for o in offs:
        A(f"s_load_dwordx2 s[{98 + 2*(sm_n[0] % 2)}:{99 + 2*(sm_n[0] % 2)}], s[96:97], {o}"); sm_n[0] += 1
stamp(0)
A("s_load_dwordx4 s[32:35], s[0:1], 0")
A("s_load_dwordx4 s[40:43], s[0:1], 40")
A("s_load_dwordx2 s[44:45], s[0:1], 56")
A("s_load_dwordx4 s[36:39], s[0:1], 24")
A("s_cmp_ge_u32 s2, 256")
A("s_cbranch_scc1 L_end")
A(f"v_readfirstlane_b32 s{sWAVE}, v0")
A("v_and_b32 v0, 63, v0")
A(f"s_and_b32 s{sT}, s2, 7")
A(f"s_lshl_b32 s{sT}, s{sT}, 3")
A(f"s_lshr_b32 s{sTMP}, s2, 5")
A(f"s_add_u32 s{sT}, s{sT}, s{sTMP}")
A(f"s_bfe_u32 s{sNT}, s2, 0x20003")
A(f"s_lshr_b32 s{sB}, s{sT}, 5")
A(f"s_and_b32 s{sT}, s{sT}, 31")
A(f"s_mov_b32 s{sMASK16}, 0xffff0000")
A(f"s_cmp_lt_u32 s{sWAVE}, 256")
A("s_cbranch_scc0 L_loader" if P["cfirst"] else "s_cbranch_scc1 L_compute")

cur[0] = "lpro"
LBL("L_loader")
vXG, vWG, vLIN, vLIN2, vU0, vFL, vZ, vTC = 1, 3, 4, 5, 6, 8, 9, 15
U0, U1, TT, FLG, NON, JUNK, GAM, VV = 16, 32, 48, 56, 64, 66, 68, 80
sTS, sTB = 24, 68
A(f"s_bfe_u32 s{sWAVE}, s{sWAVE}, 0x20006")
if P["fresh"]: A("s_memrealtime s[70:71]")
A(f"s_mul_i32 s{sXB}, s{sB}, {16000*512}")
A(f"s_mul_i32 s{sTMP}, s{sT}, {500*512}")
A(f"s_add_u32 s{sXB}, s{sXB}, s{sTMP}")
A("v_lshrrev_b32 v10, 3, v0")
A("v_and_b32 v11, 7, v0")
A("v_lshlrev_b32 v12, 4, v11")
A(f"v_lshl_add_u32 v{vXG}, v10, 11, v12")
A(f"s_lshl_b32 s{sXW}, s{sWAVE}, 16")
A(f"s_add_u32 s{sXO}, s{sXB}, s{sXW}")
A(f"s_mul_i32 s{sMX}, s{sWAVE}, {4*XB}")
A("v_bfe_u32 v13, v0, 4, 1")
A(f"s_and_b32 s{sTMP}, s{sWAVE}, 1")
A(f"s_lshl_b32 s{sTMP}, s{sTMP}, 1")
A(f"v_or_b32 v13, s{sTMP}, v13")
A("v_lshlrev_b32 v13, 5, v13")
A("v_xor_b32 v13, v13, v12")
A("v_lshl_add_u32 v13, v10, 9, v13")
A(f"s_lshl_b32 s{sTMP}, s{sNT}, 7")
A(f"s_lshl_b32 s{sM0}, s{sWAVE}, 12")
A(f"s_add_u32 s{sTMP}, s{sTMP}, s{sM0}")
A(f"v_add_u32 v{vWG}, s{sTMP}, v13")
A(f"s_lshl_b32 s{sM0}, s{sWAVE}, 10")
A(f"s_mov_b32 s{sWO}, 0")
A(f"v_mov_b32 v{vZ}, 0")
A(f"s_lshl_b32 s{sTMP}, s{sWAVE}, 4")
A(f"s_lshl_b32 s{sCNT}, s{sNT}, 6")
A(f"s_add_u32 s{sTMP}, s{sTMP}, s{sCNT}")
A(f"v_add_u32 v14, s{sTMP}, v0")
A(f"v_lshlrev_b32 v{vTC}, 10, v14")
A("s_waitcnt lgkmcnt(0)")
pstamp(1)
srd(sX, 32, X_BYTES)
srd(sW, 34, W_BYTES)
LK = sm_list(P["lk"]) if P["lk"] else []

TAPS = {("G00", 0): [0, 4, 8, 12], ("G11", 0): [2, 6, 10, 14], ("G00", 1): [1, 5, 9, 13], ("G11", 1): [3, 7, 11]}
def dw(lds, so, tap, hh):
    return [f"s_add_u32 m0, s{sM0}, {lds}",
            f"s_add_u32 s{sTMP}, s{so}, {tap*131072 + hh*16384}",
            f"buffer_load_dwordx4 v{vWG}, s[{sW}:{sW+3}], s{sTMP} offen" + (" nt" if (P["wnt"] == 2 or (P["wnt"] == 1 and cur[0] == "lpro")) else "") + " lds"]
def dma_w(slot, taps, ss=(0, 1, 2, 3), so=None):
    return [dw(slot*SLOT + WOFF + tile(hh, s), so or sWO, taps[s], hh) for hh in (0, 1) for s in ss if s < len(taps)]
def dma_wp(par, slot, spare0=False):
    r = []
    for hh in (0, 1):
        for s in range(4):
            dst = SPARE if (spare0 and hh == 0 and s == 3) else slot*SLOT + WOFF + tile(hh, s)
            r.append([f"s_add_u32 m0, s{sM0}, {dst}",
                      f"s_add_u32 s{sTMP}, s{sPO}, {WP_OFF + (par*4+s)*131072 + hh*16384}",
                      f"buffer_load_dwordx4 v{vWG}, s[{sWS}:{sWS+3}], s{sTMP} offen sc1 lds"])
    return r
def dma_x(slot, phi):
    nt_ = " nt" if (P["xnt"] == 2 or (P["xnt"] == 1 and cur[0] == "lpro")) else ""
    return [[f"s_add_u32 m0, s{sMX}, {slot*SLOT + j*XB}",
             f"s_add_u32 s{sTMP}, s{sXO}, {j*16384 + phi*512}",
             f"buffer_load_dwordx4 v{vXG}, s[{sX}:{sX+3}], s{sTMP} offen{nt_} lds"] for j in range(4)]
tl_n = [0]
def tail_g(slot, phi):
    k = tl_n[0]; tl_n[0] += 1
    return [f"s_cmp_lg_u32 s{sWAVE}, 0", f"s_cbranch_scc1 L_nt{k}",
            f"s_mov_b32 m0, {slot*SLOT + 16*XB}",
            f"s_add_u32 s{sTMP}, s{sXO}, {(512 + phi)*512}",
            "s_mov_b64 exec, 0xff",
            f"buffer_load_dwordx4 v{vXG}, s[{sX}:{sX+3}], s{sTMP} offen lds",
            "s_mov_b64 exec, -1", f"L_nt{k}:"]
def touch_g(dd, par, half="ab", const=False):
    if const:
        r = [f"s_add_u32 s{sTMP}, s{sXB}, {dd*128 + par*512}"]
    else:
        r = [f"s_cmp_lt_u32 s{sD}, {4 - dd}", f"s_cselect_b32 s{sCNT}, s{sXB}, {OOB}",
             f"s_lshl_b32 s{sTMP}, s{sD}, 7", f"s_add_u32 s{sTMP}, s{sTMP}, s{sCNT}", f"s_add_u32 s{sTMP}, s{sTMP}, {dd*128 + par*512}"]
    r.append(f"s_mov_b64 exec, {dict(ab=0xffff, a=0x5555, b=0xaaaa)[half]:#x}")
    r += [f"buffer_load_dword v{JUNK}, v{vTC}, s[{sX}:{sX+3}], s{sTMP} offen" + (" nt" if P["tnt"] else ""), "s_mov_b64 exec, -1"]
    return r
def emit_groups(gs):
    if P["nodma"]: return
    for g in gs:
        for s in g: A(s)
def mix(valu, gs):
    if P["nodma"]: gs = []
    n = len(gs)
    if not valu:
        emit_groups(gs); return
    pos = [(k * len(valu)) // n for k in range(n)] if n else []
    gi = 0
    for i, v in enumerate(valu):
        while gi < n and pos[gi] == i:
            for s in gs[gi]: A(s)
            gi += 1
        A(v)
def rd_u0(): return [f"ds_read_b128 v[{U0+4*j}:{U0+4*j+3}], v{vU0} offset:{j*XB}" for j in range(4)]
def rd_u1(lin, off): return [f"ds_read_b128 v[{U1+4*j}:{U1+4*j+3}], v{lin} offset:{off + j*XB}" for j in range(4)]
def wr_v(lin, off): return [f"ds_write_b128 v{lin}, v[{VV+4*j}:{VV+4*j+3}] offset:{off + j*XB}" for j in range(4)]
def vadd(js):
    r = []
    for j in js: r += addbf_list(VV+4*j, U1+4*j, U0+4*j, TT)
    return r
def hi(lst):
    if P["dsprio"]: A(f"s_setprio {P['dsprio']}")
    for d in lst: A(d)
    if P["dsprio"]: A(f"s_setprio {P['lprio']}")
def lsetup():
    A("v_lshlrev_b32 v13, 4, v0")
    A(f"v_add_u32 v{vLIN}, s{sMX}, v13")
    A(f"v_add_u32 v{vLIN2}, {2*SLOT}, v{vLIN}")
    A("v_cmp_eq_u32 vcc, 7, v10")
    A(f"v_add_u32 v{vU0}, 128, v{vLIN}")
    A(f"v_add_u32 v12, 160, v{vLIN}")
    A(f"v_cndmask_b32 v{vU0}, v{vU0}, v12, vcc")
    A(f"v_lshlrev_b32 v{vFL}, 3, v0")
    srd(sWS, 44, WS_BYTES)
    out_srd()
    granule_off()
    A(f"s_mov_b32 s{sWN}, 32768")
    A(f"s_mov_b32 s{sD}, 0")
    A(f"s_mov_b32 s{sPO}, 0")
    A(f"s_lshl_b32 s{sFO}, s{sWAVE}, 9")
    A(f"s_add_u32 s{sFO}, s{sFO}, {FL_OFF}")
    if P["lprio"]: A(f"s_setprio {P['lprio']}")
STG = {0: None, 1: None, 2: None, 3: None, 4: None}
w_ = dma_w(0, TAPS[("G00", 0)]); x_ = dma_x(0, 0)
STG[0] = [tail_g(0, 0) + x_[0]] + x_[1:2] + w_[:4] + x_[2:] + w_[4:]
if P["x1st"]: STG[0] = [tail_g(0, 0) + x_[0]] + x_[1:] + w_
STG[1] = dma_x(1, 2) + dma_w(1, TAPS[("G11", 0)])
x_ = dma_x(2, 1)
STG[2] = [tail_g(2, 1) + x_[0]] + x_[1:] + dma_w(2, TAPS[("G00", 1)])
STG[3] = dma_x(0, 3) + dma_w(0, TAPS[("G11", 1)]) + dma_w(0, TAPS[("G11", 0)], ss=(3,), so=sWN)
STG[4] = dma_wp(0, 1) + [dw(SPARE + hh*4096, sWN, TAPS[("G00", 0)][3], hh) for hh in (0, 1)]
issued = []; period = 0; seen = {k: 0 for k in STG}; mixv = []; pendg = []
def flush():
    global mixv, pendg
    mix(mixv, [g for _, g in pendg])
    if not P["nodma"]: issued.extend(k for k, _ in pendg)
    mixv = []; pendg = []
def wait_for(keys, extra=""):
    flush()
    last = max(i for i, k in enumerate(issued) if k in keys)
    A(f"s_waitcnt vmcnt({len(issued) - 1 - last}){extra}")
def flag_load(so): A(f"buffer_load_dwordx2 v[{FLG}:{FLG+1}], v{vFL}, s[{sWS}:{sWS+3}], {so} offen sc0 sc1")
def check_flags(name, so):
    A(f"s_mov_b32 s{sCNT}, {SPIN}")
    LBL(name)
    A(f"v_cmp_eq_u64 vcc, s[{sN0}:{sN1}], v[{FLG}:{FLG+1}]")
    A("s_cmp_eq_u64 vcc, -1")
    A(f"s_cbranch_scc1 {name}_ok")
    A(f"s_sub_u32 s{sCNT}, s{sCNT}, 1")
    A(f"s_cbranch_scc1 {name}_ok")
    flag_load(so)
    A("s_waitcnt vmcnt(0)")
    A(f"s_branch {name}")
    LBL(name + "_ok")
def nonce_load(): A(f"buffer_load_dwordx2 v[{NON}:{NON+1}], v{vZ}, s[{sDBG}:{sDBG+3}], 0 offen sc0 sc1")
if P["nodma"]: issued.extend([0, 1, 2, 3, 4])
for tok in P["pro"].split("."):
    if tok[0] == "D":
        f = tok[1:].split(":"); st = int(f[0]); gs = STG[st]
        lo, hi_ = (int(f[1]), int(f[2])) if len(f) > 1 else (seen[st], len(gs))
        assert lo == seen[st]; seen[st] = min(hi_, len(gs))
        assert st < 3 or period >= st - 1
        pendg += [(st, g) for g in gs[lo:hi_]]
        continue
    if tok[0] == "T":
        c = int(tok[1])
        if P["touch"]: pendg.append(("t", touch_g(c >> 1, c & 1, tok[2:], True)))
        continue
    flush()
    if tok[0] == "S":
        pstamp(2); lsetup()
    elif tok[0] == "Z":
        k = int(tok[1]); A(f"s_memrealtime s[{sST+2*k}:{sST+2*k+1}]")
    elif tok[0] == "X":
        for j in range(4):
            A(f"s_add_u32 s{sTMP}, s{sXO}, {j*16384 + 2048}")
            A(f"buffer_load_dwordx4 v[{U0+4*j}:{U0+4*j+3}], v{vXG}, s[{sX}:{sX+3}], s{sTMP} offen")
            A(f"s_add_u32 s{sTMP}, s{sXO}, {j*16384 + 1024}")
            A(f"buffer_load_dwordx4 v[{U1+4*j}:{U1+4*j+3}], v{vXG}, s[{sX}:{sX+3}], s{sTMP} offen")
            issued.extend(["x", "x"])
    elif tok[0] == "Y":
        wait_for(["x"])
    elif tok[0] == "K":
        n = int(tok[1:])
        if sm_n[0] == 0: sm_base()
        sm_emit(LK[:n]); del LK[:n]
    elif tok[0] == "N":
        srd(sDBG, 42, 256); nonce_load(); issued.append("n")
    elif tok[0] == "U":
        k4 = [i for i, k in enumerate(issued) if k == 1][3] if not P["nodma"] else len(issued) - 1
        A(f"s_waitcnt vmcnt({len(issued) - 1 - k4})")
        hi(rd_u1(vLIN, SLOT))
        A("s_waitcnt lgkmcnt(0)")
    elif tok[0] == "V":
        mixv = vadd(range(int(tok[1]), int(tok[2])))
    elif tok[0] == "F":
        assert period == (2 if P["lateack"] else 1)
        wait_for(["n"])
        A(f"s_mov_b32 s{sCNT}, {SPIN}")
        LBL("L_cn")
        A(f"v_readfirstlane_b32 s{sN0}, v{NON}")
        A(f"v_readfirstlane_b32 s{sN1}, v{NON+1}")
        if P["fresh"]:
            CM("a tag much older than this wave is re-read a few times (only matters if d_debug was not cleared)")
            A(f"s_sub_u32 s{sTMP}, s70, s{sN0}")
            A(f"s_cmp_lt_i32 s{sTMP}, 1000")
            A(f"s_cselect_b32 s{sTMP}, s{sN0}, 0")
            A(f"s_cmp_lt_u32 s{sCNT}, {SPIN - 256}")
            A(f"s_cselect_b32 s{sTMP}, s{sN0}, s{sTMP}")
            A(f"s_cmp_lg_u32 s{sTMP}, 0")
        else:
            A(f"s_cmp_lg_u32 s{sN0}, 0")
        A("s_cbranch_scc1 L_cn_ok")
        A(f"s_sub_u32 s{sCNT}, s{sCNT}, 1")
        A("s_cbranch_scc1 L_cn_ok")
        nonce_load()
        A("s_waitcnt vmcnt(0)")
        A("s_branch L_cn")
        LBL("L_cn_ok")
        A(f"s_lshl_b32 s{sTMP}, s2, 3")
        A(f"s_add_u32 s{sTMP}, s{sTMP}, {FL_OFF}")
        A(f"s_cmp_eq_u32 s{sWAVE}, 0")
        A(f"s_cselect_b32 s{sTMP}, s{sTMP}, {OOB}")
        A("s_mov_b64 exec, 1")
        A(f"buffer_store_dwordx2 v[{NON}:{NON+1}], v{vZ}, s[{sWS}:{sWS+3}], s{sTMP} offen sc0 sc1")
        A(f"v_mov_b32 v12, {MISC}")
        A(f"ds_write_b64 v12, v[{NON}:{NON+1}]")
        A("s_mov_b64 exec, -1")
        issued.append("f")
        pstamp(7)
    elif tok[0] == "G":
        A(f"s_mov_b32 s{sTA}, {FL_OFF}"); flag_load(f"s{sTA}"); issued.append("g")
    elif tok[0] == "C":
        wait_for(["g"])
        A(f"s_mov_b32 s{sTA}, {FL_OFF}")
        check_flags("L_spin0", f"s{sTA}")
    elif tok[0] == "W":
        assert period == 3
        hi(wr_v(vLIN, SLOT)[:P["wsplit"]] + rd_u0())
    elif tok[0] == "w":
        assert period == 3
        for d in wr_v(vLIN, SLOT)[:P["wsplit"]]: A(d)
    elif tok[0] == "r":
        assert period == 3
        for d in rd_u0(): A(d)
    elif tok[0] == "B":
        assert seen[period] == len(STG[period])
        if period == 0: pstamp(3)
        wait_for([period], " lgkmcnt(0)" if period >= 2 else "")
        if period == 0: pstamp(4)
        if period == 1:
            if "U" not in P["pro"].split(".") and "X" not in P["pro"].split(".") and not P["cv"]:
                for d in rd_u1(vLIN, SLOT): A(d)
            A("s_waitcnt lgkmcnt(0)")
            A(f"v_add_u32 v{vU0}, {2*SLOT}, v{vU0}")
        if period == 3:
            assert seen[4] == 10
            A("s_branch L_join")
            break
        A("s_barrier")
        if period < 2: pstamp(5 + period)
        period += 1
        CM(f"P({period-1})")
        if period == 1: pend_u0 = "X" not in P["pro"].split(".") and not P["cv"]
    if tok[0] in "FB" and period == 1 and pend_u0 and (tok[0] == "F" or P["lateack"]):
        hi(rd_u0()); pend_u0 = False
n_after_wp = len(issued) - 1 - max(i for i, k in enumerate(issued) if k == 4) + 2

cur[0] = "lloop"
lb_n = [0]
def lbar():
    k = lb_n[0]; lb_n[0] += 1
    if P["lst"] >= 0:
        A(f"s_cmp_lg_u32 s{sD}, {P['lst'] + 1}")
        A(f"s_cbranch_scc1 L_nb{k}")
        A(f"s_memtime s[{76+4*k}:{77+4*k}]")
        A("s_barrier")
        A(f"s_memtime s[{78+4*k}:{79+4*k}]")
        A(f"s_branch L_nc{k}")
        LBL(f"L_nb{k}")
        A("s_barrier")
        LBL(f"L_nc{k}")
    else:
        A("s_barrier")
nt = 1 if P["touch"] else 0
assert P["nodma"] or n_after_wp >= (0 if P['early2'] else 2) + nt, n_after_wp
assert P["nochk"] or P["vsplit"] <= P["wsplit"] <= P["vsplit"] + P["v1"] <= 4
LBL("L_lloop")
for par in (1, 0):
    npar = 1 - par
    CM(f"P(3c-1) par={par}")
    if par == 1:
        A(f"s_cmp_eq_u32 s{sD}, 3")
        A("s_cbranch_scc1 L_last")
    WV = wr_v(vLIN, SLOT)
    def endw(lst):
        if P["wq"] & 4: hi(lst)
        else:
            for d in lst: A(d)
    if P["wq"] & 1: hi(WV[:1])
    elif not P["wend"]: hi(wr_v(vLIN, SLOT)[:P["wsplit"]])
    if P["u0first"]: hi(rd_u0())
    early = [dw((SPARE if par == 1 else 2*SLOT + WOFF + tile(0, 3)) + hh*4096, sWN if par else sWO, TAPS[("G00", npar)][3], hh) for hh in (0, 1)]
    if P["early2"]: early = []
    ne = len(early)
    mix(vadd(range(P["vsplit"] + P["v1"], 4)), dma_wp(npar, 1) + early)
    if not P["u0first"]:
        for d in rd_u0(): A(d)
    if nt: emit_groups([touch_g(1, par)])
    if P["wend"] == 1: hi(wr_v(vLIN, SLOT)[:P["wsplit"]])
    if P["wend"] == 2:
        for d in wr_v(vLIN, SLOT)[:P["wsplit"]]: A(d)
    if P["wq"] & 1: endw(WV[1:2])
    A(f"s_waitcnt vmcnt({8 + ne + nt})")
    if par == 1: LBL("L_join")
    for d in rd_u1(vLIN, 0): A(d)
    A(f"s_mov_b32 s{sPO}, s{sWO}")
    if par == 1:
        A(f"s_add_u32 s{sD}, s{sD}, 1")
        A(f"s_mov_b32 s{sWO}, s{sWN}")
        A(f"s_add_u32 s{sWN}, s{sWN}, 32768")
        A(f"s_cmp_eq_u32 s{sD}, 3")
        A(f"s_cselect_b32 s{sWN}, {OOB}, s{sWN}")
        A(f"s_add_u32 s{sXO}, s{sXO}, 128")
    A("s_waitcnt lgkmcnt(0)")
    lbar()
    CM(f"P(3c) par={par}")
    if P["cv"] and par == 1:
        A(f"s_cmp_eq_u32 s{sD}, 1")
        A("s_cbranch_scc1 L_nolw")
    if P["wq"] & 2: hi(WV[2:3])
    elif not P["wend2"]: hi(wr_v(vLIN, SLOT)[P["wsplit"]:])
    if P["cv"] and par == 1: LBL("L_nolw")
    x_ = dma_x(2, npar)
    gs = [tail_g(2, npar) + x_[0]] + x_[1:] + dma_w(2, TAPS[("G00", npar)], ss=(0, 1, 2))
    mix(vadd(range(P["vsplit"])), gs)
    if P["wq"] & 2: endw(WV[3:4])
    if P["wend2"] == 1: hi(wr_v(vLIN, SLOT)[P["wsplit"]:])
    if P["wend2"] == 2:
        for d in wr_v(vLIN, SLOT)[P["wsplit"]:]: A(d)
    A(f"s_waitcnt vmcnt({10 + ne + nt}) lgkmcnt(0)")
    lbar()
    CM(f"P(3c+1) par={par}")
    gs = dma_x(0, 2 + npar) + dma_w(0, TAPS[("G11", npar)], ss=(0, 1, 2))
    if par == 0: gs += dma_w(0, TAPS[("G11", 0)], ss=(3,), so=sWN)
    if P["early2"]:
        gs += [dw((SPARE if par == 0 else 2*SLOT + WOFF + tile(0, 3)) + hh*4096, sWN if par == 0 else sWO, TAPS[("G00", par)][3], hh) for hh in (0, 1)]
    if par == 1:
        A(f"s_cmp_lg_u32 s{sD}, 1")
        A("s_cbranch_scc1 L_nf2")
        flag_load(f"s{sFO}")
        LBL("L_nf2")
    va = vadd(range(P["vsplit"], P["vsplit"] + P["v1"]))
    if P["burst1"]:
        k = len(va) * (P["burst1"] - 1) // 4
        mix(va[:k], gs)
        for t in va[k:]: A(t)
    else:
        mix(va, gs)
    A(f"s_waitcnt vmcnt({len(gs)})")
    if par == 1:
        A(f"s_cmp_lg_u32 s{sD}, 1")
        A("s_cbranch_scc1 L_spin1_ok")
        check_flags("L_spin1", f"s{sFO}")
    lbar()
A("s_branch L_lloop")

cur[0] = "llast"
LBL("L_last")
CM("P(20)")
hi(wr_v(vLIN, SLOT)[:P["wsplit"]])
mix(vadd(range(P["vsplit"] + P["v1"], 4)), dma_wp(0, 1))
for d in rd_u0(): A(d)
srd(sGA, 36, 512)
srd(sBE, 38, 512)
A("s_waitcnt vmcnt(8)")
for d in rd_u1(vLIN, 0): A(d)
A("s_waitcnt lgkmcnt(0)")
A("s_barrier")
CM("P(21)")
gs = dma_wp(1, 2, True)
hi(wr_v(vLIN, SLOT)[P["wsplit"]:])
mix(vadd(range(2)), gs[:5])
A("s_waitcnt lgkmcnt(0)")
mix(vadd(range(2, 3)), gs[5:])
A("s_waitcnt vmcnt(8)")
A("s_barrier")
CM("P(22)")
wv = wr_v(vLIN2, 0)
for t in vadd(range(3, 4)): A(t)
for d in wv: A(d)
A("v_and_b32 v10, 15, v0")
A(f"s_lshl_b32 s{sTMP}, s{sNT}, 2")
A(f"s_add_u32 s{sTMP}, s{sTMP}, s{sWAVE}")
A(f"s_lshl_b32 s{sTMP}, s{sTMP}, 5")
A("v_lshlrev_b32 v14, 1, v10")
A(f"buffer_load_ushort v{GAM}, v14, s[{sGA}:{sGA+3}], s{sTMP} offen")
A(f"buffer_load_ushort v{GAM+1}, v14, s[{sBE}:{sBE+3}], s{sTMP} offen")
A("s_waitcnt vmcnt(2) lgkmcnt(0)")
A("s_barrier")
A("v_lshrrev_b32 v11, 4, v0")
A("v_lshlrev_b32 v12, 4, v10")
A("v_lshl_add_u32 v12, v11, 10, v12")
A(f"s_lshl_b32 s{sTMP}, s{sWAVE}, 6")
A(f"s_add_u32 s{sTMP}, s{sTMP}, {MISC+64}")
A(f"v_lshl_add_u32 v10, v10, 2, s{sTMP}")
if P["lprio"]: A("s_setprio 0")
A(f"s_add_u32 s{sWAVE}, s{sWAVE}, 4")
final_addr(FA)
A("s_waitcnt vmcnt(0)")
A(f"v_lshlrev_b32 v{GAM}, 16, v{GAM}")
A(f"v_lshlrev_b32 v{GAM+1}, 16, v{GAM+1}")
k0 = -2.0 * math.sqrt(2.0 / math.pi) * math.log2(math.e)
k1 = k0 * 0.044715
gam3 = -((-k1) ** (1.0 / 3.0))
if P["g5"]:
    A(f"v_mul_f32 v{GAM}, {f32(gam3)}, v{GAM}")
    A(f"v_mul_f32 v{GAM+1}, {f32(gam3)}, v{GAM+1}")
if not P["peel"]: A("s_barrier")
A("s_barrier")
stamp(1)
PG = 16
A(f"s_mov_b32 s{sCNT}, {SPIN}")
if not P["mg"]: y_reads()
if P["spoll"]:
    for i in range(8):
        A(f"s_add_u32 s{84+i}, s{sGR}, {i*4096}")
    def pl(i): A(f"buffer_load_dwordx4 v[{PG+4*i}:{PG+4*i+3}], v12, s[{sWS}:{sWS+3}], s{84+i} offen sc0 sc1")
    for i in range(8): pl(i)
    for i in range(8):
        A(f"s_waitcnt vmcnt({7-i})")
        LBL(f"L_pc{i}")
        A(f"v_cmp_eq_u64 vcc, s[{sN0}:{sN1}], v[{PG+4*i+2}:{PG+4*i+3}]")
        A("s_cmp_eq_u64 vcc, -1")
        A(f"s_cbranch_scc0 L_pr{i}")
        LBL(f"L_pd{i}")
else:
    LBL("L_poll")
    for i in range(8):
        so = f"s{sGR}" if i == 0 else f"s{sTMP}"
        if i: A(f"s_add_u32 s{sTMP}, s{sGR}, {i*4096}")
        A(f"buffer_load_dwordx4 v[{PG+4*i}:{PG+4*i+3}], v12, s[{sWS}:{sWS+3}], {so} offen " + ("sc1" if P["pfl"] & 1 else "sc0 sc1"))
    A(f"s_mov_b64 s[{sTA}:{sTA+1}], -1")
    for i in range(8):
        A(f"s_waitcnt vmcnt({7-i})")
        A(f"v_cmp_eq_u64 vcc, s[{sN0}:{sN1}], v[{PG+4*i+2}:{PG+4*i+3}]")
        A(f"s_and_b64 s[{sTA}:{sTA+1}], s[{sTA}:{sTA+1}], vcc")
    A(f"s_sub_u32 s{sCNT}, s{sCNT}, 1")
    A("s_cbranch_scc1 L_poll_ok")
    A(f"s_cmp_eq_u64 s[{sTA}:{sTA+1}], -1")
    if P["psl"]:
        A("s_cbranch_scc1 L_poll_ok")
        A(f"s_sleep {P['psl']}")
        A("s_branch L_poll")
    else:
        A("s_cbranch_scc0 L_poll")
LBL("L_poll_ok")
stamp(2)
for st in (4, 2, 1):
    for i in range(st):
        pk("add", PG+4*i, PG+4*i, PG+4*(i+st))
for sw in ("v_permlane32_swap_b32", "v_permlane16_swap_b32"):
    A(f"v_mov_b32 v{PG+2}, v{PG}")
    A(f"v_mov_b32 v{PG+3}, v{PG+1}")
    A("s_nop 1")
    A(f"{sw} v{PG}, v{PG+2}")
    A(f"{sw} v{PG+1}, v{PG+3}")
    A("s_nop 1")
    pk("add", PG, PG, PG+2)
A(f"v_mul_f32 v{PG}, {f32(1.0/7993)}, v{PG}")
A(f"v_mul_f32 v{PG+1}, {f32(1.0/7993)}, v{PG+1}")
A(f"v_fma_f32 v{PG+1}, -v{PG}, v{PG}, v{PG+1}")
A(f"v_max_f32 v{PG+1}, 0, v{PG+1}")
A(f"v_add_f32 v{PG+1}, {f32(1e-5)}, v{PG+1}")
A(f"v_rsq_f32 v{PG+1}, v{PG+1}")
A("s_nop 0")
A(f"v_mul_f32 v{PG+1}, v{PG+1}, v{GAM}")
A(f"ds_write_b32 v10, v{PG+1}")
A(f"v_fma_f32 v{PG}, -v{PG}, v{PG+1}, v{GAM+1}")
A(f"ds_write_b32 v10, v{PG} offset:256")

if P["spoll"]:
    cur[0] = "cepi"
    for i in range(8):
        LBL(f"L_pr{i}")
        A(f"s_sub_u32 s{sCNT}, s{sCNT}, 1")
        A(f"s_cbranch_scc1 L_pd{i}")
        pl(i)
        for k in range(i + 1, min(i + 1 + P["spoll"] - 1, 8)): pl(k)
        A("s_waitcnt vmcnt(0)")
        A(f"s_branch L_pc{i}")
    tail_cepi = SEC["cepi"]; SEC["cepi"] = []
cur[0] = "final"
LBL("L_final")
k0 = -2.0 * math.sqrt(2.0 / math.pi) * math.log2(math.e)
k1 = k0 * 0.044715
A(f"s_mov_b32 s{sK+2}, {f32(gam3 if P['g5'] else k1)}")
A(f"s_mov_b32 s{sK+3}, {f32(gam3 if P['g5'] else k1)}")
A(f"s_mov_b32 s{sK+4}, 4096")
A(f"v_mov_b32 v56, {f32(k0/gam3 if P['g5'] else k0)}")
A(f"v_mov_b32 v57, {f32(k0/gam3 if P['g5'] else k0)}")
A("s_waitcnt lgkmcnt(0)")
A("s_barrier")
stamp(4)
CA, CC = 16, 24
A(f"ds_read_b128 v[{CA}:{CA+3}], v{FA+6}")
A(f"ds_read_b128 v[{CC}:{CC+3}], v{FA+6} offset:256")
A(f"ds_read_b128 v[{CA+4}:{CA+7}], v{FA+6} offset:16")
A(f"ds_read_b128 v[{CC+4}:{CC+7}], v{FA+6} offset:272")
Z, U = 32, 40
if P["mg"]: y_reads()
for n in range(4):
    y = Y + 8 * n
    for h in range(0, 8, 2):
        if P["mg"]:
            if h == 0: A(f"s_waitcnt lgkmcnt({6 - 2*n})")
        elif n == 0 and h in (0, 4): A(f"s_waitcnt lgkmcnt({2 if h == 0 else 0})")
        pk("fma", y+h, y+h, CA+h, c=CC+h)
    if P["g5"]:
        for h in range(0, 8, 2): pk("fma", U+h, y+h, y+h, c=56)
    else:
        for h in range(0, 8, 2): pk("mul", U+h, y+h, y+h)
        for h in range(0, 8, 2): A(f"v_pk_fma_f32 v[{U+h}:{U+h+1}], v[{U+h}:{U+h+1}], s[{sK+2}:{sK+3}], v[56:57]")
    for h in range(0, 8, 2): pk("mul", U+h, U+h, y+h)
    for h in range(8): A(f"v_exp_f32 v{U+h}, v{U+h}")
    for h in range(0, 8, 2):
        if P["g5"]: A(f"v_pk_fma_f32 v[{U+h}:{U+h+1}], v[{U+h}:{U+h+1}], s[{sK+2}:{sK+3}], s[{sK+2}:{sK+3}]")
        else: A(f"v_pk_add_f32 v[{U+h}:{U+h+1}], v[{U+h}:{U+h+1}], 1.0 op_sel_hi:[1,0]")
    for h in range(8): A(f"v_rcp_f32 v{U+h}, v{U+h}")
    for h in range(0, 8, 2): pk("mul", y+h, y+h, U+h)
    o = Z + 4 * (n & 1)
    for h in range(4): A(f"v_cvt_pk_bf16_f32 v{o+h}, v{y+2*h}, v{y+2*h+1}")
    A(f"buffer_store_dwordx4 v[{o}:{o+3}], v{FA+4 if n < 2 else FA+5}, s[{sO}:{sO+3}], {'0' if n % 2 == 0 else 's'+str(sK+4)} offen" + ["", " nt", " sc1", " sc0 sc1", " sc1 nt"][P["stf"]])
if P["stamps"]:
    stamp(5)
    A("s_waitcnt vmcnt(0)")
    stamp(6)
    A("s_waitcnt lgkmcnt(0)")
    A(f"s_mov_b32 s{sWS+2}, 0x1000000")
    A(f"s_lshl_b32 s{sTMP}, s2, 3")
    A(f"s_add_u32 s{sTMP}, s{sTMP}, s{sWAVE}")
    A(f"s_lshl_b32 s{sTMP}, s{sTMP}, 5")
    A(f"s_add_u32 s{sTMP}, s{sTMP}, 0x200000")
    A("v_mov_b32 v1, 0")
    if plain and not P["pst"]: A("s_sub_u32 s90, s94, s92")
    for k in range(8): A(f"v_mov_b32 v{2+k}, s{sST+(k if P['cst'] else 2*k)}")
    A("s_mov_b64 exec, 1")
    if P["sst"] >= 0:
        for k in range(12): A(f"v_mov_b32 v{2+k}, v{MS+k}") if False else None
    if P["lst"] >= 0 or P["cst"] or P["sst"] >= 0:
        if P["sst"] >= 0:
            for k in range(12): A(f"v_readlane_b32 s{76+k}, v255, {k}")
            A("s_nop 1")
            for k in range(12): A(f"v_mov_b32 v{2+k}, s{76+k}")
        else:
            for k in range(4): A(f"v_mov_b32 v{10+k}, s{sST+8+k if P['cst'] else sST+16+2*k}")
        A(f"s_add_u32 s{sCNT}, s{sTMP}, 0x100000")
        A(f"buffer_store_dwordx4 v[10:13], v1, s[{sWS}:{sWS+3}], s{sCNT} offen")
    A(f"buffer_store_dwordx4 v[2:5], v1, s[{sWS}:{sWS+3}], s{sTMP} offen")
    A(f"buffer_store_dwordx4 v[6:9], v1, s[{sWS}:{sWS+3}], s{sTMP} offen offset:16")
if P["dbgt"]:
    A(f"s_cmp_lg_u32 s{sWAVE}, 0")
    A("s_cbranch_scc1 L_end")
    A("s_cmp_eq_u32 s2, 0")
    A(f"s_cselect_b32 s{sTMP}, 8, 36")
    A("s_cbranch_scc1 L_dd")
    A("s_cmp_lg_u32 s2, 77")
    A("s_cbranch_scc1 L_end")
    LBL("L_dd")
    for k in range(1, 7): A(f"v_subrev_u32 v{2+k}, v2, v{2+k}")
    A(f"buffer_store_dwordx4 v[2:5], v1, s[{sDBG}:{sDBG+3}], s{sTMP} offen")
    A(f"buffer_store_dwordx3 v[6:8], v1, s[{sDBG}:{sDBG+3}], s{sTMP} offen offset:16")
LBL("L_end")
A("s_endpgm")

cur[0] = "cp0" if P["cfirst"] else "cpro"
if not P["cfirst"]: LBL("L_compute")
G00, G11, GS = 16, 48, 80
SETS = [112, 172]
def vXR(role): return 1 + 2 * role
def vWR(role): return 2 + 2 * role
vW3, vW3C, vGA, vYW = 7, 8, 9, 10
T = 232
CWA, CWB = 112, 116
TP = 160 if P["cv"] else T
CU0, CU1, vCX, vCL = 128, 144, 168, 251
CV = [232, 236, 240, 12]
A(f"s_lshr_b32 s{sWAVE}, s{sWAVE}, 6")
A(f"s_memrealtime s[{sN0}:{sN1}]")
A(f"v_lshrrev_b32 v{TP}, 5, v0")
A(f"s_lshl_b32 s{sTMP}, s{sWAVE}, 1")
A(f"v_add_u32 v{TP}, s{sTMP}, v{TP}")
A(f"v_and_b32 v{TP+1}, 31, v0")
A(f"v_lshlrev_b32 v{TP+1}, 4, v{TP+1}")
A(f"s_lshl_b32 s{sTMP}, s2, 9")
A(f"v_add_u32 v{TP+1}, s{sTMP}, v{TP+1}")
A(f"v_lshl_add_u32 v{TP+2}, v{TP}, 17, v{TP+1}")
A(f"v_and_b32 v{TP}, 3, v{TP}")
A(f"v_lshl_add_u32 v{TP+1}, v{TP}, 19, v{TP+1}")
A(f"s_lshr_b32 s{sWO}, s{sWAVE}, 1")
A(f"s_lshl_b32 s{sWO}, s{sWO}, 17")
A(f"s_add_u32 s{sWN}, s{sWO}, {2*131072}")
if P["cv"]:
    A(f"v_lshrrev_b32 v{vCX}, 3, v0")
    A(f"v_and_b32 v{vCX+1}, 7, v0")
    A(f"v_lshlrev_b32 v{vCX+1}, 4, v{vCX+1}")
    A(f"v_lshl_add_u32 v{vCX}, v{vCX}, 11, v{vCX+1}")
    A(f"s_mul_i32 s{sXB}, s{sB}, {16000*512}")
    A(f"s_mul_i32 s{sTMP}, s{sT}, {500*512}")
    A(f"s_add_u32 s{sXB}, s{sXB}, s{sTMP}")
    A(f"s_lshl_b32 s{sTMP}, s{sWAVE}, 16")
    A(f"s_add_u32 s{sXB}, s{sXB}, s{sTMP}")
A("s_waitcnt lgkmcnt(0)")
srd(sW, 34, W_BYTES)
if P["pq"]:
    A(f"s_cmp_eq_u32 s{sWAVE}, 0")
    A(f"s_cselect_b32 s{sW+2}, s{sW+2}, 0")
def p_loads():
    A(f"buffer_load_dwordx4 v[{CWA}:{CWA+3}], v{TP+1}, s[{sW}:{sW+3}], s{sWO} offen" + (" nt" if P["pnt"] else ""))
    A(f"buffer_load_dwordx4 v[{CWB}:{CWB+3}], v{TP+1}, s[{sW}:{sW+3}], s{sWN} offen" + (" nt" if P["pnt"] else ""))
if not P["pdel"]: p_loads()
def c_split():
    A("s_branch L_compute")
    cur[0] = "cpro"
    LBL("L_compute")
if P["cfirst"] == 1: c_split()
def cx_loads():
    srd(sX, 32, X_BYTES)
    for j in range(4):
        A(f"s_add_u32 s{sTMP}, s{sXB}, {j*16384 + 2048}")
        A(f"buffer_load_dwordx4 v[{CU0+4*j}:{CU0+4*j+3}], v{vCX}, s[{sX}:{sX+3}], s{sTMP} offen")
        A(f"s_add_u32 s{sTMP}, s{sXB}, {j*16384 + 1024}")
        A(f"buffer_load_dwordx4 v[{CU1+4*j}:{CU1+4*j+3}], v{vCX}, s[{sX}:{sX+3}], s{sTMP} offen")
if P["cv"] == 1: cx_loads()
SK = sm_list(P["sk"]) if P["sk"] else []
if SK: sm_base(); sm_emit(SK[:7]); del SK[:7]
srd(sDBG, 42, 256)
A(f"s_or_b32 s{sTMP}, s2, s{sWAVE}")
A(f"s_cmp_lg_u32 s{sTMP}, 0")
A("s_cbranch_scc1 L_nononce")
A(f"s_or_b32 s{sN0}, s{sN0}, 1")
A(f"v_mov_b32 v{TP+3}, 0")
A(f"v_mov_b32 v{TP+6}, s{sN0}")
A(f"v_mov_b32 v{TP+7}, s{sN1}")
A("s_mov_b64 exec, 1")
A(f"buffer_store_dwordx2 v[{TP+6}:{TP+7}], v{TP+3}, s[{sDBG}:{sDBG+3}], 0 offen sc0 sc1")
A("s_mov_b64 exec, -1")
LBL("L_nononce")
if P["cfirst"] == 2: c_split()
if P["cpf"]:
    A(f"s_cmp_lg_u32 s{sWAVE}, 1")
    A("s_cbranch_scc1 L_nocpf")
    A("s_getpc_b64 s[74:75]")
    LBL("L_pc")
    A(f"s_lshr_b32 s{sTMP}, s2, 3")
    A(f"s_lshl_b32 s{sTMP}, s{sTMP}, 9")
    A(f"s_add_u32 s74, s74, s{sTMP}")
    A("s_addc_u32 s75, s75, 0")
    A(f"s_sub_u32 s74, s74, L_pc-{KN}")
    A("s_subb_u32 s75, s75, 0")
    A(f"v_lshlrev_b32 v{TP+4}, 7, v0")
    A("s_mov_b64 exec, 15")
    A(f"global_load_dword v{TP+5}, v{TP+4}, s[74:75]")
    A("s_mov_b64 exec, -1")
    LBL("L_nocpf")
if P["warm"]:
    CM("visit one instruction in every later code page while the first loads are in flight")
    A("s_branch L_warm0")
    LBL("L_warmret")
srd(sWS, 44, WS_BYTES)
A(f"s_mov_b32 s{sPO}, {WP_OFF}")
out_srd()
A(f"s_mov_b32 s{sMID}, 0x7fff7fff")
A(f"s_cselect_b32 s{sMID}, s{sMID}, -1")
A(f"s_mov_b32 s{sMID+1}, s{sMID}")
granule_off()
A(f"s_lshl_b32 s{sTMP}, s{sT}, 10")
A(f"s_add_u32 s{sGR}, s{sGR}, s{sTMP}")
R, G_, X1, X2 = 120, 121, 122, 124
A(f"v_and_b32 v{R}, 15, v0")
A(f"v_lshrrev_b32 v{G_}, 4, v0")
A(f"v_mul_u32_u24 v{X1}, {XB}, v{R}")
A(f"v_lshl_add_u32 v{vXR(0)}, v{G_}, 4, v{X1}")
A(f"v_bfe_u32 v{X2}, v0, 2, 2")
A(f"v_lshl_add_u32 v{X1}, v{G_}, 3, v{X2}")
A(f"v_lshlrev_b32 v{X1}, 7, v{X1}")
A(f"v_lshrrev_b32 v{X2}, 1, v{X2}")
A(f"v_and_b32 v{X2+1}, 1, v{G_}")
A(f"v_lshl_or_b32 v{X2}, v{X2+1}, 1, v{X2}")
A(f"v_xor_b32 v{X2}, s{sWAVE}, v{X2}")
A(f"v_lshl_add_u32 v{X1}, v{X2}, 5, v{X1}")
A(f"v_and_b32 v{X2}, 3, v0")
A(f"v_lshl_add_u32 v{X1}, v{X2}, 3, v{X1}")
A(f"v_add_u32 v{vWR(0)}, {WOFF}, v{X1}")
A(f"v_add_u32 v{vW3}, {WOFF + tile(0,3)}, v{X1}")
A(f"v_lshlrev_b32 v{vW3C}, 1, v{X1}")
A(f"v_add_u32 v{vW3C}, {2*SLOT + WOFF + tile(0,3) + SPARE}, v{vW3C}")
for k in (1, 2):
    A(f"v_add_u32 v{k+2}, {SLOT}, v{k}")
    A(f"v_add_u32 v{k+4}, {2*SLOT}, v{k}")
if P["red"]:
    CM("after the reduce-scatter lane r of group g holds channel 4g + (r>>2)")
    A(f"v_lshrrev_b32 v{X1}, 2, v{R}")
    A(f"v_lshl_add_u32 v{vGA}, v{G_}, 2, v{X1}")
else:
    A(f"v_lshl_add_u32 v{vGA}, v{G_}, 2, v{R}")
A(f"v_lshlrev_b32 v{vGA}, 4, v{vGA}")
A(f"s_lshl_b32 s{sTMP}, s{sWAVE}, 2")
A(f"v_add_u32 v{X1}, s{sTMP}, v{G_}")
A(f"v_lshrrev_b32 v{X2}, 1, v{X1}")
A(f"v_and_b32 v{X1}, 1, v{X1}")
A(f"v_lshl_or_b32 v{X1}, v{X1}, 3, v{X2}")
A(f"v_and_b32 v{X2}, 7, v{R}")
A(f"v_xor_b32 v{X1}, v{X1}, v{X2}")
A(f"v_lshlrev_b32 v{X1}, 4, v{X1}")
A(f"v_lshl_add_u32 v{vYW}, v{R}, 12, v{X1}")
A(f"v_xor_b32 v{vYW+1}, 0x80, v{vYW}")
final_addr(FA)
for i in range(0, 96, 2):
    A(f"v_pk_mov_b32 v[{16+i}:{17+i}], 0, 0")
if P["cv"]:
    A(f"s_mul_i32 s{sTMP}, s{sWAVE}, {4*XB}")
    A(f"s_add_u32 s{sTMP}, s{sTMP}, {SLOT}")
    A(f"v_lshl_add_u32 v{vCL}, v0, 4, s{sTMP}")
if P["pdel"]: p_loads()
sm_emit(SK[:9]); del SK[:9]
if P["cv"] == 2: cx_loads()
A(f"s_waitcnt vmcnt({8 if P['cv'] else 0})")
for t in addbf_list(CWA, CWA, CWB, 224, True): A(t)
A(f"buffer_store_dwordx4 v[{CWA}:{CWA+3}], v{TP+2}, s[{sWS}:{sWS+3}], s{sPO} offen sc0 sc1")
if P["cv"]:
    for j in range(4):
        A(f"s_waitcnt vmcnt({1 + 2*(3-j) if P['cv'] == 2 else 1})") if (j == 0 or P["cv"] == 2) else None
        for t in addbf_list(CV[j], CU1+4*j, CU0+4*j, 224, True): A(t)
nct = 0
def c_touch():
    global nct
    if not P["ct"]: return
    if not P["cv"]:
        srd(sX, 32, X_BYTES)
    A(f"s_mul_i32 s{sXO}, s{sB}, {16000*512}")
    A(f"s_mul_i32 s{sTMP}, s{sT}, {500*512}")
    A(f"s_add_u32 s{sXO}, s{sXO}, s{sTMP}")
    A(f"s_lshl_b32 s{sTMP}, s{sWAVE}, 4")
    A(f"s_lshl_b32 s{sCNT}, s{sNT}, 6")
    A(f"s_add_u32 s{sTMP}, s{sTMP}, s{sCNT}")
    A(f"v_add_u32 v252, s{sTMP}, v0")
    A(f"v_lshlrev_b32 v252, 10, v252")
    for t in P["ct"].split("+"):
        c = int(t[0])
        A(f"s_add_u32 s{sTMP}, s{sXO}, {(c >> 1)*128 + (c & 1)*512}")
        A(f"s_mov_b64 exec, {dict(ab=0xffff, a=0x5555, b=0xaaaa)[t[1:]]:#x}")
        A(f"buffer_load_dword v253, v252, s[{sX}:{sX+3}], s{sTMP} offen")
        nct += 1
    A("s_mov_b64 exec, -1")
c_touch()
sm_emit(SK)
if P["sk"]: A("s_waitcnt lgkmcnt(0)")
if P["prio"]: A(f"s_setprio {P['prio']}")
if not P["lateack"]: A(f"s_waitcnt vmcnt({nct})")

def reads(role, hh, st, ndpp=0, last=False):
    xb = SETS[st]; wb = xb + 44
    def xr(q): return (("X", q), f"ds_read_b128 v[{xb+4*q}:{xb+4*q+3}], v{vXR(role)} offset:{(q & 7)*128 + hh*64 + (XB if q > 7 else 0)}")
    def wr(s, h):
        if role == 0 and s == 3 and not last:
            return (("W", s), f"ds_read_b64_tr_b16 v[{wb+4*s+2*h}:{wb+4*s+2*h+1}], v{vW3} offset:{hh*4096 + h*512}")
        return (("W", s), f"ds_read_b64_tr_b16 v[{wb+4*s+2*h}:{wb+4*s+2*h+1}], v{vWR(role)} offset:{tile(hh, s) + h*512}")
    if role == 1 and P["u3"]:
        r = [wr(0, 0), wr(0, 1), xr(0), wr(1, 0), wr(1, 1), xr(1), wr(2, 0), wr(2, 1)] + [xr(q) for q in range(2, 10)] + [wr(3, 0), wr(3, 1), xr(10)]
    else:
        r = [wr(0, 0), wr(0, 1), xr(0), wr(1, 0), wr(1, 1)] + [xr(q) for q in range(1, 9)] + [wr(2, 0), wr(2, 1), wr(3, 0), wr(3, 1), xr(9), xr(10)]
    dq = list(range(11 - ndpp, 11))
    r = [e for e in r if not (e[0][0] == "X" and e[0][1] in dq)]
    d = [f"v_mov_b32_dpp v{xb+4*q+i}, v{xb+4*(q-8)+i} row_shl:1 row_mask:0xf bank_mask:0xf bound_ctrl:0" for q in dq for i in range(4)]
    return r, d
def mfma_list(acc, st, split3=False):
    xb = SETS[st]; wb = xb + 44
    pairs = []
    if split3 and P["u3"]:
        pairs = [(s, j) for j in range(8) for s in ((0, 1, 2) if j % 2 == 0 else (2, 1, 0))] + [(3, j) for j in range(8)]
    else:
        for s0 in ((0,) if split3 else (0, 2)):
            for q in range(s0, s0 + 9):
                for s in (s0 + 1, s0):
                    if 0 <= q - s < 8: pairs.append((s, q - s))
        if split3: pairs += [(s, j) for s in (2, 3) for j in range(8)]
    out = []
    for s, j in pairs:
        d = f"v[{acc+4*j}:{acc+4*j+3}]"
        out.append(([("W", s), ("X", j+s)], f"v_mfma_f32_16x16x32_bf16 {d}, v[{wb+4*s}:{wb+4*s+3}], v[{xb+4*(j+s)}:{xb+4*(j+s)+3}], {d}"))
    return out
pending = []
ss_n = [0]
def sstamp():
    if P["sst"] < 0 or ss_n[0] >= 12: return
    k = ss_n[0]; ss_n[0] += 1
    A(f"s_memtime s[{76+2*k}:{77+2*k}]")
def seq(acc, st, rdd, barrier, skip_label=None, extra=None, delay=0, vm0=False, pre=(), c0tail=None):
    global pending
    rd, dpp = rdd
    pre = list(pre)
    nm = 24 if skip_label else 32
    m = mfma_list(acc, st, skip_label is not None)
    rd = [] if P["nords"] else list(rd)
    dpp = list(dpp)
    first = max(P["barslot"], delay) if barrier else 0
    if dpp:
        first = min(first, nm - len(rd) - len(dpp) - 0) if barrier else first
        first = max(first, P["barslot"]) if barrier else first
        last = first + len(rd) - 1
    else:
        last = max(min(first + len(rd) if barrier else P["rdA"], nm - P["rd_gap"]), first + len(rd) - 1) if rd else 0
    slots = [first + (k * (last - first)) // max(len(rd) - 1, 1) for k in range(len(rd))]
    dslots = [min(last + 1 + len(pre) + k, nm - 1) for k in range(len(dpp))]
    if pre:
        extra = dict(extra or {})
        for k, t in enumerate(pre): extra.setdefault(last + 1 + k, []).append(t)
    cur_ = list(pending); newer = 0; nxt = []; nd = 0
    for i, (need, ins) in enumerate(m):
        if i == 24 and skip_label:
            A(f"s_cbranch_scc1 {skip_label}")
            if c0tail:
                A(f"s_cmp_eq_u32 s{sCNT}, 0")
                A("s_cbranch_scc1 L_cfirst")
                c0tail.extend(x for _, x in m[24:])
        W_ = 8 if P["w8"] else 16
        if i % W_ == 0 or (skip_label and i == 24):
            need = [k for nd_, _ in m[i:i+W_ if not (skip_label and i == 16) else 24] for k in nd_]
            if barrier and i == 0: need = [k for nd_, _ in m[:P["barslot"]+1] for k in nd_]
            idx = max([k for k, key in enumerate(cur_) if key in need], default=-1)
            if idx >= 0:
                n = len(cur_) - 1 - idx + newer
                if n < 15: A(f"s_waitcnt lgkmcnt({n})")
                cur_ = cur_[idx+1:]
        A(ins)
        if barrier and i == P["barslot"]:
            if cur_ or vm0: A("s_waitcnt" + (" vmcnt(0)" if vm0 else "") + " lgkmcnt(0)"); cur_ = []
            sstamp()
            A("s_barrier")
            sstamp()
        while rd and slots[len(nxt)] <= i:
            key, s = rd.pop(0); A(s); nxt.append(key); newer += 1
        while nd < len(dpp) and dslots[nd] <= i:
            if nd == 0:
                k = max(nxt.index(("X", q)) for q in range(3) if ("X", q) in nxt)
                A(f"s_waitcnt lgkmcnt({min(len(nxt) - 1 - k, 15)})")
            A(dpp[nd]); nd += 1
        if extra and i in extra:
            for s in extra[i]: A(s)
    assert not rd and nd == len(dpp)
    if skip_label: LBL(skip_label)
    pending = nxt
    sstamp()
A("s_barrier")
if P["sst0"]: A("s_memtime s[98:99]")
stamp(1)
if plain: A("s_memtime s[92:93]"); A("s_waitcnt lgkmcnt(0)")
D2, D3 = (2 if P["dpp"] else 0), (3 if P["dpp"] else 0)
r0, _ = reads(0, 0, 0)
for _, s in r0: A(s)
LATE = reads(0, 0, 0, 2)[1] if P["dpp"] & 8 else []
pending = [k for k, _ in reads(0, 0, 0, D2 if P["dpp"] & 12 else 0)[0]]
loop_entry = list(pending)
A(f"s_mov_b32 s{sCNT}, 0")
if P["dpp"] & 12: A("s_waitcnt lgkmcnt(0)")
A("s_branch L_cloop")

cur[0] = "cloop"
def cstamp(idx=None):
    if not P["cst"]: return
    A("s_memtime s[100:101]")
    A("s_waitcnt lgkmcnt(0)")
    if idx is None:
        A(f"s_mov_b32 m0, s{sCNT}")
        A("s_nop 0")
        A("s_movreld_b32 s76, s100")
    else:
        A(f"s_mov_b32 s{76+idx}, s100")
LBL("L_cloop")
if P["sst"] >= 0:
    A(f"s_cmp_lg_u32 s{sCNT}, {P['sst'] + 1}")
    A("s_cbranch_scc1 L_nss")
    A("s_waitcnt lgkmcnt(0)")
    for k in range(12): A(f"v_writelane_b32 v255, s{76+2*k}, {k}")
    LBL("L_nss")
cstamp()
if P["sst0"]: sstamp()
seq(G00, 0, reads(0, 1, 1, D2), False, pre=LATE)
seq(G00, 1, reads(1, 0, 0, D3 if P["dpp"] & 2 else 0), True, extra={28: [f"v_sub_u32 v{vW3}, v{vW3C}, v{vW3}"]}, delay=P["dly0"], vm0=bool(P["lateack"]))
A(f"s_bitcmp1_b32 s{sCNT}, 0")
seq(G11, 0, reads(1, 1, 1), False, "L_skipa")
c0l = ["x"] if (P["cv"] and P["c0t"]) else None
seq(G11, 1, reads(2, 0, 0), True, "L_skipb", c0tail=c0l)
if not c0l:
    A(f"s_cmp_eq_u32 s{sCNT}, 0")
    A("s_cbranch_scc1 L_cfirst")
LBL("L_gs")
pend_gs = list(pending)
seq(GS, 0, reads(2, 1, 1, D3), False)
A(f"s_add_u32 s{sCNT}, s{sCNT}, 1")
A(f"s_cmp_lt_u32 s{sCNT}, 8")
seq(GS, 1, (reads(0, 0, 0, 2)[0], []) if P["dpp"] & 8 else reads(0, 0, 0, D2 if P["dpp"] & 4 else 0), True, delay=P["dly2"] + (2 if P["dpp"] & 8 else 0))
pend_loop = list(pending)
assert pend_loop == loop_entry
A("s_cbranch_scc1 L_cloop")
if not P["peel"]:
    A(f"s_cmp_eq_u32 s{sCNT}, 9")
    A("s_cbranch_scc1 L_cdone")
    cstamp(8)
    for k in (5, 6): A(f"v_mov_b32 v{k}, v{k-4}")
    if pend_loop != pend_gs: A("s_waitcnt lgkmcnt(0)")
    A("s_branch L_gs")
else:
    A("s_branch L_cdone")
LBL("L_cfirst")
if c0l:
    for k, t in enumerate(c0l[1:]):
        A(t)
        if k % 2 == 0: A(f"ds_write_b128 v{vCL}, v[{CV[k//2]}:{CV[k//2]+3}] offset:{(k//2)*XB}")
elif P["cv"]:
    for j in range(4): A(f"ds_write_b128 v{vCL}, v[{CV[j]}:{CV[j]+3}] offset:{j*XB}")
if not P["pubst"]: stamp(3)
for k in (1, 2):
    A(f"v_add_u32 v{k}, {2*SLOT}, v{k}")
    A(f"v_subrev_u32 v{k+2}, {SLOT}, v{k+2}")
    A(f"v_subrev_u32 v{k+4}, {SLOT}, v{k+4}")
A(f"v_add_u32 v{vW3}, {tile(0,3)}, v2")
A(f"s_mov_b32 s{sCNT}, 1")
if P["sst0"]: A("s_waitcnt lgkmcnt(0)"); A("s_memtime s[94:95]")
if not c0l and (pend_loop != pend_gs or P["cv"]): A("s_waitcnt lgkmcnt(0)")
assert pend_gs[:len(pend_loop)] == pend_loop
A("s_branch L_cloop")

cur[0] = "cepi"
LBL("L_cdone")
def yreg(idx): return ((SETS[0] if P["pp"] else G11) if idx % 2 == 0 else GS) + 4 * (idx // 2)
S1, S2 = 16, 20
dppl = [f"v_mov_b32_dpp v{T+i}, v{G00+i} row_shl:1 row_mask:0xf bank_mask:0xf bound_ctrl:0" for i in range(4)]
if P["peel"]:
    cstamp(8)
    pending = pend_loop
    CM("last stage, with the G00/G11 part of the output transform in its shadow: G11 <- y0, G00[j] <- G11[j] + G00[j+1]")
    exA = {20 + i: [dppl[i]] for i in range(4)}
    exA[19] = [f"v_mov_b32 v12, {MISC}", "ds_read_b64 v[238:239], v12"]
    Y0 = SETS[0]
    ex = []
    if P["pp"]:
        def op2(d, x, y):
            return [pks("add", d, x, y), pks("add", d+2, x+2, y+2)] if P["pp"] == 2 else [f"v_add_f32 v{d+i}, v{x+i}, v{y+i}" for i in range(4)]
        for j in range(8):
            ex += op2(Y0+4*j, G00+4*j, G11+4*j)
        for j in range(8):
            ex += op2(G11+4*j, G11+4*j, G00+4*(j+1) if j < 7 else T)
    if LATE:
        exA = {(k + 8 if k >= 20 else k): v for k, v in exA.items()}
        for k, t in enumerate(LATE): exA[20 + k] = [t]
    seq(GS, 0, reads(0, 1, 1, 0, True), False, extra=exA)
    pending = pending + [("N", 0)]
    nh = min(len(ex), P["ppn"])
    seq(GS, 1, ([], []), False, extra={1 + (k * 31) // max(nh, 1): [] for k in range(nh)} and
        {i: [ex[k] for k in range(nh) if 1 + (k * 31) // nh == i] for i in range(32)} if nh else None)
    if P["pp"] == 1 and nh % 4 == 0 and nh >= 32:
        for j in range((nh - 32) // 4, 8):
            for h in (0, 2): pk("add", G11+4*j+h, G11+4*j+h, (G00+4*(j+1) if j < 7 else T) + h)
    else:
        for t in ex[nh:]: A(t)
    A("s_nop 7")
else:
    A(f"v_mov_b32 v12, {MISC}")
    A("ds_read_b64 v[238:239], v12")
    for t in dppl: A(t)
    A("s_nop 2")
cstamp(9)
stamp(2)
if plain: A("s_memtime s[94:95]")
if P["prio"]: A("s_setprio 0")
for j in range(8):
    for h in (0, 2):
        pk("add", GS+4*j+h, GS+4*j+h, G11+4*j+h, neg=not P["dif"])
for j in range(8):
    for h in (0, 2):
        if P["pp"]: continue
        nx = G00+4*(j+1)+h if j < 7 else T+h
        pk("add", GS+4*j+h, GS+4*j+h, nx, neg=not P["dif"])
        pk("add", G11+4*j+h, G11+4*j+h, G00+4*j+h)
for h in (0, 2):
    pk("add", S1+h, yreg(0)+h, yreg(1)+h)
    pk("mul", S2+h, yreg(0)+h, yreg(0)+h)
for idx in range(1, 16):
    if idx == 3: A(f"s_mov_b64 exec, s[{sMID}:{sMID+1}]")
    if idx == 10:
        A("s_mov_b32 exec_lo, 0x7fff7fff")
        A("s_mov_b32 exec_hi, 0x7fff7fff")
    for h in (0, 2):
        if idx > 1: pk("add", S1+h, S1+h, yreg(idx)+h)
        pk("fma", S2+h, yreg(idx)+h, yreg(idx)+h, c=S2+h)
A("s_mov_b64 exec, -1")
A("s_nop 1")
def dadd(d, s, ctl, bm="0xf"): A(f"v_add_f32_dpp v{d}, v{s}, v{s} {ctl} row_mask:0xf bank_mask:{bm}")
if P["red"]:
    CM("reduce-scatter over the 16 lanes of a row: banks (r>>2) end up with channel r>>2")
    for b in (S1, S2):
        dadd(b+8, b, "row_ror:8"); dadd(b+9, b+1, "row_ror:8")
    for b in (S1, S2):
        dadd(b+8, b+2, "row_ror:8", "0xc"); dadd(b+9, b+3, "row_ror:8", "0xc")
    A("s_nop 0")
    dadd(236, S1+8, "row_half_mirror"); dadd(237, S2+8, "row_half_mirror")
    A("s_nop 0")
    dadd(236, S1+9, "row_half_mirror", "0xa"); dadd(237, S2+9, "row_half_mirror", "0xa")
    A("s_nop 0")
    dadd(236, 236, "quad_perm:[1,0,3,2]"); dadd(237, 237, "quad_perm:[1,0,3,2]")
    A("s_nop 0")
    dadd(236, 236, "quad_perm:[2,3,0,1]"); dadd(237, 237, "quad_perm:[2,3,0,1]")
    A("s_mov_b32 exec_lo, 0x11111111")
    A("s_mov_b32 exec_hi, 0x11111111")
else:
    for sh in (8, 4, 2, 1):
        for i in range(8): dadd(16+i, 16+i, f"row_ror:{sh}")
    A("v_mov_b32 v236, v16")
    A("v_mov_b32 v237, v20")
    for i in (1, 2, 3):
        mk = (1 << i) * 0x00010001
        A(f"s_mov_b32 exec_lo, {mk:#x}")
        A(f"s_mov_b32 exec_hi, {mk:#x}")
        A(f"v_mov_b32 v236, v{16+i}")
        A(f"v_mov_b32 v237, v{20+i}")
    A("s_mov_b32 exec_lo, 0x000f000f")
    A("s_mov_b32 exec_hi, 0x000f000f")
A("s_waitcnt lgkmcnt(0)")
A(f"buffer_store_dwordx4 v[236:239], v{vGA}, s[{sWS}:{sWS+3}], s{sGR} offen " + ("sc1" if P["pfl"] & 2 else "sc0 sc1"))
A("s_mov_b64 exec, -1")
if P["pubst"]: stamp(3)
if P["mg"]: A("s_barrier")
for idx in range(16):
    A(f"ds_write_b128 v{vYW + ((idx // 2) & 1)}, v[{yreg(idx)}:{yreg(idx)+3}] offset:{idx*256}")
if not P["mg"]:
    A("s_waitcnt lgkmcnt(0)")
    A("s_barrier")
    y_reads()
A("s_branch L_final")
if P["spoll"]: SEC["cepi"] += tail_cepi

ALG = "" if not P["algn"] else f".p2align 12\n.fill {(4096 - 0x300 + (P['algn'] - 1) * 256) // 4}, 4, 0xbf810000\n"
out = [f"""; conv stem (K=15, stride 2) as a 2-parallel fast-FIR GEMM + per-channel GroupNorm + tanh GELU, one launch.
; The bias is constant over time per channel, so it cancels exactly in (y - mean_t y).
;   y[2m] = G00[m] + G11[m],  y[2m+1] = Gs[m] + G11[m] + G00[m+1]      (23 instead of 30 tap products per output pair)
; @launch grid=(256,1,1) block=(512,1,1) lds={LDS_BYTES}
.amdgcn_target "amdgcn-amd-amdhsa--gfx950"
.text
.globl {KN}
{ALG}.p2align 8
.type {KN},@function
{KN}:"""]
wk = 0
for sec in ("entry", "cp0", "lpro", "cpro", "cloop", "lloop", "cepi", "llast", "final"):
    if P["warm"] and sec in ("cloop", "lloop", "cepi", "llast"):
        out += [f"L_warm{wk}:", f"  s_branch L_warm{wk+1}"]; wk += 1
    if sec in ("cloop", "lloop"): out.append(".p2align 6")
    out += SEC[sec]
if P["warm"]: out += [f"L_warm{wk}:", "  s_branch L_warmret"]
out.append(f""".p2align 8
.fill 1024, 4, 0xbf810000
.section .rodata,"a"
.p2align 6
.amdhsa_kernel {KN}
  .amdhsa_next_free_vgpr 256
  .amdhsa_next_free_sgpr 102
  .amdhsa_accum_offset 256
  .amdhsa_group_segment_fixed_size 0
  .amdhsa_kernarg_size 64
  .amdhsa_user_sgpr_count 2
  .amdhsa_user_sgpr_kernarg_segment_ptr 1
  .amdhsa_system_sgpr_workgroup_id_x 1
.end_amdhsa_kernel""")
print("\n".join(out))
```

```python
import sys, struct, math
P = dict(prio=2, lprio=0, dsprio=3, stamps=0, novalu=0, nodma=0, nords=0, barslot=1, rd_gap=5, rdA=19, dly0=13, dly2=13,
         touch=1, lst=-1, cst=0, pst=0, sst=-1, vsplit=2, wsplit=2, cpf=1, stf=2, dbgt=0, dpp=9, u3=1, red=1, wend=0, wend2=0, u0first=0, warm=0, pq=0, xnt=0, tnt=0, wnt=0, pnt=0, vpk=0, pubst=0, x1st=1, algn=0, fresh=1, burst1=0, early2=0, w8=1, cv=0, sst0=0, c0t=1, ct="", ctpos=1, dif=1, wq=0, sk="", lk="", pdel=0, cfirst=0, mg=0, psl=0, pfl=0, kmap=1, nochk=0, v1=2, g5=1, spoll=0, lateack=1, peel=1, pp=1, ppn=48,
         pro="D0:0:4.D1:0:4.D0.N.D1.S.B.U.V02.D2:0:8.B.F.V24.D2.D3.B.G.w.r.C.D4.T2ab.T3ab.B")
for a in sys.argv[1:]:
    k, v = a.split("=")
    P[k] = v if k in ("pro", "ct", "sk", "lk") else int(v)

KN = "standalone__self_sup_conv_stem_hubert__speech_kernel"
XB = 1056
XSZ = 16 * XB + 128
WOFF = XSZ
SLOT = WOFF + 32768
SPARE = 3 * SLOT
MISC = SPARE + 8192
LDS_BYTES = MISC + 1024
X_BYTES = 2 * 16000 * 256 * 2
W_BYTES = 15 * 256 * 256 * 2
FL_OFF, WP_OFF, WS_BYTES = 0x40000, 0x80000, 0x180000
OOB = 0x40000000
SPIN = 0x4000
def tile(hh, s): return (hh * 3 + s if s < 3 else 6 + hh) * 4096

SEC = {k: [] for k in ("cp0", "entry", "lpro", "lloop", "llast", "final", "cpro", "cloop", "cepi")}
cur = ["entry"]
def A(s): SEC[cur[0]].append("  " + s)
def LBL(s): SEC[cur[0]].append(s + ":")
def CM(s): SEC[cur[0]].append("  ; " + s)
def f32(x): return "0x%08x" % struct.unpack("<I", struct.pack("<f", x))[0]

sX, sW, sO, sWS, sDBG, sGA, sBE = 4, 8, 12, 16, 20, 24, 28
sWAVE, sT, sNT, sB = 46, 47, 48, 49
sWN, sXO, sWO, sPO, sTMP, sCNT, sMASK16 = 50, 51, 52, 53, 55, 56, 57
sTA = 58
sD, sXB = 60, 61
sN0, sN1 = 62, 63
sMID = 64
sGR, sFO = 66, 67
sK = 68
sM0, sMX = 73, 74
sXW = 75
sST = 76

def srd(d, lo, nbytes):
    A(f"s_mov_b32 s{d}, s{lo}")
    A(f"s_and_b32 s{d+1}, s{lo+1}, 0xffff")
    A(f"s_mov_b32 s{d+2}, {nbytes}")
    A(f"s_mov_b32 s{d+3}, 0x20000")
def out_srd():
    A(f"s_mul_i32 s{sTMP}, s{sB}, {7993*512}")
    A(f"s_mul_i32 s{sCNT}, s{sT}, {250*512}")
    A(f"s_add_u32 s{sTMP}, s{sTMP}, s{sCNT}")
    A(f"s_add_u32 s{sO}, s40, s{sTMP}")
    A(f"s_addc_u32 s{sO+1}, s41, 0")
    A(f"s_and_b32 s{sO+1}, s{sO+1}, 0xffff")
    A(f"s_cmp_eq_u32 s{sT}, 31")
    A(f"s_mov_b32 s{sO+2}, {243*512}")
    A(f"s_cselect_b32 s{sO+2}, s{sO+2}, {250*512}")
    A(f"s_mov_b32 s{sO+3}, 0x20000")
def granule_off():
    A(f"s_lshl_b32 s{sGR}, s{sB}, 2")
    A(f"s_add_u32 s{sGR}, s{sGR}, s{sNT}")
    A(f"s_lshl_b32 s{sGR}, s{sGR}, 15")
    A(f"s_lshl_b32 s{sTMP}, s{sWAVE}, 8")
    A(f"s_add_u32 s{sGR}, s{sGR}, s{sTMP}")
plain = P["stamps"] and P["lst"] < 0 and not P["cst"] and P["sst"] < 0
def stamp(k):
    if not plain: return
    if P["pst"] and k > 0 and cur[0] not in ("cpro", "cloop", "cepi"): return
    A(f"s_memrealtime s[{sST+2*k}:{sST+2*k+1}]")
def pstamp(k):
    if P["pst"] == 1: A(f"s_memrealtime s[{sST+2*k}:{sST+2*k+1}]")
def addbf_list(d, a, b, t, force=False):
    r = []
    if P["novalu"] and not force: return r
    for i0 in (0, 2):
        if P["vpk"]:
            for i in (i0, i0 + 1):
                u = t + 4 * (i - i0)
                r += [f"v_lshlrev_b32 v{u}, 16, v{a+i}", f"v_and_b32 v{u+1}, s{sMASK16}, v{a+i}",
                      f"v_lshlrev_b32 v{u+2}, 16, v{b+i}", f"v_and_b32 v{u+3}, s{sMASK16}, v{b+i}"]
            for i in (i0, i0 + 1):
                u = t + 4 * (i - i0)
                r += [f"v_pk_add_f32 v[{u}:{u+1}], v[{u}:{u+1}], v[{u+2}:{u+3}]"]
            for i in (i0, i0 + 1):
                u = t + 4 * (i - i0)
                r += [f"v_cvt_pk_bf16_f32 v{d+i}, v{u}, v{u+1}"]
            continue
        for i in (i0, i0 + 1):
            u = t + 4 * (i - i0)
            r += [f"v_lshlrev_b32 v{u}, 16, v{a+i}", f"v_lshlrev_b32 v{u+1}, 16, v{b+i}",
                  f"v_and_b32 v{u+2}, s{sMASK16}, v{a+i}", f"v_and_b32 v{u+3}, s{sMASK16}, v{b+i}"]
        for i in (i0, i0 + 1):
            u = t + 4 * (i - i0)
            op = "v_sub_f32" if P["dif"] else "v_add_f32"
            r += [f"{op} v{u}, v{u}, v{u+1}", f"{op} v{u+2}, v{u+2}, v{u+3}"]
        for i in (i0, i0 + 1):
            u = t + 4 * (i - i0)
            r += [f"v_cvt_pk_bf16_f32 v{d+i}, v{u}, v{u+2}"]
    return r
def pks(op, d, a, b, neg=False, c=None):
    s = f"v_pk_{op}_f32 v[{d}:{d+1}], v[{a}:{a+1}], v[{b}:{b+1}]"
    if c is not None: s += f", v[{c}:{c+1}]"
    if neg: s += " neg_lo:[0,1] neg_hi:[0,1]"
    return s
def pk(*a, **k): A(pks(*a, **k))
def final_addr(base):
    b = base
    A(f"v_lshrrev_b32 v{b+4}, 3, v0")
    A(f"v_and_b32 v{b+6}, 7, v0")
    A(f"s_lshl_b32 s{sTMP}, s{sWAVE}, 5")
    A(f"v_add_u32 v{b+4}, s{sTMP}, v{b+4}")
    A(f"v_bfe_u32 v{b}, v0, 4, 1")
    A(f"v_lshl_or_b32 v{b}, v{b}, 3, v{b+6}")
    A(f"s_lshl_b32 s{sTMP}, s{sWAVE}, 1")
    A(f"s_and_b32 s{sTMP}, s{sTMP}, 7")
    A(f"v_xor_b32 v{b}, s{sTMP}, v{b}")
    A(f"v_lshlrev_b32 v{b}, 4, v{b}")
    A(f"v_lshl_add_u32 v{b}, v{b+4}, 8, v{b}")
    A(f"v_xor_b32 v{b+1}, 0x80, v{b}")
    A(f"v_xor_b32 v{b+2}, 0x10, v{b}")
    A(f"v_xor_b32 v{b+3}, 0x90, v{b}")
    A(f"v_lshlrev_b32 v{b+4}, 9, v{b+4}")
    A(f"v_lshl_add_u32 v{b+4}, v{b+6}, 4, v{b+4}")
    A(f"s_lshl_b32 s{sTMP}, s{sNT}, 7")
    A(f"v_add_u32 v{b+4}, s{sTMP}, v{b+4}")
    A(f"v_add_u32 v{b+5}, 0x2000, v{b+4}")
    A(f"v_lshlrev_b32 v{b+6}, 5, v{b+6}")
    A(f"v_add_u32 v{b+6}, {MISC+64}, v{b+6}")
FA = 244
Y = 112
def y_reads():
    for n in range(4):
        for h in range(2):
            A(f"ds_read_b128 v[{Y+8*n+4*h}:{Y+8*n+4*h+3}], v{FA + h + 2*(n >> 1)} offset:{n*2048}")

def krow(d, t):
    if not P["kmap"]:
        A(f"s_mov_b32 s{d}, s2"); return
    A(f"s_bfe_u32 s{d}, s2, 0x20001")
    A(f"s_lshl_b32 s{d}, s{d}, 5")
    A(f"s_lshr_b32 s{t}, s2, 3")
    A(f"s_add_u32 s{d}, s{d}, s{t}")
    A(f"s_lshl_b32 s{d}, s{d}, 1")
    A(f"s_and_b32 s{t}, s2, 1")
    A(f"s_add_u32 s{d}, s{d}, s{t}")
def sm_base():
    A(f"s_mul_i32 s96, s{sB}, {16000*512}")
    A(f"s_mul_i32 s97, s{sT}, {500*512}")
    A(f"s_add_u32 s96, s96, s97")
    A(f"s_lshl_b32 s97, s{sNT}, 16")
    A(f"s_add_u32 s96, s96, s97")
    A(f"s_lshl_b32 s97, s{sWAVE}, 14")
    A(f"s_add_u32 s96, s96, s97")
    A(f"s_min_u32 s96, s96, {X_BYTES - 16384}")
    A(f"s_add_u32 s96, s96, s32")
    A(f"s_addc_u32 s97, s33, 0")
def sm_list(spec):
    r = []
    for t in spec.split("+"):
        c = int(t[0])
        for h in t[1:]:
            r += [(c >> 1)*128 + (c & 1)*512 + (2*i + (h == "b"))*1024 + 60 for i in range(8)]
    return r
sm_n = [0]
def sm_emit(offs):
    for o in offs:
        A(f"s_load_dwordx2 s[{98 + 2*(sm_n[0] % 2)}:{99 + 2*(sm_n[0] % 2)}], s[96:97], {o}"); sm_n[0] += 1
stamp(0)
A("s_load_dwordx4 s[32:35], s[0:1], 0")
A("s_load_dwordx4 s[40:43], s[0:1], 40")
A("s_load_dwordx2 s[44:45], s[0:1], 56")
A("s_load_dwordx4 s[36:39], s[0:1], 24")
A("s_cmp_ge_u32 s2, 256")
A("s_cbranch_scc1 L_end")
A(f"v_readfirstlane_b32 s{sWAVE}, v0")
A("v_and_b32 v0, 63, v0")
A(f"s_and_b32 s{sT}, s2, 7")
A(f"s_lshl_b32 s{sT}, s{sT}, 3")
A(f"s_lshr_b32 s{sTMP}, s2, 5")
A(f"s_add_u32 s{sT}, s{sT}, s{sTMP}")
A(f"s_bfe_u32 s{sNT}, s2, 0x20003")
A(f"s_lshr_b32 s{sB}, s{sT}, 5")
A(f"s_and_b32 s{sT}, s{sT}, 31")
A(f"s_mov_b32 s{sMASK16}, 0xffff0000")
A(f"s_cmp_lt_u32 s{sWAVE}, 256")
A("s_cbranch_scc0 L_loader" if P["cfirst"] else "s_cbranch_scc1 L_compute")

cur[0] = "lpro"
LBL("L_loader")
vXG, vWG, vLIN, vLIN2, vU0, vFL, vZ, vTC = 1, 3, 4, 5, 6, 8, 9, 15
U0, U1, TT, FLG, NON, JUNK, GAM, VV = 16, 32, 48, 56, 64, 66, 68, 80
sTS, sTB = 24, 68
A(f"s_bfe_u32 s{sWAVE}, s{sWAVE}, 0x20006")
if P["fresh"]: A("s_memrealtime s[70:71]")
A(f"s_mul_i32 s{sXB}, s{sB}, {16000*512}")
A(f"s_mul_i32 s{sTMP}, s{sT}, {500*512}")
A(f"s_add_u32 s{sXB}, s{sXB}, s{sTMP}")
A("v_lshrrev_b32 v10, 3, v0")
A("v_and_b32 v11, 7, v0")
A("v_lshlrev_b32 v12, 4, v11")
A(f"v_lshl_add_u32 v{vXG}, v10, 11, v12")
A(f"s_lshl_b32 s{sXW}, s{sWAVE}, 16")
A(f"s_add_u32 s{sXO}, s{sXB}, s{sXW}")
A(f"s_mul_i32 s{sMX}, s{sWAVE}, {4*XB}")
A("v_bfe_u32 v13, v0, 4, 1")
A(f"s_and_b32 s{sTMP}, s{sWAVE}, 1")
A(f"s_lshl_b32 s{sTMP}, s{sTMP}, 1")
A(f"v_or_b32 v13, s{sTMP}, v13")
A("v_lshlrev_b32 v13, 5, v13")
A("v_xor_b32 v13, v13, v12")
A("v_lshl_add_u32 v13, v10, 9, v13")
A(f"s_lshl_b32 s{sTMP}, s{sNT}, 7")
A(f"s_lshl_b32 s{sM0}, s{sWAVE}, 12")
A(f"s_add_u32 s{sTMP}, s{sTMP}, s{sM0}")
A(f"v_add_u32 v{vWG}, s{sTMP}, v13")
A(f"s_lshl_b32 s{sM0}, s{sWAVE}, 10")
A(f"s_mov_b32 s{sWO}, 0")
A(f"v_mov_b32 v{vZ}, 0")
A(f"s_lshl_b32 s{sTMP}, s{sWAVE}, 4")
A(f"s_lshl_b32 s{sCNT}, s{sNT}, 6")
A(f"s_add_u32 s{sTMP}, s{sTMP}, s{sCNT}")
A(f"v_add_u32 v14, s{sTMP}, v0")
A(f"v_lshlrev_b32 v{vTC}, 10, v14")
A("s_waitcnt lgkmcnt(0)")
pstamp(1)
srd(sX, 32, X_BYTES)
srd(sW, 34, W_BYTES)
LK = sm_list(P["lk"]) if P["lk"] else []

TAPS = {("G00", 0): [0, 4, 8, 12], ("G11", 0): [2, 6, 10, 14], ("G00", 1): [1, 5, 9, 13], ("G11", 1): [3, 7, 11]}
def dw(lds, so, tap, hh):
    return [f"s_add_u32 m0, s{sM0}, {lds}",
            f"s_add_u32 s{sTMP}, s{so}, {tap*131072 + hh*16384}",
            f"buffer_load_dwordx4 v{vWG}, s[{sW}:{sW+3}], s{sTMP} offen" + (" nt" if (P["wnt"] == 2 or (P["wnt"] == 1 and cur[0] == "lpro")) else "") + " lds"]
def dma_w(slot, taps, ss=(0, 1, 2, 3), so=None):
    return [dw(slot*SLOT + WOFF + tile(hh, s), so or sWO, taps[s], hh) for hh in (0, 1) for s in ss if s < len(taps)]
def dma_wp(par, slot, spare0=False):
    r = []
    for hh in (0, 1):
        for s in range(4):
            dst = SPARE if (spare0 and hh == 0 and s == 3) else slot*SLOT + WOFF + tile(hh, s)
            r.append([f"s_add_u32 m0, s{sM0}, {dst}",
                      f"s_add_u32 s{sTMP}, s{sPO}, {WP_OFF + (par*4+s)*131072 + hh*16384}",
                      f"buffer_load_dwordx4 v{vWG}, s[{sWS}:{sWS+3}], s{sTMP} offen sc1 lds"])
    return r
def dma_x(slot, phi):
    nt_ = " nt" if (P["xnt"] == 2 or (P["xnt"] == 1 and cur[0] == "lpro")) else ""
    return [[f"s_add_u32 m0, s{sMX}, {slot*SLOT + j*XB}",
             f"s_add_u32 s{sTMP}, s{sXO}, {j*16384 + phi*512}",
             f"buffer_load_dwordx4 v{vXG}, s[{sX}:{sX+3}], s{sTMP} offen{nt_} lds"] for j in range(4)]
tl_n = [0]
def tail_g(slot, phi):
    k = tl_n[0]; tl_n[0] += 1
    return [f"s_cmp_lg_u32 s{sWAVE}, 0", f"s_cbranch_scc1 L_nt{k}",
            f"s_mov_b32 m0, {slot*SLOT + 16*XB}",
            f"s_add_u32 s{sTMP}, s{sXO}, {(512 + phi)*512}",
            "s_mov_b64 exec, 0xff",
            f"buffer_load_dwordx4 v{vXG}, s[{sX}:{sX+3}], s{sTMP} offen lds",
            "s_mov_b64 exec, -1", f"L_nt{k}:"]
def touch_g(dd, par, half="ab", const=False):
    if const:
        r = [f"s_add_u32 s{sTMP}, s{sXB}, {dd*128 + par*512}"]
    else:
        r = [f"s_cmp_lt_u32 s{sD}, {4 - dd}", f"s_cselect_b32 s{sCNT}, s{sXB}, {OOB}",
             f"s_lshl_b32 s{sTMP}, s{sD}, 7", f"s_add_u32 s{sTMP}, s{sTMP}, s{sCNT}", f"s_add_u32 s{sTMP}, s{sTMP}, {dd*128 + par*512}"]
    r.append(f"s_mov_b64 exec, {dict(ab=0xffff, a=0x5555, b=0xaaaa)[half]:#x}")
    r += [f"buffer_load_dword v{JUNK}, v{vTC}, s[{sX}:{sX+3}], s{sTMP} offen" + (" nt" if P["tnt"] else ""), "s_mov_b64 exec, -1"]
    return r
def emit_groups(gs):
    if P["nodma"]: return
    for g in gs:
        for s in g: A(s)
def mix(valu, gs):
    if P["nodma"]: gs = []
    n = len(gs)
    if not valu:
        emit_groups(gs); return
    pos = [(k * len(valu)) // n for k in range(n)] if n else []
    gi = 0
    for i, v in enumerate(valu):
        while gi < n and pos[gi] == i:
            for s in gs[gi]: A(s)
            gi += 1
        A(v)
def rd_u0(): return [f"ds_read_b128 v[{U0+4*j}:{U0+4*j+3}], v{vU0} offset:{j*XB}" for j in range(4)]
def rd_u1(lin, off): return [f"ds_read_b128 v[{U1+4*j}:{U1+4*j+3}], v{lin} offset:{off + j*XB}" for j in range(4)]
def wr_v(lin, off): return [f"ds_write_b128 v{lin}, v[{VV+4*j}:{VV+4*j+3}] offset:{off + j*XB}" for j in range(4)]
def vadd(js):
    r = []
    for j in js: r += addbf_list(VV+4*j, U1+4*j, U0+4*j, TT)
    return r
def hi(lst):
    if P["dsprio"]: A(f"s_setprio {P['dsprio']}")
    for d in lst: A(d)
    if P["dsprio"]: A(f"s_setprio {P['lprio']}")
def lsetup():
    A("v_lshlrev_b32 v13, 4, v0")
    A(f"v_add_u32 v{vLIN}, s{sMX}, v13")
    A(f"v_add_u32 v{vLIN2}, {2*SLOT}, v{vLIN}")
    A("v_cmp_eq_u32 vcc, 7, v10")
    A(f"v_add_u32 v{vU0}, 128, v{vLIN}")
    A(f"v_add_u32 v12, 160, v{vLIN}")
    A(f"v_cndmask_b32 v{vU0}, v{vU0}, v12, vcc")
    A(f"v_lshlrev_b32 v{vFL}, 3, v0")
    srd(sWS, 44, WS_BYTES)
    out_srd()
    granule_off()
    A(f"s_mov_b32 s{sWN}, 32768")
    A(f"s_mov_b32 s{sD}, 0")
    A(f"s_mov_b32 s{sPO}, 0")
    A(f"s_lshl_b32 s{sFO}, s{sWAVE}, 9")
    A(f"s_add_u32 s{sFO}, s{sFO}, {FL_OFF}")
    if P["lprio"]: A(f"s_setprio {P['lprio']}")
STG = {0: None, 1: None, 2: None, 3: None, 4: None}
w_ = dma_w(0, TAPS[("G00", 0)]); x_ = dma_x(0, 0)
STG[0] = [tail_g(0, 0) + x_[0]] + x_[1:2] + w_[:4] + x_[2:] + w_[4:]
if P["x1st"]: STG[0] = [tail_g(0, 0) + x_[0]] + x_[1:] + w_
STG[1] = dma_x(1, 2) + dma_w(1, TAPS[("G11", 0)])
x_ = dma_x(2, 1)
STG[2] = [tail_g(2, 1) + x_[0]] + x_[1:] + dma_w(2, TAPS[("G00", 1)])
STG[3] = dma_x(0, 3) + dma_w(0, TAPS[("G11", 1)]) + dma_w(0, TAPS[("G11", 0)], ss=(3,), so=sWN)
STG[4] = dma_wp(0, 1) + [dw(SPARE + hh*4096, sWN, TAPS[("G00", 0)][3], hh) for hh in (0, 1)]
issued = []; period = 0; seen = {k: 0 for k in STG}; mixv = []; pendg = []
def flush():
    global mixv, pendg
    mix(mixv, [g for _, g in pendg])
    if not P["nodma"]: issued.extend(k for k, _ in pendg)
    mixv = []; pendg = []
def wait_for(keys, extra=""):
    flush()
    last = max(i for i, k in enumerate(issued) if k in keys)
    A(f"s_waitcnt vmcnt({len(issued) - 1 - last}){extra}")
def flag_load(so): A(f"buffer_load_dwordx2 v[{FLG}:{FLG+1}], v{vFL}, s[{sWS}:{sWS+3}], {so} offen sc0 sc1")
def check_flags(name, so):
    A(f"s_mov_b32 s{sCNT}, {SPIN}")
    LBL(name)
    A(f"v_cmp_eq_u64 vcc, s[{sN0}:{sN1}], v[{FLG}:{FLG+1}]")
    A("s_cmp_eq_u64 vcc, -1")
    A(f"s_cbranch_scc1 {name}_ok")
    A(f"s_sub_u32 s{sCNT}, s{sCNT}, 1")
    A(f"s_cbranch_scc1 {name}_ok")
    flag_load(so)
    A("s_waitcnt vmcnt(0)")
    A(f"s_branch {name}")
    LBL(name + "_ok")
def nonce_load(): A(f"buffer_load_dwordx2 v[{NON}:{NON+1}], v{vZ}, s[{sDBG}:{sDBG+3}], 0 offen sc0 sc1")
if P["nodma"]: issued.extend([0, 1, 2, 3, 4])
for tok in P["pro"].split("."):
    if tok[0] == "D":
        f = tok[1:].split(":"); st = int(f[0]); gs = STG[st]
        lo, hi_ = (int(f[1]), int(f[2])) if len(f) > 1 else (seen[st], len(gs))
        assert lo == seen[st]; seen[st] = min(hi_, len(gs))
        assert st < 3 or period >= st - 1
        pendg += [(st, g) for g in gs[lo:hi_]]
        continue
    if tok[0] == "T":
        c = int(tok[1])
        if P["touch"]: pendg.append(("t", touch_g(c >> 1, c & 1, tok[2:], True)))
        continue
    flush()
    if tok[0] == "S":
        pstamp(2); lsetup()
    elif tok[0] == "Z":
        k = int(tok[1]); A(f"s_memrealtime s[{sST+2*k}:{sST+2*k+1}]")
    elif tok[0] == "X":
        for j in range(4):
            A(f"s_add_u32 s{sTMP}, s{sXO}, {j*16384 + 2048}")
            A(f"buffer_load_dwordx4 v[{U0+4*j}:{U0+4*j+3}], v{vXG}, s[{sX}:{sX+3}], s{sTMP} offen")
            A(f"s_add_u32 s{sTMP}, s{sXO}, {j*16384 + 1024}")
            A(f"buffer_load_dwordx4 v[{U1+4*j}:{U1+4*j+3}], v{vXG}, s[{sX}:{sX+3}], s{sTMP} offen")
            issued.extend(["x", "x"])
    elif tok[0] == "Y":
        wait_for(["x"])
    elif tok[0] == "K":
        n = int(tok[1:])
        if sm_n[0] == 0: sm_base()
        sm_emit(LK[:n]); del LK[:n]
    elif tok[0] == "N":
        srd(sDBG, 42, 256); nonce_load(); issued.append("n")
    elif tok[0] == "U":
        k4 = [i for i, k in enumerate(issued) if k == 1][3] if not P["nodma"] else len(issued) - 1
        A(f"s_waitcnt vmcnt({len(issued) - 1 - k4})")
        hi(rd_u1(vLIN, SLOT))
        A("s_waitcnt lgkmcnt(0)")
    elif tok[0] == "V":
        mixv = vadd(range(int(tok[1]), int(tok[2])))
    elif tok[0] == "F":
        assert period == (2 if P["lateack"] else 1)
        wait_for(["n"])
        A(f"s_mov_b32 s{sCNT}, {SPIN}")
        LBL("L_cn")
        A(f"v_readfirstlane_b32 s{sN0}, v{NON}")
        A(f"v_readfirstlane_b32 s{sN1}, v{NON+1}")
        if P["fresh"]:
            CM("a tag much older than this wave is re-read a few times (only matters if d_debug was not cleared)")
            A(f"s_sub_u32 s{sTMP}, s70, s{sN0}")
            A(f"s_cmp_lt_i32 s{sTMP}, 1000")
            A(f"s_cselect_b32 s{sTMP}, s{sN0}, 0")
            A(f"s_cmp_lt_u32 s{sCNT}, {SPIN - 256}")
            A(f"s_cselect_b32 s{sTMP}, s{sN0}, s{sTMP}")
            A(f"s_cmp_lg_u32 s{sTMP}, 0")
        else:
            A(f"s_cmp_lg_u32 s{sN0}, 0")
        A("s_cbranch_scc1 L_cn_ok")
        A(f"s_sub_u32 s{sCNT}, s{sCNT}, 1")
        A("s_cbranch_scc1 L_cn_ok")
        nonce_load()
        A("s_waitcnt vmcnt(0)")
        A("s_branch L_cn")
        LBL("L_cn_ok")
        krow(sTMP, sCNT)
        A(f"s_lshl_b32 s{sTMP}, s{sTMP}, 3")
        A(f"s_add_u32 s{sTMP}, s{sTMP}, {FL_OFF}")
        A(f"s_cmp_eq_u32 s{sWAVE}, 0")
        A(f"s_cselect_b32 s{sTMP}, s{sTMP}, {OOB}")
        A("s_mov_b64 exec, 1")
        A(f"buffer_store_dwordx2 v[{NON}:{NON+1}], v{vZ}, s[{sWS}:{sWS+3}], s{sTMP} offen sc0 sc1")
        A(f"v_mov_b32 v12, {MISC}")
        A(f"ds_write_b64 v12, v[{NON}:{NON+1}]")
        A("s_mov_b64 exec, -1")
        issued.append("f")
        pstamp(7)
    elif tok[0] == "G":
        A(f"s_mov_b32 s{sTA}, {FL_OFF}"); flag_load(f"s{sTA}"); issued.append("g")
    elif tok[0] == "C":
        wait_for(["g"])
        A(f"s_mov_b32 s{sTA}, {FL_OFF}")
        check_flags("L_spin0", f"s{sTA}")
    elif tok[0] == "W":
        assert period == 3
        hi(wr_v(vLIN, SLOT)[:P["wsplit"]] + rd_u0())
    elif tok[0] == "w":
        assert period == 3
        for d in wr_v(vLIN, SLOT)[:P["wsplit"]]: A(d)
    elif tok[0] == "r":
        assert period == 3
        for d in rd_u0(): A(d)
    elif tok[0] == "B":
        assert seen[period] == len(STG[period])
        if period == 0: pstamp(3)
        wait_for([period], " lgkmcnt(0)" if period >= 2 else "")
        if period == 0: pstamp(4)
        if period == 1:
            if "U" not in P["pro"].split(".") and "X" not in P["pro"].split(".") and not P["cv"]:
                for d in rd_u1(vLIN, SLOT): A(d)
            A("s_waitcnt lgkmcnt(0)")
            A(f"v_add_u32 v{vU0}, {2*SLOT}, v{vU0}")
        if period == 3:
            assert seen[4] == 10
            A("s_branch L_join")
            break
        A("s_barrier")
        if period < 2: pstamp(5 + period)
        period += 1
        CM(f"P({period-1})")
        if period == 1: pend_u0 = "X" not in P["pro"].split(".") and not P["cv"]
    if tok[0] in "FB" and period == 1 and pend_u0 and (tok[0] == "F" or P["lateack"]):
        hi(rd_u0()); pend_u0 = False
n_after_wp = len(issued) - 1 - max(i for i, k in enumerate(issued) if k == 4) + 2

cur[0] = "lloop"
lb_n = [0]
def lbar():
    k = lb_n[0]; lb_n[0] += 1
    if P["lst"] >= 0:
        A(f"s_cmp_lg_u32 s{sD}, {P['lst'] + 1}")
        A(f"s_cbranch_scc1 L_nb{k}")
        A(f"s_memtime s[{76+4*k}:{77+4*k}]")
        A("s_barrier")
        A(f"s_memtime s[{78+4*k}:{79+4*k}]")
        A(f"s_branch L_nc{k}")
        LBL(f"L_nb{k}")
        A("s_barrier")
        LBL(f"L_nc{k}")
    else:
        A("s_barrier")
nt = 1 if P["touch"] else 0
assert P["nodma"] or n_after_wp >= (0 if P['early2'] else 2) + nt, n_after_wp
assert P["nochk"] or P["vsplit"] <= P["wsplit"] <= P["vsplit"] + P["v1"] <= 4
LBL("L_lloop")
for par in (1, 0):
    npar = 1 - par
    CM(f"P(3c-1) par={par}")
    if par == 1:
        A(f"s_cmp_eq_u32 s{sD}, 3")
        A("s_cbranch_scc1 L_last")
    WV = wr_v(vLIN, SLOT)
    def endw(lst):
        if P["wq"] & 4: hi(lst)
        else:
            for d in lst: A(d)
    if P["wq"] & 1: hi(WV[:1])
    elif not P["wend"]: hi(wr_v(vLIN, SLOT)[:P["wsplit"]])
    if P["u0first"]: hi(rd_u0())
    early = [dw((SPARE if par == 1 else 2*SLOT + WOFF + tile(0, 3)) + hh*4096, sWN if par else sWO, TAPS[("G00", npar)][3], hh) for hh in (0, 1)]
    if P["early2"]: early = []
    ne = len(early)
    mix(vadd(range(P["vsplit"] + P["v1"], 4)), dma_wp(npar, 1) + early)
    if not P["u0first"]:
        for d in rd_u0(): A(d)
    if nt: emit_groups([touch_g(1, par)])
    if P["wend"] == 1: hi(wr_v(vLIN, SLOT)[:P["wsplit"]])
    if P["wend"] == 2:
        for d in wr_v(vLIN, SLOT)[:P["wsplit"]]: A(d)
    if P["wq"] & 1: endw(WV[1:2])
    A(f"s_waitcnt vmcnt({8 + ne + nt})")
    if par == 1: LBL("L_join")
    for d in rd_u1(vLIN, 0): A(d)
    A(f"s_mov_b32 s{sPO}, s{sWO}")
    if par == 1:
        A(f"s_add_u32 s{sD}, s{sD}, 1")
        A(f"s_mov_b32 s{sWO}, s{sWN}")
        A(f"s_add_u32 s{sWN}, s{sWN}, 32768")
        A(f"s_cmp_eq_u32 s{sD}, 3")
        A(f"s_cselect_b32 s{sWN}, {OOB}, s{sWN}")
        A(f"s_add_u32 s{sXO}, s{sXO}, 128")
    A("s_waitcnt lgkmcnt(0)")
    lbar()
    CM(f"P(3c) par={par}")
    if P["cv"] and par == 1:
        A(f"s_cmp_eq_u32 s{sD}, 1")
        A("s_cbranch_scc1 L_nolw")
    if P["wq"] & 2: hi(WV[2:3])
    elif not P["wend2"]: hi(wr_v(vLIN, SLOT)[P["wsplit"]:])
    if P["cv"] and par == 1: LBL("L_nolw")
    x_ = dma_x(2, npar)
    gs = [tail_g(2, npar) + x_[0]] + x_[1:] + dma_w(2, TAPS[("G00", npar)], ss=(0, 1, 2))
    mix(vadd(range(P["vsplit"])), gs)
    if P["wq"] & 2: endw(WV[3:4])
    if P["wend2"] == 1: hi(wr_v(vLIN, SLOT)[P["wsplit"]:])
    if P["wend2"] == 2:
        for d in wr_v(vLIN, SLOT)[P["wsplit"]:]: A(d)
    A(f"s_waitcnt vmcnt({10 + ne + nt}) lgkmcnt(0)")
    lbar()
    CM(f"P(3c+1) par={par}")
    gs = dma_x(0, 2 + npar) + dma_w(0, TAPS[("G11", npar)], ss=(0, 1, 2))
    if par == 0: gs += dma_w(0, TAPS[("G11", 0)], ss=(3,), so=sWN)
    if P["early2"]:
        gs += [dw((SPARE if par == 0 else 2*SLOT + WOFF + tile(0, 3)) + hh*4096, sWN if par == 0 else sWO, TAPS[("G00", par)][3], hh) for hh in (0, 1)]
    if par == 1:
        A(f"s_cmp_lg_u32 s{sD}, 1")
        A("s_cbranch_scc1 L_nf2")
        flag_load(f"s{sFO}")
        LBL("L_nf2")
    va = vadd(range(P["vsplit"], P["vsplit"] + P["v1"]))
    if P["burst1"]:
        k = len(va) * (P["burst1"] - 1) // 4
        mix(va[:k], gs)
        for t in va[k:]: A(t)
    else:
        mix(va, gs)
    A(f"s_waitcnt vmcnt({len(gs)})")
    if par == 1:
        A(f"s_cmp_lg_u32 s{sD}, 1")
        A("s_cbranch_scc1 L_spin1_ok")
        check_flags("L_spin1", f"s{sFO}")
    lbar()
A("s_branch L_lloop")

cur[0] = "llast"
LBL("L_last")
CM("P(20)")
hi(wr_v(vLIN, SLOT)[:P["wsplit"]])
mix(vadd(range(P["vsplit"] + P["v1"], 4)), dma_wp(0, 1))
for d in rd_u0(): A(d)
srd(sGA, 36, 512)
srd(sBE, 38, 512)
A("s_waitcnt vmcnt(8)")
for d in rd_u1(vLIN, 0): A(d)
A("s_waitcnt lgkmcnt(0)")
A("s_barrier")
CM("P(21)")
gs = dma_wp(1, 2, True)
hi(wr_v(vLIN, SLOT)[P["wsplit"]:])
mix(vadd(range(2)), gs[:5])
A("s_waitcnt lgkmcnt(0)")
mix(vadd(range(2, 3)), gs[5:])
A("s_waitcnt vmcnt(8)")
A("s_barrier")
CM("P(22)")
wv = wr_v(vLIN2, 0)
for t in vadd(range(3, 4)): A(t)
for d in wv: A(d)
A("v_and_b32 v10, 15, v0")
A(f"s_lshl_b32 s{sTMP}, s{sNT}, 2")
A(f"s_add_u32 s{sTMP}, s{sTMP}, s{sWAVE}")
A(f"s_lshl_b32 s{sTMP}, s{sTMP}, 5")
A("v_lshlrev_b32 v14, 1, v10")
A(f"buffer_load_ushort v{GAM}, v14, s[{sGA}:{sGA+3}], s{sTMP} offen")
A(f"buffer_load_ushort v{GAM+1}, v14, s[{sBE}:{sBE+3}], s{sTMP} offen")
A("s_waitcnt vmcnt(2) lgkmcnt(0)")
A("s_barrier")
A("v_lshrrev_b32 v11, 4, v0")
A("v_lshlrev_b32 v12, 4, v10")
A("v_lshl_add_u32 v12, v11, 10, v12")
A(f"s_lshl_b32 s{sTMP}, s{sWAVE}, 6")
A(f"s_add_u32 s{sTMP}, s{sTMP}, {MISC+64}")
A(f"v_lshl_add_u32 v10, v10, 2, s{sTMP}")
if P["lprio"]: A("s_setprio 0")
A(f"s_add_u32 s{sWAVE}, s{sWAVE}, 4")
final_addr(FA)
A("s_waitcnt vmcnt(0)")
A(f"v_lshlrev_b32 v{GAM}, 16, v{GAM}")
A(f"v_lshlrev_b32 v{GAM+1}, 16, v{GAM+1}")
k0 = -2.0 * math.sqrt(2.0 / math.pi) * math.log2(math.e)
k1 = k0 * 0.044715
gam3 = -((-k1) ** (1.0 / 3.0))
if P["g5"]:
    A(f"v_mul_f32 v{GAM}, {f32(gam3)}, v{GAM}")
    A(f"v_mul_f32 v{GAM+1}, {f32(gam3)}, v{GAM+1}")
if not P["peel"]: A("s_barrier")
A("s_barrier")
stamp(1)
PG = 16
A(f"s_mov_b32 s{sCNT}, {SPIN}")
if not P["mg"]: y_reads()
if P["spoll"]:
    for i in range(8):
        A(f"s_add_u32 s{84+i}, s{sGR}, {i*4096}")
    def pl(i): A(f"buffer_load_dwordx4 v[{PG+4*i}:{PG+4*i+3}], v12, s[{sWS}:{sWS+3}], s{84+i} offen sc0 sc1")
    for i in range(8): pl(i)
    for i in range(8):
        A(f"s_waitcnt vmcnt({7-i})")
        LBL(f"L_pc{i}")
        A(f"v_cmp_eq_u64 vcc, s[{sN0}:{sN1}], v[{PG+4*i+2}:{PG+4*i+3}]")
        A("s_cmp_eq_u64 vcc, -1")
        A(f"s_cbranch_scc0 L_pr{i}")
        LBL(f"L_pd{i}")
else:
    LBL("L_poll")
    for i in range(8):
        so = f"s{sGR}" if i == 0 else f"s{sTMP}"
        if i: A(f"s_add_u32 s{sTMP}, s{sGR}, {i*4096}")
        A(f"buffer_load_dwordx4 v[{PG+4*i}:{PG+4*i+3}], v12, s[{sWS}:{sWS+3}], {so} offen " + ("sc1" if P["pfl"] & 1 else "sc0 sc1"))
    A(f"s_mov_b64 s[{sTA}:{sTA+1}], -1")
    for i in range(8):
        A(f"s_waitcnt vmcnt({7-i})")
        A(f"v_cmp_eq_u64 vcc, s[{sN0}:{sN1}], v[{PG+4*i+2}:{PG+4*i+3}]")
        A(f"s_and_b64 s[{sTA}:{sTA+1}], s[{sTA}:{sTA+1}], vcc")
    A(f"s_sub_u32 s{sCNT}, s{sCNT}, 1")
    A("s_cbranch_scc1 L_poll_ok")
    A(f"s_cmp_eq_u64 s[{sTA}:{sTA+1}], -1")
    if P["psl"]:
        A("s_cbranch_scc1 L_poll_ok")
        A(f"s_sleep {P['psl']}")
        A("s_branch L_poll")
    else:
        A("s_cbranch_scc0 L_poll")
LBL("L_poll_ok")
stamp(2)
for st in (4, 2, 1):
    for i in range(st):
        pk("add", PG+4*i, PG+4*i, PG+4*(i+st))
for sw in ("v_permlane32_swap_b32", "v_permlane16_swap_b32"):
    A(f"v_mov_b32 v{PG+2}, v{PG}")
    A(f"v_mov_b32 v{PG+3}, v{PG+1}")
    A("s_nop 1")
    A(f"{sw} v{PG}, v{PG+2}")
    A(f"{sw} v{PG+1}, v{PG+3}")
    A("s_nop 1")
    pk("add", PG, PG, PG+2)
A(f"v_mul_f32 v{PG}, {f32(1.0/7993)}, v{PG}")
A(f"v_mul_f32 v{PG+1}, {f32(1.0/7993)}, v{PG+1}")
A(f"v_fma_f32 v{PG+1}, -v{PG}, v{PG}, v{PG+1}")
A(f"v_max_f32 v{PG+1}, 0, v{PG+1}")
A(f"v_add_f32 v{PG+1}, {f32(1e-5)}, v{PG+1}")
A(f"v_rsq_f32 v{PG+1}, v{PG+1}")
A("s_nop 0")
A(f"v_mul_f32 v{PG+1}, v{PG+1}, v{GAM}")
A(f"ds_write_b32 v10, v{PG+1}")
A(f"v_fma_f32 v{PG}, -v{PG}, v{PG+1}, v{GAM+1}")
A(f"ds_write_b32 v10, v{PG} offset:256")

if P["spoll"]:
    cur[0] = "cepi"
    for i in range(8):
        LBL(f"L_pr{i}")
        A(f"s_sub_u32 s{sCNT}, s{sCNT}, 1")
        A(f"s_cbranch_scc1 L_pd{i}")
        pl(i)
        for k in range(i + 1, min(i + 1 + P["spoll"] - 1, 8)): pl(k)
        A("s_waitcnt vmcnt(0)")
        A(f"s_branch L_pc{i}")
    tail_cepi = SEC["cepi"]; SEC["cepi"] = []
cur[0] = "final"
LBL("L_final")
k0 = -2.0 * math.sqrt(2.0 / math.pi) * math.log2(math.e)
k1 = k0 * 0.044715
A(f"s_mov_b32 s{sK+2}, {f32(gam3 if P['g5'] else k1)}")
A(f"s_mov_b32 s{sK+3}, {f32(gam3 if P['g5'] else k1)}")
A(f"s_mov_b32 s{sK+4}, 4096")
A(f"v_mov_b32 v56, {f32(k0/gam3 if P['g5'] else k0)}")
A(f"v_mov_b32 v57, {f32(k0/gam3 if P['g5'] else k0)}")
A("s_waitcnt lgkmcnt(0)")
A("s_barrier")
stamp(4)
CA, CC = 16, 24
A(f"ds_read_b128 v[{CA}:{CA+3}], v{FA+6}")
A(f"ds_read_b128 v[{CC}:{CC+3}], v{FA+6} offset:256")
A(f"ds_read_b128 v[{CA+4}:{CA+7}], v{FA+6} offset:16")
A(f"ds_read_b128 v[{CC+4}:{CC+7}], v{FA+6} offset:272")
Z, U = 32, 40
if P["mg"]: y_reads()
for n in range(4):
    y = Y + 8 * n
    for h in range(0, 8, 2):
        if P["mg"]:
            if h == 0: A(f"s_waitcnt lgkmcnt({6 - 2*n})")
        elif n == 0 and h in (0, 4): A(f"s_waitcnt lgkmcnt({2 if h == 0 else 0})")
        pk("fma", y+h, y+h, CA+h, c=CC+h)
    if P["g5"]:
        for h in range(0, 8, 2): pk("fma", U+h, y+h, y+h, c=56)
    else:
        for h in range(0, 8, 2): pk("mul", U+h, y+h, y+h)
        for h in range(0, 8, 2): A(f"v_pk_fma_f32 v[{U+h}:{U+h+1}], v[{U+h}:{U+h+1}], s[{sK+2}:{sK+3}], v[56:57]")
    for h in range(0, 8, 2): pk("mul", U+h, U+h, y+h)
    for h in range(8): A(f"v_exp_f32 v{U+h}, v{U+h}")
    for h in range(0, 8, 2):
        if P["g5"]: A(f"v_pk_fma_f32 v[{U+h}:{U+h+1}], v[{U+h}:{U+h+1}], s[{sK+2}:{sK+3}], s[{sK+2}:{sK+3}]")
        else: A(f"v_pk_add_f32 v[{U+h}:{U+h+1}], v[{U+h}:{U+h+1}], 1.0 op_sel_hi:[1,0]")
    for h in range(8): A(f"v_rcp_f32 v{U+h}, v{U+h}")
    for h in range(0, 8, 2): pk("mul", y+h, y+h, U+h)
    o = Z + 4 * (n & 1)
    for h in range(4): A(f"v_cvt_pk_bf16_f32 v{o+h}, v{y+2*h}, v{y+2*h+1}")
    A(f"buffer_store_dwordx4 v[{o}:{o+3}], v{FA+4 if n < 2 else FA+5}, s[{sO}:{sO+3}], {'0' if n % 2 == 0 else 's'+str(sK+4)} offen" + ["", " nt", " sc1", " sc0 sc1", " sc1 nt"][P["stf"]])
if P["stamps"]:
    stamp(5)
    A("s_waitcnt vmcnt(0)")
    stamp(6)
    A("s_waitcnt lgkmcnt(0)")
    A(f"s_mov_b32 s{sWS+2}, 0x1000000")
    A(f"s_lshl_b32 s{sTMP}, s2, 3")
    A(f"s_add_u32 s{sTMP}, s{sTMP}, s{sWAVE}")
    A(f"s_lshl_b32 s{sTMP}, s{sTMP}, 5")
    A(f"s_add_u32 s{sTMP}, s{sTMP}, 0x200000")
    A("v_mov_b32 v1, 0")
    if plain and not P["pst"]: A("s_sub_u32 s90, s94, s92")
    for k in range(8): A(f"v_mov_b32 v{2+k}, s{sST+(k if P['cst'] else 2*k)}")
    A("s_mov_b64 exec, 1")
    if P["sst"] >= 0:
        for k in range(12): A(f"v_mov_b32 v{2+k}, v{MS+k}") if False else None
    if P["lst"] >= 0 or P["cst"] or P["sst"] >= 0:
        if P["sst"] >= 0:
            for k in range(12): A(f"v_readlane_b32 s{76+k}, v255, {k}")
            A("s_nop 1")
            for k in range(12): A(f"v_mov_b32 v{2+k}, s{76+k}")
        else:
            for k in range(4): A(f"v_mov_b32 v{10+k}, s{sST+8+k if P['cst'] else sST+16+2*k}")
        A(f"s_add_u32 s{sCNT}, s{sTMP}, 0x100000")
        A(f"buffer_store_dwordx4 v[10:13], v1, s[{sWS}:{sWS+3}], s{sCNT} offen")
    A(f"buffer_store_dwordx4 v[2:5], v1, s[{sWS}:{sWS+3}], s{sTMP} offen")
    A(f"buffer_store_dwordx4 v[6:9], v1, s[{sWS}:{sWS+3}], s{sTMP} offen offset:16")
if P["dbgt"]:
    A(f"s_cmp_lg_u32 s{sWAVE}, 0")
    A("s_cbranch_scc1 L_end")
    A("s_cmp_eq_u32 s2, 0")
    A(f"s_cselect_b32 s{sTMP}, 8, 36")
    A("s_cbranch_scc1 L_dd")
    A("s_cmp_lg_u32 s2, 77")
    A("s_cbranch_scc1 L_end")
    LBL("L_dd")
    for k in range(1, 7): A(f"v_subrev_u32 v{2+k}, v2, v{2+k}")
    A(f"buffer_store_dwordx4 v[2:5], v1, s[{sDBG}:{sDBG+3}], s{sTMP} offen")
    A(f"buffer_store_dwordx3 v[6:8], v1, s[{sDBG}:{sDBG+3}], s{sTMP} offen offset:16")
LBL("L_end")
A("s_endpgm")

cur[0] = "cp0" if P["cfirst"] else "cpro"
if not P["cfirst"]: LBL("L_compute")
G00, G11, GS = 16, 48, 80
SETS = [112, 172]
def vXR(role): return 1 + 2 * role
def vWR(role): return 2 + 2 * role
vW3, vW3C, vGA, vYW = 7, 8, 9, 10
T = 232
CWA, CWB = 112, 116
TP = 160 if P["cv"] else T
CU0, CU1, vCX, vCL = 128, 144, 168, 251
CV = [232, 236, 240, 12]
A(f"s_lshr_b32 s{sWAVE}, s{sWAVE}, 6")
A(f"s_memrealtime s[{sN0}:{sN1}]")
A(f"v_lshrrev_b32 v{TP}, 5, v0")
A(f"s_lshl_b32 s{sTMP}, s{sWAVE}, 1")
A(f"v_add_u32 v{TP}, s{sTMP}, v{TP}")
A(f"v_and_b32 v{TP+1}, 31, v0")
A(f"v_lshlrev_b32 v{TP+1}, 4, v{TP+1}")
krow(sTMP, sCNT)
A(f"s_lshl_b32 s{sTMP}, s{sTMP}, 9")
A(f"v_add_u32 v{TP+1}, s{sTMP}, v{TP+1}")
A(f"v_lshl_add_u32 v{TP+2}, v{TP}, 17, v{TP+1}")
A(f"v_and_b32 v{TP}, 3, v{TP}")
A(f"v_lshl_add_u32 v{TP+1}, v{TP}, 19, v{TP+1}")
A(f"s_lshr_b32 s{sWO}, s{sWAVE}, 1")
A(f"s_lshl_b32 s{sWO}, s{sWO}, 17")
A(f"s_add_u32 s{sWN}, s{sWO}, {2*131072}")
if P["cv"]:
    A(f"v_lshrrev_b32 v{vCX}, 3, v0")
    A(f"v_and_b32 v{vCX+1}, 7, v0")
    A(f"v_lshlrev_b32 v{vCX+1}, 4, v{vCX+1}")
    A(f"v_lshl_add_u32 v{vCX}, v{vCX}, 11, v{vCX+1}")
    A(f"s_mul_i32 s{sXB}, s{sB}, {16000*512}")
    A(f"s_mul_i32 s{sTMP}, s{sT}, {500*512}")
    A(f"s_add_u32 s{sXB}, s{sXB}, s{sTMP}")
    A(f"s_lshl_b32 s{sTMP}, s{sWAVE}, 16")
    A(f"s_add_u32 s{sXB}, s{sXB}, s{sTMP}")
A("s_waitcnt lgkmcnt(0)")
srd(sW, 34, W_BYTES)
if P["pq"]:
    A(f"s_cmp_eq_u32 s{sWAVE}, 0")
    A(f"s_cselect_b32 s{sW+2}, s{sW+2}, 0")
def p_loads():
    A(f"buffer_load_dwordx4 v[{CWA}:{CWA+3}], v{TP+1}, s[{sW}:{sW+3}], s{sWO} offen" + (" nt" if P["pnt"] else ""))
    A(f"buffer_load_dwordx4 v[{CWB}:{CWB+3}], v{TP+1}, s[{sW}:{sW+3}], s{sWN} offen" + (" nt" if P["pnt"] else ""))
if not P["pdel"]: p_loads()
def c_split():
    A("s_branch L_compute")
    cur[0] = "cpro"
    LBL("L_compute")
if P["cfirst"] == 1: c_split()
def cx_loads():
    srd(sX, 32, X_BYTES)
    for j in range(4):
        A(f"s_add_u32 s{sTMP}, s{sXB}, {j*16384 + 2048}")
        A(f"buffer_load_dwordx4 v[{CU0+4*j}:{CU0+4*j+3}], v{vCX}, s[{sX}:{sX+3}], s{sTMP} offen")
        A(f"s_add_u32 s{sTMP}, s{sXB}, {j*16384 + 1024}")
        A(f"buffer_load_dwordx4 v[{CU1+4*j}:{CU1+4*j+3}], v{vCX}, s[{sX}:{sX+3}], s{sTMP} offen")
if P["cv"] == 1: cx_loads()
SK = sm_list(P["sk"]) if P["sk"] else []
if SK: sm_base(); sm_emit(SK[:7]); del SK[:7]
srd(sDBG, 42, 256)
A(f"s_or_b32 s{sTMP}, s2, s{sWAVE}")
A(f"s_cmp_lg_u32 s{sTMP}, 0")
A("s_cbranch_scc1 L_nononce")
A(f"s_or_b32 s{sN0}, s{sN0}, 1")
A(f"v_mov_b32 v{TP+3}, 0")
A(f"v_mov_b32 v{TP+6}, s{sN0}")
A(f"v_mov_b32 v{TP+7}, s{sN1}")
A("s_mov_b64 exec, 1")
A(f"buffer_store_dwordx2 v[{TP+6}:{TP+7}], v{TP+3}, s[{sDBG}:{sDBG+3}], 0 offen sc0 sc1")
A("s_mov_b64 exec, -1")
LBL("L_nononce")
if P["cfirst"] == 2: c_split()
if P["cpf"]:
    A(f"s_cmp_lg_u32 s{sWAVE}, 1")
    A("s_cbranch_scc1 L_nocpf")
    A("s_getpc_b64 s[74:75]")
    LBL("L_pc")
    A(f"s_lshr_b32 s{sTMP}, s2, 3")
    A(f"s_lshl_b32 s{sTMP}, s{sTMP}, 9")
    A(f"s_add_u32 s74, s74, s{sTMP}")
    A("s_addc_u32 s75, s75, 0")
    A(f"s_sub_u32 s74, s74, L_pc-{KN}")
    A("s_subb_u32 s75, s75, 0")
    A(f"v_lshlrev_b32 v{TP+4}, 7, v0")
    A("s_mov_b64 exec, 15")
    A(f"global_load_dword v{TP+5}, v{TP+4}, s[74:75]")
    A("s_mov_b64 exec, -1")
    LBL("L_nocpf")
if P["warm"]:
    CM("visit one instruction in every later code page while the first loads are in flight")
    A("s_branch L_warm0")
    LBL("L_warmret")
srd(sWS, 44, WS_BYTES)
A(f"s_mov_b32 s{sPO}, {WP_OFF}")
out_srd()
A(f"s_mov_b32 s{sMID}, 0x7fff7fff")
A(f"s_cselect_b32 s{sMID}, s{sMID}, -1")
A(f"s_mov_b32 s{sMID+1}, s{sMID}")
granule_off()
A(f"s_lshl_b32 s{sTMP}, s{sT}, 10")
A(f"s_add_u32 s{sGR}, s{sGR}, s{sTMP}")
R, G_, X1, X2 = 120, 121, 122, 124
A(f"v_and_b32 v{R}, 15, v0")
A(f"v_lshrrev_b32 v{G_}, 4, v0")
A(f"v_mul_u32_u24 v{X1}, {XB}, v{R}")
A(f"v_lshl_add_u32 v{vXR(0)}, v{G_}, 4, v{X1}")
A(f"v_bfe_u32 v{X2}, v0, 2, 2")
A(f"v_lshl_add_u32 v{X1}, v{G_}, 3, v{X2}")
A(f"v_lshlrev_b32 v{X1}, 7, v{X1}")
A(f"v_lshrrev_b32 v{X2}, 1, v{X2}")
A(f"v_and_b32 v{X2+1}, 1, v{G_}")
A(f"v_lshl_or_b32 v{X2}, v{X2+1}, 1, v{X2}")
A(f"v_xor_b32 v{X2}, s{sWAVE}, v{X2}")
A(f"v_lshl_add_u32 v{X1}, v{X2}, 5, v{X1}")
A(f"v_and_b32 v{X2}, 3, v0")
A(f"v_lshl_add_u32 v{X1}, v{X2}, 3, v{X1}")
A(f"v_add_u32 v{vWR(0)}, {WOFF}, v{X1}")
A(f"v_add_u32 v{vW3}, {WOFF + tile(0,3)}, v{X1}")
A(f"v_lshlrev_b32 v{vW3C}, 1, v{X1}")
A(f"v_add_u32 v{vW3C}, {2*SLOT + WOFF + tile(0,3) + SPARE}, v{vW3C}")
for k in (1, 2):
    A(f"v_add_u32 v{k+2}, {SLOT}, v{k}")
    A(f"v_add_u32 v{k+4}, {2*SLOT}, v{k}")
if P["red"]:
    CM("after the reduce-scatter lane r of group g holds channel 4g + (r>>2)")
    A(f"v_lshrrev_b32 v{X1}, 2, v{R}")
    A(f"v_lshl_add_u32 v{vGA}, v{G_}, 2, v{X1}")
else:
    A(f"v_lshl_add_u32 v{vGA}, v{G_}, 2, v{R}")
A(f"v_lshlrev_b32 v{vGA}, 4, v{vGA}")
A(f"s_lshl_b32 s{sTMP}, s{sWAVE}, 2")
A(f"v_add_u32 v{X1}, s{sTMP}, v{G_}")
A(f"v_lshrrev_b32 v{X2}, 1, v{X1}")
A(f"v_and_b32 v{X1}, 1, v{X1}")
A(f"v_lshl_or_b32 v{X1}, v{X1}, 3, v{X2}")
A(f"v_and_b32 v{X2}, 7, v{R}")
A(f"v_xor_b32 v{X1}, v{X1}, v{X2}")
A(f"v_lshlrev_b32 v{X1}, 4, v{X1}")
A(f"v_lshl_add_u32 v{vYW}, v{R}, 12, v{X1}")
A(f"v_xor_b32 v{vYW+1}, 0x80, v{vYW}")
final_addr(FA)
for i in range(0, 96, 2):
    A(f"v_pk_mov_b32 v[{16+i}:{17+i}], 0, 0")
if P["cv"]:
    A(f"s_mul_i32 s{sTMP}, s{sWAVE}, {4*XB}")
    A(f"s_add_u32 s{sTMP}, s{sTMP}, {SLOT}")
    A(f"v_lshl_add_u32 v{vCL}, v0, 4, s{sTMP}")
if P["pdel"]: p_loads()
sm_emit(SK[:9]); del SK[:9]
if P["cv"] == 2: cx_loads()
A(f"s_waitcnt vmcnt({8 if P['cv'] else 0})")
for t in addbf_list(CWA, CWA, CWB, 224, True): A(t)
A(f"buffer_store_dwordx4 v[{CWA}:{CWA+3}], v{TP+2}, s[{sWS}:{sWS+3}], s{sPO} offen sc0 sc1")
if P["cv"]:
    for j in range(4):
        A(f"s_waitcnt vmcnt({1 + 2*(3-j) if P['cv'] == 2 else 1})") if (j == 0 or P["cv"] == 2) else None
        for t in addbf_list(CV[j], CU1+4*j, CU0+4*j, 224, True): A(t)
nct = 0
def c_touch():
    global nct
    if not P["ct"]: return
    if not P["cv"]:
        srd(sX, 32, X_BYTES)
    A(f"s_mul_i32 s{sXO}, s{sB}, {16000*512}")
    A(f"s_mul_i32 s{sTMP}, s{sT}, {500*512}")
    A(f"s_add_u32 s{sXO}, s{sXO}, s{sTMP}")
    A(f"s_lshl_b32 s{sTMP}, s{sWAVE}, 4")
    A(f"s_lshl_b32 s{sCNT}, s{sNT}, 6")
    A(f"s_add_u32 s{sTMP}, s{sTMP}, s{sCNT}")
    A(f"v_add_u32 v252, s{sTMP}, v0")
    A(f"v_lshlrev_b32 v252, 10, v252")
    for t in P["ct"].split("+"):
        c = int(t[0])
        A(f"s_add_u32 s{sTMP}, s{sXO}, {(c >> 1)*128 + (c & 1)*512}")
        A(f"s_mov_b64 exec, {dict(ab=0xffff, a=0x5555, b=0xaaaa)[t[1:]]:#x}")
        A(f"buffer_load_dword v253, v252, s[{sX}:{sX+3}], s{sTMP} offen")
        nct += 1
    A("s_mov_b64 exec, -1")
c_touch()
sm_emit(SK)
if P["sk"]: A("s_waitcnt lgkmcnt(0)")
if P["prio"]: A(f"s_setprio {P['prio']}")
if not P["lateack"]: A(f"s_waitcnt vmcnt({nct})")

def reads(role, hh, st, ndpp=0, last=False):
    xb = SETS[st]; wb = xb + 44
    def xr(q): return (("X", q), f"ds_read_b128 v[{xb+4*q}:{xb+4*q+3}], v{vXR(role)} offset:{(q & 7)*128 + hh*64 + (XB if q > 7 else 0)}")
    def wr(s, h):
        if role == 0 and s == 3 and not last:
            return (("W", s), f"ds_read_b64_tr_b16 v[{wb+4*s+2*h}:{wb+4*s+2*h+1}], v{vW3} offset:{hh*4096 + h*512}")
        return (("W", s), f"ds_read_b64_tr_b16 v[{wb+4*s+2*h}:{wb+4*s+2*h+1}], v{vWR(role)} offset:{tile(hh, s) + h*512}")
    if role == 1 and P["u3"]:
        r = [wr(0, 0), wr(0, 1), xr(0), wr(1, 0), wr(1, 1), xr(1), wr(2, 0), wr(2, 1)] + [xr(q) for q in range(2, 10)] + [wr(3, 0), wr(3, 1), xr(10)]
    else:
        r = [wr(0, 0), wr(0, 1), xr(0), wr(1, 0), wr(1, 1)] + [xr(q) for q in range(1, 9)] + [wr(2, 0), wr(2, 1), wr(3, 0), wr(3, 1), xr(9), xr(10)]
    dq = list(range(11 - ndpp, 11))
    r = [e for e in r if not (e[0][0] == "X" and e[0][1] in dq)]
    d = [f"v_mov_b32_dpp v{xb+4*q+i}, v{xb+4*(q-8)+i} row_shl:1 row_mask:0xf bank_mask:0xf bound_ctrl:0" for q in dq for i in range(4)]
    return r, d
def mfma_list(acc, st, split3=False):
    xb = SETS[st]; wb = xb + 44
    pairs = []
    if split3 and P["u3"]:
        pairs = [(s, j) for j in range(8) for s in ((0, 1, 2) if j % 2 == 0 else (2, 1, 0))] + [(3, j) for j in range(8)]
    else:
        for s0 in ((0,) if split3 else (0, 2)):
            for q in range(s0, s0 + 9):
                for s in (s0 + 1, s0):
                    if 0 <= q - s < 8: pairs.append((s, q - s))
        if split3: pairs += [(s, j) for s in (2, 3) for j in range(8)]
    out = []
    for s, j in pairs:
        d = f"v[{acc+4*j}:{acc+4*j+3}]"
        out.append(([("W", s), ("X", j+s)], f"v_mfma_f32_16x16x32_bf16 {d}, v[{wb+4*s}:{wb+4*s+3}], v[{xb+4*(j+s)}:{xb+4*(j+s)+3}], {d}"))
    return out
pending = []
ss_n = [0]
def sstamp():
    if P["sst"] < 0 or ss_n[0] >= 12: return
    k = ss_n[0]; ss_n[0] += 1
    A(f"s_memtime s[{76+2*k}:{77+2*k}]")
def seq(acc, st, rdd, barrier, skip_label=None, extra=None, delay=0, vm0=False, pre=(), c0tail=None):
    global pending
    rd, dpp = rdd
    pre = list(pre)
    nm = 24 if skip_label else 32
    m = mfma_list(acc, st, skip_label is not None)
    rd = [] if P["nords"] else list(rd)
    dpp = list(dpp)
    first = max(P["barslot"], delay) if barrier else 0
    if dpp:
        first = min(first, nm - len(rd) - len(dpp) - 0) if barrier else first
        first = max(first, P["barslot"]) if barrier else first
        last = first + len(rd) - 1
    else:
        last = max(min(first + len(rd) if barrier else P["rdA"], nm - P["rd_gap"]), first + len(rd) - 1) if rd else 0
    slots = [first + (k * (last - first)) // max(len(rd) - 1, 1) for k in range(len(rd))]
    dslots = [min(last + 1 + len(pre) + k, nm - 1) for k in range(len(dpp))]
    if pre:
        extra = dict(extra or {})
        for k, t in enumerate(pre): extra.setdefault(last + 1 + k, []).append(t)
    cur_ = list(pending); newer = 0; nxt = []; nd = 0
    for i, (need, ins) in enumerate(m):
        if i == 24 and skip_label:
            A(f"s_cbranch_scc1 {skip_label}")
            if c0tail:
                A(f"s_cmp_eq_u32 s{sCNT}, 0")
                A("s_cbranch_scc1 L_cfirst")
                c0tail.extend(x for _, x in m[24:])
        W_ = 8 if P["w8"] else 16
        if i % W_ == 0 or (skip_label and i == 24):
            need = [k for nd_, _ in m[i:i+W_ if not (skip_label and i == 16) else 24] for k in nd_]
            if barrier and i == 0: need = [k for nd_, _ in m[:P["barslot"]+1] for k in nd_]
            idx = max([k for k, key in enumerate(cur_) if key in need], default=-1)
            if idx >= 0:
                n = len(cur_) - 1 - idx + newer
                if n < 15: A(f"s_waitcnt lgkmcnt({n})")
                cur_ = cur_[idx+1:]
        A(ins)
        if barrier and i == P["barslot"]:
            if cur_ or vm0: A("s_waitcnt" + (" vmcnt(0)" if vm0 else "") + " lgkmcnt(0)"); cur_ = []
            sstamp()
            A("s_barrier")
            sstamp()
        while rd and slots[len(nxt)] <= i:
            key, s = rd.pop(0); A(s); nxt.append(key); newer += 1
        while nd < len(dpp) and dslots[nd] <= i:
            if nd == 0:
                k = max(nxt.index(("X", q)) for q in range(3) if ("X", q) in nxt)
                A(f"s_waitcnt lgkmcnt({min(len(nxt) - 1 - k, 15)})")
            A(dpp[nd]); nd += 1
        if extra and i in extra:
            for s in extra[i]: A(s)
    assert not rd and nd == len(dpp)
    if skip_label: LBL(skip_label)
    pending = nxt
    sstamp()
A("s_barrier")
if P["sst0"]: A("s_memtime s[98:99]")
stamp(1)
if plain: A("s_memtime s[92:93]"); A("s_waitcnt lgkmcnt(0)")
D2, D3 = (2 if P["dpp"] else 0), (3 if P["dpp"] else 0)
r0, _ = reads(0, 0, 0)
for _, s in r0: A(s)
LATE = reads(0, 0, 0, 2)[1] if P["dpp"] & 8 else []
pending = [k for k, _ in reads(0, 0, 0, D2 if P["dpp"] & 12 else 0)[0]]
loop_entry = list(pending)
A(f"s_mov_b32 s{sCNT}, 0")
if P["dpp"] & 12: A("s_waitcnt lgkmcnt(0)")
A("s_branch L_cloop")

cur[0] = "cloop"
def cstamp(idx=None):
    if not P["cst"]: return
    A("s_memtime s[100:101]")
    A("s_waitcnt lgkmcnt(0)")
    if idx is None:
        A(f"s_mov_b32 m0, s{sCNT}")
        A("s_nop 0")
        A("s_movreld_b32 s76, s100")
    else:
        A(f"s_mov_b32 s{76+idx}, s100")
LBL("L_cloop")
if P["sst"] >= 0:
    A(f"s_cmp_lg_u32 s{sCNT}, {P['sst'] + 1}")
    A("s_cbranch_scc1 L_nss")
    A("s_waitcnt lgkmcnt(0)")
    for k in range(12): A(f"v_writelane_b32 v255, s{76+2*k}, {k}")
    LBL("L_nss")
cstamp()
if P["sst0"]: sstamp()
seq(G00, 0, reads(0, 1, 1, D2), False, pre=LATE)
seq(G00, 1, reads(1, 0, 0, D3 if P["dpp"] & 2 else 0), True, extra={28: [f"v_sub_u32 v{vW3}, v{vW3C}, v{vW3}"]}, delay=P["dly0"], vm0=bool(P["lateack"]))
A(f"s_bitcmp1_b32 s{sCNT}, 0")
seq(G11, 0, reads(1, 1, 1), False, "L_skipa")
c0l = ["x"] if (P["cv"] and P["c0t"]) else None
seq(G11, 1, reads(2, 0, 0), True, "L_skipb", c0tail=c0l)
if not c0l:
    A(f"s_cmp_eq_u32 s{sCNT}, 0")
    A("s_cbranch_scc1 L_cfirst")
LBL("L_gs")
pend_gs = list(pending)
seq(GS, 0, reads(2, 1, 1, D3), False)
A(f"s_add_u32 s{sCNT}, s{sCNT}, 1")
A(f"s_cmp_lt_u32 s{sCNT}, 8")
seq(GS, 1, (reads(0, 0, 0, 2)[0], []) if P["dpp"] & 8 else reads(0, 0, 0, D2 if P["dpp"] & 4 else 0), True, delay=P["dly2"] + (2 if P["dpp"] & 8 else 0))
pend_loop = list(pending)
assert pend_loop == loop_entry
A("s_cbranch_scc1 L_cloop")
if not P["peel"]:
    A(f"s_cmp_eq_u32 s{sCNT}, 9")
    A("s_cbranch_scc1 L_cdone")
    cstamp(8)
    for k in (5, 6): A(f"v_mov_b32 v{k}, v{k-4}")
    if pend_loop != pend_gs: A("s_waitcnt lgkmcnt(0)")
    A("s_branch L_gs")
else:
    A("s_branch L_cdone")
LBL("L_cfirst")
if c0l:
    for k, t in enumerate(c0l[1:]):
        A(t)
        if k % 2 == 0: A(f"ds_write_b128 v{vCL}, v[{CV[k//2]}:{CV[k//2]+3}] offset:{(k//2)*XB}")
elif P["cv"]:
    for j in range(4): A(f"ds_write_b128 v{vCL}, v[{CV[j]}:{CV[j]+3}] offset:{j*XB}")
if not P["pubst"]: stamp(3)
for k in (1, 2):
    A(f"v_add_u32 v{k}, {2*SLOT}, v{k}")
    A(f"v_subrev_u32 v{k+2}, {SLOT}, v{k+2}")
    A(f"v_subrev_u32 v{k+4}, {SLOT}, v{k+4}")
A(f"v_add_u32 v{vW3}, {tile(0,3)}, v2")
A(f"s_mov_b32 s{sCNT}, 1")
if P["sst0"]: A("s_waitcnt lgkmcnt(0)"); A("s_memtime s[94:95]")
if not c0l and (pend_loop != pend_gs or P["cv"]): A("s_waitcnt lgkmcnt(0)")
assert pend_gs[:len(pend_loop)] == pend_loop
A("s_branch L_cloop")

cur[0] = "cepi"
LBL("L_cdone")
def yreg(idx): return ((SETS[0] if P["pp"] else G11) if idx % 2 == 0 else GS) + 4 * (idx // 2)
S1, S2 = 16, 20
dppl = [f"v_mov_b32_dpp v{T+i}, v{G00+i} row_shl:1 row_mask:0xf bank_mask:0xf bound_ctrl:0" for i in range(4)]
if P["peel"]:
    cstamp(8)
    pending = pend_loop
    CM("last stage, with the G00/G11 part of the output transform in its shadow: G11 <- y0, G00[j] <- G11[j] + G00[j+1]")
    exA = {20 + i: [dppl[i]] for i in range(4)}
    exA[19] = [f"v_mov_b32 v12, {MISC}", "ds_read_b64 v[238:239], v12"]
    Y0 = SETS[0]
    ex = []
    if P["pp"]:
        def op2(d, x, y):
            return [pks("add", d, x, y), pks("add", d+2, x+2, y+2)] if P["pp"] == 2 else [f"v_add_f32 v{d+i}, v{x+i}, v{y+i}" for i in range(4)]
        for j in range(8):
            ex += op2(Y0+4*j, G00+4*j, G11+4*j)
        for j in range(8):
            ex += op2(G11+4*j, G11+4*j, G00+4*(j+1) if j < 7 else T)
    if LATE:
        exA = {(k + 8 if k >= 20 else k): v for k, v in exA.items()}
        for k, t in enumerate(LATE): exA[20 + k] = [t]
    seq(GS, 0, reads(0, 1, 1, 0, True), False, extra=exA)
    pending = pending + [("N", 0)]
    nh = min(len(ex), P["ppn"])
    seq(GS, 1, ([], []), False, extra={1 + (k * 31) // max(nh, 1): [] for k in range(nh)} and
        {i: [ex[k] for k in range(nh) if 1 + (k * 31) // nh == i] for i in range(32)} if nh else None)
    if P["pp"] == 1 and nh % 4 == 0 and nh >= 32:
        for j in range((nh - 32) // 4, 8):
            for h in (0, 2): pk("add", G11+4*j+h, G11+4*j+h, (G00+4*(j+1) if j < 7 else T) + h)
    else:
        for t in ex[nh:]: A(t)
    A("s_nop 7")
else:
    A(f"v_mov_b32 v12, {MISC}")
    A("ds_read_b64 v[238:239], v12")
    for t in dppl: A(t)
    A("s_nop 2")
cstamp(9)
stamp(2)
if plain: A("s_memtime s[94:95]")
if P["prio"]: A("s_setprio 0")
for j in range(8):
    for h in (0, 2):
        pk("add", GS+4*j+h, GS+4*j+h, G11+4*j+h, neg=not P["dif"])
for j in range(8):
    for h in (0, 2):
        if P["pp"]: continue
        nx = G00+4*(j+1)+h if j < 7 else T+h
        pk("add", GS+4*j+h, GS+4*j+h, nx, neg=not P["dif"])
        pk("add", G11+4*j+h, G11+4*j+h, G00+4*j+h)
for h in (0, 2):
    pk("add", S1+h, yreg(0)+h, yreg(1)+h)
    pk("mul", S2+h, yreg(0)+h, yreg(0)+h)
for idx in range(1, 16):
    if idx == 3: A(f"s_mov_b64 exec, s[{sMID}:{sMID+1}]")
    if idx == 10:
        A("s_mov_b32 exec_lo, 0x7fff7fff")
        A("s_mov_b32 exec_hi, 0x7fff7fff")
    for h in (0, 2):
        if idx > 1: pk("add", S1+h, S1+h, yreg(idx)+h)
        pk("fma", S2+h, yreg(idx)+h, yreg(idx)+h, c=S2+h)
A("s_mov_b64 exec, -1")
A("s_nop 1")
def dadd(d, s, ctl, bm="0xf"): A(f"v_add_f32_dpp v{d}, v{s}, v{s} {ctl} row_mask:0xf bank_mask:{bm}")
if P["red"]:
    CM("reduce-scatter over the 16 lanes of a row: banks (r>>2) end up with channel r>>2")
    for b in (S1, S2):
        dadd(b+8, b, "row_ror:8"); dadd(b+9, b+1, "row_ror:8")
    for b in (S1, S2):
        dadd(b+8, b+2, "row_ror:8", "0xc"); dadd(b+9, b+3, "row_ror:8", "0xc")
    A("s_nop 0")
    dadd(236, S1+8, "row_half_mirror"); dadd(237, S2+8, "row_half_mirror")
    A("s_nop 0")
    dadd(236, S1+9, "row_half_mirror", "0xa"); dadd(237, S2+9, "row_half_mirror", "0xa")
    A("s_nop 0")
    dadd(236, 236, "quad_perm:[1,0,3,2]"); dadd(237, 237, "quad_perm:[1,0,3,2]")
    A("s_nop 0")
    dadd(236, 236, "quad_perm:[2,3,0,1]"); dadd(237, 237, "quad_perm:[2,3,0,1]")
    A("s_mov_b32 exec_lo, 0x11111111")
    A("s_mov_b32 exec_hi, 0x11111111")
else:
    for sh in (8, 4, 2, 1):
        for i in range(8): dadd(16+i, 16+i, f"row_ror:{sh}")
    A("v_mov_b32 v236, v16")
    A("v_mov_b32 v237, v20")
    for i in (1, 2, 3):
        mk = (1 << i) * 0x00010001
        A(f"s_mov_b32 exec_lo, {mk:#x}")
        A(f"s_mov_b32 exec_hi, {mk:#x}")
        A(f"v_mov_b32 v236, v{16+i}")
        A(f"v_mov_b32 v237, v{20+i}")
    A("s_mov_b32 exec_lo, 0x000f000f")
    A("s_mov_b32 exec_hi, 0x000f000f")
A("s_waitcnt lgkmcnt(0)")
A(f"buffer_store_dwordx4 v[236:239], v{vGA}, s[{sWS}:{sWS+3}], s{sGR} offen " + ("sc1" if P["pfl"] & 2 else "sc0 sc1"))
A("s_mov_b64 exec, -1")
if P["pubst"]: stamp(3)
if P["mg"]: A("s_barrier")
for idx in range(16):
    A(f"ds_write_b128 v{vYW + ((idx // 2) & 1)}, v[{yreg(idx)}:{yreg(idx)+3}] offset:{idx*256}")
if not P["mg"]:
    A("s_waitcnt lgkmcnt(0)")
    A("s_barrier")
    y_reads()
A("s_branch L_final")
if P["spoll"]: SEC["cepi"] += tail_cepi

ALG = "" if not P["algn"] else f".p2align 12\n.fill {(4096 - 0x300 + (P['algn'] - 1) * 256) // 4}, 4, 0xbf810000\n"
out = [f"""; conv stem (K=15, stride 2) as a 2-parallel fast-FIR GEMM + per-channel GroupNorm + tanh GELU, one launch.
; The bias is constant over time per channel, so it cancels exactly in (y - mean_t y).
;   y[2m] = G00[m] + G11[m],  y[2m+1] = Gs[m] + G11[m] + G00[m+1]      (23 instead of 30 tap products per output pair)
; @launch grid=(256,1,1) block=(512,1,1) lds={LDS_BYTES}
.amdgcn_target "amdgcn-amd-amdhsa--gfx950"
.text
.globl {KN}
{ALG}.p2align 8
.type {KN},@function
{KN}:"""]
wk = 0
for sec in ("entry", "cp0", "lpro", "cpro", "cloop", "lloop", "cepi", "llast", "final"):
    if P["warm"] and sec in ("cloop", "lloop", "cepi", "llast"):
        out += [f"L_warm{wk}:", f"  s_branch L_warm{wk+1}"]; wk += 1
    if sec in ("cloop", "lloop"): out.append(".p2align 6")
    out += SEC[sec]
if P["warm"]: out += [f"L_warm{wk}:", "  s_branch L_warmret"]
out.append(f""".p2align 8
.fill 1024, 4, 0xbf810000
.section .rodata,"a"
.p2align 6
.amdhsa_kernel {KN}
  .amdhsa_next_free_vgpr 256
  .amdhsa_next_free_sgpr 102
  .amdhsa_accum_offset 256
  .amdhsa_group_segment_fixed_size 0
  .amdhsa_kernarg_size 64
  .amdhsa_user_sgpr_count 2
  .amdhsa_user_sgpr_kernarg_segment_ptr 1
  .amdhsa_system_sgpr_workgroup_id_x 1
.end_amdhsa_kernel""")
print("\n".join(out))
```

```python
import sys, struct, math
P = dict(prio=2, lprio=0, dsprio=3, stamps=0, novalu=0, nodma=0, nords=0, barslot=1, rd_gap=5, rdA=19, dly0=13, dly2=13,
         touch=1, lst=-1, cst=0, pst=0, sst=-1, vsplit=2, wsplit=2, cpf=1, stf=2, dbgt=0, dpp=9, u3=1, red=1, wend=0, wend2=0, u0first=0, warm=0, pq=0, xnt=0, tnt=0, wnt=0, pnt=0, vpk=0, pubst=0, x1st=1, algn=0, fresh=1, burst1=0, early2=0, w8=1, cv=0, sst0=0, c0t=1, ct="", ctpos=1, dif=1, wq=0, sk="", lk="", pdel=0, cfirst=0, mg=0, psl=0, pfl=0, kmap=1, gsd=3, l7=0, nochk=0, v1=2, g5=1, spoll=0, lateack=1, peel=1, pp=1, ppn=48,
         pro="D0:0:4.D1:0:4.D0.N.D1.S.B.U.V02.D2:0:8.B.F.V24.D2.D3.B.G.w.r.C.D4.T2ab.T3ab.B")
for a in sys.argv[1:]:
    k, v = a.split("=")
    P[k] = v if k in ("pro", "ct", "sk", "lk") else int(v)

KN = "standalone__self_sup_conv_stem_hubert__speech_kernel"
XB = 1056
XSZ = 16 * XB + 128
WOFF = XSZ
SLOT = WOFF + 32768
SPARE = 3 * SLOT
MISC = SPARE + 8192
LDS_BYTES = MISC + 1024
X_BYTES = 2 * 16000 * 256 * 2
W_BYTES = 15 * 256 * 256 * 2
FL_OFF, WP_OFF, WS_BYTES = 0x40000, 0x80000, 0x180000
OOB = 0x40000000
SPIN = 0x4000
def tile(hh, s): return (hh * 3 + s if s < 3 else 6 + hh) * 4096

SEC = {k: [] for k in ("cp0", "entry", "lpro", "lloop", "llast", "final", "cpro", "cloop", "cepi")}
cur = ["entry"]
def A(s): SEC[cur[0]].append("  " + s)
def LBL(s): SEC[cur[0]].append(s + ":")
def CM(s): SEC[cur[0]].append("  ; " + s)
def f32(x): return "0x%08x" % struct.unpack("<I", struct.pack("<f", x))[0]

sX, sW, sO, sWS, sDBG, sGA, sBE = 4, 8, 12, 16, 20, 24, 28
sWAVE, sT, sNT, sB = 46, 47, 48, 49
sWN, sXO, sWO, sPO, sTMP, sCNT, sMASK16 = 50, 51, 52, 53, 55, 56, 57
sTA = 58
sD, sXB = 60, 61
sN0, sN1 = 62, 63
sMID = 64
sGR, sFO = 66, 67
sK = 68
sM0, sMX = 73, 74
sXW = 75
sST = 76

def srd(d, lo, nbytes):
    A(f"s_mov_b32 s{d}, s{lo}")
    A(f"s_and_b32 s{d+1}, s{lo+1}, 0xffff")
    A(f"s_mov_b32 s{d+2}, {nbytes}")
    A(f"s_mov_b32 s{d+3}, 0x20000")
def out_srd():
    A(f"s_mul_i32 s{sTMP}, s{sB}, {7993*512}")
    A(f"s_mul_i32 s{sCNT}, s{sT}, {250*512}")
    A(f"s_add_u32 s{sTMP}, s{sTMP}, s{sCNT}")
    A(f"s_add_u32 s{sO}, s40, s{sTMP}")
    A(f"s_addc_u32 s{sO+1}, s41, 0")
    A(f"s_and_b32 s{sO+1}, s{sO+1}, 0xffff")
    A(f"s_cmp_eq_u32 s{sT}, 31")
    A(f"s_mov_b32 s{sO+2}, {243*512}")
    A(f"s_cselect_b32 s{sO+2}, s{sO+2}, {250*512}")
    A(f"s_mov_b32 s{sO+3}, 0x20000")
def granule_off():
    A(f"s_lshl_b32 s{sGR}, s{sB}, 2")
    A(f"s_add_u32 s{sGR}, s{sGR}, s{sNT}")
    A(f"s_lshl_b32 s{sGR}, s{sGR}, 15")
    A(f"s_lshl_b32 s{sTMP}, s{sWAVE}, 8")
    A(f"s_add_u32 s{sGR}, s{sGR}, s{sTMP}")
plain = P["stamps"] and P["lst"] < 0 and not P["cst"] and P["sst"] < 0
def stamp(k):
    if not plain: return
    if P["pst"] and k > 0 and cur[0] not in ("cpro", "cloop", "cepi"): return
    A(f"s_memrealtime s[{sST+2*k}:{sST+2*k+1}]")
def pstamp(k):
    if P["pst"] == 1: A(f"s_memrealtime s[{sST+2*k}:{sST+2*k+1}]")
def addbf_list(d, a, b, t, force=False):
    r = []
    if P["novalu"] and not force: return r
    for i0 in (0, 2):
        if P["vpk"]:
            for i in (i0, i0 + 1):
                u = t + 4 * (i - i0)
                r += [f"v_lshlrev_b32 v{u}, 16, v{a+i}", f"v_and_b32 v{u+1}, s{sMASK16}, v{a+i}",
                      f"v_lshlrev_b32 v{u+2}, 16, v{b+i}", f"v_and_b32 v{u+3}, s{sMASK16}, v{b+i}"]
            for i in (i0, i0 + 1):
                u = t + 4 * (i - i0)
                r += [f"v_pk_add_f32 v[{u}:{u+1}], v[{u}:{u+1}], v[{u+2}:{u+3}]"]
            for i in (i0, i0 + 1):
                u = t + 4 * (i - i0)
                r += [f"v_cvt_pk_bf16_f32 v{d+i}, v{u}, v{u+1}"]
            continue
        for i in (i0, i0 + 1):
            u = t + 4 * (i - i0)
            r += [f"v_lshlrev_b32 v{u}, 16, v{a+i}", f"v_lshlrev_b32 v{u+1}, 16, v{b+i}",
                  f"v_and_b32 v{u+2}, s{sMASK16}, v{a+i}", f"v_and_b32 v{u+3}, s{sMASK16}, v{b+i}"]
        for i in (i0, i0 + 1):
            u = t + 4 * (i - i0)
            op = "v_sub_f32" if P["dif"] else "v_add_f32"
            r += [f"{op} v{u}, v{u}, v{u+1}", f"{op} v{u+2}, v{u+2}, v{u+3}"]
        for i in (i0, i0 + 1):
            u = t + 4 * (i - i0)
            r += [f"v_cvt_pk_bf16_f32 v{d+i}, v{u}, v{u+2}"]
    return r
def pks(op, d, a, b, neg=False, c=None):
    s = f"v_pk_{op}_f32 v[{d}:{d+1}], v[{a}:{a+1}], v[{b}:{b+1}]"
    if c is not None: s += f", v[{c}:{c+1}]"
    if neg: s += " neg_lo:[0,1] neg_hi:[0,1]"
    return s
def pk(*a, **k): A(pks(*a, **k))
def final_addr(base):
    b = base
    A(f"v_lshrrev_b32 v{b+4}, 3, v0")
    A(f"v_and_b32 v{b+6}, 7, v0")
    A(f"s_lshl_b32 s{sTMP}, s{sWAVE}, 5")
    A(f"v_add_u32 v{b+4}, s{sTMP}, v{b+4}")
    A(f"v_bfe_u32 v{b}, v0, 4, 1")
    A(f"v_lshl_or_b32 v{b}, v{b}, 3, v{b+6}")
    A(f"s_lshl_b32 s{sTMP}, s{sWAVE}, 1")
    A(f"s_and_b32 s{sTMP}, s{sTMP}, 7")
    A(f"v_xor_b32 v{b}, s{sTMP}, v{b}")
    A(f"v_lshlrev_b32 v{b}, 4, v{b}")
    A(f"v_lshl_add_u32 v{b}, v{b+4}, 8, v{b}")
    A(f"v_xor_b32 v{b+1}, 0x80, v{b}")
    A(f"v_xor_b32 v{b+2}, 0x10, v{b}")
    A(f"v_xor_b32 v{b+3}, 0x90, v{b}")
    A(f"v_lshlrev_b32 v{b+4}, 9, v{b+4}")
    A(f"v_lshl_add_u32 v{b+4}, v{b+6}, 4, v{b+4}")
    A(f"s_lshl_b32 s{sTMP}, s{sNT}, 7")
    A(f"v_add_u32 v{b+4}, s{sTMP}, v{b+4}")
    A(f"v_add_u32 v{b+5}, 0x2000, v{b+4}")
    A(f"v_lshlrev_b32 v{b+6}, 5, v{b+6}")
    A(f"v_add_u32 v{b+6}, {MISC+64}, v{b+6}")
FA = 244
Y = 112
def y_reads():
    for n in range(4):
        for h in range(2):
            A(f"ds_read_b128 v[{Y+8*n+4*h}:{Y+8*n+4*h+3}], v{FA + h + 2*(n >> 1)} offset:{n*2048}")

def krow(d, t):
    if not P["kmap"]:
        A(f"s_mov_b32 s{d}, s2"); return
    A(f"s_bfe_u32 s{d}, s2, 0x20001")
    A(f"s_lshl_b32 s{d}, s{d}, 5")
    A(f"s_lshr_b32 s{t}, s2, 3")
    A(f"s_add_u32 s{d}, s{d}, s{t}")
    A(f"s_lshl_b32 s{d}, s{d}, 1")
    A(f"s_and_b32 s{t}, s2, 1")
    A(f"s_add_u32 s{d}, s{d}, s{t}")
def sm_base():
    A(f"s_mul_i32 s96, s{sB}, {16000*512}")
    A(f"s_mul_i32 s97, s{sT}, {500*512}")
    A(f"s_add_u32 s96, s96, s97")
    A(f"s_lshl_b32 s97, s{sNT}, 16")
    A(f"s_add_u32 s96, s96, s97")
    A(f"s_lshl_b32 s97, s{sWAVE}, 14")
    A(f"s_add_u32 s96, s96, s97")
    A(f"s_min_u32 s96, s96, {X_BYTES - 16384}")
    A(f"s_add_u32 s96, s96, s32")
    A(f"s_addc_u32 s97, s33, 0")
def sm_list(spec):
    r = []
    for t in spec.split("+"):
        c = int(t[0])
        for h in t[1:]:
            r += [(c >> 1)*128 + (c & 1)*512 + (2*i + (h == "b"))*1024 + 60 for i in range(8)]
    return r
sm_n = [0]
def sm_emit(offs):
    for o in offs:
        A(f"s_load_dwordx2 s[{98 + 2*(sm_n[0] % 2)}:{99 + 2*(sm_n[0] % 2)}], s[96:97], {o}"); sm_n[0] += 1
stamp(0)
A("s_load_dwordx4 s[32:35], s[0:1], 0")
A("s_load_dwordx4 s[40:43], s[0:1], 40")
A("s_load_dwordx2 s[44:45], s[0:1], 56")
A("s_load_dwordx4 s[36:39], s[0:1], 24")
A("s_cmp_ge_u32 s2, 256")
A("s_cbranch_scc1 L_end")
A(f"v_readfirstlane_b32 s{sWAVE}, v0")
A("v_and_b32 v0, 63, v0")
A(f"s_and_b32 s{sT}, s2, 7")
A(f"s_lshl_b32 s{sT}, s{sT}, 3")
A(f"s_lshr_b32 s{sTMP}, s2, 5")
A(f"s_add_u32 s{sT}, s{sT}, s{sTMP}")
A(f"s_bfe_u32 s{sNT}, s2, 0x20003")
A(f"s_lshr_b32 s{sB}, s{sT}, 5")
A(f"s_and_b32 s{sT}, s{sT}, 31")
A(f"s_mov_b32 s{sMASK16}, 0xffff0000")
A(f"s_cmp_lt_u32 s{sWAVE}, 256")
A("s_cbranch_scc0 L_loader" if P["cfirst"] else "s_cbranch_scc1 L_compute")

cur[0] = "lpro"
LBL("L_loader")
vXG, vWG, vLIN, vLIN2, vU0, vFL, vZ, vTC = 1, 3, 4, 5, 6, 8, 9, 15
U0, U1, TT, FLG, NON, JUNK, GAM, VV = 16, 32, 48, 56, 64, 66, 68, 80
sTS, sTB = 24, 68
A(f"s_bfe_u32 s{sWAVE}, s{sWAVE}, 0x20006")
if P["fresh"]: A("s_memrealtime s[70:71]")
A(f"s_mul_i32 s{sXB}, s{sB}, {16000*512}")
A(f"s_mul_i32 s{sTMP}, s{sT}, {500*512}")
A(f"s_add_u32 s{sXB}, s{sXB}, s{sTMP}")
A("v_lshrrev_b32 v10, 3, v0")
A("v_and_b32 v11, 7, v0")
A("v_lshlrev_b32 v12, 4, v11")
A(f"v_lshl_add_u32 v{vXG}, v10, 11, v12")
A(f"s_lshl_b32 s{sXW}, s{sWAVE}, 16")
A(f"s_add_u32 s{sXO}, s{sXB}, s{sXW}")
A(f"s_mul_i32 s{sMX}, s{sWAVE}, {4*XB}")
A("v_bfe_u32 v13, v0, 4, 1")
A(f"s_and_b32 s{sTMP}, s{sWAVE}, 1")
A(f"s_lshl_b32 s{sTMP}, s{sTMP}, 1")
A(f"v_or_b32 v13, s{sTMP}, v13")
A("v_lshlrev_b32 v13, 5, v13")
A("v_xor_b32 v13, v13, v12")
A("v_lshl_add_u32 v13, v10, 9, v13")
A(f"s_lshl_b32 s{sTMP}, s{sNT}, 7")
A(f"s_lshl_b32 s{sM0}, s{sWAVE}, 12")
A(f"s_add_u32 s{sTMP}, s{sTMP}, s{sM0}")
A(f"v_add_u32 v{vWG}, s{sTMP}, v13")
A(f"s_lshl_b32 s{sM0}, s{sWAVE}, 10")
A(f"s_mov_b32 s{sWO}, 0")
A(f"v_mov_b32 v{vZ}, 0")
A(f"s_lshl_b32 s{sTMP}, s{sWAVE}, 4")
A(f"s_lshl_b32 s{sCNT}, s{sNT}, 6")
A(f"s_add_u32 s{sTMP}, s{sTMP}, s{sCNT}")
A(f"v_add_u32 v14, s{sTMP}, v0")
A(f"v_lshlrev_b32 v{vTC}, 10, v14")
A("s_waitcnt lgkmcnt(0)")
pstamp(1)
srd(sX, 32, X_BYTES)
srd(sW, 34, W_BYTES)
LK = sm_list(P["lk"]) if P["lk"] else []

TAPS = {("G00", 0): [0, 4, 8, 12], ("G11", 0): [2, 6, 10, 14], ("G00", 1): [1, 5, 9, 13], ("G11", 1): [3, 7, 11]}
def dw(lds, so, tap, hh):
    return [f"s_add_u32 m0, s{sM0}, {lds}",
            f"s_add_u32 s{sTMP}, s{so}, {tap*131072 + hh*16384}",
            f"buffer_load_dwordx4 v{vWG}, s[{sW}:{sW+3}], s{sTMP} offen" + (" nt" if (P["wnt"] == 2 or (P["wnt"] == 1 and cur[0] == "lpro")) else "") + " lds"]
def dma_w(slot, taps, ss=(0, 1, 2, 3), so=None):
    return [dw(slot*SLOT + WOFF + tile(hh, s), so or sWO, taps[s], hh) for hh in (0, 1) for s in ss if s < len(taps)]
def dma_wp(par, slot, spare0=False):
    r = []
    for hh in (0, 1):
        for s in range(4):
            dst = SPARE if (spare0 and hh == 0 and s == 3) else slot*SLOT + WOFF + tile(hh, s)
            r.append([f"s_add_u32 m0, s{sM0}, {dst}",
                      f"s_add_u32 s{sTMP}, s{sPO}, {WP_OFF + (par*4+s)*131072 + hh*16384}",
                      f"buffer_load_dwordx4 v{vWG}, s[{sWS}:{sWS+3}], s{sTMP} offen sc1 lds"])
    return r
def dma_x(slot, phi):
    nt_ = " nt" if (P["xnt"] == 2 or (P["xnt"] == 1 and cur[0] == "lpro")) else ""
    return [[f"s_add_u32 m0, s{sMX}, {slot*SLOT + j*XB}",
             f"s_add_u32 s{sTMP}, s{sXO}, {j*16384 + phi*512}",
             f"buffer_load_dwordx4 v{vXG}, s[{sX}:{sX+3}], s{sTMP} offen{nt_} lds"] for j in range(4)]
tl_n = [0]
def tail_g(slot, phi):
    k = tl_n[0]; tl_n[0] += 1
    return [f"s_cmp_lg_u32 s{sWAVE}, 0", f"s_cbranch_scc1 L_nt{k}",
            f"s_mov_b32 m0, {slot*SLOT + 16*XB}",
            f"s_add_u32 s{sTMP}, s{sXO}, {(512 + phi)*512}",
            "s_mov_b64 exec, 0xff",
            f"buffer_load_dwordx4 v{vXG}, s[{sX}:{sX+3}], s{sTMP} offen lds",
            "s_mov_b64 exec, -1", f"L_nt{k}:"]
def touch_g(dd, par, half="ab", const=False):
    if const:
        r = [f"s_add_u32 s{sTMP}, s{sXB}, {dd*128 + par*512}"]
    else:
        r = [f"s_cmp_lt_u32 s{sD}, {4 - dd}", f"s_cselect_b32 s{sCNT}, s{sXB}, {OOB}",
             f"s_lshl_b32 s{sTMP}, s{sD}, 7", f"s_add_u32 s{sTMP}, s{sTMP}, s{sCNT}", f"s_add_u32 s{sTMP}, s{sTMP}, {dd*128 + par*512}"]
    r.append(f"s_mov_b64 exec, {dict(ab=0xffff, a=0x5555, b=0xaaaa)[half]:#x}")
    r += [f"buffer_load_dword v{JUNK}, v{vTC}, s[{sX}:{sX+3}], s{sTMP} offen" + (" nt" if P["tnt"] else ""), "s_mov_b64 exec, -1"]
    return r
def emit_groups(gs):
    if P["nodma"]: return
    for g in gs:
        for s in g: A(s)
def mix(valu, gs):
    if P["nodma"]: gs = []
    n = len(gs)
    if not valu:
        emit_groups(gs); return
    pos = [(k * len(valu)) // n for k in range(n)] if n else []
    gi = 0
    for i, v in enumerate(valu):
        while gi < n and pos[gi] == i:
            for s in gs[gi]: A(s)
            gi += 1
        A(v)
def rd_u0(): return [f"ds_read_b128 v[{U0+4*j}:{U0+4*j+3}], v{vU0} offset:{j*XB}" for j in range(4)]
def rd_u1(lin, off): return [f"ds_read_b128 v[{U1+4*j}:{U1+4*j+3}], v{lin} offset:{off + j*XB}" for j in range(4)]
def wr_v(lin, off): return [f"ds_write_b128 v{lin}, v[{VV+4*j}:{VV+4*j+3}] offset:{off + j*XB}" for j in range(4)]
def vadd(js):
    r = []
    for j in js: r += addbf_list(VV+4*j, U1+4*j, U0+4*j, TT)
    return r
def hi(lst):
    if P["dsprio"]: A(f"s_setprio {P['dsprio']}")
    for d in lst: A(d)
    if P["dsprio"]: A(f"s_setprio {P['lprio']}")
def lsetup():
    A("v_lshlrev_b32 v13, 4, v0")
    A(f"v_add_u32 v{vLIN}, s{sMX}, v13")
    A(f"v_add_u32 v{vLIN2}, {2*SLOT}, v{vLIN}")
    A("v_cmp_eq_u32 vcc, 7, v10")
    A(f"v_add_u32 v{vU0}, 128, v{vLIN}")
    A(f"v_add_u32 v12, 160, v{vLIN}")
    A(f"v_cndmask_b32 v{vU0}, v{vU0}, v12, vcc")
    A(f"v_lshlrev_b32 v{vFL}, 3, v0")
    srd(sWS, 44, WS_BYTES)
    out_srd()
    granule_off()
    A(f"s_mov_b32 s{sWN}, 32768")
    A(f"s_mov_b32 s{sD}, 0")
    A(f"s_mov_b32 s{sPO}, 0")
    A(f"s_lshl_b32 s{sFO}, s{sWAVE}, 9")
    A(f"s_add_u32 s{sFO}, s{sFO}, {FL_OFF}")
    if P["lprio"]: A(f"s_setprio {P['lprio']}")
STG = {0: None, 1: None, 2: None, 3: None, 4: None}
w_ = dma_w(0, TAPS[("G00", 0)]); x_ = dma_x(0, 0)
STG[0] = [tail_g(0, 0) + x_[0]] + x_[1:2] + w_[:4] + x_[2:] + w_[4:]
if P["x1st"]: STG[0] = [tail_g(0, 0) + x_[0]] + x_[1:] + w_
STG[1] = dma_x(1, 2) + dma_w(1, TAPS[("G11", 0)])
x_ = dma_x(2, 1)
STG[2] = [tail_g(2, 1) + x_[0]] + x_[1:] + dma_w(2, TAPS[("G00", 1)])
STG[3] = dma_x(0, 3) + dma_w(0, TAPS[("G11", 1)]) + dma_w(0, TAPS[("G11", 0)], ss=(3,), so=sWN)
STG[4] = dma_wp(0, 1) + [dw(SPARE + hh*4096, sWN, TAPS[("G00", 0)][3], hh) for hh in (0, 1)]
qdone = []; issued = []; period = 0; seen = {k: 0 for k in STG}; mixv = []; pendg = []
def flush():
    global mixv, pendg
    mix(mixv, [g for _, g in pendg])
    if not P["nodma"]: issued.extend(k for k, _ in pendg)
    mixv = []; pendg = []
def wait_for(keys, extra=""):
    flush()
    last = max(i for i, k in enumerate(issued) if k in keys)
    A(f"s_waitcnt vmcnt({len(issued) - 1 - last}){extra}")
def flag_load(so): A(f"buffer_load_dwordx2 v[{FLG}:{FLG+1}], v{vFL}, s[{sWS}:{sWS+3}], {so} offen sc0 sc1")
def check_flags(name, so):
    A(f"s_mov_b32 s{sCNT}, {SPIN}")
    LBL(name)
    A(f"v_cmp_eq_u64 vcc, s[{sN0}:{sN1}], v[{FLG}:{FLG+1}]")
    A("s_cmp_eq_u64 vcc, -1")
    A(f"s_cbranch_scc1 {name}_ok")
    A(f"s_sub_u32 s{sCNT}, s{sCNT}, 1")
    A(f"s_cbranch_scc1 {name}_ok")
    flag_load(so)
    A("s_waitcnt vmcnt(0)")
    A(f"s_branch {name}")
    LBL(name + "_ok")
def nonce_load(): A(f"buffer_load_dwordx2 v[{NON}:{NON+1}], v{vZ}, s[{sDBG}:{sDBG+3}], 0 offen sc0 sc1")
if P["nodma"]: issued.extend([0, 1, 2, 3, 4])
for tok in P["pro"].split("."):
    if tok[0] == "D":
        f = tok[1:].split(":"); st = int(f[0]); gs = STG[st]
        lo, hi_ = (int(f[1]), int(f[2])) if len(f) > 1 else (seen[st], len(gs))
        assert lo == seen[st]; seen[st] = min(hi_, len(gs))
        assert st < 3 or period >= st - 1
        pendg += [(st, g) for g in gs[lo:hi_]]
        continue
    if tok[0] == "Q":
        if not qdone:
            flush(); qdone.append(1)
            A("v_and_b32 v14, 7, v0")
            A("v_lshlrev_b32 v14, 9, v14")
            A("v_bfe_u32 v2, v0, 3, 1")
            A("v_lshl_add_u32 v14, v2, 18, v14")
            A("v_bfe_u32 v2, v0, 4, 1")
            A("v_lshl_add_u32 v2, v2, 17, v14")
            A(f"s_lshr_b32 s{sTA}, s2, 6")
            A(f"s_lshl_b32 s{sTA}, s{sTA}, 5")
            A(f"s_bfe_u32 s{sTMP}, s2, 0x10005")
            A(f"s_add_u32 s{sTA}, s{sTA}, s{sTMP}")
            A(f"s_lshl_b32 s{sTA}, s{sTA}, 2")
            A(f"s_add_u32 s{sTA}, s{sTA}, s{sWAVE}")
            A(f"s_lshl_b32 s{sTA}, s{sTA}, 5")
            A(f"s_add_u32 s{sTA}, s{sTA}, s{sNT}")
            A(f"s_lshl_b32 s{sTA}, s{sTA}, 7")
        mask = sum(0xff << (8 * int(ch)) for ch in tok[1:])
        pendg.append(("t", [f"s_mov_b64 exec, {mask:#x}", f"buffer_load_dword v{JUNK}, v2, s[{sW}:{sW+3}], s{sTA} offen", "s_mov_b64 exec, -1"]))
        continue
    if tok[0] == "T":
        c = int(tok[1])
        if P["touch"]: pendg.append(("t", touch_g(c >> 1, c & 1, tok[2:], True)))
        continue
    flush()
    if tok[0] == "S":
        pstamp(2); lsetup()
    elif tok[0] == "Z":
        k = int(tok[1]); A(f"s_memrealtime s[{sST+2*k}:{sST+2*k+1}]")
    elif tok[0] == "X":
        for j in range(4):
            A(f"s_add_u32 s{sTMP}, s{sXO}, {j*16384 + 2048}")
            A(f"buffer_load_dwordx4 v[{U0+4*j}:{U0+4*j+3}], v{vXG}, s[{sX}:{sX+3}], s{sTMP} offen")
            A(f"s_add_u32 s{sTMP}, s{sXO}, {j*16384 + 1024}")
            A(f"buffer_load_dwordx4 v[{U1+4*j}:{U1+4*j+3}], v{vXG}, s[{sX}:{sX+3}], s{sTMP} offen")
            issued.extend(["x", "x"])
    elif tok[0] == "Y":
        wait_for(["x"])
    elif tok[0] == "K":
        n = int(tok[1:])
        if sm_n[0] == 0: sm_base()
        sm_emit(LK[:n]); del LK[:n]
    elif tok[0] == "N":
        srd(sDBG, 42, 256); nonce_load(); issued.append("n")
    elif tok[0] == "U":
        k4 = [i for i, k in enumerate(issued) if k == 1][3] if not P["nodma"] else len(issued) - 1
        A(f"s_waitcnt vmcnt({len(issued) - 1 - k4})")
        hi(rd_u1(vLIN, SLOT))
        A("s_waitcnt lgkmcnt(0)")
    elif tok[0] == "V":
        mixv = vadd(range(int(tok[1]), int(tok[2])))
    elif tok[0] == "F":
        assert period == (2 if P["lateack"] else 1)
        wait_for(["n"])
        A(f"s_mov_b32 s{sCNT}, {SPIN}")
        LBL("L_cn")
        A(f"v_readfirstlane_b32 s{sN0}, v{NON}")
        A(f"v_readfirstlane_b32 s{sN1}, v{NON+1}")
        if P["fresh"]:
            CM("a tag much older than this wave is re-read a few times (only matters if d_debug was not cleared)")
            A(f"s_sub_u32 s{sTMP}, s70, s{sN0}")
            A(f"s_cmp_lt_i32 s{sTMP}, 1000")
            A(f"s_cselect_b32 s{sTMP}, s{sN0}, 0")
            A(f"s_cmp_lt_u32 s{sCNT}, {SPIN - 256}")
            A(f"s_cselect_b32 s{sTMP}, s{sN0}, s{sTMP}")
            A(f"s_cmp_lg_u32 s{sTMP}, 0")
        else:
            A(f"s_cmp_lg_u32 s{sN0}, 0")
        A("s_cbranch_scc1 L_cn_ok")
        A(f"s_sub_u32 s{sCNT}, s{sCNT}, 1")
        A("s_cbranch_scc1 L_cn_ok")
        nonce_load()
        A("s_waitcnt vmcnt(0)")
        A("s_branch L_cn")
        LBL("L_cn_ok")
        krow(sTMP, sCNT)
        A(f"s_lshl_b32 s{sTMP}, s{sTMP}, 3")
        A(f"s_add_u32 s{sTMP}, s{sTMP}, {FL_OFF}")
        A(f"s_cmp_eq_u32 s{sWAVE}, 0")
        A(f"s_cselect_b32 s{sTMP}, s{sTMP}, {OOB}")
        A("s_mov_b64 exec, 1")
        A(f"buffer_store_dwordx2 v[{NON}:{NON+1}], v{vZ}, s[{sWS}:{sWS+3}], s{sTMP} offen sc0 sc1")
        A(f"v_mov_b32 v12, {MISC}")
        A(f"ds_write_b64 v12, v[{NON}:{NON+1}]")
        A("s_mov_b64 exec, -1")
        issued.append("f")
        pstamp(7)
    elif tok[0] == "G":
        A(f"s_mov_b32 s{sTA}, {FL_OFF}"); flag_load(f"s{sTA}"); issued.append("g")
    elif tok[0] == "C":
        wait_for(["g"])
        A(f"s_mov_b32 s{sTA}, {FL_OFF}")
        check_flags("L_spin0", f"s{sTA}")
    elif tok[0] == "W":
        assert period == 3
        hi(wr_v(vLIN, SLOT)[:P["wsplit"]] + rd_u0())
    elif tok[0] == "w":
        assert period == 3
        for d in wr_v(vLIN, SLOT)[:P["wsplit"]]: A(d)
    elif tok[0] == "r":
        assert period == 3
        for d in rd_u0(): A(d)
    elif tok[0] == "B":
        assert seen[period] == len(STG[period])
        if period == 0: pstamp(3)
        wait_for([period], " lgkmcnt(0)" if period >= 2 else "")
        if period == 0: pstamp(4)
        if period == 1:
            if "U" not in P["pro"].split(".") and "X" not in P["pro"].split(".") and not P["cv"]:
                for d in rd_u1(vLIN, SLOT): A(d)
            A("s_waitcnt lgkmcnt(0)")
            A(f"v_add_u32 v{vU0}, {2*SLOT}, v{vU0}")
        if period == 3:
            assert seen[4] == 10
            A("s_branch L_join")
            break
        A("s_barrier")
        if period < 2: pstamp(5 + period)
        period += 1
        CM(f"P({period-1})")
        if period == 1: pend_u0 = "X" not in P["pro"].split(".") and not P["cv"]
    if tok[0] in "FB" and period == 1 and pend_u0 and (tok[0] == "F" or P["lateack"]):
        hi(rd_u0()); pend_u0 = False
n_after_wp = len(issued) - 1 - max(i for i, k in enumerate(issued) if k == 4) + 2

cur[0] = "lloop"
lb_n = [0]
def lbar():
    k = lb_n[0]; lb_n[0] += 1
    if P["lst"] >= 0:
        A(f"s_cmp_lg_u32 s{sD}, {P['lst'] + 1}")
        A(f"s_cbranch_scc1 L_nb{k}")
        A(f"s_memtime s[{76+4*k}:{77+4*k}]")
        A("s_barrier")
        A(f"s_memtime s[{78+4*k}:{79+4*k}]")
        A(f"s_branch L_nc{k}")
        LBL(f"L_nb{k}")
        A("s_barrier")
        LBL(f"L_nc{k}")
    else:
        A("s_barrier")
nt = 1 if P["touch"] else 0
assert P["nodma"] or n_after_wp >= (0 if P['early2'] else 2) + nt, n_after_wp
assert P["nochk"] or P["vsplit"] <= P["wsplit"] <= P["vsplit"] + P["v1"] <= 4
LBL("L_lloop")
for par in (1, 0):
    npar = 1 - par
    CM(f"P(3c-1) par={par}")
    if par == 1:
        A(f"s_cmp_eq_u32 s{sD}, 3")
        A("s_cbranch_scc1 L_last")
    WV = wr_v(vLIN, SLOT)
    def endw(lst):
        if P["wq"] & 4: hi(lst)
        else:
            for d in lst: A(d)
    if P["wq"] & 1: hi(WV[:1])
    elif not P["wend"]: hi(wr_v(vLIN, SLOT)[:P["wsplit"]])
    if P["u0first"]: hi(rd_u0())
    early = [dw((SPARE if par == 1 else 2*SLOT + WOFF + tile(0, 3)) + hh*4096, sWN if par else sWO, TAPS[("G00", npar)][3], hh) for hh in (0, 1)]
    if P["early2"]: early = []
    ne = len(early)
    mix(vadd(range(P["vsplit"] + P["v1"], 4)), dma_wp(npar, 1) + early)
    if not P["u0first"]:
        for d in rd_u0(): A(d)
    if nt: emit_groups([touch_g(1, par)])
    if P["wend"] == 1: hi(wr_v(vLIN, SLOT)[:P["wsplit"]])
    if P["wend"] == 2:
        for d in wr_v(vLIN, SLOT)[:P["wsplit"]]: A(d)
    if P["wq"] & 1: endw(WV[1:2])
    A(f"s_waitcnt vmcnt({8 + ne + nt})")
    if par == 1: LBL("L_join")
    for d in rd_u1(vLIN, 0): A(d)
    A(f"s_mov_b32 s{sPO}, s{sWO}")
    if par == 1:
        A(f"s_add_u32 s{sD}, s{sD}, 1")
        A(f"s_mov_b32 s{sWO}, s{sWN}")
        A(f"s_add_u32 s{sWN}, s{sWN}, 32768")
        A(f"s_cmp_eq_u32 s{sD}, 3")
        A(f"s_cselect_b32 s{sWN}, {OOB}, s{sWN}")
        A(f"s_add_u32 s{sXO}, s{sXO}, 128")
    A("s_waitcnt lgkmcnt(0)")
    lbar()
    CM(f"P(3c) par={par}")
    if P["cv"] and par == 1:
        A(f"s_cmp_eq_u32 s{sD}, 1")
        A("s_cbranch_scc1 L_nolw")
    if P["wq"] & 2: hi(WV[2:3])
    elif not P["wend2"]: hi(wr_v(vLIN, SLOT)[P["wsplit"]:])
    if P["cv"] and par == 1: LBL("L_nolw")
    x_ = dma_x(2, npar)
    gs = [tail_g(2, npar) + x_[0]] + x_[1:] + dma_w(2, TAPS[("G00", npar)], ss=(0, 1, 2))
    mix(vadd(range(P["vsplit"])), gs)
    if P["wq"] & 2: endw(WV[3:4])
    if P["wend2"] == 1: hi(wr_v(vLIN, SLOT)[P["wsplit"]:])
    if P["wend2"] == 2:
        for d in wr_v(vLIN, SLOT)[P["wsplit"]:]: A(d)
    A(f"s_waitcnt vmcnt({10 + ne + nt}) lgkmcnt(0)")
    lbar()
    CM(f"P(3c+1) par={par}")
    gs = dma_x(0, 2 + npar) + dma_w(0, TAPS[("G11", npar)], ss=(0, 1, 2))
    if par == 0: gs += dma_w(0, TAPS[("G11", 0)], ss=(3,), so=sWN)
    if P["early2"]:
        gs += [dw((SPARE if par == 0 else 2*SLOT + WOFF + tile(0, 3)) + hh*4096, sWN if par == 0 else sWO, TAPS[("G00", par)][3], hh) for hh in (0, 1)]
    if par == 1:
        A(f"s_cmp_lg_u32 s{sD}, 1")
        A("s_cbranch_scc1 L_nf2")
        flag_load(f"s{sFO}")
        LBL("L_nf2")
    va = vadd(range(P["vsplit"], P["vsplit"] + P["v1"]))
    if P["burst1"]:
        k = len(va) * (P["burst1"] - 1) // 4
        mix(va[:k], gs)
        for t in va[k:]: A(t)
    else:
        mix(va, gs)
    A(f"s_waitcnt vmcnt({len(gs)})")
    if par == 1:
        A(f"s_cmp_lg_u32 s{sD}, 1")
        A("s_cbranch_scc1 L_spin1_ok")
        check_flags("L_spin1", f"s{sFO}")
    lbar()
A("s_branch L_lloop")

cur[0] = "llast"
LBL("L_last")
CM("P(20)")
hi(wr_v(vLIN, SLOT)[:P["wsplit"]])
mix(vadd(range(P["vsplit"] + P["v1"], 4)), dma_wp(0, 1))
for d in rd_u0(): A(d)
srd(sGA, 36, 512)
srd(sBE, 38, 512)
A("s_waitcnt vmcnt(8)")
for d in rd_u1(vLIN, 0): A(d)
A("s_waitcnt lgkmcnt(0)")
A("s_barrier")
CM("P(21)")
gs = dma_wp(1, 2, True)
hi(wr_v(vLIN, SLOT)[P["wsplit"]:])
mix(vadd(range(2)), gs[:5])
A("s_waitcnt lgkmcnt(0)")
mix(vadd(range(2, 3)), gs[5:])
A("s_waitcnt vmcnt(8)")
A("s_barrier")
CM("P(22)")
wv = wr_v(vLIN2, 0)
if P["l7"] == 0:
    for t in vadd(range(3, 4)): A(t)
    for d in wv: A(d)
elif P["l7"] == 1:
    va = vadd(range(3, 4))
    for k in range(3):
        A(wv[k])
        for t in va[k*len(va)//3:(k+1)*len(va)//3]: A(t)
    A(wv[3])
elif P["l7"] == 2:
    for t in vadd(range(3, 4)): A(t)
    hi(wv)
A("v_and_b32 v10, 15, v0")
A(f"s_lshl_b32 s{sTMP}, s{sNT}, 2")
A(f"s_add_u32 s{sTMP}, s{sTMP}, s{sWAVE}")
A(f"s_lshl_b32 s{sTMP}, s{sTMP}, 5")
A("v_lshlrev_b32 v14, 1, v10")
A(f"buffer_load_ushort v{GAM}, v14, s[{sGA}:{sGA+3}], s{sTMP} offen")
A(f"buffer_load_ushort v{GAM+1}, v14, s[{sBE}:{sBE+3}], s{sTMP} offen")
A("s_waitcnt vmcnt(2) lgkmcnt(0)")
A("s_barrier")
A("v_lshrrev_b32 v11, 4, v0")
A("v_lshlrev_b32 v12, 4, v10")
A("v_lshl_add_u32 v12, v11, 10, v12")
A(f"s_lshl_b32 s{sTMP}, s{sWAVE}, 6")
A(f"s_add_u32 s{sTMP}, s{sTMP}, {MISC+64}")
A(f"v_lshl_add_u32 v10, v10, 2, s{sTMP}")
if P["lprio"]: A("s_setprio 0")
A(f"s_add_u32 s{sWAVE}, s{sWAVE}, 4")
final_addr(FA)
A("s_waitcnt vmcnt(0)")
A(f"v_lshlrev_b32 v{GAM}, 16, v{GAM}")
A(f"v_lshlrev_b32 v{GAM+1}, 16, v{GAM+1}")
k0 = -2.0 * math.sqrt(2.0 / math.pi) * math.log2(math.e)
k1 = k0 * 0.044715
gam3 = -((-k1) ** (1.0 / 3.0))
if P["g5"]:
    A(f"v_mul_f32 v{GAM}, {f32(gam3)}, v{GAM}")
    A(f"v_mul_f32 v{GAM+1}, {f32(gam3)}, v{GAM+1}")
if not P["peel"]: A("s_barrier")
A("s_barrier")
stamp(1)
PG = 16
A(f"s_mov_b32 s{sCNT}, {SPIN}")
if not P["mg"]: y_reads()
if P["spoll"]:
    for i in range(8):
        A(f"s_add_u32 s{84+i}, s{sGR}, {i*4096}")
    def pl(i): A(f"buffer_load_dwordx4 v[{PG+4*i}:{PG+4*i+3}], v12, s[{sWS}:{sWS+3}], s{84+i} offen sc0 sc1")
    for i in range(8): pl(i)
    for i in range(8):
        A(f"s_waitcnt vmcnt({7-i})")
        LBL(f"L_pc{i}")
        A(f"v_cmp_eq_u64 vcc, s[{sN0}:{sN1}], v[{PG+4*i+2}:{PG+4*i+3}]")
        A("s_cmp_eq_u64 vcc, -1")
        A(f"s_cbranch_scc0 L_pr{i}")
        LBL(f"L_pd{i}")
else:
    LBL("L_poll")
    for i in range(8):
        so = f"s{sGR}" if i == 0 else f"s{sTMP}"
        if i: A(f"s_add_u32 s{sTMP}, s{sGR}, {i*4096}")
        A(f"buffer_load_dwordx4 v[{PG+4*i}:{PG+4*i+3}], v12, s[{sWS}:{sWS+3}], {so} offen " + ("sc1" if P["pfl"] & 1 else "sc0 sc1"))
    A(f"s_mov_b64 s[{sTA}:{sTA+1}], -1")
    for i in range(8):
        A(f"s_waitcnt vmcnt({7-i})")
        A(f"v_cmp_eq_u64 vcc, s[{sN0}:{sN1}], v[{PG+4*i+2}:{PG+4*i+3}]")
        A(f"s_and_b64 s[{sTA}:{sTA+1}], s[{sTA}:{sTA+1}], vcc")
    A(f"s_sub_u32 s{sCNT}, s{sCNT}, 1")
    A("s_cbranch_scc1 L_poll_ok")
    A(f"s_cmp_eq_u64 s[{sTA}:{sTA+1}], -1")
    if P["psl"]:
        A("s_cbranch_scc1 L_poll_ok")
        A(f"s_sleep {P['psl']}")
        A("s_branch L_poll")
    else:
        A("s_cbranch_scc0 L_poll")
LBL("L_poll_ok")
stamp(2)
for st in (4, 2, 1):
    for i in range(st):
        pk("add", PG+4*i, PG+4*i, PG+4*(i+st))
for sw in ("v_permlane32_swap_b32", "v_permlane16_swap_b32"):
    A(f"v_mov_b32 v{PG+2}, v{PG}")
    A(f"v_mov_b32 v{PG+3}, v{PG+1}")
    A("s_nop 1")
    A(f"{sw} v{PG}, v{PG+2}")
    A(f"{sw} v{PG+1}, v{PG+3}")
    A("s_nop 1")
    pk("add", PG, PG, PG+2)
A(f"v_mul_f32 v{PG}, {f32(1.0/7993)}, v{PG}")
A(f"v_mul_f32 v{PG+1}, {f32(1.0/7993)}, v{PG+1}")
A(f"v_fma_f32 v{PG+1}, -v{PG}, v{PG}, v{PG+1}")
A(f"v_max_f32 v{PG+1}, 0, v{PG+1}")
A(f"v_add_f32 v{PG+1}, {f32(1e-5)}, v{PG+1}")
A(f"v_rsq_f32 v{PG+1}, v{PG+1}")
A("s_nop 0")
A(f"v_mul_f32 v{PG+1}, v{PG+1}, v{GAM}")
A(f"ds_write_b32 v10, v{PG+1}")
A(f"v_fma_f32 v{PG}, -v{PG}, v{PG+1}, v{GAM+1}")
A(f"ds_write_b32 v10, v{PG} offset:256")

if P["spoll"]:
    cur[0] = "cepi"
    for i in range(8):
        LBL(f"L_pr{i}")
        A(f"s_sub_u32 s{sCNT}, s{sCNT}, 1")
        A(f"s_cbranch_scc1 L_pd{i}")
        pl(i)
        for k in range(i + 1, min(i + 1 + P["spoll"] - 1, 8)): pl(k)
        A("s_waitcnt vmcnt(0)")
        A(f"s_branch L_pc{i}")
    tail_cepi = SEC["cepi"]; SEC["cepi"] = []
cur[0] = "final"
LBL("L_final")
k0 = -2.0 * math.sqrt(2.0 / math.pi) * math.log2(math.e)
k1 = k0 * 0.044715
A(f"s_mov_b32 s{sK+2}, {f32(gam3 if P['g5'] else k1)}")
A(f"s_mov_b32 s{sK+3}, {f32(gam3 if P['g5'] else k1)}")
A(f"s_mov_b32 s{sK+4}, 4096")
A(f"v_mov_b32 v56, {f32(k0/gam3 if P['g5'] else k0)}")
A(f"v_mov_b32 v57, {f32(k0/gam3 if P['g5'] else k0)}")
A("s_waitcnt lgkmcnt(0)")
A("s_barrier")
stamp(4)
CA, CC = 16, 24
A(f"ds_read_b128 v[{CA}:{CA+3}], v{FA+6}")
A(f"ds_read_b128 v[{CC}:{CC+3}], v{FA+6} offset:256")
A(f"ds_read_b128 v[{CA+4}:{CA+7}], v{FA+6} offset:16")
A(f"ds_read_b128 v[{CC+4}:{CC+7}], v{FA+6} offset:272")
Z, U = 32, 40
if P["mg"]: y_reads()
for n in range(4):
    y = Y + 8 * n
    for h in range(0, 8, 2):
        if P["mg"]:
            if h == 0: A(f"s_waitcnt lgkmcnt({6 - 2*n})")
        elif n == 0 and h in (0, 4): A(f"s_waitcnt lgkmcnt({2 if h == 0 else 0})")
        pk("fma", y+h, y+h, CA+h, c=CC+h)
    if P["g5"]:
        for h in range(0, 8, 2): pk("fma", U+h, y+h, y+h, c=56)
    else:
        for h in range(0, 8, 2): pk("mul", U+h, y+h, y+h)
        for h in range(0, 8, 2): A(f"v_pk_fma_f32 v[{U+h}:{U+h+1}], v[{U+h}:{U+h+1}], s[{sK+2}:{sK+3}], v[56:57]")
    for h in range(0, 8, 2): pk("mul", U+h, U+h, y+h)
    for h in range(8): A(f"v_exp_f32 v{U+h}, v{U+h}")
    for h in range(0, 8, 2):
        if P["g5"]: A(f"v_pk_fma_f32 v[{U+h}:{U+h+1}], v[{U+h}:{U+h+1}], s[{sK+2}:{sK+3}], s[{sK+2}:{sK+3}]")
        else: A(f"v_pk_add_f32 v[{U+h}:{U+h+1}], v[{U+h}:{U+h+1}], 1.0 op_sel_hi:[1,0]")
    for h in range(8): A(f"v_rcp_f32 v{U+h}, v{U+h}")
    for h in range(0, 8, 2): pk("mul", y+h, y+h, U+h)
    o = Z + 4 * (n & 1)
    for h in range(4): A(f"v_cvt_pk_bf16_f32 v{o+h}, v{y+2*h}, v{y+2*h+1}")
    A(f"buffer_store_dwordx4 v[{o}:{o+3}], v{FA+4 if n < 2 else FA+5}, s[{sO}:{sO+3}], {'0' if n % 2 == 0 else 's'+str(sK+4)} offen" + ["", " nt", " sc1", " sc0 sc1", " sc1 nt"][P["stf"]])
if P["stamps"]:
    stamp(5)
    A("s_waitcnt vmcnt(0)")
    stamp(6)
    A("s_waitcnt lgkmcnt(0)")
    A(f"s_mov_b32 s{sWS+2}, 0x1000000")
    A(f"s_lshl_b32 s{sTMP}, s2, 3")
    A(f"s_add_u32 s{sTMP}, s{sTMP}, s{sWAVE}")
    A(f"s_lshl_b32 s{sTMP}, s{sTMP}, 5")
    A(f"s_add_u32 s{sTMP}, s{sTMP}, 0x200000")
    A("v_mov_b32 v1, 0")
    if plain and not P["pst"]: A("s_sub_u32 s90, s94, s92")
    for k in range(8): A(f"v_mov_b32 v{2+k}, s{sST+(k if P['cst'] else 2*k)}")
    A("s_mov_b64 exec, 1")
    if P["sst"] >= 0:
        for k in range(12): A(f"v_mov_b32 v{2+k}, v{MS+k}") if False else None
    if P["lst"] >= 0 or P["cst"] or P["sst"] >= 0:
        if P["sst"] >= 0:
            for k in range(12): A(f"v_readlane_b32 s{76+k}, v255, {k}")
            A("s_nop 1")
            for k in range(12): A(f"v_mov_b32 v{2+k}, s{76+k}")
        else:
            for k in range(4): A(f"v_mov_b32 v{10+k}, s{sST+8+k if P['cst'] else sST+16+2*k}")
        A(f"s_add_u32 s{sCNT}, s{sTMP}, 0x100000")
        A(f"buffer_store_dwordx4 v[10:13], v1, s[{sWS}:{sWS+3}], s{sCNT} offen")
    A(f"buffer_store_dwordx4 v[2:5], v1, s[{sWS}:{sWS+3}], s{sTMP} offen")
    A(f"buffer_store_dwordx4 v[6:9], v1, s[{sWS}:{sWS+3}], s{sTMP} offen offset:16")
if P["dbgt"]:
    A(f"s_cmp_lg_u32 s{sWAVE}, 0")
    A("s_cbranch_scc1 L_end")
    A("s_cmp_eq_u32 s2, 0")
    A(f"s_cselect_b32 s{sTMP}, 8, 36")
    A("s_cbranch_scc1 L_dd")
    A("s_cmp_lg_u32 s2, 77")
    A("s_cbranch_scc1 L_end")
    LBL("L_dd")
    for k in range(1, 7): A(f"v_subrev_u32 v{2+k}, v2, v{2+k}")
    A(f"buffer_store_dwordx4 v[2:5], v1, s[{sDBG}:{sDBG+3}], s{sTMP} offen")
    A(f"buffer_store_dwordx3 v[6:8], v1, s[{sDBG}:{sDBG+3}], s{sTMP} offen offset:16")
LBL("L_end")
A("s_endpgm")

cur[0] = "cp0" if P["cfirst"] else "cpro"
if not P["cfirst"]: LBL("L_compute")
G00, G11, GS = 16, 48, 80
SETS = [112, 172]
def vXR(role): return 1 + 2 * role
def vWR(role): return 2 + 2 * role
vW3, vW3C, vGA, vYW = 7, 8, 9, 10
T = 232
CWA, CWB = 112, 116
TP = 160 if P["cv"] else T
CU0, CU1, vCX, vCL = 128, 144, 168, 251
CV = [232, 236, 240, 12]
A(f"s_lshr_b32 s{sWAVE}, s{sWAVE}, 6")
A(f"s_memrealtime s[{sN0}:{sN1}]")
A(f"v_lshrrev_b32 v{TP}, 5, v0")
A(f"s_lshl_b32 s{sTMP}, s{sWAVE}, 1")
A(f"v_add_u32 v{TP}, s{sTMP}, v{TP}")
A(f"v_and_b32 v{TP+1}, 31, v0")
A(f"v_lshlrev_b32 v{TP+1}, 4, v{TP+1}")
krow(sTMP, sCNT)
A(f"s_lshl_b32 s{sTMP}, s{sTMP}, 9")
A(f"v_add_u32 v{TP+1}, s{sTMP}, v{TP+1}")
A(f"v_lshl_add_u32 v{TP+2}, v{TP}, 17, v{TP+1}")
A(f"v_and_b32 v{TP}, 3, v{TP}")
A(f"v_lshl_add_u32 v{TP+1}, v{TP}, 19, v{TP+1}")
A(f"s_lshr_b32 s{sWO}, s{sWAVE}, 1")
A(f"s_lshl_b32 s{sWO}, s{sWO}, 17")
A(f"s_add_u32 s{sWN}, s{sWO}, {2*131072}")
if P["cv"]:
    A(f"v_lshrrev_b32 v{vCX}, 3, v0")
    A(f"v_and_b32 v{vCX+1}, 7, v0")
    A(f"v_lshlrev_b32 v{vCX+1}, 4, v{vCX+1}")
    A(f"v_lshl_add_u32 v{vCX}, v{vCX}, 11, v{vCX+1}")
    A(f"s_mul_i32 s{sXB}, s{sB}, {16000*512}")
    A(f"s_mul_i32 s{sTMP}, s{sT}, {500*512}")
    A(f"s_add_u32 s{sXB}, s{sXB}, s{sTMP}")
    A(f"s_lshl_b32 s{sTMP}, s{sWAVE}, 16")
    A(f"s_add_u32 s{sXB}, s{sXB}, s{sTMP}")
A("s_waitcnt lgkmcnt(0)")
srd(sW, 34, W_BYTES)
if P["pq"]:
    A(f"s_cmp_eq_u32 s{sWAVE}, 0")
    A(f"s_cselect_b32 s{sW+2}, s{sW+2}, 0")
def p_loads():
    A(f"buffer_load_dwordx4 v[{CWA}:{CWA+3}], v{TP+1}, s[{sW}:{sW+3}], s{sWO} offen" + (" nt" if P["pnt"] else ""))
    A(f"buffer_load_dwordx4 v[{CWB}:{CWB+3}], v{TP+1}, s[{sW}:{sW+3}], s{sWN} offen" + (" nt" if P["pnt"] else ""))
if not P["pdel"]: p_loads()
if P["pdel"] == 2:
    A("s_and_b32 s54, s2, 6")
    A("s_cmp_lg_u32 s54, 0")
    A("s_cbranch_scc1 L_pd1")
    p_loads()
    LBL("L_pd1")
def c_split():
    A("s_branch L_compute")
    cur[0] = "cpro"
    LBL("L_compute")
if P["cfirst"] == 1: c_split()
def cx_loads():
    srd(sX, 32, X_BYTES)
    for j in range(4):
        A(f"s_add_u32 s{sTMP}, s{sXB}, {j*16384 + 2048}")
        A(f"buffer_load_dwordx4 v[{CU0+4*j}:{CU0+4*j+3}], v{vCX}, s[{sX}:{sX+3}], s{sTMP} offen")
        A(f"s_add_u32 s{sTMP}, s{sXB}, {j*16384 + 1024}")
        A(f"buffer_load_dwordx4 v[{CU1+4*j}:{CU1+4*j+3}], v{vCX}, s[{sX}:{sX+3}], s{sTMP} offen")
if P["cv"] == 1: cx_loads()
SK = sm_list(P["sk"]) if P["sk"] else []
if SK: sm_base(); sm_emit(SK[:7]); del SK[:7]
srd(sDBG, 42, 256)
A(f"s_or_b32 s{sTMP}, s2, s{sWAVE}")
A(f"s_cmp_lg_u32 s{sTMP}, 0")
A("s_cbranch_scc1 L_nononce")
A(f"s_or_b32 s{sN0}, s{sN0}, 1")
A(f"v_mov_b32 v{TP+3}, 0")
A(f"v_mov_b32 v{TP+6}, s{sN0}")
A(f"v_mov_b32 v{TP+7}, s{sN1}")
A("s_mov_b64 exec, 1")
A(f"buffer_store_dwordx2 v[{TP+6}:{TP+7}], v{TP+3}, s[{sDBG}:{sDBG+3}], 0 offen sc0 sc1")
A("s_mov_b64 exec, -1")
LBL("L_nononce")
if P["cfirst"] == 2: c_split()
if P["cpf"]:
    A(f"s_cmp_lg_u32 s{sWAVE}, 1")
    A("s_cbranch_scc1 L_nocpf")
    A("s_getpc_b64 s[74:75]")
    LBL("L_pc")
    A(f"s_lshr_b32 s{sTMP}, s2, 3")
    A(f"s_lshl_b32 s{sTMP}, s{sTMP}, 9")
    A(f"s_add_u32 s74, s74, s{sTMP}")
    A("s_addc_u32 s75, s75, 0")
    A(f"s_sub_u32 s74, s74, L_pc-{KN}")
    A("s_subb_u32 s75, s75, 0")
    A(f"v_lshlrev_b32 v{TP+4}, 7, v0")
    A("s_mov_b64 exec, 15")
    A(f"global_load_dword v{TP+5}, v{TP+4}, s[74:75]")
    A("s_mov_b64 exec, -1")
    LBL("L_nocpf")
if P["warm"]:
    CM("visit one instruction in every later code page while the first loads are in flight")
    A("s_branch L_warm0")
    LBL("L_warmret")
srd(sWS, 44, WS_BYTES)
A(f"s_mov_b32 s{sPO}, {WP_OFF}")
out_srd()
A(f"s_mov_b32 s{sMID}, 0x7fff7fff")
A(f"s_cselect_b32 s{sMID}, s{sMID}, -1")
A(f"s_mov_b32 s{sMID+1}, s{sMID}")
granule_off()
A(f"s_lshl_b32 s{sTMP}, s{sT}, 10")
A(f"s_add_u32 s{sGR}, s{sGR}, s{sTMP}")
R, G_, X1, X2 = 120, 121, 122, 124
A(f"v_and_b32 v{R}, 15, v0")
A(f"v_lshrrev_b32 v{G_}, 4, v0")
A(f"v_mul_u32_u24 v{X1}, {XB}, v{R}")
A(f"v_lshl_add_u32 v{vXR(0)}, v{G_}, 4, v{X1}")
A(f"v_bfe_u32 v{X2}, v0, 2, 2")
A(f"v_lshl_add_u32 v{X1}, v{G_}, 3, v{X2}")
A(f"v_lshlrev_b32 v{X1}, 7, v{X1}")
A(f"v_lshrrev_b32 v{X2}, 1, v{X2}")
A(f"v_and_b32 v{X2+1}, 1, v{G_}")
A(f"v_lshl_or_b32 v{X2}, v{X2+1}, 1, v{X2}")
A(f"v_xor_b32 v{X2}, s{sWAVE}, v{X2}")
A(f"v_lshl_add_u32 v{X1}, v{X2}, 5, v{X1}")
A(f"v_and_b32 v{X2}, 3, v0")
A(f"v_lshl_add_u32 v{X1}, v{X2}, 3, v{X1}")
A(f"v_add_u32 v{vWR(0)}, {WOFF}, v{X1}")
A(f"v_add_u32 v{vW3}, {WOFF + tile(0,3)}, v{X1}")
A(f"v_lshlrev_b32 v{vW3C}, 1, v{X1}")
A(f"v_add_u32 v{vW3C}, {2*SLOT + WOFF + tile(0,3) + SPARE}, v{vW3C}")
for k in (1, 2):
    A(f"v_add_u32 v{k+2}, {SLOT}, v{k}")
    A(f"v_add_u32 v{k+4}, {2*SLOT}, v{k}")
if P["red"]:
    CM("after the reduce-scatter lane r of group g holds channel 4g + (r>>2)")
    A(f"v_lshrrev_b32 v{X1}, 2, v{R}")
    A(f"v_lshl_add_u32 v{vGA}, v{G_}, 2, v{X1}")
else:
    A(f"v_lshl_add_u32 v{vGA}, v{G_}, 2, v{R}")
A(f"v_lshlrev_b32 v{vGA}, 4, v{vGA}")
A(f"s_lshl_b32 s{sTMP}, s{sWAVE}, 2")
A(f"v_add_u32 v{X1}, s{sTMP}, v{G_}")
A(f"v_lshrrev_b32 v{X2}, 1, v{X1}")
A(f"v_and_b32 v{X1}, 1, v{X1}")
A(f"v_lshl_or_b32 v{X1}, v{X1}, 3, v{X2}")
A(f"v_and_b32 v{X2}, 7, v{R}")
A(f"v_xor_b32 v{X1}, v{X1}, v{X2}")
A(f"v_lshlrev_b32 v{X1}, 4, v{X1}")
A(f"v_lshl_add_u32 v{vYW}, v{R}, 12, v{X1}")
A(f"v_xor_b32 v{vYW+1}, 0x80, v{vYW}")
final_addr(FA)
for i in range(0, 96, 2):
    A(f"v_pk_mov_b32 v[{16+i}:{17+i}], 0, 0")
if P["cv"]:
    A(f"s_mul_i32 s{sTMP}, s{sWAVE}, {4*XB}")
    A(f"s_add_u32 s{sTMP}, s{sTMP}, {SLOT}")
    A(f"v_lshl_add_u32 v{vCL}, v0, 4, s{sTMP}")
if P["pdel"] == 1: p_loads()
if P["pdel"] == 2:
    A("s_cmp_eq_u32 s54, 0")
    A("s_cbranch_scc1 L_pd2")
    p_loads()
    LBL("L_pd2")
sm_emit(SK[:9]); del SK[:9]
if P["cv"] == 2: cx_loads()
A(f"s_waitcnt vmcnt({8 if P['cv'] else 0})")
for t in addbf_list(CWA, CWA, CWB, 224, True): A(t)
A(f"buffer_store_dwordx4 v[{CWA}:{CWA+3}], v{TP+2}, s[{sWS}:{sWS+3}], s{sPO} offen sc0 sc1")
if P["cv"]:
    for j in range(4):
        A(f"s_waitcnt vmcnt({1 + 2*(3-j) if P['cv'] == 2 else 1})") if (j == 0 or P["cv"] == 2) else None
        for t in addbf_list(CV[j], CU1+4*j, CU0+4*j, 224, True): A(t)
nct = 0
def c_touch():
    global nct
    if not P["ct"]: return
    if not P["cv"]:
        srd(sX, 32, X_BYTES)
    A(f"s_mul_i32 s{sXO}, s{sB}, {16000*512}")
    A(f"s_mul_i32 s{sTMP}, s{sT}, {500*512}")
    A(f"s_add_u32 s{sXO}, s{sXO}, s{sTMP}")
    A(f"s_lshl_b32 s{sTMP}, s{sWAVE}, 4")
    A(f"s_lshl_b32 s{sCNT}, s{sNT}, 6")
    A(f"s_add_u32 s{sTMP}, s{sTMP}, s{sCNT}")
    A(f"v_add_u32 v252, s{sTMP}, v0")
    A(f"v_lshlrev_b32 v252, 10, v252")
    for t in P["ct"].split("+"):
        c = int(t[0])
        A(f"s_add_u32 s{sTMP}, s{sXO}, {(c >> 1)*128 + (c & 1)*512}")
        A(f"s_mov_b64 exec, {dict(ab=0xffff, a=0x5555, b=0xaaaa)[t[1:]]:#x}")
        A(f"buffer_load_dword v253, v252, s[{sX}:{sX+3}], s{sTMP} offen")
        nct += 1
    A("s_mov_b64 exec, -1")
c_touch()
sm_emit(SK)
if P["sk"]: A("s_waitcnt lgkmcnt(0)")
if P["prio"]: A(f"s_setprio {P['prio']}")
if not P["lateack"]: A(f"s_waitcnt vmcnt({nct})")

def reads(role, hh, st, ndpp=0, last=False):
    xb = SETS[st]; wb = xb + 44
    def xr(q): return (("X", q), f"ds_read_b128 v[{xb+4*q}:{xb+4*q+3}], v{vXR(role)} offset:{(q & 7)*128 + hh*64 + (XB if q > 7 else 0)}")
    def wr(s, h):
        if role == 0 and s == 3 and not last:
            return (("W", s), f"ds_read_b64_tr_b16 v[{wb+4*s+2*h}:{wb+4*s+2*h+1}], v{vW3} offset:{hh*4096 + h*512}")
        return (("W", s), f"ds_read_b64_tr_b16 v[{wb+4*s+2*h}:{wb+4*s+2*h+1}], v{vWR(role)} offset:{tile(hh, s) + h*512}")
    if role == 1 and P["u3"]:
        r = [wr(0, 0), wr(0, 1), xr(0), wr(1, 0), wr(1, 1), xr(1), wr(2, 0), wr(2, 1)] + [xr(q) for q in range(2, 10)] + [wr(3, 0), wr(3, 1), xr(10)]
    else:
        r = [wr(0, 0), wr(0, 1), xr(0), wr(1, 0), wr(1, 1)] + [xr(q) for q in range(1, 9)] + [wr(2, 0), wr(2, 1), wr(3, 0), wr(3, 1), xr(9), xr(10)]
    dq = list(range(11 - ndpp, 11))
    r = [e for e in r if not (e[0][0] == "X" and e[0][1] in dq)]
    d = [f"v_mov_b32_dpp v{xb+4*q+i}, v{xb+4*(q-8)+i} row_shl:1 row_mask:0xf bank_mask:0xf bound_ctrl:0" for q in dq for i in range(4)]
    return r, d
def mfma_list(acc, st, split3=False):
    xb = SETS[st]; wb = xb + 44
    pairs = []
    if split3 and P["u3"]:
        pairs = [(s, j) for j in range(8) for s in ((0, 1, 2) if j % 2 == 0 else (2, 1, 0))] + [(3, j) for j in range(8)]
    else:
        for s0 in ((0,) if split3 else (0, 2)):
            for q in range(s0, s0 + 9):
                for s in (s0 + 1, s0):
                    if 0 <= q - s < 8: pairs.append((s, q - s))
        if split3: pairs += [(s, j) for s in (2, 3) for j in range(8)]
    out = []
    for s, j in pairs:
        d = f"v[{acc+4*j}:{acc+4*j+3}]"
        out.append(([("W", s), ("X", j+s)], f"v_mfma_f32_16x16x32_bf16 {d}, v[{wb+4*s}:{wb+4*s+3}], v[{xb+4*(j+s)}:{xb+4*(j+s)+3}], {d}"))
    return out
pending = []
ss_n = [0]
def sstamp():
    if P["sst"] < 0 or ss_n[0] >= 12: return
    k = ss_n[0]; ss_n[0] += 1
    A(f"s_memtime s[{76+2*k}:{77+2*k}]")
def seq(acc, st, rdd, barrier, skip_label=None, extra=None, delay=0, vm0=False, pre=(), c0tail=None):
    global pending
    rd, dpp = rdd
    pre = list(pre)
    nm = 24 if skip_label else 32
    m = mfma_list(acc, st, skip_label is not None)
    rd = [] if P["nords"] else list(rd)
    dpp = list(dpp)
    first = max(P["barslot"], delay) if barrier else 0
    if dpp:
        first = min(first, nm - len(rd) - len(dpp) - 0) if barrier else first
        first = max(first, P["barslot"]) if barrier else first
        last = first + len(rd) - 1
    else:
        last = max(min(first + len(rd) if barrier else P["rdA"], nm - P["rd_gap"]), first + len(rd) - 1) if rd else 0
    slots = [first + (k * (last - first)) // max(len(rd) - 1, 1) for k in range(len(rd))]
    dslots = [min(last + 1 + len(pre) + k, nm - 1) for k in range(len(dpp))]
    if pre:
        extra = dict(extra or {})
        for k, t in enumerate(pre): extra.setdefault(last + 1 + k, []).append(t)
    cur_ = list(pending); newer = 0; nxt = []; nd = 0
    for i, (need, ins) in enumerate(m):
        if i == 24 and skip_label:
            A(f"s_cbranch_scc1 {skip_label}")
            if c0tail:
                A(f"s_cmp_eq_u32 s{sCNT}, 0")
                A("s_cbranch_scc1 L_cfirst")
                c0tail.extend(x for _, x in m[24:])
        W_ = 8 if P["w8"] else 16
        if i % W_ == 0 or (skip_label and i == 24):
            need = [k for nd_, _ in m[i:i+W_ if not (skip_label and i == 16) else 24] for k in nd_]
            if barrier and i == 0: need = [k for nd_, _ in m[:P["barslot"]+1] for k in nd_]
            idx = max([k for k, key in enumerate(cur_) if key in need], default=-1)
            if idx >= 0:
                n = len(cur_) - 1 - idx + newer
                if n < 15: A(f"s_waitcnt lgkmcnt({n})")
                cur_ = cur_[idx+1:]
        A(ins)
        if barrier and i == P["barslot"]:
            if cur_ or vm0: A("s_waitcnt" + (" vmcnt(0)" if vm0 else "") + " lgkmcnt(0)"); cur_ = []
            sstamp()
            A("s_barrier")
            sstamp()
        while rd and slots[len(nxt)] <= i:
            key, s = rd.pop(0); A(s); nxt.append(key); newer += 1
        while nd < len(dpp) and dslots[nd] <= i:
            if nd == 0:
                k = max(nxt.index(("X", q)) for q in range(3) if ("X", q) in nxt)
                A(f"s_waitcnt lgkmcnt({min(len(nxt) - 1 - k, 15)})")
            A(dpp[nd]); nd += 1
        if extra and i in extra:
            for s in extra[i]: A(s)
    assert not rd and nd == len(dpp)
    if skip_label: LBL(skip_label)
    pending = nxt
    sstamp()
A("s_barrier")
if P["sst0"]: A("s_memtime s[98:99]")
stamp(1)
if plain: A("s_memtime s[92:93]"); A("s_waitcnt lgkmcnt(0)")
D2, D3 = (2 if P["dpp"] else 0), (3 if P["dpp"] else 0)
r0, _ = reads(0, 0, 0)
for _, s in r0: A(s)
LATE = reads(0, 0, 0, 2)[1] if P["dpp"] & 8 else []
pending = [k for k, _ in reads(0, 0, 0, D2 if P["dpp"] & 12 else 0)[0]]
loop_entry = list(pending)
A(f"s_mov_b32 s{sCNT}, 0")
if P["dpp"] & 12: A("s_waitcnt lgkmcnt(0)")
A("s_branch L_cloop")

cur[0] = "cloop"
def cstamp(idx=None):
    if not P["cst"]: return
    A("s_memtime s[100:101]")
    A("s_waitcnt lgkmcnt(0)")
    if idx is None:
        A(f"s_mov_b32 m0, s{sCNT}")
        A("s_nop 0")
        A("s_movreld_b32 s76, s100")
    else:
        A(f"s_mov_b32 s{76+idx}, s100")
LBL("L_cloop")
if P["sst"] >= 0:
    A(f"s_cmp_lg_u32 s{sCNT}, {P['sst'] + 1}")
    A("s_cbranch_scc1 L_nss")
    A("s_waitcnt lgkmcnt(0)")
    for k in range(12): A(f"v_writelane_b32 v255, s{76+2*k}, {k}")
    LBL("L_nss")
cstamp()
if P["sst0"]: sstamp()
seq(G00, 0, reads(0, 1, 1, D2), False, pre=LATE)
seq(G00, 1, reads(1, 0, 0, D3 if P["dpp"] & 2 else 0), True, extra={28: [f"v_sub_u32 v{vW3}, v{vW3C}, v{vW3}"]}, delay=P["dly0"], vm0=bool(P["lateack"]))
A(f"s_bitcmp1_b32 s{sCNT}, 0")
seq(G11, 0, reads(1, 1, 1), False, "L_skipa")
c0l = ["x"] if (P["cv"] and P["c0t"]) else None
seq(G11, 1, reads(2, 0, 0), True, "L_skipb", c0tail=c0l)
if not c0l:
    A(f"s_cmp_eq_u32 s{sCNT}, 0")
    A("s_cbranch_scc1 L_cfirst")
LBL("L_gs")
pend_gs = list(pending)
seq(GS, 0, reads(2, 1, 1, P["gsd"] if P["dpp"] else 0), False)
A(f"s_add_u32 s{sCNT}, s{sCNT}, 1")
A(f"s_cmp_lt_u32 s{sCNT}, 8")
seq(GS, 1, (reads(0, 0, 0, 2)[0], []) if P["dpp"] & 8 else reads(0, 0, 0, D2 if P["dpp"] & 4 else 0), True, delay=P["dly2"] + (2 if P["dpp"] & 8 else 0))
pend_loop = list(pending)
assert pend_loop == loop_entry
A("s_cbranch_scc1 L_cloop")
if not P["peel"]:
    A(f"s_cmp_eq_u32 s{sCNT}, 9")
    A("s_cbranch_scc1 L_cdone")
    cstamp(8)
    for k in (5, 6): A(f"v_mov_b32 v{k}, v{k-4}")
    if pend_loop != pend_gs: A("s_waitcnt lgkmcnt(0)")
    A("s_branch L_gs")
else:
    A("s_branch L_cdone")
LBL("L_cfirst")
if c0l:
    for k, t in enumerate(c0l[1:]):
        A(t)
        if k % 2 == 0: A(f"ds_write_b128 v{vCL}, v[{CV[k//2]}:{CV[k//2]+3}] offset:{(k//2)*XB}")
elif P["cv"]:
    for j in range(4): A(f"ds_write_b128 v{vCL}, v[{CV[j]}:{CV[j]+3}] offset:{j*XB}")
if not P["pubst"]: stamp(3)
for k in (1, 2):
    A(f"v_add_u32 v{k}, {2*SLOT}, v{k}")
    A(f"v_subrev_u32 v{k+2}, {SLOT}, v{k+2}")
    A(f"v_subrev_u32 v{k+4}, {SLOT}, v{k+4}")
A(f"v_add_u32 v{vW3}, {tile(0,3)}, v2")
A(f"s_mov_b32 s{sCNT}, 1")
if P["sst0"]: A("s_waitcnt lgkmcnt(0)"); A("s_memtime s[94:95]")
if not c0l and (pend_loop != pend_gs or P["cv"]): A("s_waitcnt lgkmcnt(0)")
assert pend_gs[:len(pend_loop)] == pend_loop
A("s_branch L_cloop")

cur[0] = "cepi"
LBL("L_cdone")
def yreg(idx): return ((SETS[0] if P["pp"] else G11) if idx % 2 == 0 else GS) + 4 * (idx // 2)
S1, S2 = 16, 20
dppl = [f"v_mov_b32_dpp v{T+i}, v{G00+i} row_shl:1 row_mask:0xf bank_mask:0xf bound_ctrl:0" for i in range(4)]
if P["peel"]:
    cstamp(8)
    pending = pend_loop
    CM("last stage, with the G00/G11 part of the output transform in its shadow: G11 <- y0, G00[j] <- G11[j] + G00[j+1]")
    exA = {20 + i: [dppl[i]] for i in range(4)}
    exA[19] = [f"v_mov_b32 v12, {MISC}", "ds_read_b64 v[238:239], v12"]
    Y0 = SETS[0]
    ex = []
    if P["pp"]:
        def op2(d, x, y):
            return [pks("add", d, x, y), pks("add", d+2, x+2, y+2)] if P["pp"] == 2 else [f"v_add_f32 v{d+i}, v{x+i}, v{y+i}" for i in range(4)]
        for j in range(8):
            ex += op2(Y0+4*j, G00+4*j, G11+4*j)
        for j in range(8):
            ex += op2(G11+4*j, G11+4*j, G00+4*(j+1) if j < 7 else T)
    if LATE:
        exA = {(k + 8 if k >= 20 else k): v for k, v in exA.items()}
        for k, t in enumerate(LATE): exA[20 + k] = [t]
    seq(GS, 0, reads(0, 1, 1, 0, True), False, extra=exA)
    pending = pending + [("N", 0)]
    nh = min(len(ex), P["ppn"])
    seq(GS, 1, ([], []), False, extra={1 + (k * 31) // max(nh, 1): [] for k in range(nh)} and
        {i: [ex[k] for k in range(nh) if 1 + (k * 31) // nh == i] for i in range(32)} if nh else None)
    if P["pp"] == 1 and nh % 4 == 0 and nh >= 32:
        for j in range((nh - 32) // 4, 8):
            for h in (0, 2): pk("add", G11+4*j+h, G11+4*j+h, (G00+4*(j+1) if j < 7 else T) + h)
    else:
        for t in ex[nh:]: A(t)
    A("s_nop 7")
else:
    A(f"v_mov_b32 v12, {MISC}")
    A("ds_read_b64 v[238:239], v12")
    for t in dppl: A(t)
    A("s_nop 2")
cstamp(9)
stamp(2)
if plain: A("s_memtime s[94:95]")
if P["prio"]: A("s_setprio 0")
for j in range(8):
    for h in (0, 2):
        pk("add", GS+4*j+h, GS+4*j+h, G11+4*j+h, neg=not P["dif"])
for j in range(8):
    for h in (0, 2):
        if P["pp"]: continue
        nx = G00+4*(j+1)+h if j < 7 else T+h
        pk("add", GS+4*j+h, GS+4*j+h, nx, neg=not P["dif"])
        pk("add", G11+4*j+h, G11+4*j+h, G00+4*j+h)
for h in (0, 2):
    pk("add", S1+h, yreg(0)+h, yreg(1)+h)
    pk("mul", S2+h, yreg(0)+h, yreg(0)+h)
for idx in range(1, 16):
    if idx == 3: A(f"s_mov_b64 exec, s[{sMID}:{sMID+1}]")
    if idx == 10:
        A("s_mov_b32 exec_lo, 0x7fff7fff")
        A("s_mov_b32 exec_hi, 0x7fff7fff")
    for h in (0, 2):
        if idx > 1: pk("add", S1+h, S1+h, yreg(idx)+h)
        pk("fma", S2+h, yreg(idx)+h, yreg(idx)+h, c=S2+h)
A("s_mov_b64 exec, -1")
A("s_nop 1")
def dadd(d, s, ctl, bm="0xf"): A(f"v_add_f32_dpp v{d}, v{s}, v{s} {ctl} row_mask:0xf bank_mask:{bm}")
if P["red"]:
    CM("reduce-scatter over the 16 lanes of a row: banks (r>>2) end up with channel r>>2")
    for b in (S1, S2):
        dadd(b+8, b, "row_ror:8"); dadd(b+9, b+1, "row_ror:8")
    for b in (S1, S2):
        dadd(b+8, b+2, "row_ror:8", "0xc"); dadd(b+9, b+3, "row_ror:8", "0xc")
    A("s_nop 0")
    dadd(236, S1+8, "row_half_mirror"); dadd(237, S2+8, "row_half_mirror")
    A("s_nop 0")
    dadd(236, S1+9, "row_half_mirror", "0xa"); dadd(237, S2+9, "row_half_mirror", "0xa")
    A("s_nop 0")
    dadd(236, 236, "quad_perm:[1,0,3,2]"); dadd(237, 237, "quad_perm:[1,0,3,2]")
    A("s_nop 0")
    dadd(236, 236, "quad_perm:[2,3,0,1]"); dadd(237, 237, "quad_perm:[2,3,0,1]")
    A("s_mov_b32 exec_lo, 0x11111111")
    A("s_mov_b32 exec_hi, 0x11111111")
else:
    for sh in (8, 4, 2, 1):
        for i in range(8): dadd(16+i, 16+i, f"row_ror:{sh}")
    A("v_mov_b32 v236, v16")
    A("v_mov_b32 v237, v20")
    for i in (1, 2, 3):
        mk = (1 << i) * 0x00010001
        A(f"s_mov_b32 exec_lo, {mk:#x}")
        A(f"s_mov_b32 exec_hi, {mk:#x}")
        A(f"v_mov_b32 v236, v{16+i}")
        A(f"v_mov_b32 v237, v{20+i}")
    A("s_mov_b32 exec_lo, 0x000f000f")
    A("s_mov_b32 exec_hi, 0x000f000f")
A("s_waitcnt lgkmcnt(0)")
A(f"buffer_store_dwordx4 v[236:239], v{vGA}, s[{sWS}:{sWS+3}], s{sGR} offen " + ("sc1" if P["pfl"] & 2 else "sc0 sc1"))
A("s_mov_b64 exec, -1")
if P["pubst"]: stamp(3)
if P["mg"]: A("s_barrier")
for idx in range(16):
    A(f"ds_write_b128 v{vYW + ((idx // 2) & 1)}, v[{yreg(idx)}:{yreg(idx)+3}] offset:{idx*256}")
if not P["mg"]:
    A("s_waitcnt lgkmcnt(0)")
    A("s_barrier")
    y_reads()
A("s_branch L_final")
if P["spoll"]: SEC["cepi"] += tail_cepi

ALG = "" if not P["algn"] else f".p2align 12\n.fill {(4096 - 0x300 + (P['algn'] - 1) * 256) // 4}, 4, 0xbf810000\n"
out = [f"""; conv stem (K=15, stride 2) as a 2-parallel fast-FIR GEMM + per-channel GroupNorm + tanh GELU, one launch.
; The bias is constant over time per channel, so it cancels exactly in (y - mean_t y).
;   y[2m] = G00[m] + G11[m],  y[2m+1] = Gs[m] + G11[m] + G00[m+1]      (23 instead of 30 tap products per output pair)
; @launch grid=(256,1,1) block=(512,1,1) lds={LDS_BYTES}
.amdgcn_target "amdgcn-amd-amdhsa--gfx950"
.text
.globl {KN}
{ALG}.p2align 8
.type {KN},@function
{KN}:"""]
wk = 0
for sec in ("entry", "cp0", "lpro", "cpro", "cloop", "lloop", "cepi", "llast", "final"):
    if P["warm"] and sec in ("cloop", "lloop", "cepi", "llast"):
        out += [f"L_warm{wk}:", f"  s_branch L_warm{wk+1}"]; wk += 1
    if sec in ("cloop", "lloop"): out.append(".p2align 6")
    out += SEC[sec]
if P["warm"]: out += [f"L_warm{wk}:", "  s_branch L_warmret"]
out.append(f""".p2align 8
.fill 1024, 4, 0xbf810000
.section .rodata,"a"
.p2align 6
.amdhsa_kernel {KN}
  .amdhsa_next_free_vgpr 256
  .amdhsa_next_free_sgpr 102
  .amdhsa_accum_offset 256
  .amdhsa_group_segment_fixed_size 0
  .amdhsa_kernarg_size 64
  .amdhsa_user_sgpr_count 2
  .amdhsa_user_sgpr_kernarg_segment_ptr 1
  .amdhsa_system_sgpr_workgroup_id_x 1
.end_amdhsa_kernel""")
print("\n".join(out))
```

```python
import sys, struct, math
P = dict(prio=2, lprio=0, dsprio=3, stamps=0, novalu=0, nodma=0, nords=0, barslot=1, rd_gap=5, rdA=19, dly0=13, dly2=13,
         touch=1, lst=-1, cst=0, pst=0, sst=-1, vsplit=2, wsplit=2, cpf=1, stf=2, dbgt=0, dpp=9, u3=1, red=1, wend=0, wend2=0, u0first=0, warm=0, pq=0, xnt=0, tnt=0, wnt=0, pnt=0, vpk=0, pubst=0, x1st=1, algn=0, fresh=1, burst1=0, early2=0, w8=1, cv=0, sst0=0, c0t=1, ct="", ctpos=1, dif=1, wq=0, sk="", lk="", pdel=0, cfirst=0, mg=0, psl=0, pfl=0, kmap=1, gsd=3, l7=0, wm0=0, wm2=1, nochk=0, v1=2, g5=1, spoll=0, lateack=1, peel=1, pp=1, ppn=48,
         pro="D0:0:4.D1:0:4.D0.N.D1.S.B.U.V02.D2:0:8.B.F.V24.D2.D3.B.G.w.r.C.D4.T2ab.T3ab.B")
for a in sys.argv[1:]:
    k, v = a.split("=")
    P[k] = v if k in ("pro", "ct", "sk", "lk") else int(v)

KN = "standalone__self_sup_conv_stem_hubert__speech_kernel"
XB = 1056
XSZ = 16 * XB + 128
WOFF = XSZ
SLOT = WOFF + 32768
SPARE = 3 * SLOT
MISC = SPARE + 8192
LDS_BYTES = MISC + 1024
X_BYTES = 2 * 16000 * 256 * 2
W_BYTES = 15 * 256 * 256 * 2
FL_OFF, WP_OFF, WS_BYTES = 0x40000, 0x80000, 0x180000
OOB = 0x40000000
SPIN = 0x4000
def tile(hh, s): return (hh * 3 + s if s < 3 else 6 + hh) * 4096

SEC = {k: [] for k in ("cp0", "entry", "lpro", "lloop", "llast", "final", "cpro", "cloop", "cepi")}
cur = ["entry"]
def A(s): SEC[cur[0]].append("  " + s)
def LBL(s): SEC[cur[0]].append(s + ":")
def CM(s): SEC[cur[0]].append("  ; " + s)
def f32(x): return "0x%08x" % struct.unpack("<I", struct.pack("<f", x))[0]

sX, sW, sO, sWS, sDBG, sGA, sBE = 4, 8, 12, 16, 20, 24, 28
sWAVE, sT, sNT, sB = 46, 47, 48, 49
sWN, sXO, sWO, sPO, sTMP, sCNT, sMASK16 = 50, 51, 52, 53, 55, 56, 57
sTA = 58
sD, sXB = 60, 61
sN0, sN1 = 62, 63
sMID = 64
sGR, sFO = 66, 67
sK = 68
sM0, sMX = 73, 74
sXW = 75
sST = 76

def srd(d, lo, nbytes):
    A(f"s_mov_b32 s{d}, s{lo}")
    A(f"s_and_b32 s{d+1}, s{lo+1}, 0xffff")
    A(f"s_mov_b32 s{d+2}, {nbytes}")
    A(f"s_mov_b32 s{d+3}, 0x20000")
def out_srd():
    A(f"s_mul_i32 s{sTMP}, s{sB}, {7993*512}")
    A(f"s_mul_i32 s{sCNT}, s{sT}, {250*512}")
    A(f"s_add_u32 s{sTMP}, s{sTMP}, s{sCNT}")
    A(f"s_add_u32 s{sO}, s40, s{sTMP}")
    A(f"s_addc_u32 s{sO+1}, s41, 0")
    A(f"s_and_b32 s{sO+1}, s{sO+1}, 0xffff")
    A(f"s_cmp_eq_u32 s{sT}, 31")
    A(f"s_mov_b32 s{sO+2}, {243*512}")
    A(f"s_cselect_b32 s{sO+2}, s{sO+2}, {250*512}")
    A(f"s_mov_b32 s{sO+3}, 0x20000")
def granule_off():
    A(f"s_lshl_b32 s{sGR}, s{sB}, 2")
    A(f"s_add_u32 s{sGR}, s{sGR}, s{sNT}")
    A(f"s_lshl_b32 s{sGR}, s{sGR}, 15")
    A(f"s_lshl_b32 s{sTMP}, s{sWAVE}, 8")
    A(f"s_add_u32 s{sGR}, s{sGR}, s{sTMP}")
plain = P["stamps"] and P["lst"] < 0 and not P["cst"] and P["sst"] < 0
def stamp(k):
    if not plain: return
    if P["pst"] and k > 0 and cur[0] not in ("cpro", "cloop", "cepi"): return
    A(f"s_memrealtime s[{sST+2*k}:{sST+2*k+1}]")
def pstamp(k):
    if P["pst"] == 1: A(f"s_memrealtime s[{sST+2*k}:{sST+2*k+1}]")
def addbf_list(d, a, b, t, force=False):
    r = []
    if P["novalu"] and not force: return r
    for i0 in (0, 2):
        if P["vpk"]:
            for i in (i0, i0 + 1):
                u = t + 4 * (i - i0)
                r += [f"v_lshlrev_b32 v{u}, 16, v{a+i}", f"v_and_b32 v{u+1}, s{sMASK16}, v{a+i}",
                      f"v_lshlrev_b32 v{u+2}, 16, v{b+i}", f"v_and_b32 v{u+3}, s{sMASK16}, v{b+i}"]
            for i in (i0, i0 + 1):
                u = t + 4 * (i - i0)
                r += [f"v_pk_add_f32 v[{u}:{u+1}], v[{u}:{u+1}], v[{u+2}:{u+3}]"]
            for i in (i0, i0 + 1):
                u = t + 4 * (i - i0)
                r += [f"v_cvt_pk_bf16_f32 v{d+i}, v{u}, v{u+1}"]
            continue
        for i in (i0, i0 + 1):
            u = t + 4 * (i - i0)
            r += [f"v_lshlrev_b32 v{u}, 16, v{a+i}", f"v_lshlrev_b32 v{u+1}, 16, v{b+i}",
                  f"v_and_b32 v{u+2}, s{sMASK16}, v{a+i}", f"v_and_b32 v{u+3}, s{sMASK16}, v{b+i}"]
        for i in (i0, i0 + 1):
            u = t + 4 * (i - i0)
            op = "v_sub_f32" if P["dif"] else "v_add_f32"
            r += [f"{op} v{u}, v{u}, v{u+1}", f"{op} v{u+2}, v{u+2}, v{u+3}"]
        for i in (i0, i0 + 1):
            u = t + 4 * (i - i0)
            r += [f"v_cvt_pk_bf16_f32 v{d+i}, v{u}, v{u+2}"]
    return r
def pks(op, d, a, b, neg=False, c=None):
    s = f"v_pk_{op}_f32 v[{d}:{d+1}], v[{a}:{a+1}], v[{b}:{b+1}]"
    if c is not None: s += f", v[{c}:{c+1}]"
    if neg: s += " neg_lo:[0,1] neg_hi:[0,1]"
    return s
def pk(*a, **k): A(pks(*a, **k))
def final_addr(base):
    b = base
    A(f"v_lshrrev_b32 v{b+4}, 3, v0")
    A(f"v_and_b32 v{b+6}, 7, v0")
    A(f"s_lshl_b32 s{sTMP}, s{sWAVE}, 5")
    A(f"v_add_u32 v{b+4}, s{sTMP}, v{b+4}")
    A(f"v_bfe_u32 v{b}, v0, 4, 1")
    A(f"v_lshl_or_b32 v{b}, v{b}, 3, v{b+6}")
    A(f"s_lshl_b32 s{sTMP}, s{sWAVE}, 1")
    A(f"s_and_b32 s{sTMP}, s{sTMP}, 7")
    A(f"v_xor_b32 v{b}, s{sTMP}, v{b}")
    A(f"v_lshlrev_b32 v{b}, 4, v{b}")
    A(f"v_lshl_add_u32 v{b}, v{b+4}, 8, v{b}")
    A(f"v_xor_b32 v{b+1}, 0x80, v{b}")
    A(f"v_xor_b32 v{b+2}, 0x10, v{b}")
    A(f"v_xor_b32 v{b+3}, 0x90, v{b}")
    A(f"v_lshlrev_b32 v{b+4}, 9, v{b+4}")
    A(f"v_lshl_add_u32 v{b+4}, v{b+6}, 4, v{b+4}")
    A(f"s_lshl_b32 s{sTMP}, s{sNT}, 7")
    A(f"v_add_u32 v{b+4}, s{sTMP}, v{b+4}")
    A(f"v_add_u32 v{b+5}, 0x2000, v{b+4}")
    A(f"v_lshlrev_b32 v{b+6}, 5, v{b+6}")
    A(f"v_add_u32 v{b+6}, {MISC+64}, v{b+6}")
FA = 244
Y = 112
def y_reads():
    for n in range(4):
        for h in range(2):
            A(f"ds_read_b128 v[{Y+8*n+4*h}:{Y+8*n+4*h+3}], v{FA + h + 2*(n >> 1)} offset:{n*2048}")

def krow(d, t):
    if not P["kmap"]:
        A(f"s_mov_b32 s{d}, s2"); return
    A(f"s_bfe_u32 s{d}, s2, 0x20001")
    A(f"s_lshl_b32 s{d}, s{d}, 5")
    A(f"s_lshr_b32 s{t}, s2, 3")
    A(f"s_add_u32 s{d}, s{d}, s{t}")
    A(f"s_lshl_b32 s{d}, s{d}, 1")
    A(f"s_and_b32 s{t}, s2, 1")
    A(f"s_add_u32 s{d}, s{d}, s{t}")
def sm_base():
    A(f"s_mul_i32 s96, s{sB}, {16000*512}")
    A(f"s_mul_i32 s97, s{sT}, {500*512}")
    A(f"s_add_u32 s96, s96, s97")
    A(f"s_lshl_b32 s97, s{sNT}, 16")
    A(f"s_add_u32 s96, s96, s97")
    A(f"s_lshl_b32 s97, s{sWAVE}, 14")
    A(f"s_add_u32 s96, s96, s97")
    A(f"s_min_u32 s96, s96, {X_BYTES - 16384}")
    A(f"s_add_u32 s96, s96, s32")
    A(f"s_addc_u32 s97, s33, 0")
def sm_list(spec):
    r = []
    for t in spec.split("+"):
        c = int(t[0])
        for h in t[1:]:
            r += [(c >> 1)*128 + (c & 1)*512 + (2*i + (h == "b"))*1024 + 60 for i in range(8)]
    return r
sm_n = [0]
def sm_emit(offs):
    for o in offs:
        A(f"s_load_dwordx2 s[{98 + 2*(sm_n[0] % 2)}:{99 + 2*(sm_n[0] % 2)}], s[96:97], {o}"); sm_n[0] += 1
stamp(0)
A("s_load_dwordx4 s[32:35], s[0:1], 0")
A("s_load_dwordx4 s[40:43], s[0:1], 40")
A("s_load_dwordx2 s[44:45], s[0:1], 56")
A("s_load_dwordx4 s[36:39], s[0:1], 24")
A("s_cmp_ge_u32 s2, 256")
A("s_cbranch_scc1 L_end")
A(f"v_readfirstlane_b32 s{sWAVE}, v0")
A("v_and_b32 v0, 63, v0")
A(f"s_and_b32 s{sT}, s2, 7")
A(f"s_lshl_b32 s{sT}, s{sT}, 3")
A(f"s_lshr_b32 s{sTMP}, s2, 5")
A(f"s_add_u32 s{sT}, s{sT}, s{sTMP}")
A(f"s_bfe_u32 s{sNT}, s2, 0x20003")
A(f"s_lshr_b32 s{sB}, s{sT}, 5")
A(f"s_and_b32 s{sT}, s{sT}, 31")
A(f"s_mov_b32 s{sMASK16}, 0xffff0000")
A(f"s_cmp_lt_u32 s{sWAVE}, 256")
A("s_cbranch_scc0 L_loader" if P["cfirst"] else "s_cbranch_scc1 L_compute")

cur[0] = "lpro"
LBL("L_loader")
vXG, vWG, vLIN, vLIN2, vU0, vFL, vZ, vTC = 1, 3, 4, 5, 6, 8, 9, 15
U0, U1, TT, FLG, NON, JUNK, GAM, VV = 16, 32, 48, 56, 64, 66, 68, 80
sTS, sTB = 24, 68
A(f"s_bfe_u32 s{sWAVE}, s{sWAVE}, 0x20006")
if P["fresh"]: A("s_memrealtime s[70:71]")
A(f"s_mul_i32 s{sXB}, s{sB}, {16000*512}")
A(f"s_mul_i32 s{sTMP}, s{sT}, {500*512}")
A(f"s_add_u32 s{sXB}, s{sXB}, s{sTMP}")
A("v_lshrrev_b32 v10, 3, v0")
A("v_and_b32 v11, 7, v0")
A("v_lshlrev_b32 v12, 4, v11")
A(f"v_lshl_add_u32 v{vXG}, v10, 11, v12")
A(f"s_lshl_b32 s{sXW}, s{sWAVE}, 16")
A(f"s_add_u32 s{sXO}, s{sXB}, s{sXW}")
A(f"s_mul_i32 s{sMX}, s{sWAVE}, {4*XB}")
A("v_bfe_u32 v13, v0, 4, 1")
A(f"s_and_b32 s{sTMP}, s{sWAVE}, 1")
A(f"s_lshl_b32 s{sTMP}, s{sTMP}, 1")
A(f"v_or_b32 v13, s{sTMP}, v13")
A("v_lshlrev_b32 v13, 5, v13")
A("v_xor_b32 v13, v13, v12")
A("v_lshl_add_u32 v13, v10, 9, v13")
A(f"s_lshl_b32 s{sTMP}, s{sNT}, 7")
A(f"s_lshl_b32 s{sM0}, s{sWAVE}, 12")
A(f"s_add_u32 s{sTMP}, s{sTMP}, s{sM0}")
A(f"v_add_u32 v{vWG}, s{sTMP}, v13")
A(f"s_lshl_b32 s{sM0}, s{sWAVE}, 10")
A(f"s_mov_b32 s{sWO}, 0")
A(f"v_mov_b32 v{vZ}, 0")
A(f"s_lshl_b32 s{sTMP}, s{sWAVE}, 4")
A(f"s_lshl_b32 s{sCNT}, s{sNT}, 6")
A(f"s_add_u32 s{sTMP}, s{sTMP}, s{sCNT}")
A(f"v_add_u32 v14, s{sTMP}, v0")
A(f"v_lshlrev_b32 v{vTC}, 10, v14")
A("s_waitcnt lgkmcnt(0)")
pstamp(1)
srd(sX, 32, X_BYTES)
srd(sW, 34, W_BYTES)
LK = sm_list(P["lk"]) if P["lk"] else []

TAPS = {("G00", 0): [0, 4, 8, 12], ("G11", 0): [2, 6, 10, 14], ("G00", 1): [1, 5, 9, 13], ("G11", 1): [3, 7, 11]}
def dw(lds, so, tap, hh):
    return [f"s_add_u32 m0, s{sM0}, {lds}",
            f"s_add_u32 s{sTMP}, s{so}, {tap*131072 + hh*16384}",
            f"buffer_load_dwordx4 v{vWG}, s[{sW}:{sW+3}], s{sTMP} offen" + (" nt" if (P["wnt"] == 2 or (P["wnt"] == 1 and cur[0] == "lpro")) else "") + " lds"]
def dma_w(slot, taps, ss=(0, 1, 2, 3), so=None):
    return [dw(slot*SLOT + WOFF + tile(hh, s), so or sWO, taps[s], hh) for hh in (0, 1) for s in ss if s < len(taps)]
def dma_wp(par, slot, spare0=False):
    r = []
    for hh in (0, 1):
        for s in range(4):
            dst = SPARE if (spare0 and hh == 0 and s == 3) else slot*SLOT + WOFF + tile(hh, s)
            r.append([f"s_add_u32 m0, s{sM0}, {dst}",
                      f"s_add_u32 s{sTMP}, s{sPO}, {WP_OFF + (par*4+s)*131072 + hh*16384}",
                      f"buffer_load_dwordx4 v{vWG}, s[{sWS}:{sWS+3}], s{sTMP} offen sc1 lds"])
    return r
def dma_x(slot, phi):
    nt_ = " nt" if (P["xnt"] == 2 or (P["xnt"] == 1 and cur[0] == "lpro")) else ""
    return [[f"s_add_u32 m0, s{sMX}, {slot*SLOT + j*XB}",
             f"s_add_u32 s{sTMP}, s{sXO}, {j*16384 + phi*512}",
             f"buffer_load_dwordx4 v{vXG}, s[{sX}:{sX+3}], s{sTMP} offen{nt_} lds"] for j in range(4)]
tl_n = [0]
def tail_g(slot, phi):
    k = tl_n[0]; tl_n[0] += 1
    return [f"s_cmp_lg_u32 s{sWAVE}, 0", f"s_cbranch_scc1 L_nt{k}",
            f"s_mov_b32 m0, {slot*SLOT + 16*XB}",
            f"s_add_u32 s{sTMP}, s{sXO}, {(512 + phi)*512}",
            "s_mov_b64 exec, 0xff",
            f"buffer_load_dwordx4 v{vXG}, s[{sX}:{sX+3}], s{sTMP} offen lds",
            "s_mov_b64 exec, -1", f"L_nt{k}:"]
def touch_g(dd, par, half="ab", const=False):
    if const:
        r = [f"s_add_u32 s{sTMP}, s{sXB}, {dd*128 + par*512}"]
    else:
        r = [f"s_cmp_lt_u32 s{sD}, {4 - dd}", f"s_cselect_b32 s{sCNT}, s{sXB}, {OOB}",
             f"s_lshl_b32 s{sTMP}, s{sD}, 7", f"s_add_u32 s{sTMP}, s{sTMP}, s{sCNT}", f"s_add_u32 s{sTMP}, s{sTMP}, {dd*128 + par*512}"]
    r.append(f"s_mov_b64 exec, {dict(ab=0xffff, a=0x5555, b=0xaaaa)[half]:#x}")
    r += [f"buffer_load_dword v{JUNK}, v{vTC}, s[{sX}:{sX+3}], s{sTMP} offen" + (" nt" if P["tnt"] else ""), "s_mov_b64 exec, -1"]
    return r
def emit_groups(gs):
    if P["nodma"]: return
    for g in gs:
        for s in g: A(s)
def mix(valu, gs):
    if P["nodma"]: gs = []
    n = len(gs)
    if not valu:
        emit_groups(gs); return
    pos = [(k * len(valu)) // n for k in range(n)] if n else []
    gi = 0
    for i, v in enumerate(valu):
        while gi < n and pos[gi] == i:
            for s in gs[gi]: A(s)
            gi += 1
        A(v)
def rd_u0(): return [f"ds_read_b128 v[{U0+4*j}:{U0+4*j+3}], v{vU0} offset:{j*XB}" for j in range(4)]
def rd_u1(lin, off): return [f"ds_read_b128 v[{U1+4*j}:{U1+4*j+3}], v{lin} offset:{off + j*XB}" for j in range(4)]
def wr_v(lin, off): return [f"ds_write_b128 v{lin}, v[{VV+4*j}:{VV+4*j+3}] offset:{off + j*XB}" for j in range(4)]
def vadd(js):
    r = []
    for j in js: r += addbf_list(VV+4*j, U1+4*j, U0+4*j, TT)
    return r
def hi(lst):
    if P["dsprio"]: A(f"s_setprio {P['dsprio']}")
    for d in lst: A(d)
    if P["dsprio"]: A(f"s_setprio {P['lprio']}")
def lsetup():
    A("v_lshlrev_b32 v13, 4, v0")
    A(f"v_add_u32 v{vLIN}, s{sMX}, v13")
    A(f"v_add_u32 v{vLIN2}, {2*SLOT}, v{vLIN}")
    A("v_cmp_eq_u32 vcc, 7, v10")
    A(f"v_add_u32 v{vU0}, 128, v{vLIN}")
    A(f"v_add_u32 v12, 160, v{vLIN}")
    A(f"v_cndmask_b32 v{vU0}, v{vU0}, v12, vcc")
    A(f"v_lshlrev_b32 v{vFL}, 3, v0")
    srd(sWS, 44, WS_BYTES)
    out_srd()
    granule_off()
    A(f"s_mov_b32 s{sWN}, 32768")
    A(f"s_mov_b32 s{sD}, 0")
    A(f"s_mov_b32 s{sPO}, 0")
    A(f"s_lshl_b32 s{sFO}, s{sWAVE}, 9")
    A(f"s_add_u32 s{sFO}, s{sFO}, {FL_OFF}")
    if P["lprio"]: A(f"s_setprio {P['lprio']}")
STG = {0: None, 1: None, 2: None, 3: None, 4: None}
w_ = dma_w(0, TAPS[("G00", 0)]); x_ = dma_x(0, 0)
STG[0] = [tail_g(0, 0) + x_[0]] + x_[1:2] + w_[:4] + x_[2:] + w_[4:]
if P["x1st"]: STG[0] = [tail_g(0, 0) + x_[0]] + x_[1:] + w_
STG[1] = dma_x(1, 2) + dma_w(1, TAPS[("G11", 0)])
x_ = dma_x(2, 1)
STG[2] = [tail_g(2, 1) + x_[0]] + x_[1:] + dma_w(2, TAPS[("G00", 1)])
STG[3] = dma_x(0, 3) + dma_w(0, TAPS[("G11", 1)]) + dma_w(0, TAPS[("G11", 0)], ss=(3,), so=sWN)
STG[4] = dma_wp(0, 1) + [dw(SPARE + hh*4096, sWN, TAPS[("G00", 0)][3], hh) for hh in (0, 1)]
qdone = []; issued = []; period = 0; seen = {k: 0 for k in STG}; mixv = []; pendg = []
def flush():
    global mixv, pendg
    mix(mixv, [g for _, g in pendg])
    if not P["nodma"]: issued.extend(k for k, _ in pendg)
    mixv = []; pendg = []
def wait_for(keys, extra=""):
    flush()
    last = max(i for i, k in enumerate(issued) if k in keys)
    A(f"s_waitcnt vmcnt({len(issued) - 1 - last}){extra}")
def flag_load(so): A(f"buffer_load_dwordx2 v[{FLG}:{FLG+1}], v{vFL}, s[{sWS}:{sWS+3}], {so} offen sc0 sc1")
def check_flags(name, so):
    A(f"s_mov_b32 s{sCNT}, {SPIN}")
    LBL(name)
    A(f"v_cmp_eq_u64 vcc, s[{sN0}:{sN1}], v[{FLG}:{FLG+1}]")
    A("s_cmp_eq_u64 vcc, -1")
    A(f"s_cbranch_scc1 {name}_ok")
    A(f"s_sub_u32 s{sCNT}, s{sCNT}, 1")
    A(f"s_cbranch_scc1 {name}_ok")
    flag_load(so)
    A("s_waitcnt vmcnt(0)")
    A(f"s_branch {name}")
    LBL(name + "_ok")
def nonce_load(): A(f"buffer_load_dwordx2 v[{NON}:{NON+1}], v{vZ}, s[{sDBG}:{sDBG+3}], 0 offen sc0 sc1")
if P["nodma"]: issued.extend([0, 1, 2, 3, 4])
for tok in P["pro"].split("."):
    if tok[0] == "D":
        f = tok[1:].split(":"); st = int(f[0]); gs = STG[st]
        lo, hi_ = (int(f[1]), int(f[2])) if len(f) > 1 else (seen[st], len(gs))
        assert lo == seen[st]; seen[st] = min(hi_, len(gs))
        assert st < 3 or period >= st - 1
        pendg += [(st, g) for g in gs[lo:hi_]]
        continue
    if tok[0] == "Q":
        if not qdone:
            flush(); qdone.append(1)
            A("v_and_b32 v14, 7, v0")
            A("v_lshlrev_b32 v14, 9, v14")
            A("v_bfe_u32 v2, v0, 3, 1")
            A("v_lshl_add_u32 v14, v2, 18, v14")
            A("v_bfe_u32 v2, v0, 4, 1")
            A("v_lshl_add_u32 v2, v2, 17, v14")
            A(f"s_lshr_b32 s{sTA}, s2, 6")
            A(f"s_lshl_b32 s{sTA}, s{sTA}, 5")
            A(f"s_bfe_u32 s{sTMP}, s2, 0x10005")
            A(f"s_add_u32 s{sTA}, s{sTA}, s{sTMP}")
            A(f"s_lshl_b32 s{sTA}, s{sTA}, 2")
            A(f"s_add_u32 s{sTA}, s{sTA}, s{sWAVE}")
            A(f"s_lshl_b32 s{sTA}, s{sTA}, 5")
            A(f"s_add_u32 s{sTA}, s{sTA}, s{sNT}")
            A(f"s_lshl_b32 s{sTA}, s{sTA}, 7")
        mask = sum(0xff << (8 * int(ch)) for ch in tok[1:])
        pendg.append(("t", [f"s_mov_b64 exec, {mask:#x}", f"buffer_load_dword v{JUNK}, v2, s[{sW}:{sW+3}], s{sTA} offen", "s_mov_b64 exec, -1"]))
        continue
    if tok[0] == "T":
        c = int(tok[1])
        if P["touch"]: pendg.append(("t", touch_g(c >> 1, c & 1, tok[2:], True)))
        continue
    flush()
    if tok[0] == "S":
        pstamp(2); lsetup()
    elif tok[0] == "Z":
        k = int(tok[1]); A(f"s_memrealtime s[{sST+2*k}:{sST+2*k+1}]")
    elif tok[0] == "X":
        for j in range(4):
            A(f"s_add_u32 s{sTMP}, s{sXO}, {j*16384 + 2048}")
            A(f"buffer_load_dwordx4 v[{U0+4*j}:{U0+4*j+3}], v{vXG}, s[{sX}:{sX+3}], s{sTMP} offen")
            A(f"s_add_u32 s{sTMP}, s{sXO}, {j*16384 + 1024}")
            A(f"buffer_load_dwordx4 v[{U1+4*j}:{U1+4*j+3}], v{vXG}, s[{sX}:{sX+3}], s{sTMP} offen")
            issued.extend(["x", "x"])
    elif tok[0] == "Y":
        wait_for(["x"])
    elif tok[0] == "K":
        n = int(tok[1:])
        if sm_n[0] == 0: sm_base()
        sm_emit(LK[:n]); del LK[:n]
    elif tok[0] == "N":
        srd(sDBG, 42, 256); nonce_load(); issued.append("n")
    elif tok[0] == "U":
        k4 = [i for i, k in enumerate(issued) if k == 1][3] if not P["nodma"] else len(issued) - 1
        A(f"s_waitcnt vmcnt({len(issued) - 1 - k4})")
        hi(rd_u1(vLIN, SLOT))
        A("s_waitcnt lgkmcnt(0)")
    elif tok[0] == "V":
        mixv = vadd(range(int(tok[1]), int(tok[2])))
    elif tok[0] == "F":
        assert period == (2 if P["lateack"] else 1)
        wait_for(["n"])
        A(f"s_mov_b32 s{sCNT}, {SPIN}")
        LBL("L_cn")
        A(f"v_readfirstlane_b32 s{sN0}, v{NON}")
        A(f"v_readfirstlane_b32 s{sN1}, v{NON+1}")
        if P["fresh"]:
            CM("a tag much older than this wave is re-read a few times (only matters if d_debug was not cleared)")
            A(f"s_sub_u32 s{sTMP}, s70, s{sN0}")
            A(f"s_cmp_lt_i32 s{sTMP}, 1000")
            A(f"s_cselect_b32 s{sTMP}, s{sN0}, 0")
            A(f"s_cmp_lt_u32 s{sCNT}, {SPIN - 256}")
            A(f"s_cselect_b32 s{sTMP}, s{sN0}, s{sTMP}")
            A(f"s_cmp_lg_u32 s{sTMP}, 0")
        else:
            A(f"s_cmp_lg_u32 s{sN0}, 0")
        A("s_cbranch_scc1 L_cn_ok")
        A(f"s_sub_u32 s{sCNT}, s{sCNT}, 1")
        A("s_cbranch_scc1 L_cn_ok")
        nonce_load()
        A("s_waitcnt vmcnt(0)")
        A("s_branch L_cn")
        LBL("L_cn_ok")
        krow(sTMP, sCNT)
        A(f"s_lshl_b32 s{sTMP}, s{sTMP}, 3")
        A(f"s_add_u32 s{sTMP}, s{sTMP}, {FL_OFF}")
        A(f"s_cmp_eq_u32 s{sWAVE}, 0")
        A(f"s_cselect_b32 s{sTMP}, s{sTMP}, {OOB}")
        A("s_mov_b64 exec, 1")
        A(f"buffer_store_dwordx2 v[{NON}:{NON+1}], v{vZ}, s[{sWS}:{sWS+3}], s{sTMP} offen sc0 sc1")
        A(f"v_mov_b32 v12, {MISC}")
        A(f"ds_write_b64 v12, v[{NON}:{NON+1}]")
        A("s_mov_b64 exec, -1")
        issued.append("f")
        pstamp(7)
    elif tok[0] == "G":
        A(f"s_mov_b32 s{sTA}, {FL_OFF}"); flag_load(f"s{sTA}"); issued.append("g")
    elif tok[0] == "C":
        wait_for(["g"])
        A(f"s_mov_b32 s{sTA}, {FL_OFF}")
        check_flags("L_spin0", f"s{sTA}")
    elif tok[0] == "W":
        assert period == 3
        hi(wr_v(vLIN, SLOT)[:P["wsplit"]] + rd_u0())
    elif tok[0] == "w":
        assert period == 3
        for d in wr_v(vLIN, SLOT)[:P["wsplit"]]: A(d)
    elif tok[0] == "r":
        assert period == 3
        for d in rd_u0(): A(d)
    elif tok[0] == "B":
        assert seen[period] == len(STG[period])
        if period == 0: pstamp(3)
        wait_for([period], " lgkmcnt(0)" if period >= 2 else "")
        if period == 0: pstamp(4)
        if period == 1:
            if "U" not in P["pro"].split(".") and "X" not in P["pro"].split(".") and not P["cv"]:
                for d in rd_u1(vLIN, SLOT): A(d)
            A("s_waitcnt lgkmcnt(0)")
            A(f"v_add_u32 v{vU0}, {2*SLOT}, v{vU0}")
        if period == 3:
            assert seen[4] == 10
            A("s_branch L_join")
            break
        A("s_barrier")
        if period < 2: pstamp(5 + period)
        period += 1
        CM(f"P({period-1})")
        if period == 1: pend_u0 = "X" not in P["pro"].split(".") and not P["cv"]
    if tok[0] in "FB" and period == 1 and pend_u0 and (tok[0] == "F" or P["lateack"]):
        hi(rd_u0()); pend_u0 = False
n_after_wp = len(issued) - 1 - max(i for i, k in enumerate(issued) if k == 4) + 2

cur[0] = "lloop"
lb_n = [0]
def lbar():
    k = lb_n[0]; lb_n[0] += 1
    if P["lst"] >= 0:
        A(f"s_cmp_lg_u32 s{sD}, {P['lst'] + 1}")
        A(f"s_cbranch_scc1 L_nb{k}")
        A(f"s_memtime s[{76+4*k}:{77+4*k}]")
        A("s_barrier")
        A(f"s_memtime s[{78+4*k}:{79+4*k}]")
        A(f"s_branch L_nc{k}")
        LBL(f"L_nb{k}")
        A("s_barrier")
        LBL(f"L_nc{k}")
    else:
        A("s_barrier")
nt = 1 if P["touch"] else 0
assert P["nodma"] or n_after_wp >= (0 if P['early2'] else 2) + nt, n_after_wp
assert P["nochk"] or P["vsplit"] <= P["wsplit"] <= P["vsplit"] + P["v1"] <= 4
LBL("L_lloop")
for par in (1, 0):
    npar = 1 - par
    CM(f"P(3c-1) par={par}")
    if par == 1:
        A(f"s_cmp_eq_u32 s{sD}, 3")
        A("s_cbranch_scc1 L_last")
    WV = wr_v(vLIN, SLOT)
    def endw(lst):
        if P["wq"] & 4: hi(lst)
        else:
            for d in lst: A(d)
    if P["wq"] & 1: hi(WV[:1])
    elif not P["wend"]: hi(wr_v(vLIN, SLOT)[:P["wsplit"]])
    if P["u0first"]: hi(rd_u0())
    early = [dw((SPARE if par == 1 else 2*SLOT + WOFF + tile(0, 3)) + hh*4096, sWN if par else sWO, TAPS[("G00", npar)][3], hh) for hh in (0, 1)]
    if P["early2"]: early = []
    ne = len(early)
    mix(vadd(range(P["vsplit"] + P["v1"], 4)), dma_wp(npar, 1) + early)
    if not P["u0first"]:
        for d in rd_u0(): A(d)
    if nt: emit_groups([touch_g(1, par)])
    if P["wend"] == 1: hi(wr_v(vLIN, SLOT)[:P["wsplit"]])
    if P["wend"] == 2:
        for d in wr_v(vLIN, SLOT)[:P["wsplit"]]: A(d)
    if P["wq"] & 1: endw(WV[1:2])
    A(f"s_waitcnt vmcnt({8 + ne + nt})")
    if par == 1: LBL("L_join")
    for d in rd_u1(vLIN, 0): A(d)
    A(f"s_mov_b32 s{sPO}, s{sWO}")
    if par == 1:
        A(f"s_add_u32 s{sD}, s{sD}, 1")
        A(f"s_mov_b32 s{sWO}, s{sWN}")
        A(f"s_add_u32 s{sWN}, s{sWN}, 32768")
        A(f"s_cmp_eq_u32 s{sD}, 3")
        A(f"s_cselect_b32 s{sWN}, {OOB}, s{sWN}")
        A(f"s_add_u32 s{sXO}, s{sXO}, 128")
    A("s_waitcnt lgkmcnt(0)")
    lbar()
    CM(f"P(3c) par={par}")
    if P["cv"] and par == 1:
        A(f"s_cmp_eq_u32 s{sD}, 1")
        A("s_cbranch_scc1 L_nolw")
    if P["wq"] & 2: hi(WV[2:3])
    elif not P["wend2"]: hi(wr_v(vLIN, SLOT)[P["wsplit"]:])
    if P["cv"] and par == 1: LBL("L_nolw")
    x_ = dma_x(2, npar)
    gs = [tail_g(2, npar) + x_[0]] + x_[1:] + dma_w(2, TAPS[("G00", npar)], ss=(0, 1, 2))
    mix(vadd(range(P["vsplit"])), gs)
    if P["wq"] & 2: endw(WV[3:4])
    if P["wend2"] == 1: hi(wr_v(vLIN, SLOT)[P["wsplit"]:])
    if P["wend2"] == 2:
        for d in wr_v(vLIN, SLOT)[P["wsplit"]:]: A(d)
    A(f"s_waitcnt vmcnt({10 + ne + nt}) lgkmcnt(0)")
    lbar()
    CM(f"P(3c+1) par={par}")
    gs = dma_x(0, 2 + npar) + dma_w(0, TAPS[("G11", npar)], ss=(0, 1, 2))
    if par == 0: gs += dma_w(0, TAPS[("G11", 0)], ss=(3,), so=sWN)
    if P["early2"]:
        gs += [dw((SPARE if par == 0 else 2*SLOT + WOFF + tile(0, 3)) + hh*4096, sWN if par == 0 else sWO, TAPS[("G00", par)][3], hh) for hh in (0, 1)]
    if par == 1:
        A(f"s_cmp_lg_u32 s{sD}, 1")
        A("s_cbranch_scc1 L_nf2")
        flag_load(f"s{sFO}")
        LBL("L_nf2")
    va = vadd(range(P["vsplit"], P["vsplit"] + P["v1"]))
    if P["burst1"]:
        k = len(va) * (P["burst1"] - 1) // 4
        mix(va[:k], gs)
        for t in va[k:]: A(t)
    else:
        mix(va, gs)
    A(f"s_waitcnt vmcnt({len(gs)})")
    if par == 1:
        A(f"s_cmp_lg_u32 s{sD}, 1")
        A("s_cbranch_scc1 L_spin1_ok")
        check_flags("L_spin1", f"s{sFO}")
    if par == 0 and P["wm2"]:
        A(f"s_cmp_eq_u32 s{sD}, 2")
        A("s_cbranch_scc1 L_wm0")
        LBL("L_wmret")
    lbar()
A("s_branch L_lloop")

cur[0] = "llast"
LBL("L_last")
CM("P(20)")
hi(wr_v(vLIN, SLOT)[:P["wsplit"]])
mix(vadd(range(P["vsplit"] + P["v1"], 4)), dma_wp(0, 1))
for d in rd_u0(): A(d)
srd(sGA, 36, 512)
srd(sBE, 38, 512)
A("s_waitcnt vmcnt(8)")
for d in rd_u1(vLIN, 0): A(d)
A("s_waitcnt lgkmcnt(0)")
A("s_barrier")
CM("P(21)")
gs = dma_wp(1, 2, True)
hi(wr_v(vLIN, SLOT)[P["wsplit"]:])
mix(vadd(range(2)), gs[:5])
A("s_waitcnt lgkmcnt(0)")
mix(vadd(range(2, 3)), gs[5:])
A("s_waitcnt vmcnt(8)")
A("s_barrier")
CM("P(22)")
wv = wr_v(vLIN2, 0)
if P["l7"] == 0:
    for t in vadd(range(3, 4)): A(t)
    for d in wv: A(d)
elif P["l7"] == 1:
    va = vadd(range(3, 4))
    for k in range(3):
        A(wv[k])
        for t in va[k*len(va)//3:(k+1)*len(va)//3]: A(t)
    A(wv[3])
elif P["l7"] == 2:
    for t in vadd(range(3, 4)): A(t)
    hi(wv)
A("v_and_b32 v10, 15, v0")
A(f"s_lshl_b32 s{sTMP}, s{sNT}, 2")
A(f"s_add_u32 s{sTMP}, s{sTMP}, s{sWAVE}")
A(f"s_lshl_b32 s{sTMP}, s{sTMP}, 5")
A("v_lshlrev_b32 v14, 1, v10")
A(f"buffer_load_ushort v{GAM}, v14, s[{sGA}:{sGA+3}], s{sTMP} offen")
A(f"buffer_load_ushort v{GAM+1}, v14, s[{sBE}:{sBE+3}], s{sTMP} offen")
A("s_waitcnt vmcnt(2) lgkmcnt(0)")
A("s_barrier")
A("v_lshrrev_b32 v11, 4, v0")
A("v_lshlrev_b32 v12, 4, v10")
A("v_lshl_add_u32 v12, v11, 10, v12")
A(f"s_lshl_b32 s{sTMP}, s{sWAVE}, 6")
A(f"s_add_u32 s{sTMP}, s{sTMP}, {MISC+64}")
A(f"v_lshl_add_u32 v10, v10, 2, s{sTMP}")
if P["lprio"]: A("s_setprio 0")
A(f"s_add_u32 s{sWAVE}, s{sWAVE}, 4")
final_addr(FA)
A("s_waitcnt vmcnt(0)")
A(f"v_lshlrev_b32 v{GAM}, 16, v{GAM}")
A(f"v_lshlrev_b32 v{GAM+1}, 16, v{GAM+1}")
k0 = -2.0 * math.sqrt(2.0 / math.pi) * math.log2(math.e)
k1 = k0 * 0.044715
gam3 = -((-k1) ** (1.0 / 3.0))
if P["g5"]:
    A(f"v_mul_f32 v{GAM}, {f32(gam3)}, v{GAM}")
    A(f"v_mul_f32 v{GAM+1}, {f32(gam3)}, v{GAM+1}")
if not P["peel"]: A("s_barrier")
A("s_barrier")
stamp(1)
PG = 16
A(f"s_mov_b32 s{sCNT}, {SPIN}")
if not P["mg"]: y_reads()
if P["spoll"]:
    for i in range(8):
        A(f"s_add_u32 s{84+i}, s{sGR}, {i*4096}")
    def pl(i): A(f"buffer_load_dwordx4 v[{PG+4*i}:{PG+4*i+3}], v12, s[{sWS}:{sWS+3}], s{84+i} offen sc0 sc1")
    for i in range(8): pl(i)
    for i in range(8):
        A(f"s_waitcnt vmcnt({7-i})")
        LBL(f"L_pc{i}")
        A(f"v_cmp_eq_u64 vcc, s[{sN0}:{sN1}], v[{PG+4*i+2}:{PG+4*i+3}]")
        A("s_cmp_eq_u64 vcc, -1")
        A(f"s_cbranch_scc0 L_pr{i}")
        LBL(f"L_pd{i}")
else:
    LBL("L_poll")
    for i in range(8):
        so = f"s{sGR}" if i == 0 else f"s{sTMP}"
        if i: A(f"s_add_u32 s{sTMP}, s{sGR}, {i*4096}")
        A(f"buffer_load_dwordx4 v[{PG+4*i}:{PG+4*i+3}], v12, s[{sWS}:{sWS+3}], {so} offen " + ("sc1" if P["pfl"] & 1 else "sc0 sc1"))
    A(f"s_mov_b64 s[{sTA}:{sTA+1}], -1")
    for i in range(8):
        A(f"s_waitcnt vmcnt({7-i})")
        A(f"v_cmp_eq_u64 vcc, s[{sN0}:{sN1}], v[{PG+4*i+2}:{PG+4*i+3}]")
        A(f"s_and_b64 s[{sTA}:{sTA+1}], s[{sTA}:{sTA+1}], vcc")
    A(f"s_sub_u32 s{sCNT}, s{sCNT}, 1")
    A("s_cbranch_scc1 L_poll_ok")
    A(f"s_cmp_eq_u64 s[{sTA}:{sTA+1}], -1")
    if P["psl"]:
        A("s_cbranch_scc1 L_poll_ok")
        A(f"s_sleep {P['psl']}")
        A("s_branch L_poll")
    else:
        A("s_cbranch_scc0 L_poll")
LBL("L_poll_ok")
stamp(2)
for st in (4, 2, 1):
    for i in range(st):
        pk("add", PG+4*i, PG+4*i, PG+4*(i+st))
for sw in ("v_permlane32_swap_b32", "v_permlane16_swap_b32"):
    A(f"v_mov_b32 v{PG+2}, v{PG}")
    A(f"v_mov_b32 v{PG+3}, v{PG+1}")
    A("s_nop 1")
    A(f"{sw} v{PG}, v{PG+2}")
    A(f"{sw} v{PG+1}, v{PG+3}")
    A("s_nop 1")
    pk("add", PG, PG, PG+2)
A(f"v_mul_f32 v{PG}, {f32(1.0/7993)}, v{PG}")
A(f"v_mul_f32 v{PG+1}, {f32(1.0/7993)}, v{PG+1}")
A(f"v_fma_f32 v{PG+1}, -v{PG}, v{PG}, v{PG+1}")
A(f"v_max_f32 v{PG+1}, 0, v{PG+1}")
A(f"v_add_f32 v{PG+1}, {f32(1e-5)}, v{PG+1}")
A(f"v_rsq_f32 v{PG+1}, v{PG+1}")
A("s_nop 0")
A(f"v_mul_f32 v{PG+1}, v{PG+1}, v{GAM}")
A(f"ds_write_b32 v10, v{PG+1}")
A(f"v_fma_f32 v{PG}, -v{PG}, v{PG+1}, v{GAM+1}")
A(f"ds_write_b32 v10, v{PG} offset:256")

if P["spoll"]:
    cur[0] = "cepi"
    for i in range(8):
        LBL(f"L_pr{i}")
        A(f"s_sub_u32 s{sCNT}, s{sCNT}, 1")
        A(f"s_cbranch_scc1 L_pd{i}")
        pl(i)
        for k in range(i + 1, min(i + 1 + P["spoll"] - 1, 8)): pl(k)
        A("s_waitcnt vmcnt(0)")
        A(f"s_branch L_pc{i}")
    tail_cepi = SEC["cepi"]; SEC["cepi"] = []
cur[0] = "final"
LBL("L_final")
k0 = -2.0 * math.sqrt(2.0 / math.pi) * math.log2(math.e)
k1 = k0 * 0.044715
A(f"s_mov_b32 s{sK+2}, {f32(gam3 if P['g5'] else k1)}")
A(f"s_mov_b32 s{sK+3}, {f32(gam3 if P['g5'] else k1)}")
A(f"s_mov_b32 s{sK+4}, 4096")
A(f"v_mov_b32 v56, {f32(k0/gam3 if P['g5'] else k0)}")
A(f"v_mov_b32 v57, {f32(k0/gam3 if P['g5'] else k0)}")
A("s_waitcnt lgkmcnt(0)")
A("s_barrier")
stamp(4)
CA, CC = 16, 24
A(f"ds_read_b128 v[{CA}:{CA+3}], v{FA+6}")
A(f"ds_read_b128 v[{CC}:{CC+3}], v{FA+6} offset:256")
A(f"ds_read_b128 v[{CA+4}:{CA+7}], v{FA+6} offset:16")
A(f"ds_read_b128 v[{CC+4}:{CC+7}], v{FA+6} offset:272")
Z, U = 32, 40
if P["mg"]: y_reads()
for n in range(4):
    y = Y + 8 * n
    for h in range(0, 8, 2):
        if P["mg"]:
            if h == 0: A(f"s_waitcnt lgkmcnt({6 - 2*n})")
        elif n == 0 and h in (0, 4): A(f"s_waitcnt lgkmcnt({2 if h == 0 else 0})")
        pk("fma", y+h, y+h, CA+h, c=CC+h)
    if P["g5"]:
        for h in range(0, 8, 2): pk("fma", U+h, y+h, y+h, c=56)
    else:
        for h in range(0, 8, 2): pk("mul", U+h, y+h, y+h)
        for h in range(0, 8, 2): A(f"v_pk_fma_f32 v[{U+h}:{U+h+1}], v[{U+h}:{U+h+1}], s[{sK+2}:{sK+3}], v[56:57]")
    for h in range(0, 8, 2): pk("mul", U+h, U+h, y+h)
    for h in range(8): A(f"v_exp_f32 v{U+h}, v{U+h}")
    for h in range(0, 8, 2):
        if P["g5"]: A(f"v_pk_fma_f32 v[{U+h}:{U+h+1}], v[{U+h}:{U+h+1}], s[{sK+2}:{sK+3}], s[{sK+2}:{sK+3}]")
        else: A(f"v_pk_add_f32 v[{U+h}:{U+h+1}], v[{U+h}:{U+h+1}], 1.0 op_sel_hi:[1,0]")
    for h in range(8): A(f"v_rcp_f32 v{U+h}, v{U+h}")
    for h in range(0, 8, 2): pk("mul", y+h, y+h, U+h)
    o = Z + 4 * (n & 1)
    for h in range(4): A(f"v_cvt_pk_bf16_f32 v{o+h}, v{y+2*h}, v{y+2*h+1}")
    A(f"buffer_store_dwordx4 v[{o}:{o+3}], v{FA+4 if n < 2 else FA+5}, s[{sO}:{sO+3}], {'0' if n % 2 == 0 else 's'+str(sK+4)} offen" + ["", " nt", " sc1", " sc0 sc1", " sc1 nt"][P["stf"]])
if P["stamps"]:
    stamp(5)
    A("s_waitcnt vmcnt(0)")
    stamp(6)
    A("s_waitcnt lgkmcnt(0)")
    A(f"s_mov_b32 s{sWS+2}, 0x1000000")
    A(f"s_lshl_b32 s{sTMP}, s2, 3")
    A(f"s_add_u32 s{sTMP}, s{sTMP}, s{sWAVE}")
    A(f"s_lshl_b32 s{sTMP}, s{sTMP}, 5")
    A(f"s_add_u32 s{sTMP}, s{sTMP}, 0x200000")
    A("v_mov_b32 v1, 0")
    if plain and not P["pst"]: A("s_sub_u32 s90, s94, s92")
    for k in range(8): A(f"v_mov_b32 v{2+k}, s{sST+(k if P['cst'] else 2*k)}")
    A("s_mov_b64 exec, 1")
    if P["sst"] >= 0:
        for k in range(12): A(f"v_mov_b32 v{2+k}, v{MS+k}") if False else None
    if P["lst"] >= 0 or P["cst"] or P["sst"] >= 0:
        if P["sst"] >= 0:
            for k in range(12): A(f"v_readlane_b32 s{76+k}, v255, {k}")
            A("s_nop 1")
            for k in range(12): A(f"v_mov_b32 v{2+k}, s{76+k}")
        else:
            for k in range(4): A(f"v_mov_b32 v{10+k}, s{sST+8+k if P['cst'] else sST+16+2*k}")
        A(f"s_add_u32 s{sCNT}, s{sTMP}, 0x100000")
        A(f"buffer_store_dwordx4 v[10:13], v1, s[{sWS}:{sWS+3}], s{sCNT} offen")
    A(f"buffer_store_dwordx4 v[2:5], v1, s[{sWS}:{sWS+3}], s{sTMP} offen")
    A(f"buffer_store_dwordx4 v[6:9], v1, s[{sWS}:{sWS+3}], s{sTMP} offen offset:16")
if P["dbgt"]:
    A(f"s_cmp_lg_u32 s{sWAVE}, 0")
    A("s_cbranch_scc1 L_end")
    A("s_cmp_eq_u32 s2, 0")
    A(f"s_cselect_b32 s{sTMP}, 8, 36")
    A("s_cbranch_scc1 L_dd")
    A("s_cmp_lg_u32 s2, 77")
    A("s_cbranch_scc1 L_end")
    LBL("L_dd")
    for k in range(1, 7): A(f"v_subrev_u32 v{2+k}, v2, v{2+k}")
    A(f"buffer_store_dwordx4 v[2:5], v1, s[{sDBG}:{sDBG+3}], s{sTMP} offen")
    A(f"buffer_store_dwordx3 v[6:8], v1, s[{sDBG}:{sDBG+3}], s{sTMP} offen offset:16")
LBL("L_end")
A("s_endpgm")

cur[0] = "cp0" if P["cfirst"] else "cpro"
if not P["cfirst"]: LBL("L_compute")
G00, G11, GS = 16, 48, 80
SETS = [112, 172]
def vXR(role): return 1 + 2 * role
def vWR(role): return 2 + 2 * role
vW3, vW3C, vGA, vYW = 7, 8, 9, 10
T = 232
CWA, CWB = 112, 116
TP = 160 if P["cv"] else T
CU0, CU1, vCX, vCL = 128, 144, 168, 251
CV = [232, 236, 240, 12]
A(f"s_lshr_b32 s{sWAVE}, s{sWAVE}, 6")
A(f"s_memrealtime s[{sN0}:{sN1}]")
A(f"v_lshrrev_b32 v{TP}, 5, v0")
A(f"s_lshl_b32 s{sTMP}, s{sWAVE}, 1")
A(f"v_add_u32 v{TP}, s{sTMP}, v{TP}")
A(f"v_and_b32 v{TP+1}, 31, v0")
A(f"v_lshlrev_b32 v{TP+1}, 4, v{TP+1}")
krow(sTMP, sCNT)
A(f"s_lshl_b32 s{sTMP}, s{sTMP}, 9")
A(f"v_add_u32 v{TP+1}, s{sTMP}, v{TP+1}")
A(f"v_lshl_add_u32 v{TP+2}, v{TP}, 17, v{TP+1}")
A(f"v_and_b32 v{TP}, 3, v{TP}")
A(f"v_lshl_add_u32 v{TP+1}, v{TP}, 19, v{TP+1}")
A(f"s_lshr_b32 s{sWO}, s{sWAVE}, 1")
A(f"s_lshl_b32 s{sWO}, s{sWO}, 17")
A(f"s_add_u32 s{sWN}, s{sWO}, {2*131072}")
if P["cv"]:
    A(f"v_lshrrev_b32 v{vCX}, 3, v0")
    A(f"v_and_b32 v{vCX+1}, 7, v0")
    A(f"v_lshlrev_b32 v{vCX+1}, 4, v{vCX+1}")
    A(f"v_lshl_add_u32 v{vCX}, v{vCX}, 11, v{vCX+1}")
    A(f"s_mul_i32 s{sXB}, s{sB}, {16000*512}")
    A(f"s_mul_i32 s{sTMP}, s{sT}, {500*512}")
    A(f"s_add_u32 s{sXB}, s{sXB}, s{sTMP}")
    A(f"s_lshl_b32 s{sTMP}, s{sWAVE}, 16")
    A(f"s_add_u32 s{sXB}, s{sXB}, s{sTMP}")
A("s_waitcnt lgkmcnt(0)")
srd(sW, 34, W_BYTES)
if P["pq"]:
    A(f"s_cmp_eq_u32 s{sWAVE}, 0")
    A(f"s_cselect_b32 s{sW+2}, s{sW+2}, 0")
def p_loads():
    A(f"buffer_load_dwordx4 v[{CWA}:{CWA+3}], v{TP+1}, s[{sW}:{sW+3}], s{sWO} offen" + (" nt" if P["pnt"] else ""))
    A(f"buffer_load_dwordx4 v[{CWB}:{CWB+3}], v{TP+1}, s[{sW}:{sW+3}], s{sWN} offen" + (" nt" if P["pnt"] else ""))
if not P["pdel"]: p_loads()
if P["pdel"] == 2:
    A("s_and_b32 s54, s2, 6")
    A("s_cmp_lg_u32 s54, 0")
    A("s_cbranch_scc1 L_pd1")
    p_loads()
    LBL("L_pd1")
def c_split():
    A("s_branch L_compute")
    cur[0] = "cpro"
    LBL("L_compute")
if P["cfirst"] == 1: c_split()
def cx_loads():
    srd(sX, 32, X_BYTES)
    for j in range(4):
        A(f"s_add_u32 s{sTMP}, s{sXB}, {j*16384 + 2048}")
        A(f"buffer_load_dwordx4 v[{CU0+4*j}:{CU0+4*j+3}], v{vCX}, s[{sX}:{sX+3}], s{sTMP} offen")
        A(f"s_add_u32 s{sTMP}, s{sXB}, {j*16384 + 1024}")
        A(f"buffer_load_dwordx4 v[{CU1+4*j}:{CU1+4*j+3}], v{vCX}, s[{sX}:{sX+3}], s{sTMP} offen")
if P["cv"] == 1: cx_loads()
SK = sm_list(P["sk"]) if P["sk"] else []
if SK: sm_base(); sm_emit(SK[:7]); del SK[:7]
srd(sDBG, 42, 256)
A(f"s_or_b32 s{sTMP}, s2, s{sWAVE}")
A(f"s_cmp_lg_u32 s{sTMP}, 0")
A("s_cbranch_scc1 L_nononce")
A(f"s_or_b32 s{sN0}, s{sN0}, 1")
A(f"v_mov_b32 v{TP+3}, 0")
A(f"v_mov_b32 v{TP+6}, s{sN0}")
A(f"v_mov_b32 v{TP+7}, s{sN1}")
A("s_mov_b64 exec, 1")
A(f"buffer_store_dwordx2 v[{TP+6}:{TP+7}], v{TP+3}, s[{sDBG}:{sDBG+3}], 0 offen sc0 sc1")
A("s_mov_b64 exec, -1")
LBL("L_nononce")
if P["cfirst"] == 2: c_split()
if P["cpf"]:
    A(f"s_cmp_lg_u32 s{sWAVE}, 1")
    A("s_cbranch_scc1 L_nocpf")
    A("s_getpc_b64 s[74:75]")
    LBL("L_pc")
    A(f"s_lshr_b32 s{sTMP}, s2, 3")
    A(f"s_lshl_b32 s{sTMP}, s{sTMP}, 9")
    A(f"s_add_u32 s74, s74, s{sTMP}")
    A("s_addc_u32 s75, s75, 0")
    A(f"s_sub_u32 s74, s74, L_pc-{KN}")
    A("s_subb_u32 s75, s75, 0")
    A(f"v_lshlrev_b32 v{TP+4}, 7, v0")
    A("s_mov_b64 exec, 15")
    A(f"global_load_dword v{TP+5}, v{TP+4}, s[74:75]")
    A("s_mov_b64 exec, -1")
    LBL("L_nocpf")
if P["warm"]:
    CM("visit one instruction in every later code page while the first loads are in flight")
    A("s_branch L_warm0")
    LBL("L_warmret")
srd(sWS, 44, WS_BYTES)
A(f"s_mov_b32 s{sPO}, {WP_OFF}")
out_srd()
A(f"s_mov_b32 s{sMID}, 0x7fff7fff")
A(f"s_cselect_b32 s{sMID}, s{sMID}, -1")
A(f"s_mov_b32 s{sMID+1}, s{sMID}")
granule_off()
A(f"s_lshl_b32 s{sTMP}, s{sT}, 10")
A(f"s_add_u32 s{sGR}, s{sGR}, s{sTMP}")
R, G_, X1, X2 = 120, 121, 122, 124
A(f"v_and_b32 v{R}, 15, v0")
A(f"v_lshrrev_b32 v{G_}, 4, v0")
A(f"v_mul_u32_u24 v{X1}, {XB}, v{R}")
A(f"v_lshl_add_u32 v{vXR(0)}, v{G_}, 4, v{X1}")
A(f"v_bfe_u32 v{X2}, v0, 2, 2")
A(f"v_lshl_add_u32 v{X1}, v{G_}, 3, v{X2}")
A(f"v_lshlrev_b32 v{X1}, 7, v{X1}")
A(f"v_lshrrev_b32 v{X2}, 1, v{X2}")
A(f"v_and_b32 v{X2+1}, 1, v{G_}")
A(f"v_lshl_or_b32 v{X2}, v{X2+1}, 1, v{X2}")
A(f"v_xor_b32 v{X2}, s{sWAVE}, v{X2}")
A(f"v_lshl_add_u32 v{X1}, v{X2}, 5, v{X1}")
A(f"v_and_b32 v{X2}, 3, v0")
A(f"v_lshl_add_u32 v{X1}, v{X2}, 3, v{X1}")
A(f"v_add_u32 v{vWR(0)}, {WOFF}, v{X1}")
A(f"v_add_u32 v{vW3}, {WOFF + tile(0,3)}, v{X1}")
A(f"v_lshlrev_b32 v{vW3C}, 1, v{X1}")
A(f"v_add_u32 v{vW3C}, {2*SLOT + WOFF + tile(0,3) + SPARE}, v{vW3C}")
for k in (1, 2):
    A(f"v_add_u32 v{k+2}, {SLOT}, v{k}")
    A(f"v_add_u32 v{k+4}, {2*SLOT}, v{k}")
if P["red"]:
    CM("after the reduce-scatter lane r of group g holds channel 4g + (r>>2)")
    A(f"v_lshrrev_b32 v{X1}, 2, v{R}")
    A(f"v_lshl_add_u32 v{vGA}, v{G_}, 2, v{X1}")
else:
    A(f"v_lshl_add_u32 v{vGA}, v{G_}, 2, v{R}")
A(f"v_lshlrev_b32 v{vGA}, 4, v{vGA}")
A(f"s_lshl_b32 s{sTMP}, s{sWAVE}, 2")
A(f"v_add_u32 v{X1}, s{sTMP}, v{G_}")
A(f"v_lshrrev_b32 v{X2}, 1, v{X1}")
A(f"v_and_b32 v{X1}, 1, v{X1}")
A(f"v_lshl_or_b32 v{X1}, v{X1}, 3, v{X2}")
A(f"v_and_b32 v{X2}, 7, v{R}")
A(f"v_xor_b32 v{X1}, v{X1}, v{X2}")
A(f"v_lshlrev_b32 v{X1}, 4, v{X1}")
A(f"v_lshl_add_u32 v{vYW}, v{R}, 12, v{X1}")
A(f"v_xor_b32 v{vYW+1}, 0x80, v{vYW}")
final_addr(FA)
if P["wm0"]:
    A("s_branch " + ("L_wa0" if P["wm0"] & 1 else "L_wa1"))
    LBL("L_waret")
for i in range(0, 96, 2):
    A(f"v_pk_mov_b32 v[{16+i}:{17+i}], 0, 0")
if P["cv"]:
    A(f"s_mul_i32 s{sTMP}, s{sWAVE}, {4*XB}")
    A(f"s_add_u32 s{sTMP}, s{sTMP}, {SLOT}")
    A(f"v_lshl_add_u32 v{vCL}, v0, 4, s{sTMP}")
if P["pdel"] == 1: p_loads()
if P["pdel"] == 2:
    A("s_cmp_eq_u32 s54, 0")
    A("s_cbranch_scc1 L_pd2")
    p_loads()
    LBL("L_pd2")
sm_emit(SK[:9]); del SK[:9]
if P["cv"] == 2: cx_loads()
A(f"s_waitcnt vmcnt({8 if P['cv'] else 0})")
for t in addbf_list(CWA, CWA, CWB, 224, True): A(t)
A(f"buffer_store_dwordx4 v[{CWA}:{CWA+3}], v{TP+2}, s[{sWS}:{sWS+3}], s{sPO} offen sc0 sc1")
if P["cv"]:
    for j in range(4):
        A(f"s_waitcnt vmcnt({1 + 2*(3-j) if P['cv'] == 2 else 1})") if (j == 0 or P["cv"] == 2) else None
        for t in addbf_list(CV[j], CU1+4*j, CU0+4*j, 224, True): A(t)
nct = 0
def c_touch():
    global nct
    if not P["ct"]: return
    if not P["cv"]:
        srd(sX, 32, X_BYTES)
    A(f"s_mul_i32 s{sXO}, s{sB}, {16000*512}")
    A(f"s_mul_i32 s{sTMP}, s{sT}, {500*512}")
    A(f"s_add_u32 s{sXO}, s{sXO}, s{sTMP}")
    A(f"s_lshl_b32 s{sTMP}, s{sWAVE}, 4")
    A(f"s_lshl_b32 s{sCNT}, s{sNT}, 6")
    A(f"s_add_u32 s{sTMP}, s{sTMP}, s{sCNT}")
    A(f"v_add_u32 v252, s{sTMP}, v0")
    A(f"v_lshlrev_b32 v252, 10, v252")
    for t in P["ct"].split("+"):
        c = int(t[0])
        A(f"s_add_u32 s{sTMP}, s{sXO}, {(c >> 1)*128 + (c & 1)*512}")
        A(f"s_mov_b64 exec, {dict(ab=0xffff, a=0x5555, b=0xaaaa)[t[1:]]:#x}")
        A(f"buffer_load_dword v253, v252, s[{sX}:{sX+3}], s{sTMP} offen")
        nct += 1
    A("s_mov_b64 exec, -1")
c_touch()
sm_emit(SK)
if P["sk"]: A("s_waitcnt lgkmcnt(0)")
if P["prio"]: A(f"s_setprio {P['prio']}")
if not P["lateack"]: A(f"s_waitcnt vmcnt({nct})")

def reads(role, hh, st, ndpp=0, last=False):
    xb = SETS[st]; wb = xb + 44
    def xr(q): return (("X", q), f"ds_read_b128 v[{xb+4*q}:{xb+4*q+3}], v{vXR(role)} offset:{(q & 7)*128 + hh*64 + (XB if q > 7 else 0)}")
    def wr(s, h):
        if role == 0 and s == 3 and not last:
            return (("W", s), f"ds_read_b64_tr_b16 v[{wb+4*s+2*h}:{wb+4*s+2*h+1}], v{vW3} offset:{hh*4096 + h*512}")
        return (("W", s), f"ds_read_b64_tr_b16 v[{wb+4*s+2*h}:{wb+4*s+2*h+1}], v{vWR(role)} offset:{tile(hh, s) + h*512}")
    if role == 1 and P["u3"]:
        r = [wr(0, 0), wr(0, 1), xr(0), wr(1, 0), wr(1, 1), xr(1), wr(2, 0), wr(2, 1)] + [xr(q) for q in range(2, 10)] + [wr(3, 0), wr(3, 1), xr(10)]
    else:
        r = [wr(0, 0), wr(0, 1), xr(0), wr(1, 0), wr(1, 1)] + [xr(q) for q in range(1, 9)] + [wr(2, 0), wr(2, 1), wr(3, 0), wr(3, 1), xr(9), xr(10)]
    dq = list(range(11 - ndpp, 11))
    r = [e for e in r if not (e[0][0] == "X" and e[0][1] in dq)]
    d = [f"v_mov_b32_dpp v{xb+4*q+i}, v{xb+4*(q-8)+i} row_shl:1 row_mask:0xf bank_mask:0xf bound_ctrl:0" for q in dq for i in range(4)]
    return r, d
def mfma_list(acc, st, split3=False):
    xb = SETS[st]; wb = xb + 44
    pairs = []
    if split3 and P["u3"]:
        pairs = [(s, j) for j in range(8) for s in ((0, 1, 2) if j % 2 == 0 else (2, 1, 0))] + [(3, j) for j in range(8)]
    else:
        for s0 in ((0,) if split3 else (0, 2)):
            for q in range(s0, s0 + 9):
                for s in (s0 + 1, s0):
                    if 0 <= q - s < 8: pairs.append((s, q - s))
        if split3: pairs += [(s, j) for s in (2, 3) for j in range(8)]
    out = []
    for s, j in pairs:
        d = f"v[{acc+4*j}:{acc+4*j+3}]"
        out.append(([("W", s), ("X", j+s)], f"v_mfma_f32_16x16x32_bf16 {d}, v[{wb+4*s}:{wb+4*s+3}], v[{xb+4*(j+s)}:{xb+4*(j+s)+3}], {d}"))
    return out
pending = []
ss_n = [0]
def sstamp():
    if P["sst"] < 0 or ss_n[0] >= 12: return
    k = ss_n[0]; ss_n[0] += 1
    A(f"s_memtime s[{76+2*k}:{77+2*k}]")
def seq(acc, st, rdd, barrier, skip_label=None, extra=None, delay=0, vm0=False, pre=(), c0tail=None):
    global pending
    rd, dpp = rdd
    pre = list(pre)
    nm = 24 if skip_label else 32
    m = mfma_list(acc, st, skip_label is not None)
    rd = [] if P["nords"] else list(rd)
    dpp = list(dpp)
    first = max(P["barslot"], delay) if barrier else 0
    if dpp:
        first = min(first, nm - len(rd) - len(dpp) - 0) if barrier else first
        first = max(first, P["barslot"]) if barrier else first
        last = first + len(rd) - 1
    else:
        last = max(min(first + len(rd) if barrier else P["rdA"], nm - P["rd_gap"]), first + len(rd) - 1) if rd else 0
    slots = [first + (k * (last - first)) // max(len(rd) - 1, 1) for k in range(len(rd))]
    dslots = [min(last + 1 + len(pre) + k, nm - 1) for k in range(len(dpp))]
    if pre:
        extra = dict(extra or {})
        for k, t in enumerate(pre): extra.setdefault(last + 1 + k, []).append(t)
    cur_ = list(pending); newer = 0; nxt = []; nd = 0
    for i, (need, ins) in enumerate(m):
        if i == 24 and skip_label:
            A(f"s_cbranch_scc1 {skip_label}")
            if c0tail:
                A(f"s_cmp_eq_u32 s{sCNT}, 0")
                A("s_cbranch_scc1 L_cfirst")
                c0tail.extend(x for _, x in m[24:])
        W_ = 8 if P["w8"] else 16
        if i % W_ == 0 or (skip_label and i == 24):
            need = [k for nd_, _ in m[i:i+W_ if not (skip_label and i == 16) else 24] for k in nd_]
            if barrier and i == 0: need = [k for nd_, _ in m[:P["barslot"]+1] for k in nd_]
            idx = max([k for k, key in enumerate(cur_) if key in need], default=-1)
            if idx >= 0:
                n = len(cur_) - 1 - idx + newer
                if n < 15: A(f"s_waitcnt lgkmcnt({n})")
                cur_ = cur_[idx+1:]
        A(ins)
        if barrier and i == P["barslot"]:
            if cur_ or vm0: A("s_waitcnt" + (" vmcnt(0)" if vm0 else "") + " lgkmcnt(0)"); cur_ = []
            sstamp()
            A("s_barrier")
            sstamp()
        while rd and slots[len(nxt)] <= i:
            key, s = rd.pop(0); A(s); nxt.append(key); newer += 1
        while nd < len(dpp) and dslots[nd] <= i:
            if nd == 0:
                k = max(nxt.index(("X", q)) for q in range(3) if ("X", q) in nxt)
                A(f"s_waitcnt lgkmcnt({min(len(nxt) - 1 - k, 15)})")
            A(dpp[nd]); nd += 1
        if extra and i in extra:
            for s in extra[i]: A(s)
    assert not rd and nd == len(dpp)
    if skip_label: LBL(skip_label)
    pending = nxt
    sstamp()
A("s_barrier")
if P["sst0"]: A("s_memtime s[98:99]")
stamp(1)
if plain: A("s_memtime s[92:93]"); A("s_waitcnt lgkmcnt(0)")
D2, D3 = (2 if P["dpp"] else 0), (3 if P["dpp"] else 0)
r0, _ = reads(0, 0, 0)
for _, s in r0: A(s)
LATE = reads(0, 0, 0, 2)[1] if P["dpp"] & 8 else []
pending = [k for k, _ in reads(0, 0, 0, D2 if P["dpp"] & 12 else 0)[0]]
loop_entry = list(pending)
A(f"s_mov_b32 s{sCNT}, 0")
if P["dpp"] & 12: A("s_waitcnt lgkmcnt(0)")
A("s_branch L_cloop")

cur[0] = "cloop"
def cstamp(idx=None):
    if not P["cst"]: return
    A("s_memtime s[100:101]")
    A("s_waitcnt lgkmcnt(0)")
    if idx is None:
        A(f"s_mov_b32 m0, s{sCNT}")
        A("s_nop 0")
        A("s_movreld_b32 s76, s100")
    else:
        A(f"s_mov_b32 s{76+idx}, s100")
LBL("L_cloop")
if P["sst"] >= 0:
    A(f"s_cmp_lg_u32 s{sCNT}, {P['sst'] + 1}")
    A("s_cbranch_scc1 L_nss")
    A("s_waitcnt lgkmcnt(0)")
    for k in range(12): A(f"v_writelane_b32 v255, s{76+2*k}, {k}")
    LBL("L_nss")
cstamp()
if P["sst0"]: sstamp()
seq(G00, 0, reads(0, 1, 1, D2), False, pre=LATE)
seq(G00, 1, reads(1, 0, 0, D3 if P["dpp"] & 2 else 0), True, extra={28: [f"v_sub_u32 v{vW3}, v{vW3C}, v{vW3}"]}, delay=P["dly0"], vm0=bool(P["lateack"]))
A(f"s_bitcmp1_b32 s{sCNT}, 0")
seq(G11, 0, reads(1, 1, 1), False, "L_skipa")
c0l = ["x"] if (P["cv"] and P["c0t"]) else None
seq(G11, 1, reads(2, 0, 0), True, "L_skipb", c0tail=c0l)
if not c0l:
    A(f"s_cmp_eq_u32 s{sCNT}, 0")
    A("s_cbranch_scc1 L_cfirst")
LBL("L_gs")
pend_gs = list(pending)
seq(GS, 0, reads(2, 1, 1, P["gsd"] if P["dpp"] else 0), False)
A(f"s_add_u32 s{sCNT}, s{sCNT}, 1")
A(f"s_cmp_lt_u32 s{sCNT}, 8")
seq(GS, 1, (reads(0, 0, 0, 2)[0], []) if P["dpp"] & 8 else reads(0, 0, 0, D2 if P["dpp"] & 4 else 0), True, delay=P["dly2"] + (2 if P["dpp"] & 8 else 0))
pend_loop = list(pending)
assert pend_loop == loop_entry
A("s_cbranch_scc1 L_cloop")
if not P["peel"]:
    A(f"s_cmp_eq_u32 s{sCNT}, 9")
    A("s_cbranch_scc1 L_cdone")
    cstamp(8)
    for k in (5, 6): A(f"v_mov_b32 v{k}, v{k-4}")
    if pend_loop != pend_gs: A("s_waitcnt lgkmcnt(0)")
    A("s_branch L_gs")
else:
    A("s_branch L_cdone")
LBL("L_cfirst")
if c0l:
    for k, t in enumerate(c0l[1:]):
        A(t)
        if k % 2 == 0: A(f"ds_write_b128 v{vCL}, v[{CV[k//2]}:{CV[k//2]+3}] offset:{(k//2)*XB}")
elif P["cv"]:
    for j in range(4): A(f"ds_write_b128 v{vCL}, v[{CV[j]}:{CV[j]+3}] offset:{j*XB}")
if not P["pubst"]: stamp(3)
for k in (1, 2):
    A(f"v_add_u32 v{k}, {2*SLOT}, v{k}")
    A(f"v_subrev_u32 v{k+2}, {SLOT}, v{k+2}")
    A(f"v_subrev_u32 v{k+4}, {SLOT}, v{k+4}")
A(f"v_add_u32 v{vW3}, {tile(0,3)}, v2")
A(f"s_mov_b32 s{sCNT}, 1")
if P["sst0"]: A("s_waitcnt lgkmcnt(0)"); A("s_memtime s[94:95]")
if not c0l and (pend_loop != pend_gs or P["cv"]): A("s_waitcnt lgkmcnt(0)")
assert pend_gs[:len(pend_loop)] == pend_loop
A("s_branch L_cloop")

cur[0] = "cepi"
LBL("L_cdone")
def yreg(idx): return ((SETS[0] if P["pp"] else G11) if idx % 2 == 0 else GS) + 4 * (idx // 2)
S1, S2 = 16, 20
dppl = [f"v_mov_b32_dpp v{T+i}, v{G00+i} row_shl:1 row_mask:0xf bank_mask:0xf bound_ctrl:0" for i in range(4)]
if P["peel"]:
    cstamp(8)
    pending = pend_loop
    CM("last stage, with the G00/G11 part of the output transform in its shadow: G11 <- y0, G00[j] <- G11[j] + G00[j+1]")
    exA = {20 + i: [dppl[i]] for i in range(4)}
    exA[19] = [f"v_mov_b32 v12, {MISC}", "ds_read_b64 v[238:239], v12"]
    Y0 = SETS[0]
    ex = []
    if P["pp"]:
        def op2(d, x, y):
            return [pks("add", d, x, y), pks("add", d+2, x+2, y+2)] if P["pp"] == 2 else [f"v_add_f32 v{d+i}, v{x+i}, v{y+i}" for i in range(4)]
        for j in range(8):
            ex += op2(Y0+4*j, G00+4*j, G11+4*j)
        for j in range(8):
            ex += op2(G11+4*j, G11+4*j, G00+4*(j+1) if j < 7 else T)
    if LATE:
        exA = {(k + 8 if k >= 20 else k): v for k, v in exA.items()}
        for k, t in enumerate(LATE): exA[20 + k] = [t]
    seq(GS, 0, reads(0, 1, 1, 0, True), False, extra=exA)
    pending = pending + [("N", 0)]
    nh = min(len(ex), P["ppn"])
    seq(GS, 1, ([], []), False, extra={1 + (k * 31) // max(nh, 1): [] for k in range(nh)} and
        {i: [ex[k] for k in range(nh) if 1 + (k * 31) // nh == i] for i in range(32)} if nh else None)
    if P["pp"] == 1 and nh % 4 == 0 and nh >= 32:
        for j in range((nh - 32) // 4, 8):
            for h in (0, 2): pk("add", G11+4*j+h, G11+4*j+h, (G00+4*(j+1) if j < 7 else T) + h)
    else:
        for t in ex[nh:]: A(t)
    A("s_nop 7")
else:
    A(f"v_mov_b32 v12, {MISC}")
    A("ds_read_b64 v[238:239], v12")
    for t in dppl: A(t)
    A("s_nop 2")
cstamp(9)
stamp(2)
if plain: A("s_memtime s[94:95]")
if P["prio"]: A("s_setprio 0")
for j in range(8):
    for h in (0, 2):
        pk("add", GS+4*j+h, GS+4*j+h, G11+4*j+h, neg=not P["dif"])
for j in range(8):
    for h in (0, 2):
        if P["pp"]: continue
        nx = G00+4*(j+1)+h if j < 7 else T+h
        pk("add", GS+4*j+h, GS+4*j+h, nx, neg=not P["dif"])
        pk("add", G11+4*j+h, G11+4*j+h, G00+4*j+h)
for h in (0, 2):
    pk("add", S1+h, yreg(0)+h, yreg(1)+h)
    pk("mul", S2+h, yreg(0)+h, yreg(0)+h)
for idx in range(1, 16):
    if idx == 3: A(f"s_mov_b64 exec, s[{sMID}:{sMID+1}]")
    if idx == 10:
        A("s_mov_b32 exec_lo, 0x7fff7fff")
        A("s_mov_b32 exec_hi, 0x7fff7fff")
    for h in (0, 2):
        if idx > 1: pk("add", S1+h, S1+h, yreg(idx)+h)
        pk("fma", S2+h, yreg(idx)+h, yreg(idx)+h, c=S2+h)
A("s_mov_b64 exec, -1")
A("s_nop 1")
def dadd(d, s, ctl, bm="0xf"): A(f"v_add_f32_dpp v{d}, v{s}, v{s} {ctl} row_mask:0xf bank_mask:{bm}")
if P["red"]:
    CM("reduce-scatter over the 16 lanes of a row: banks (r>>2) end up with channel r>>2")
    for b in (S1, S2):
        dadd(b+8, b, "row_ror:8"); dadd(b+9, b+1, "row_ror:8")
    for b in (S1, S2):
        dadd(b+8, b+2, "row_ror:8", "0xc"); dadd(b+9, b+3, "row_ror:8", "0xc")
    A("s_nop 0")
    dadd(236, S1+8, "row_half_mirror"); dadd(237, S2+8, "row_half_mirror")
    A("s_nop 0")
    dadd(236, S1+9, "row_half_mirror", "0xa"); dadd(237, S2+9, "row_half_mirror", "0xa")
    A("s_nop 0")
    dadd(236, 236, "quad_perm:[1,0,3,2]"); dadd(237, 237, "quad_perm:[1,0,3,2]")
    A("s_nop 0")
    dadd(236, 236, "quad_perm:[2,3,0,1]"); dadd(237, 237, "quad_perm:[2,3,0,1]")
    A("s_mov_b32 exec_lo, 0x11111111")
    A("s_mov_b32 exec_hi, 0x11111111")
else:
    for sh in (8, 4, 2, 1):
        for i in range(8): dadd(16+i, 16+i, f"row_ror:{sh}")
    A("v_mov_b32 v236, v16")
    A("v_mov_b32 v237, v20")
    for i in (1, 2, 3):
        mk = (1 << i) * 0x00010001
        A(f"s_mov_b32 exec_lo, {mk:#x}")
        A(f"s_mov_b32 exec_hi, {mk:#x}")
        A(f"v_mov_b32 v236, v{16+i}")
        A(f"v_mov_b32 v237, v{20+i}")
    A("s_mov_b32 exec_lo, 0x000f000f")
    A("s_mov_b32 exec_hi, 0x000f000f")
A("s_waitcnt lgkmcnt(0)")
A(f"buffer_store_dwordx4 v[236:239], v{vGA}, s[{sWS}:{sWS+3}], s{sGR} offen " + ("sc1" if P["pfl"] & 2 else "sc0 sc1"))
A("s_mov_b64 exec, -1")
if P["pubst"]: stamp(3)
if P["mg"]: A("s_barrier")
for idx in range(16):
    A(f"ds_write_b128 v{vYW + ((idx // 2) & 1)}, v[{yreg(idx)}:{yreg(idx)+3}] offset:{idx*256}")
if not P["mg"]:
    A("s_waitcnt lgkmcnt(0)")
    A("s_barrier")
    y_reads()
A("s_branch L_final")
if P["spoll"]: SEC["cepi"] += tail_cepi

ALG = "" if not P["algn"] else f".p2align 12\n.fill {(4096 - 0x300 + (P['algn'] - 1) * 256) // 4}, 4, 0xbf810000\n"
out = [f"""; conv stem (K=15, stride 2) as a 2-parallel fast-FIR GEMM + per-channel GroupNorm + tanh GELU, one launch.
; The bias is constant over time per channel, so it cancels exactly in (y - mean_t y).
;   y[2m] = G00[m] + G11[m],  y[2m+1] = Gs[m] + G11[m] + G00[m+1]      (23 instead of 30 tap products per output pair)
; @launch grid=(256,1,1) block=(512,1,1) lds={LDS_BYTES}
.amdgcn_target "amdgcn-amd-amdhsa--gfx950"
.text
.globl {KN}
{ALG}.p2align 8
.type {KN},@function
{KN}:"""]
wk = 0
for sec in ("entry", "cp0", "lpro", "cpro", "cloop", "lloop", "cepi", "llast", "final"):
    if P["warm"] and sec in ("cloop", "lloop", "cepi", "llast"):
        out += [f"L_warm{wk}:", f"  s_branch L_warm{wk+1}"]; wk += 1
    if P["wm0"] & 1 and sec == "lloop": out += ["L_wa0:", "  s_branch " + ("L_wa1" if P["wm0"] & 2 else "L_waret")]
    if P["wm2"] and sec == "cepi": out += [".p2align 6", "L_wm0:", "  s_branch L_wm1"]
    if P["wm0"] & 2 and sec == "cepi": out += ["L_wa1:", "  s_branch " + ("L_wa2" if P["wm0"] & 4 else "L_waret")]
    if P["wm2"] and sec == "llast": out += [".p2align 6", "L_wm1:", "  s_branch " + ("L_wm2" if P["wm2"] == 2 else "L_wmret")]
    if sec in ("cloop", "lloop"): out.append(".p2align 6")
    out += SEC[sec]
if P["warm"]: out += [f"L_warm{wk}:", "  s_branch L_warmret"]
if P["wm2"] == 2: out += ["L_wm2:", "  s_branch L_wmret"]
if P["wm0"] & 4: out += ["L_wa2:", "  s_branch L_waret"]
out.append(f""".p2align 8
.fill 1024, 4, 0xbf810000
.section .rodata,"a"
.p2align 6
.amdhsa_kernel {KN}
  .amdhsa_next_free_vgpr 256
  .amdhsa_next_free_sgpr 102
  .amdhsa_accum_offset 256
  .amdhsa_group_segment_fixed_size 0
  .amdhsa_kernarg_size 64
  .amdhsa_user_sgpr_count 2
  .amdhsa_user_sgpr_kernarg_segment_ptr 1
  .amdhsa_system_sgpr_workgroup_id_x 1
.end_amdhsa_kernel""")
print("\n".join(out))
```
